```python
import torch

def _softmax(x, axis=-1):
    return torch.softmax(x, dim=axis)
def _gelu(x):
    return torch.nn.functional.gelu(x, approximate="tanh")
def _silu(x):
    return torch.nn.functional.silu(x)
def _sigmoid(x):
    return torch.sigmoid(x)
def _layernorm(x, axis=-1, eps=1e-5):
    m = x.mean(dim=axis, keepdim=True)
    v = x.var(dim=axis, keepdim=True, unbiased=False)
    return (x - m) / torch.sqrt(v + eps)
def _scatter_add(tgt, idx, src, axis=0):
    return tgt.clone().index_add_(axis, idx, src)
def _segment_sum(src, seg, n):
    out = torch.zeros((n,) + src.shape[1:], dtype=src.dtype)
    return out.index_add_(0, seg, src)
def _pad(x, pw):
    flat = tuple(v for pair in reversed(pw) for v in pair)
    return torch.nn.functional.pad(x, flat)

kernel_name = 'parallel_sum__linear_attn_block__glu_gated_reglu__prompt'

def setup_inputs():

    _w = (lambda a: (lambda t: t.to(torch.bfloat16) if t.is_floating_point() else t)(torch.as_tensor(a)))
    def _A_setup():
        B, S, D = 1, 2048, 512
        return {
            "x": _w((lambda *s: torch.randn(*s, dtype=torch.bfloat16) * 0.05)(B, S, D)),
            "wqkv": _w((lambda *s: torch.randn(*s, dtype=torch.bfloat16) * 0.05)(D, 3 * D)),
            "wo": _w((lambda *s: torch.randn(*s, dtype=torch.bfloat16) * 0.05)(D, D)),
        }
    _A_in = _A_setup()

    def _B_setup():
        B, S, D, F = 1, 2048, 512, 1792
        return {
            "x": _w((lambda *s: torch.randn(*s, dtype=torch.bfloat16) * 0.05)(B, S, D)),
            "W_gate": _w((lambda *s: torch.randn(*s, dtype=torch.bfloat16) * 0.2)(D, F) * (2.0 / D) ** 0.5),
            "W_up": _w((lambda *s: torch.randn(*s, dtype=torch.bfloat16) * 0.2)(D, F) * (2.0 / D) ** 0.5),
            "W_down": _w((lambda *s: torch.randn(*s, dtype=torch.bfloat16) * 0.2)(F, D) * (1.0 / F) ** 0.5),
        }
    _B_in = _B_setup()

    return {
        "A_x": _A_in["x"],
        "A_wqkv": _A_in["wqkv"],
        "A_wo": _A_in["wo"],
        "B_x": _B_in["x"],
        "B_W_gate": _B_in["W_gate"],
        "B_W_up": _B_in["W_up"],
        "B_W_down": _B_in["W_down"],
    }

def reference(A_x, A_wqkv, A_wo, B_x, B_W_gate, B_W_up, B_W_down):
    def _A_ref(x, wqkv, wo):
        B, S, D = x.shape
        H = 32; Dh = D // H
        qkv = (lambda x, *d: x.permute(*d))((x @ wqkv).reshape(B, S, 3, H, Dh), 2, 0, 3, 1, 4)
        q, k, v = qkv[0], qkv[1], qkv[2]
        phi = lambda t: torch.where(t > 0, t + 1, torch.exp(t)) + 1e-6
        pq, pk = phi(q), phi(k)
        kv = torch.einsum("bhsd,bhse->bhde", pk, v)
        z = torch.einsum("bhsd->bhd", pk)
        num = torch.einsum("bhqd,bhde->bhqe", pq, kv)
        den = torch.einsum("bhqd,bhd->bhq", pq, z)[..., None] + 1e-6
        o = num / den
        return (lambda x, *d: x.permute(*d))(o, 0, 2, 1, 3).reshape(B, S, D) @ wo

    def _B_ref(x, W_gate, W_up, W_down):
        gate = torch.einsum("bsd,df->bsf", x, W_gate)
        up = torch.einsum("bsd,df->bsf", x, W_up)
        gate = gate * (lambda x, dt: x.to(dt))(gate > 0, gate.dtype)
        h = gate * up
        return torch.einsum("bsf,fd->bsd", h, W_down)

    x = A_x
    xn = _layernorm(x, axis=-1)
    return x + _A_ref(xn, A_wqkv, A_wo) + _B_ref(xn, B_W_gate, B_W_up, B_W_down)
```

```python
import re

TRANS = ("v_exp_f32", "v_log_f32", "v_rcp_f32", "v_rsq_f32", "v_sqrt_f32", "v_sin_f32", "v_cos_f32")

def expand_reg(tok):
    tok = tok.strip()
    neg = tok.startswith("-")
    if neg: tok = tok[1:]
    m = re.fullmatch(r"abs\((.*)\)", tok)
    if m: tok = m.group(1)
    m = re.fullmatch(r"([vas])\[(\d+):(\d+)\]", tok)
    if m:
        return [(m.group(1), i) for i in range(int(m.group(2)), int(m.group(3)) + 1)]
    m = re.fullmatch(r"([vas])(\d+)", tok)
    if m:
        return [(m.group(1), int(m.group(2)))]
    if tok == "vcc": return [("vcc", 0)]
    if tok in ("vcc_lo", "vcc_hi"): return [("vcc", 0)]
    if tok == "m0": return [("m0", 0)]
    if tok == "exec": return [("exec", 0)]
    return []

class Ins:
    __slots__ = ("text", "op", "kind", "dst", "src", "passes", "srcc", "nstates", "is_label")
    def __init__(self, text):
        self.text = text
        self.is_label = False
        t = text.split(";")[0].strip()
        self.nstates = 1
        self.passes = 0
        self.srcc = []
        self.dst = []; self.src = []
        if t.endswith(":") or t == "" or t.startswith("."):
            self.kind = "label" if t.endswith(":") else "none"
            self.op = ""
            self.nstates = 0
            self.is_label = t.endswith(":")
            return
        parts = t.split(None, 1)
        op = parts[0]
        self.op = op
        rest = parts[1] if len(parts) > 1 else ""
        ops = []
        depth = 0; cur = ""
        for ch in rest:
            if ch in "[(": depth += 1
            if ch in "])": depth -= 1
            if ch == "," and depth == 0:
                ops.append(cur.strip()); cur = ""
            else:
                cur += ch
        if cur.strip(): ops.append(cur.strip())
        mods = ""
        if ops:
            last = ops[-1].split()
            ops[-1] = last[0]
            mods = " ".join(last[1:])
        regs = [expand_reg(o) for o in ops]
        if op == "s_nop":
            self.kind = "nop"; self.nstates = int(ops[0], 0) + 1
        elif op.startswith("v_mfma"):
            self.kind = "mfma"
            self.passes = 8 if "32x32x16" in op else 4
            self.dst = regs[0]; self.src = regs[1] + regs[2]; self.srcc = regs[3]
        elif op.startswith("v_cmp"):
            self.kind = "valu"
            self.dst = regs[0]; self.src = sum(regs[1:], [])
        elif op in ("v_readlane_b32", "v_readfirstlane_b32"):
            self.kind = "valu"; self.dst = regs[0]; self.src = sum(regs[1:], [])
        elif op.startswith("v_permlane"):
            self.kind = "valu"; self.dst = regs[0] + regs[1]; self.src = regs[0] + regs[1]
        elif op.startswith("v_"):
            self.kind = "valu"
            self.dst = regs[0]; self.src = sum(regs[1:], [])
            if op.startswith(("v_fmac", "v_dot2c", "v_writelane")): self.src += regs[0]
            if op.startswith("v_cndmask") and len(ops) == 3: self.src += [("vcc", 0)]
            if op.startswith(("v_add_co", "v_sub_co", "v_addc_co")):
                self.dst = regs[0] + regs[1]; self.src = sum(regs[2:], [])
            if "dpp" in op or "row_" in mods or "quad_perm" in mods: self.kind = "dpp"
        elif op.startswith("ds_read"):
            self.kind = "ds"; self.dst = regs[0]; self.src = sum(regs[1:], [])
        elif op.startswith("ds_write"):
            self.kind = "ds"; self.src = sum(regs, [])
        elif op.startswith(("buffer_load", "global_load")):
            self.kind = "vmem"
            if "lds" in mods.split() or op.startswith("global_load_lds"):
                self.src = sum(regs, []) + [("m0", 0)]
                self.kind = "vmem_lds"
            else:
                self.dst = regs[0]; self.src = sum(regs[1:], [])
        elif op.startswith(("buffer_store", "buffer_atomic", "global_store", "global_atomic")):
            self.kind = "vmem_st"; self.src = sum(regs, [])
            wide = ("x4" in op) or ("x3" in op)
            self.srcc = regs[0] if (wide and op.startswith("buffer")) else []
        elif op.startswith(("buffer_inv", "buffer_wbl2")):
            self.kind = "vmem"
        elif op.startswith("s_"):
            self.kind = "salu"
            if op.startswith(("s_cmp", "s_cbranch", "s_branch", "s_waitcnt", "s_barrier", "s_sleep", "s_setprio", "s_endpgm")):
                self.src = sum(regs, [])
            else:
                self.dst = regs[0] if regs else []; self.src = sum(regs[1:], [])
                if "saveexec" in op: self.dst = self.dst + [("exec", 0)]
            if op.startswith(("s_cbranch", "s_branch")): self.kind = "branch"
        else:
            raise ValueError("unknown instruction: " + text)

def is_vec(r): return r[0] in ("v", "a")
def is_sreg(r): return r[0] in ("s", "vcc")

class Asm:
    def __init__(self):
        self.lines = []
        self.vm_issued = 0
        self.lg_issued = 0
        self.vm_floor = 0
        self.lg_floor = 0
        self.nlabel = 0

    def __call__(self, text):
        for t in text.strip("\n").split("\n"):
            t = t.strip()
            if not t: continue
            self.lines.append(Ins(t))
    def comment(self, c):
        self.lines.append(Ins("; " + c))
    def label(self, name):
        self.lines.append(Ins(name + ":"))
    def newlabel(self, p="L"):
        self.nlabel += 1
        return f"{p}_{self.nlabel}"

    def vm(self, text):
        self(text); self.vm_issued += 1
        return self.vm_issued - 1
    def lg(self, text):
        self(text); self.lg_issued += 1
        return self.lg_issued - 1
    def wait(self, vm=None, lg=None):
        parts = []
        if vm is not None and vm >= self.vm_floor:
            n = self.vm_issued - vm - 1
            n = min(n, 63)
            parts.append(f"vmcnt({n})")
            self.vm_floor = max(self.vm_floor, self.vm_issued - n)
        if lg is not None and lg >= self.lg_floor:
            n = self.lg_issued - lg - 1
            n = min(n, 15)
            parts.append(f"lgkmcnt({n})")
            self.lg_floor = max(self.lg_floor, self.lg_issued - n)
        if parts: self("s_waitcnt " + " ".join(parts))
    def wait_all(self, vm=True, lg=True):
        parts = []
        if vm: parts.append("vmcnt(0)"); self.vm_floor = self.vm_issued
        if lg: parts.append("lgkmcnt(0)"); self.lg_floor = self.lg_issued
        self("s_waitcnt " + " ".join(parts))

    def finalize(self):
        out = []
        hist = []
        snaps = {}; seen = set()
        def need(n, dist):
            return max(0, n - dist)
        for ins in self.lines:
            if ins.kind in ("none",):
                out.append(ins); continue
            if ins.kind == "label":
                name = ins.text.strip()[:-1]
                seen.add(name)
                hist = hist + snaps.pop(name, [])
                out.append(ins); continue
            req = 0
            vsrc = set(r for r in ins.src if is_vec(r))
            vsrcc = set(r for r in ins.srcc if is_vec(r)) if ins.kind == "mfma" else set()
            vdst = set(r for r in ins.dst if is_vec(r))
            ssrc = set(r for r in ins.src if is_sreg(r))
            for dist, p in hist:
                pd = set(r for r in p.dst if is_vec(r))
                psd = set(r for r in p.dst if is_sreg(r))
                if p.kind in ("valu", "dpp"):
                    if ins.kind == "mfma" and (pd & (vsrc | vsrcc)): req = max(req, need(2, dist))
                    if ins.kind == "dpp" and (pd & vsrc): req = max(req, need(2, dist))
                    if ins.op.startswith("v_permlane") and (pd & vsrc): req = max(req, need(2, dist))
                    if ins.op in ("v_readlane_b32", "v_readfirstlane_b32") and (pd & vsrc): req = max(req, need(1, dist))
                    if p.op.startswith(TRANS) and ins.kind in ("valu", "dpp", "mfma", "vmem_st", "ds", "vmem") and (pd & (vsrc | vsrcc)): req = max(req, need(1, dist))
                    if psd:
                        if ins.kind in ("valu", "dpp") and (psd & ssrc): req = max(req, need(2, dist))
                        if ins.kind.startswith("vmem") and (psd & ssrc): req = max(req, need(5, dist))
                        if ins.op in ("v_readlane_b32", "v_writelane_b32") and (psd & ssrc): req = max(req, need(4, dist))
                        if ins.kind in ("salu", "branch") and (psd & ssrc): req = max(req, need(1, dist))
                if p.kind == "mfma":
                    n_rw = 12 if p.passes == 8 else 8
                    n_ov = 10 if p.passes == 8 else 6
                    n_war = 7 if p.passes == 8 else 3
                    if ins.kind == "mfma":
                        if pd & vsrc: req = max(req, need(n_rw, dist))
                        if pd & vsrcc:
                            same = (p.dst == ins.srcc) and (p.passes == ins.passes)
                            if not same: req = max(req, need(n_ov, dist))
                        if (pd & vdst) and not (p.dst == ins.dst and p.passes == ins.passes):
                            req = max(req, need(n_ov, dist))
                        if (pd & vdst) and not (pd & vsrcc):
                            req = max(req, need(n_ov, dist))
                    else:
                        if pd & (vsrc | vdst): req = max(req, need(n_rw, dist))
                        pc = set(r for r in p.srcc if is_vec(r))
                        if ins.kind in ("valu", "dpp") and (pc & vdst): req = max(req, need(n_war, dist))
                if p.kind == "vmem_st" and p.srcc:
                    pc = set(p.srcc)
                    if pc & vdst: req = max(req, need(2 if ins.kind in ("valu", "dpp") else 1, dist))
                if p.kind == "salu" and ("m0", 0) in p.dst and ins.kind == "vmem_lds":
                    req = max(req, need(1, dist))
            if req > 0:
                k = req
                while k > 0:
                    n = min(k, 16)
                    nop = Ins(f"s_nop {n-1}")
                    out.append(nop)
                    hist = [[d + n, p] for d, p in hist]
                    k -= n
            out.append(ins)
            hist = [[d + ins.nstates, p] for d, p in hist if d + ins.nstates < 16]
            hist.append([0, ins])
            if ins.kind == "branch":
                tgt = ins.text.split(";")[0].split()[1]
                if tgt not in seen:
                    snaps.setdefault(tgt, []).extend([[d, p] for d, p in hist])
                if ins.op == "s_branch":
                    hist = []
        self.lines = out
    def text(self):
        return "\n".join(("    " + i.text) if not i.is_label else i.text for i in self.lines)
```

```python
import sys, os
sys.path.insert(0, os.path.dirname(os.path.abspath(__file__)))
from asmlib import Asm

KNAME = "parallel_sum__linear_attn_block__glu_gated_reglu__prompt_kernel"

WS_EPOCH = 0x0
WS_ZF    = 0x1000
WS_HF    = 0x2000
WS_STAT  = 0x10000
WS_ACC   = 0x20000
ACC_CNT_CS = 1280
ACC_CNT_KV = 1408
ACC_KV     = 2048
WS_H     = 0x100000
WS_PROF  = 0xF00000
OOB      = 0x7FFFFFF0

NW = 5
L_X   = 0x14000
L_C   = 0x20000
L_CS  = 0x24000
L_KVS = 0x14000
KVP   = 144
LDS_BYTES = 0x28000

LOOK = 6
NFR  = 8

S_X, S_WS, S_OUT, S_U1, S_U2, S_U3, S_WD, S_WO = 8, 12, 16, 20, 24, 28, 32, 36
def srd(b): return f"s[{b}:{b+3}]"
sW, sR, sCG, sM, sPAR = "s46", "s47", "s48", "s49", "s50"
sWLDS = "s51"
sU1c, sU1s8, sU1sk = "s52", "s53", "s54"
sU2c = "s55"
sU3c, sU3s16, sU3sk = "s56", "s57", "s58"
sXB = "s59"
sTAGL, sTAGH = "s60", "s61"
sACC = "s62"
sHB = "s63"
sT, sC2, sR2, sHALF = "s80", "s81", "s82", "s83"

vLANE, vL16 = "v1", "v2"
vWA = [["v3", "v4"], ["v5", "v6"]]
vSA = ["v7", "v8"]
vXA = ["v9", "v10", "v11", "v12"]
vDW1, vDW2, vDS, vDX0, vDX1 = "v13", "v14", "v15", "v16", "v17"
vMEAN, vRSTD, vR2 = "v18", "v19", "v20"
vG16 = "v21"
vTAGL, vTAGH = "v22", "v23"
ACC0 = 128

class Gen:
    def __init__(self, prof=False, stop_after=None):
        self.a = Asm()
        self.slow = []
        self.prof = prof
        self.nstamp = 0
        self.stop_after = stop_after

    def stamp(self):
        if not self.prof: return
        i = self.nstamp; self.nstamp += 1
        assert i < 9
        self.a(f"s_memtime s[{84+2*i}:{85+2*i}]")

    def poll_check(self, tok, cmp_lines, reissue):
        a = self.a
        slow = a.newlabel("Lslow"); back = a.newlabel("Lback")
        a.wait(vm=tok)
        a(cmp_lines)
        a("s_cmp_eq_u64 vcc, -1")
        a(f"s_cbranch_scc0 {slow}")
        a.label(back)
        def emit():
            loop = a.newlabel("Lspin")
            a.label(slow)
            a("s_mov_b32 s66, 0x4000")
            a.label(loop)
            a("s_sleep 2")
            a(reissue)
            a("s_waitcnt vmcnt(0)")
            a(cmp_lines)
            a("s_cmp_eq_u64 vcc, -1")
            a(f"s_cbranch_scc1 {back}")
            a("s_sub_u32 s66, s66, 1")
            a("s_cmp_lg_u32 s66, 0")
            a(f"s_cbranch_scc1 {loop}")
            a(f"s_branch {back}")
        self.slow.append(emit)

    def tagcmp(self, d):
        return (f"v_cmp_eq_u32 vcc, v{d}, {vTAGL}\n"
                f"v_cmp_eq_u32 s[64:65], v{d+1}, {vTAGH}\n"
                f"s_and_b64 vcc, vcc, s[64:65]")

    def prologue(self):
        a = self.a
        a("s_cmp_ge_u32 s2, 256")
        a("s_cbranch_scc1 Lend")
        a("s_load_dwordx16 s[64:79], s[0:1], 0")
        a("s_load_dwordx2 s[4:5], s[0:1], 72")
        self.stamp()
        a(f"v_and_b32 {vLANE}, 63, v0")
        a("v_lshrrev_b32 v32, 6, v0")
        a(f"v_lshlrev_b32 {vL16}, 4, {vLANE}")
        a(f"v_readfirstlane_b32 {sW}, v32")
        a("s_and_b32 s3, s2, 7")
        a("s_lshr_b32 s6, s2, 3")
        a("s_lshr_b32 s7, s3, 2")
        a(f"s_lshl_b32 {sR}, s7, 3")
        a("s_lshr_b32 s7, s6, 2")
        a(f"s_add_u32 {sR}, {sR}, s7")
        a("s_and_b32 s7, s3, 3")
        a(f"s_lshl_b32 {sCG}, s7, 2")
        a("s_and_b32 s7, s6, 3")
        a(f"s_add_u32 {sCG}, {sCG}, s7")
        a(f"s_lshr_b32 {sM}, {sCG}, 1")
        a(f"s_and_b32 {sPAR}, {sCG}, 1")
        a(f"s_lshl_b32 {sT}, s3, 2")
        a("s_lshr_b32 s7, s6, 3")
        a(f"s_add_u32 {sT}, {sT}, s7")
        a(f"s_and_b32 {sC2}, s6, 7")
        a(f"s_lshr_b32 {sR2}, {sT}, 1")
        a(f"s_and_b32 {sHALF}, {sT}, 1")
        a(f"s_lshl_b32 {sWLDS}, {sW}, 12")
        a(f"v_and_b32 v32, 31, {vLANE}")
        a(f"v_lshrrev_b32 v33, 5, {vLANE}")
        a(f"v_bfe_u32 v34, {vLANE}, 2, 2")
        a(f"v_and_b32 v35, 3, {vLANE}")
        a(f"v_bfe_u32 v36, {vLANE}, 4, 1")
        a("v_lshlrev_b32 v37, 5, v36")
        a("v_lshl_add_u32 v37, v35, 3, v37")
        a("v_lshrrev_b32 v38, 1, v34")
        a("v_lshlrev_b32 v38, 6, v38")
        a("v_lshl_add_u32 v39, v33, 3, v34")
        a("v_lshlrev_b32 v40, 7, v39")
        a("v_xor_b32 v41, v37, v38")
        a(f"v_add_u32 {vWA[0][0]}, v40, v41")
        a("v_or_b32 v41, 64, v37")
        a("v_xor_b32 v41, v41, v38")
        a(f"v_add_u32 {vWA[0][1]}, v40, v41")
        a(f"v_add_u32 {vWA[1][0]}, 0x10000, {vWA[0][0]}")
        a(f"v_add_u32 {vWA[1][1]}, 0x10000, {vWA[0][1]}")
        a("v_lshlrev_b32 v40, 6, v39")
        a(f"v_add_u32 {vSA[0]}, v40, v37")
        a(f"v_add_u32 {vSA[1]}, 0x10000, {vSA[0]}")
        a("v_bfe_u32 v40, v32, 1, 3")
        a("v_xor_b32 v40, v40, v33")
        a("v_lshlrev_b32 v41, 7, v32")
        a(f"s_add_u32 s7, {sWLDS}, {L_X}")
        a("v_add_u32 v41, s7, v41")
        for s in range(4):
            a(f"v_xor_b32 v42, {2*s}, v40")
            a(f"v_lshl_add_u32 {vXA[s]}, v42, 4, v41")
        a(f"v_lshrrev_b32 v40, 3, {vLANE}")
        a(f"v_and_b32 v41, 7, {vLANE}")
        a("v_lshlrev_b32 v42, 2, v36")
        a("v_xor_b32 v42, v41, v42")
        a("v_lshlrev_b32 v42, 4, v42")
        a(f"v_lshrrev_b32 v43, 4, {vLANE}")
        a("v_xor_b32 v43, v41, v43")
        a("v_lshlrev_b32 v43, 4, v43")
        a(f"v_lshl_add_u32 {vDX0}, v40, 10, v43")
        a(f"v_xor_b32 {vDX1}, 64, {vDX0}")
        a(f"v_lshlrev_b32 {vG16}, 4, v33")
        a("s_waitcnt lgkmcnt(0)")
        a("s_load_dwordx2 s[60:61], s[4:5], 0")
        def mk(b, lo, hi, size):
            a(f"s_mov_b32 s{b}, {lo}"); a(f"s_mov_b32 s{b+1}, {hi}")
            a(f"s_mov_b32 s{b+2}, {size}"); a(f"s_mov_b32 s{b+3}, 0x00020000")
        mk(S_X, "s64", "s65", 2097152)
        mk(S_WS, "s4", "s5", 0x10000000)
        mk(S_OUT, "s78", "s79", 2097152)
        mk(S_WD, "s76", "s77", 1792*1024)
        mk(S_WO, "s68", "s69", 524288)
        a(f"s_cmp_lt_u32 {sW}, 2")
        a("s_cselect_b32 s40, s72, s74")
        a("s_cselect_b32 s41, s73, s75")
        mk(S_U2, "s40", "s41", 512*3584)
        a(f"s_cmp_eq_u32 {sPAR}, 0")
        a(f"s_cselect_b32 s{S_U1}, s66, s40"); a(f"s_cselect_b32 s{S_U1+1}, s67, s41")
        a(f"s_mov_b32 s6, {512*3072}"); a(f"s_mov_b32 s7, {512*3584}")
        a(f"s_cselect_b32 s{S_U1+2}, s6, s7"); a(f"s_mov_b32 s{S_U1+3}, 0x00020000")
        a(f"s_cselect_b32 s{S_U3}, s40, s66"); a(f"s_cselect_b32 s{S_U3+1}, s41, s67")
        a(f"s_cselect_b32 s{S_U3+2}, s7, s6"); a(f"s_mov_b32 s{S_U3+3}, 0x00020000")
        a("s_movk_i32 s6, 3072"); a("s_movk_i32 s7, 3584")
        a("s_cselect_b32 s42, s6, s7")
        a("s_cselect_b32 s43, s7, s6")
        a(f"s_lshr_b32 s44, {sW}, 1")
        a("s_lshl_b32 s45, s44, 10")
        a("s_add_u32 s45, s45, 1024")
        a(f"s_lshl_b32 s7, {sM}, 7")
        a("s_add_u32 s45, s45, s7")
        a(f"s_lshl_b32 s6, {sM}, 8")
        a("s_add_u32 s6, s6, 1024")
        a(f"s_cmp_eq_u32 {sPAR}, 0")
        a("s_cselect_b32 s70, s45, s6")
        a("s_add_u32 s6, s6, 128")
        a(f"s_cmp_eq_u32 {sPAR}, 0")
        a("s_cselect_b32 s71, s7, s6")
        a(f"s_lshr_b32 s6, {sM}, 1")
        a("s_lshl_b32 s6, s6, 7")
        a("s_add_u32 s6, s6, 3072")
        a(f"s_and_b32 s45, {sM}, 1")
        a("s_lshl_b32 s45, s45, 6")
        a("s_add_u32 s6, s6, s45")
        a("s_lshl_b32 s45, s44, 6")
        a("s_add_u32 s45, s45, s7")
        a(f"s_cmp_eq_u32 {sPAR}, 0")
        a("s_cselect_b32 s72, s6, s45")
        a(f"s_and_b32 s44, {sW}, 1")
        a(f"s_lshl_b32 {sU1s8}, s42, 3")
        a(f"s_mul_i32 {sU1sk}, s42, 40")
        a("s_mul_i32 s6, s44, s42"); a("s_lshl_b32 s7, s6, 5")
        a(f"s_add_u32 {sU1c}, s70, s7")
        a(f"s_mul_i32 s7, s44, {32*3584}")
        a(f"s_add_u32 {sU2c}, s71, s7")
        a(f"s_lshl_b32 {sU3s16}, s43, 4")
        a(f"s_mul_i32 {sU3sk}, s43, 80")
        a("s_mul_i32 s6, s44, s43"); a("s_lshl_b32 s7, s6, 6")
        a(f"s_add_u32 {sU3c}, s72, s7")
        a(f"s_lshl_b32 s6, {sR}, 5"); a("s_lshl_b32 s7, s44, 4"); a("s_add_u32 s6, s6, s7")
        a("s_mul_i32 s73, s6, s42"); a("s_add_u32 s73, s73, s70")
        a("s_mul_i32 s74, s6, 3584"); a("s_add_u32 s74, s74, s71")
        a("s_mul_i32 s75, s6, s43"); a("s_add_u32 s75, s75, s72")
        a("v_mul_lo_u32 v43, v40, s42"); a(f"v_add_u32 {vDW1}, v43, v42")
        a("s_movk_i32 s7, 3584")
        a("v_mul_lo_u32 v43, v40, s7"); a(f"v_add_u32 {vDW2}, v43, v42")
        a(f"v_lshrrev_b32 v43, 2, {vLANE}"); a("v_mul_lo_u32 v43, v43, s43")
        a(f"v_lshl_add_u32 {vDS}, v35, 4, v43")
        a(f"s_lshl_b32 s6, {sR}, 7"); a(f"s_lshl_b32 s7, {sW}, 5"); a("s_add_u32 s6, s6, s7")
        a(f"s_lshl_b32 {sXB}, s6, 10")
        a(f"s_lshl_b32 {sACC}, {sCG}, 13"); a(f"s_add_u32 {sACC}, {sACC}, {WS_ACC}")
        a("v_mov_b32 v44, 0"); a("v_mov_b32 v45, 0"); a("v_mov_b32 v46, 0"); a("v_mov_b32 v47, 0")
        a("v_lshlrev_b32 v48, 4, v0")
        a(f"v_mov_b32 v49, {OOB}")
        a(f"s_cmp_eq_u32 {sR}, 0")
        a("s_cselect_b64 vcc, -1, 0")
        a("v_cndmask_b32 v48, v49, v48, vcc")
        z0 = a.vm(f"buffer_store_dwordx4 v[44:47], v48, {srd(S_WS)}, {sACC} offen sc1")
        a(f"s_add_u32 s6, {sACC}, 4096")
        z1 = a.vm(f"buffer_store_dwordx4 v[44:47], v48, {srd(S_WS)}, s6 offen sc1")
        a(f"s_lshl_b32 s6, {sR}, 7"); a(f"s_lshl_b32 s7, {sCG}, 3"); a("s_add_u32 s6, s6, s7")
        a(f"s_lshl_b32 s7, {sW}, 1"); a("s_add_u32 s76, s6, s7")
        a("s_lshl_b32 s6, s76, 10")
        st0 = a.vm(f"buffer_load_dwordx4 v[52:55], {vL16}, {srd(S_X)}, s6 offen")
        st1 = a.vm(f"buffer_load_dwordx4 v[56:59], {vL16}, {srd(S_X)}, s6 offen offset:1024")
        self.xtok = {}; self.wtok = {}
        self.dma_x(0); self.dma_w(0); self.dma_x(1); self.dma_w(1)
        a(f"s_lshl_b32 s6, {sW}, 11")
        for u, (so, vd, sr, st8) in enumerate((("s73", vDW1, S_U1, sU1s8), ("s74", vDW2, S_U2, str(8*3584)))):
            for i in range(2):
                a(f"s_add_u32 m0, s6, {L_C + u*8192 + i*1024}")
                self.ctok = a.vm(f"buffer_load_dwordx4 {vd}, {srd(sr)}, {so} offen lds")
                if i == 0: a(f"s_add_u32 {so}, {so}, {st8}")
        a(f"s_lshl_b32 s6, {sW}, 10")
        a(f"s_add_u32 m0, s6, {L_CS}")
        self.ctok = a.vm(f"buffer_load_dwordx4 {vDS}, {srd(S_U3)}, s75 offen lds")
        self.dma_x(2); self.dma_w(2); self.dma_w(3); self.dma_w(4)
        a.wait(vm=z1)
        a("s_waitcnt lgkmcnt(0)")
        a(f"s_add_u32 {sTAGL}, {sTAGL}, 1"); a(f"s_addc_u32 {sTAGH}, {sTAGH}, 0")
        a(f"v_mov_b32 {vTAGL}, {sTAGL}"); a(f"v_mov_b32 {vTAGH}, {sTAGH}")
        a(f"s_lshl_b32 s6, {sCG}, 7"); a(f"s_lshl_b32 s7, {sW}, 3"); a("s_add_u32 s6, s6, s7")
        a(f"s_add_u32 s6, s6, {WS_ZF}")
        a(f"v_cmp_eq_u32 s[64:65], 0, {vLANE}")
        a(f"s_cmp_eq_u32 {sR}, 0")
        a("s_cselect_b64 vcc, s[64:65], 0")
        a("v_mov_b32 v48, 0")
        a("v_cndmask_b32 v48, v49, v48, vcc")
        a.vm(f"buffer_store_dwordx2 v[22:23], v48, {srd(S_WS)}, s6 offen sc1")
        a.wait(vm=st1)
        self.stats()
        self.stamp()

    def wave_sum(self, v):
        a = self.a
        a(f"v_add_f32_dpp {v}, {v}, {v} quad_perm:[1,0,3,2] row_mask:0xf bank_mask:0xf")
        a(f"v_add_f32_dpp {v}, {v}, {v} quad_perm:[2,3,0,1] row_mask:0xf bank_mask:0xf")
        a(f"v_add_f32_dpp {v}, {v}, {v} row_half_mirror row_mask:0xf bank_mask:0xf")
        a(f"v_add_f32_dpp {v}, {v}, {v} row_mirror row_mask:0xf bank_mask:0xf")
        a(f"v_add_f32_dpp {v}, {v}, {v} row_bcast:15 row_mask:0xa bank_mask:0xf")
        a(f"v_add_f32_dpp {v}, {v}, {v} row_bcast:31 row_mask:0xc bank_mask:0xf")

    def stats(self):
        a = self.a
        for r in range(2):
            src = 52 + 4*r; dst = 60 + 8*r
            for k in range(4):
                a(f"v_lshlrev_b32 v{dst+2*k}, 16, v{src+k}")
                a(f"v_and_b32 v{dst+2*k+1}, 0xffff0000, v{src+k}")
        for r in range(2):
            d = 60 + 8*r; t = 76 + r
            a(f"v_add_f32 v{t}, v{d}, v{d+1}")
            for k in range(2, 8): a(f"v_add_f32 v{t}, v{t}, v{d+k}")
        self.wave_sum("v76"); self.wave_sum("v77")
        a("v_readlane_b32 s64, v76, 63"); a("v_readlane_b32 s65, v77, 63")
        a("s_mov_b32 s66, 0x3b000000")
        a("v_mov_b32 v78, s64"); a("v_mov_b32 v79, s65")
        a("v_mul_f32 v78, s66, v78"); a("v_mul_f32 v79, s66, v79")
        for r in range(2):
            d = 60 + 8*r; t = 76 + r; m = 78 + r
            for k in range(8): a(f"v_sub_f32 v{d+k}, v{d+k}, v{m}")
            a(f"v_mul_f32 v{t}, v{d}, v{d}")
            for k in range(1, 8): a(f"v_fmac_f32 v{t}, v{d+k}, v{d+k}")
        self.wave_sum("v76"); self.wave_sum("v77")
        a("v_readlane_b32 s64, v76, 63"); a("v_readlane_b32 s65, v77, 63")
        a("v_mov_b32 v80, s64"); a("v_mov_b32 v81, s65")
        a("v_mov_b32 v82, 0x3727c5ac")
        a("v_fma_f32 v80, v80, s66, v82"); a("v_fma_f32 v81, v81, s66, v82")
        a("v_rsq_f32 v80, v80"); a("v_rsq_f32 v81, v81")
        a(f"v_cmp_eq_u32 vcc, 1, {vLANE}")
        a("v_cndmask_b32 v84, v78, v79, vcc")
        a("v_cndmask_b32 v85, v80, v81, vcc")
        a(f"v_mov_b32 v86, {vTAGL}"); a(f"v_mov_b32 v87, {vTAGH}")
        a(f"v_cmp_gt_u32 vcc, 2, {vLANE}")
        a(f"v_mov_b32 v49, {OOB}")
        a(f"v_cndmask_b32 v48, v49, {vL16}, vcc")
        a("s_lshl_b32 s6, s76, 4"); a(f"s_add_u32 s6, s6, {WS_STAT}")
        a.vm(f"buffer_store_dwordx4 v[84:87], v48, {srd(S_WS)}, s6 offen sc1")

    def dma_x_parts(self, c):
        a = self.a
        parts = []
        for i in range(4):
            def p(i=i):
                a(f"s_add_u32 m0, {sWLDS}, {L_X + (c % 3)*16384 + i*1024}")
                a(f"s_add_u32 s67, {sXB}, {i*8192 + c*128}")
                self.xtok[c] = a.vm(f"buffer_load_dwordx4 {vDX0 if i % 2 == 0 else vDX1}, {srd(S_X)}, s67 offen lds")
            parts.append(p)
        return parts
    def dma_x(self, c):
        for p in self.dma_x_parts(c): p()
    def dma_w_parts(self, G):
        a = self.a
        slot = G % NW
        parts = []
        for i in range(4):
            def p(i=i):
                a(f"s_add_u32 m0, {sWLDS}, {slot*16384 + i*1024}")
                if G < 8:   vd, sr, cur, st, sk = vDW1, S_U1, sU1c, sU1s8, sU1sk
                elif G < 16: vd, sr, cur, st, sk = vDW2, S_U2, sU2c, str(8*3584), str(40*3584)
                else:       vd, sr, cur, st, sk = vDS, S_U3, sU3c, sU3s16, sU3sk
                self.wtok[G] = a.vm(f"buffer_load_dwordx4 {vd}, {srd(sr)}, {cur} offen lds")
                a(f"s_add_u32 {cur}, {cur}, {st if i < 3 else sk}")
            parts.append(p)
        return parts
    def dma_w(self, G):
        for p in self.dma_w_parts(G): p()

    def frag_info(self, f):
        G, m = divmod(f, 16)
        slot = G % NW; rng = slot // 4; sb = (slot % 4) * 16384
        if G < 16:
            c = G % 8; s = m // 4; cbk = m % 4; panel, cb = divmod(cbk, 2)
            base = vWA[rng][cb]; imm = [sb + panel*8192 + (16*s + 4*q)*128 for q in range(2)]
            ks = c*4 + s; tile = cbk
        else:
            it = G - 16; s = m // 2; b = m % 2
            base = vSA[rng]; imm = [sb + b*8192 + (16*s + 4*q)*64 for q in range(2)]
            ks = it*8 + s; tile = b
        return G, m, base, imm, ks, tile
    def frag_read(self, f):
        a = self.a
        G, m, base, imm, ks, tile = self.frag_info(f)
        r = 128 + 4*(f % NFR)
        a.lg(f"ds_read_b64_tr_b16 a[{r}:{r+1}], {base} offset:{imm[0]}")
        self.ftok[f] = a.lg(f"ds_read_b64_tr_b16 a[{r+2}:{r+3}], {base} offset:{imm[1]}")
    def x_read_parts(self, c):
        a = self.a
        parts = []
        for s in range(4):
            def p(s=s):
                r = (c*4 + s)*4
                self.xrtok[c] = a.lg(f"ds_read_b128 a[{r}:{r+3}], {vXA[s]} offset:{(c % 3)*16384}")
            parts.append(p)
        return parts

    def stage1(self):
        a = self.a
        self.ftok = {}; self.xrtok = {}
        NF = 320
        a.wait(vm=self.xtok[0])
        for p in self.x_read_parts(0): p()
        a.wait(vm=self.wtok[0])
        a("s_barrier")
        for f in range(LOOK): self.frag_read(f)
        a.wait(lg=self.xrtok[0])
        self.dma_x(3)
        extras = {}
        def at(f, fn): extras.setdefault(f, []).append(fn)
        for G in range(20):
            f0 = G*16
            if G + 1 < 20:
                def bar(G=G):
                    a.wait(vm=self.wtok[G+1]); a("s_barrier")
                at(f0 + 16 - LOOK - 1, bar)
                if G + NW < 20 and G >= 0:
                    pass
                nxt = G + NW - 1
                if G >= 1 and nxt < 20:
                    def mk(parts_fn, nxt=nxt):
                        holder = {}
                        def get(i):
                            if "p" not in holder: holder["p"] = parts_fn(nxt)
                            return holder["p"][i]
                        return get
                    get = mk(self.dma_w_parts)
                    for i in range(4):
                        at(f0 + 16 - LOOK + i, (lambda i=i, get=get: get(i)()))
            if G < 7:
                c = G
                at(f0 + 0, lambda c=c: a.wait(vm=self.xtok[c+1]))
                xp = self.x_read_parts(c+1)
                for i in range(4): at(f0 + i, xp[i])
                if c + 4 <= 7:
                    def mkx(c=c):
                        holder = {}
                        def get(i):
                            if "p" not in holder:
                                a.wait(lg=self.xrtok[c+1]); holder["p"] = self.dma_x_parts(c+4)
                            return holder["p"][i]
                        return get
                    get = mkx()
                    for i, pos in enumerate((6, 7, 8, 14)):
                        at(f0 + pos, (lambda i=i, get=get: get(i)()))
        at(16*1 + 2, self.cs_issue_zf)
        at(16*2 + 2, self.cs_partial)
        at(16*4 + 4, self.cs_count)
        at(16*5 + 6, self.stats_issue)
        for p in range(3):
            last = (8*p + 7) if p < 2 else 19
            if p == 0: at(16*(last-1) + 5, lambda p=p: self.cscnt_issue(p))
            at(16*last + 3, lambda p=p: self.cs_load(p))
        for f in range(NF):
            G, m, base, imm, ks, tile = self.frag_info(f)
            if f == 128: self.epilogue(0)
            if f == 256: self.epilogue(1)
            a.wait(lg=self.ftok[f])
            if m == 0 and G < 8: a.wait(lg=self.xrtok[G])
            r = 128 + 4*(f % NFR)
            acc = f"v[{ACC0+16*tile}:{ACC0+16*tile+15}]"
            first = (ks == 0)
            a(f"v_mfma_f32_32x32x16_bf16 {acc}, a[{r}:{r+3}], a[{ks*4}:{ks*4+3}], {'0' if first else acc}")
            for fn in extras.get(f, []):
                pass
            for fn in extras.get(f, []): fn()
            if f + LOOK < NF: self.frag_read(f + LOOK)
        self.stamp()
        a("s_barrier")
        self.stage2_pre()
        self.epilogue(2)

    def cs_issue_zf(self):
        a = self.a
        a(f"v_and_b32 v96, 3, {vLANE}"); a("v_lshlrev_b32 v96, 3, v96")
        a(f"s_lshl_b32 s68, {sCG}, 7"); a(f"s_add_u32 s68, s68, {WS_ZF}")
        self.zf_txt = f"buffer_load_dwordx2 v[98:99], v96, {srd(S_WS)}, s68 offen sc1"
        self.zftok = a.vm(self.zf_txt)
    def cs_partial(self):
        a = self.a
        self.poll_check(self.zftok, self.tagcmp(98), self.zf_txt)
        a(f"s_and_b32 s6, {sW}, 1"); a("s_cmp_eq_u32 s6, 0")
        a("s_cselect_b64 vcc, -1, 0")
        a(f"v_cndmask_b32 v96, {vWA[0][1]}, {vWA[0][0]}, vcc")
        a(f"s_lshr_b32 s6, {sW}, 1"); a("s_lshl_b32 s6, s6, 12"); a(f"s_add_u32 s6, s6, {L_C}")
        a("v_add_u32 v96, s6, v96")
        toks = []
        for u in range(2):
            for s in range(2):
                for q in range(2):
                    r = 100 + u*8 + s*4 + q*2
                    t = a.lg(f"ds_read_b64_tr_b16 v[{r}:{r+1}], v96 offset:{u*8192 + (16*s + 4*q)*128}")
        a(f"s_and_b32 s6, {sW}, 1"); a("s_lshl_b32 s6, s6, 11"); a(f"s_add_u32 s6, s6, {L_CS}")
        a(f"v_add_u32 v97, s6, {vSA[0]}")
        for s in range(2):
            for q in range(2):
                r = 116 + s*4 + q*2
                t = a.lg(f"ds_read_b64_tr_b16 v[{r}:{r+1}], v97 offset:{(16*s + 4*q)*64}")
        for k in range(4): a(f"v_mov_b32 v{124+k}, 0x3f803f80")
        a.wait(lg=t)
        for u in range(3):
            d = 192 + 16*u
            for s in range(2):
                r = 100 + u*8 + s*4
                a(f"v_mfma_f32_32x32x16_bf16 v[{d}:{d+15}], v[124:127], v[{r}:{r+3}], {'0' if s == 0 else f'v[{d}:{d+15}]'}")
        a(f"v_cmp_gt_u32 vcc, 32, {vLANE}")
        a("v_cndmask_b32 v100, v208, v192, vcc")
        a(f"v_and_b32 v101, 31, {vLANE}")
        a(f"v_lshrrev_b32 v102, 5, {vLANE}")
        a("v_lshlrev_b32 v102, 9, v102")
        a("v_lshl_add_u32 v101, v101, 2, v102")
        a(f"s_lshl_b32 s6, {sW}, 7"); a(f"s_add_u32 s6, s6, {sACC}")
        a.vm(f"buffer_atomic_add_f32 v100, v101, {srd(S_WS)}, s6 offen sc1")
        a(f"v_and_b32 v103, 31, {vLANE}"); a("v_lshlrev_b32 v103, 2, v103")
        a(f"v_mov_b32 v104, {OOB}")
        a(f"s_cmp_lt_u32 {sW}, 2"); a("s_cselect_b64 s[64:65], vcc, 0")
        a("v_cndmask_b32 v103, v104, v103, s[64:65]")
        a("s_add_u32 s6, s6, 1024")
        self.cstok = a.vm(f"buffer_atomic_add_f32 v224, v103, {srd(S_WS)}, s6 offen sc1")
    def cs_count(self):
        a = self.a
        a.wait(vm=self.cstok)
        a(f"v_cmp_eq_u32 vcc, 0, {vLANE}")
        a(f"v_mov_b32 v100, {OOB}"); a(f"v_mov_b32 v101, {ACC_CNT_CS}")
        a("v_cndmask_b32 v100, v100, v101, vcc")
        a("v_mov_b32 v101, 1")
        a.vm(f"buffer_atomic_add v101, v100, {srd(S_WS)}, {sACC} offen sc1")
    def stats_issue(self):
        a = self.a
        a(f"v_and_b32 v96, 31, {vLANE}"); a("v_lshlrev_b32 v96, 4, v96")
        a(f"s_lshl_b32 s6, {sR}, 7"); a(f"s_lshl_b32 s7, {sW}, 5"); a("s_add_u32 s6, s6, s7")
        a("s_lshl_b32 s69, s6, 4"); a(f"s_add_u32 s69, s69, {WS_STAT}")
        self.st_txt = f"buffer_load_dwordx4 v[24:27], v96, {srd(S_WS)}, s69 offen sc1"
        self.sttok = a.vm(self.st_txt)
    def cscnt_issue(self, p):
        a = self.a
        a(f"v_mov_b32 v97, {ACC_CNT_CS}")
        if p == 0 or True:
            self.cc_txt = f"buffer_load_dword v98, v97, {srd(S_WS)}, {sACC} offen sc1"
            self.cctok = a.vm(self.cc_txt)
    def cs_load(self, p):
        a = self.a
        if p == 0:
            self.poll_check(self.cctok, "v_cmp_eq_u32 vcc, 64, v98", self.cc_txt)
        ntile = 4 if p < 2 else 2
        for t in range(ntile):
            for g4 in range(4):
                r = 32 + t*16 + g4*4
                self.csltok = a.vm(f"buffer_load_dwordx4 v[{r}:{r+3}], {vG16}, {srd(S_WS)}, {sACC} offen offset:{(p*128 + 32*t + 8*g4)*4} sc1")

    def save_state(self):
        a = self.a
        return (a.vm_issued, a.lg_issued, a.vm_floor, a.lg_floor)
    def restore_state(self, st):
        a = self.a
        a.vm_issued, a.lg_issued, a.vm_floor, a.lg_floor = st

    def epilogue(self, p):
        a = self.a
        if p == 0:
            self.poll_check(self.sttok, self.tagcmp(26), self.st_txt)
            a(f"v_mov_b32 {vMEAN}, v24"); a(f"v_mov_b32 {vRSTD}, v25")
            a(f"v_mul_f32 {vR2}, v25, v25")
        a.wait(vm=self.csltok)
        if p == 1:
            self.hbase("m_even", "9+2m")
            self.epi_ffn(4, 1)
            return
        other = a.newlabel("Lepi"); join = a.newlabel("Lepij")
        a(f"s_cmp_eq_u32 {sPAR}, 0")
        a(f"s_cbranch_scc0 {other}")
        st = self.save_state()
        if p == 0: self.epi_kv()
        else:
            self.epi_ffn_side()
        sa = self.save_state()
        a(f"s_branch {join}")
        a.label(other)
        self.restore_state(st)
        if p == 0:
            self.hbase(None, "8+2m")
            self.epi_ffn(4, 0)
        else: self.epi_q()
        sb = self.save_state()
        a.label(join)
        a.vm_issued = a.vm_floor = max(sa[0], sb[0]); a.lg_issued = a.lg_floor = max(sa[1], sb[1])

    def hbase(self, even, odd):
        a = self.a
        if odd == "8+2m": a(f"s_lshl_b32 s6, {sM}, 1"); a("s_add_u32 s6, s6, 8")
        if odd == "9+2m":
            a(f"s_lshl_b32 s6, {sM}, 1"); a("s_add_u32 s6, s6, 9")
            a(f"s_cmp_eq_u32 {sPAR}, 0"); a(f"s_cselect_b32 s6, {sM}, s6")
        self.hbase_q("s6")
    def hbase_q(self, q):
        a = self.a
        a(f"s_mul_i32 s7, {sR}, 36"); a(f"s_add_u32 s7, s7, {q}")
        a("s_lshl_b32 s7, s7, 2"); a(f"s_add_u32 s7, s7, {sW}")
        a("s_lshl_b32 s7, s7, 12"); a(f"s_add_u32 {sHB}, s7, {WS_H}")

    def publish(self, phase):
        a = self.a
        a.wait_all()
        a(f"s_lshl_b32 s6, {sR}, 1"); a(f"s_lshr_b32 s7, {sW}, 1"); a("s_add_u32 s6, s6, s7")
        a("s_mul_i32 s6, s6, 768"); a(f"s_add_u32 s6, s6, {WS_HF + phase*256}")
        a(f"s_lshl_b32 s7, {sCG}, 4"); a("s_add_u32 s6, s6, s7")
        a(f"s_and_b32 s7, {sW}, 1"); a("s_lshl_b32 s7, s7, 3"); a("s_add_u32 s6, s6, s7")
        a(f"v_cmp_eq_u32 vcc, 0, {vLANE}")
        a(f"v_mov_b32 v96, {OOB}"); a("v_mov_b32 v97, 0")
        a("v_cndmask_b32 v96, v96, v97, vcc")
        a.vm(f"buffer_store_dwordx2 v[22:23], v96, {srd(S_WS)}, s6 offen sc1")

    def ffn_block(self, tg, tu, csg, csu, dst):
        a = self.a
        for i in range(0, 16, 2):
            for k in (i, i+1):
                a(f"v_fma_f32 v{tg+k}, -{vMEAN}, v{csg+k}, v{tg+k}")
                a(f"v_fma_f32 v{tu+k}, -{vMEAN}, v{csu+k}, v{tu+k}")
                a(f"v_max_f32 v{tg+k}, 0, v{tg+k}")
                a(f"v_mul_f32 v{tu+k}, {vR2}, v{tu+k}")
                a(f"v_mul_f32 v{tg+k}, v{tg+k}, v{tu+k}")
            a(f"v_cvt_pk_bf16_f32 v{dst+i//2}, v{tg+i}, v{tg+i+1}")
    def epi_ffn(self, ntile, phase):
        a = self.a
        for cb in range(2):
            d = 96 + 8*cb
            self.ffn_block(ACC0 + 16*cb, ACC0 + 32 + 16*cb, 32 + 16*cb, 64 + 16*cb, d)
            for h in range(2):
                a.vm(f"buffer_store_dwordx4 v[{d+4*h}:{d+4*h+3}], {vL16}, {srd(S_WS)}, {sHB} offen offset:{(2*cb+h)*1024} sc1")
        self.publish(phase)
    def epi_ffn_side(self):
        a = self.a
        a(f"s_lshr_b32 s6, {sM}, 1"); a("s_add_u32 s6, s6, 24")
        self.hbase_q("s6")
        a(f"s_and_b32 s6, {sM}, 1"); a("s_lshl_b32 s6, s6, 11"); a(f"s_add_u32 {sHB}, {sHB}, s6")
        self.ffn_block(ACC0, ACC0 + 16, 32, 48, 96)
        for h in range(2):
            a.vm(f"buffer_store_dwordx4 v[{96+4*h}:{96+4*h+3}], {vL16}, {srd(S_WS)}, {sHB} offen offset:{h*1024} sc1")
        self.publish(2)

    def ln_fix(self, t, cs):
        a = self.a
        a(f"v_fma_f32 v{t}, -{vMEAN}, v{cs}, v{t}")
        a(f"v_mul_f32 v{t}, {vRSTD}, v{t}")
    def phi(self, t, tmp):
        a = self.a
        a(f"v_mul_f32 v{tmp}, s70, v{t}")
        a(f"v_min_f32 v{tmp}, 0, v{tmp}")
        a(f"v_exp_f32 v{tmp}, v{tmp}")
        a(f"v_max_f32 v{t}, 0, v{t}")
        a(f"v_add_f32 v{t}, s71, v{t}")
        a(f"v_add_f32 v{t}, v{t}, v{tmp}")
    def consts(self):
        self.a("s_mov_b32 s70, 0x3fb8aa3b"); self.a("s_mov_b32 s71, 0x358637bd")

    def epi_kv(self):
        a = self.a
        self.consts()
        a(f"v_and_b32 v96, 31, {vLANE}")
        a(f"s_lshl_b32 s6, {sW}, 5"); a("v_add_u32 v96, s6, v96")
        a(f"s_movk_i32 s7, {KVP}"); a("v_mul_lo_u32 v96, v96, s7")
        a(f"v_lshrrev_b32 v97, 1, {vG16}")
        a("v_add_u32 v96, v96, v97"); a(f"v_add_u32 v96, {L_KVS}, v96")
        for t in range(4):
            T = ACC0 + 16*t; cs = 32 + 16*t
            for k in range(16):
                self.ln_fix(T+k, cs+k)
                if t < 2: self.phi(T+k, 100 + (k % 4))
            for g4 in range(4):
                d = 104 + 2*(g4 % 2)
                a(f"v_cvt_pk_bf16_f32 v{d}, v{T+4*g4}, v{T+4*g4+1}")
                a(f"v_cvt_pk_bf16_f32 v{d+1}, v{T+4*g4+2}, v{T+4*g4+3}")
                off = (t // 2)*128*KVP + (32*(t % 2) + 8*g4)*2
                a.lg(f"ds_write_b64 v96, v[{d}:{d+1}] offset:{off}")
        a.wait_all(vm=False)
        a("s_barrier")
        a(f"v_lshrrev_b32 v96, 4, {vLANE}"); a("v_lshlrev_b32 v96, 3, v96")
        a(f"v_bfe_u32 v97, {vLANE}, 2, 2"); a("v_add_u32 v96, v96, v97")
        a(f"s_movk_i32 s7, {KVP}"); a("v_mul_lo_u32 v96, v96, s7")
        a(f"v_and_b32 v97, 3, {vLANE}"); a("v_lshl_add_u32 v96, v97, 3, v96")
        a(f"s_lshl_b32 s6, {sW}, 5"); a(f"s_add_u32 s6, s6, {L_KVS}"); a("v_add_u32 v96, s6, v96")
        for ks in range(4):
            for tile in range(2):
                for q in range(2):
                    r = 32 + ks*8 + tile*4 + q*2
                    t = a.lg(f"ds_read_b64_tr_b16 v[{r}:{r+1}], v96 offset:{tile*128*KVP + (32*ks + 4*q)*KVP}")
        for k in range(4): a(f"v_mov_b32 v{120+k}, 0x3f803f80")
        a.wait(lg=t)
        for ks in range(4):
            pk = 32 + ks*8; vv = pk + 4
            a(f"v_mfma_f32_16x16x32_bf16 v[64:67], v[{vv}:{vv+3}], v[{pk}:{pk+3}], {'0' if ks == 0 else 'v[64:67]'}")
            a(f"v_mfma_f32_16x16x32_bf16 v[68:71], v[120:123], v[{pk}:{pk+3}], {'0' if ks == 0 else 'v[68:71]'}")
        a(f"v_lshrrev_b32 v96, 4, {vLANE}"); a("v_lshlrev_b32 v96, 8, v96")
        a(f"v_and_b32 v97, 15, {vLANE}"); a("v_lshl_add_u32 v96, v97, 2, v96")
        a(f"s_mul_i32 s6, {sW}, 1088"); a(f"s_add_u32 s6, s6, {sACC}"); a(f"s_add_u32 s6, s6, {ACC_KV}")
        for v in range(4):
            a.vm(f"buffer_atomic_add_f32 v{64+v}, v96, {srd(S_WS)}, s6 offen offset:{v*64} sc1")
        a(f"v_cmp_gt_u32 vcc, 16, {vLANE}")
        a(f"v_mov_b32 v98, {OOB}"); a("v_lshlrev_b32 v97, 2, v97")
        a("v_cndmask_b32 v97, v98, v97, vcc")
        a.vm(f"buffer_atomic_add_f32 v68, v97, {srd(S_WS)}, s6 offen offset:1024 sc1")
        a.wait_all()
        a(f"v_cmp_eq_u32 vcc, 0, {vLANE}")
        a(f"v_mov_b32 v100, {OOB}"); a(f"v_mov_b32 v101, {ACC_CNT_KV}")
        a("v_cndmask_b32 v100, v100, v101, vcc")
        a("v_mov_b32 v101, 1")
        a.vm(f"buffer_atomic_add v101, v100, {srd(S_WS)}, {sACC} offen sc1")
        a.wait_all()

    def epi_q(self):
        a = self.a
        self.consts()
        a(f"s_sub_u32 s68, {sACC}, 8192")
        a(f"v_mov_b32 v97, {ACC_CNT_KV}")
        txt = f"buffer_load_dword v98, v97, {srd(S_WS)}, s68 offen sc1"
        tok = a.vm(txt)
        for t in range(2):
            T = ACC0 + 16*t; cs = 32 + 16*t
            for k in range(16):
                self.ln_fix(T+k, cs+k)
                self.phi(T+k, 100 + (k % 4))
            for k in range(8):
                a(f"v_cvt_pk_bf16_f32 v{104+8*t+k}, v{T+2*k}, v{T+2*k+1}")
        self.poll_check(tok, "v_cmp_eq_u32 vcc, 64, v98", txt)
        a(f"v_and_b32 v96, 31, {vLANE}"); a("v_min_u32 v96, 16, v96")
        a(f"v_lshl_add_u32 v96, v96, 6, {vG16}")
        a(f"s_add_u32 s68, s68, {ACC_KV}")
        for h in range(4):
            for j in range(2):
                r = 32 + h*8 + j*4
                tk = a.vm(f"buffer_load_dwordx4 v[{r}:{r+3}], v96, {srd(S_WS)}, s68 offen offset:{h*1088 + j*32} sc1")
        a(f"s_add_u32 s6, {sM}, 28")
        self.hbase_q("s6")
        a.wait(vm=tk)
        for h in range(4):
            for k in range(4):
                a(f"v_cvt_pk_bf16_f32 v{64+4*h+k}, v{32+8*h+2*k}, v{32+8*h+2*k+1}")
        for h in range(4):
            d = 128 + 16*h
            a(f"v_mfma_f32_32x32x16_bf16 v[{d}:{d+15}], v[{64+4*h}:{64+4*h+3}], v[{104+4*h}:{104+4*h+3}], 0")
        for h in range(4):
            d = 128 + 16*h
            a(f"v_add_f32 v{d+8}, s71, v{d+8}")
            a(f"v_rcp_f32 v{d+8}, v{d+8}")
            for k in range(8): a(f"v_mul_f32 v{d+k}, v{d+k}, v{d+8}")
            for k in range(4): a(f"v_cvt_pk_bf16_f32 v{80+4*h+k}, v{d+2*k}, v{d+2*k+1}")
            a.vm(f"buffer_store_dwordx4 v[{80+4*h}:{80+4*h+3}], {vL16}, {srd(S_WS)}, {sHB} offen offset:{h*1024} sc1")
        self.publish(2)

    QAB = [(8,2),(16,2),(0,1),(4,1),(9,2),(17,2),(24,1),(28,1),(32,1)]
    def s2_w_dma(self, i):
        a = self.a
        al, be = self.QAB[i]
        a(f"s_mul_i32 s6, {sW}, {be}"); a(f"s_add_u32 s6, s6, {al if i < 7 else al - 28}")
        a("s_lshl_b32 s6, s6, 16"); a(f"s_lshl_b32 s7, {sC2}, 7"); a("s_add_u32 s6, s6, s7")
        sr = S_WD if i < 7 else S_WO
        for k in range(8):
            a(f"s_add_u32 m0, s72, {(i % 4)*8192 + k*1024}")
            self.w2tok[i] = a.vm(f"buffer_load_dwordx4 v28, {srd(sr)}, s6 offen lds")
            if k < 7: a("s_add_u32 s6, s6, 8192")
    def s2_h_load(self, i):
        a = self.a
        al, be = self.QAB[i]
        a(f"s_mul_i32 s6, {sW}, {be}"); a(f"s_add_u32 s6, s6, {al}")
        a(f"s_add_u32 s6, s6, s73")
        a("s_lshl_b32 s6, s6, 14"); a("s_add_u32 s6, s6, s74")
        a("s_add_u32 s7, s6, 4096")
        for rf in range(2):
            for s in range(4):
                r = (i % 3)*32 + rf*16 + s*4
                self.htok[i] = a.vm(f"buffer_load_dwordx4 a[{r}:{r+3}], {vL16}, {srd(S_WS)}, {'s6' if rf == 0 else 's7'} offen offset:{s*1024} sc1")
    def s2_flag_issue(self, phase):
        a = self.a
        if phase == 0:
            a(f"v_bfe_u32 v30, {vLANE}, 1, 3"); a("v_lshlrev_b32 v30, 2, v30")
            a(f"v_and_b32 v31, 1, {vLANE}"); a("v_add_u32 v30, v30, v31"); a("v_add_u32 v30, 2, v30")
            a("v_lshlrev_b32 v30, 3, v30")
        else:
            a(f"v_and_b32 v30, 31, {vLANE}"); a("v_lshlrev_b32 v30, 3, v30")
        a(f"s_mul_i32 s75, {sT}, 768"); a(f"s_add_u32 s75, s75, {WS_HF + phase*256}")
        self.fl_txt = f"buffer_load_dwordx2 v[26:27], v30, {srd(S_WS)}, s75 offen sc1"
        self.fltok = a.vm(self.fl_txt)
    def s2_flag_check(self):
        self.poll_check(self.fltok, self.tagcmp(26), self.fl_txt)

    def stage2_pre(self):
        a = self.a
        self.w2tok = {}; self.htok = {}
        a(f"v_lshrrev_b32 v33, 5, {vLANE}")
        a(f"v_bfe_u32 v34, {vLANE}, 2, 2")
        a(f"v_and_b32 v35, 3, {vLANE}")
        a(f"v_bfe_u32 v36, {vLANE}, 4, 1")
    def stage2_consts(self):
        a = self.a
        a(f"v_lshrrev_b32 v97, 5, {vLANE}")
        a(f"v_bfe_u32 v98, {vLANE}, 2, 2")
        a(f"v_and_b32 v99, 3, {vLANE}")
        a(f"v_bfe_u32 v100, {vLANE}, 4, 1")
        a("v_lshlrev_b32 v101, 5, v100"); a("v_lshl_add_u32 v101, v99, 3, v101")
        a("v_lshrrev_b32 v102, 1, v98"); a("v_lshlrev_b32 v102, 6, v102")
        a("v_lshl_add_u32 v103, v97, 2, v98"); a("v_lshlrev_b32 v103, 7, v103")
        a(f"s_lshl_b32 s72, {sW}, 15")
        a("v_add_u32 v103, s72, v103")
        a("v_xor_b32 v104, v101, v102"); a("v_add_u32 v24, v103, v104")
        a("v_or_b32 v104, 64, v101"); a("v_xor_b32 v104, v104, v102"); a("v_add_u32 v25, v103, v104")
        a(f"v_lshrrev_b32 v103, 3, {vLANE}"); a(f"v_and_b32 v104, 7, {vLANE}")
        a("v_lshlrev_b32 v105, 2, v100"); a("v_xor_b32 v104, v104, v105"); a("v_lshlrev_b32 v104, 4, v104")
        a("v_lshl_add_u32 v28, v103, 10, v104")
        a(f"s_mul_i32 s73, {sR2}, 36")
        a(f"s_lshl_b32 s74, {sHALF}, 13"); a(f"s_add_u32 s74, s74, {WS_H}")

    def stage2(self):
        a = self.a
        self.stamp()
        self.s2_flag_issue(0)
        a("v_lshrrev_b32 v96, 3, v0"); a("v_and_b32 v97, 7, v0")
        a("v_lshlrev_b32 v29, 10, v96"); a("v_lshl_add_u32 v29, v97, 4, v29")
        a(f"s_lshl_b32 s76, {sT}, 16"); a(f"s_lshl_b32 s7, {sC2}, 7"); a("s_add_u32 s76, s76, s7")
        a("s_add_u32 s77, s76, 32768")
        a.vm(f"buffer_load_dwordx4 v[112:115], v29, {srd(S_X)}, s76 offen")
        xr = a.vm(f"buffer_load_dwordx4 v[116:119], v29, {srd(S_X)}, s77 offen")
        self.s2_flag_check()
        self.s2_h_load(0); self.s2_h_load(1)
        for i in range(9):
            if i + 2 < 9:
                if i + 2 in (2, 6):
                    self.s2_flag_issue(1 if i + 2 == 2 else 2); self.s2_flag_check()
                self.s2_w_dma(i + 2); self.s2_h_load(i + 2)
            a.wait(vm=max(self.w2tok[i], self.htok[i]))
            slot = (i % 4)*8192
            ft = {}
            def rd(s, cb):
                r = 128 + ((s % 2)*2 + cb)*4
                a.lg(f"ds_read_b64_tr_b16 a[{r}:{r+1}], v{24+cb} offset:{slot + (16*s)*128}")
                ft[(s, cb)] = a.lg(f"ds_read_b64_tr_b16 a[{r+2}:{r+3}], v{24+cb} offset:{slot + (16*s + 8)*128}")
            rd(0, 0); rd(0, 1)
            for s in range(4):
                if s + 1 < 4: rd(s+1, 0); rd(s+1, 1)
                for cb in range(2):
                    a.wait(lg=ft[(s, cb)])
                    r = 128 + ((s % 2)*2 + cb)*4
                    for rf in range(2):
                        acc = f"v[{ACC0 + (cb*2+rf)*16}:{ACC0 + (cb*2+rf)*16 + 15}]"
                        h = (i % 3)*32 + rf*16 + s*4
                        first = (i == 0 and s == 0)
                        a(f"v_mfma_f32_32x32x16_bf16 {acc}, a[{r}:{r+3}], a[{h}:{h+3}], {'0' if first else acc}")
        self.stamp()
        a("s_barrier")
        a(f"v_and_b32 v96, 31, {vLANE}"); a("s_movk_i32 s7, 272"); a("v_mul_lo_u32 v96, v96, s7")
        a(f"v_add_u32 v96, v96, {vG16}")
        a(f"s_mul_i32 s6, {sW}, 17408"); a("v_add_u32 v96, s6, v96")
        for cb in range(2):
            for rf in range(2):
                for t in range(4):
                    r = ACC0 + (cb*2+rf)*16 + 4*t
                    a.lg(f"ds_write_b128 v96, v[{r}:{r+3}] offset:{rf*8704 + cb*128 + t*32}")
        a.wait_all(vm=False)
        a("s_barrier")
        a("v_lshrrev_b32 v96, 3, v0"); a("s_movk_i32 s7, 272"); a("v_mul_lo_u32 v96, v96, s7")
        a("v_and_b32 v97, 7, v0"); a("v_lshl_add_u32 v96, v97, 5, v96")
        for it in range(2):
            for p in range(4):
                for hh in range(2):
                    r = 32 + it*32 + p*8 + hh*4
                    t = a.lg(f"ds_read_b128 v[{r}:{r+3}], v96 offset:{p*17408 + it*8704 + hh*16}")
        a.wait(vm=xr, lg=t)
        for it in range(2):
            b = 32 + it*32; x = 112 + 4*it
            for k in range(8):
                a(f"v_add_f32 v{b+k}, v{b+k}, v{b+8+k}")
                a(f"v_add_f32 v{b+16+k}, v{b+16+k}, v{b+24+k}")
            for k in range(8):
                a(f"v_add_f32 v{b+k}, v{b+k}, v{b+16+k}")
            for k in range(4):
                a(f"v_lshlrev_b32 v100, 16, v{x+k}"); a(f"v_and_b32 v101, 0xffff0000, v{x+k}")
                a(f"v_add_f32 v{b+2*k}, v{b+2*k}, v100"); a(f"v_add_f32 v{b+2*k+1}, v{b+2*k+1}, v101")
                a(f"v_cvt_pk_bf16_f32 v{104+4*it+k}, v{b+2*k}, v{b+2*k+1}")
            a.vm(f"buffer_store_dwordx4 v[{104+4*it}:{104+4*it+3}], v29, {srd(S_OUT)}, {'s76' if it == 0 else 's77'} offen")
        a("v_cmp_eq_u32 vcc, 0, v0")
        a("s_cmp_eq_u32 s2, 0"); a("s_cselect_b64 vcc, vcc, 0")
        a(f"v_mov_b32 v96, {OOB}"); a("v_mov_b32 v97, 0")
        a("v_cndmask_b32 v96, v96, v97, vcc")
        a.vm(f"buffer_store_dwordx2 v[22:23], v96, {srd(S_WS)}, 0 offen sc1")
        self.stamp()

    def prof_out(self):
        if not self.prof: return
        a = self.a
        a.wait_all()
        a(f"s_lshl_b32 s6, s2, 2"); a(f"s_add_u32 s6, s6, {sW}"); a("s_lshl_b32 s6, s6, 7"); a(f"s_add_u32 s6, s6, {WS_PROF}")
        a(f"v_cmp_eq_u32 vcc, 0, {vLANE}")
        a(f"v_mov_b32 v96, {OOB}"); a("v_mov_b32 v97, 0"); a("v_cndmask_b32 v96, v96, v97, vcc")
        for i in range(self.nstamp):
            a(f"v_mov_b32 v98, s{84+2*i}"); a(f"v_mov_b32 v99, s{85+2*i}")
            a.vm(f"buffer_store_dwordx2 v[98:99], v96, {srd(S_WS)}, s6 offen offset:{i*8}")
            a("s_nop 1")

    def build(self):
        a = self.a
        self.prologue()
        def pre():
            self.w2tok = {}; self.htok = {}
            self.stage2_consts()
            self.s2_w_dma(0); self.s2_w_dma(1)
        self.stage2_pre = pre
        self.stage1()
        self.stage2()
        self.prof_out()
        a.label("Lend")
        a("s_endpgm")
        for e in self.slow: e()
        a.finalize()
        return a.text()

HEADER = """; Kernarg layout for this problem (80 bytes, ptrs only, base s[0:1]):
; @launch grid=(256,1,1) block=(256,1,1) lds=%d
.amdgcn_target "amdgcn-amd-amdhsa--gfx950"
.text
.globl %s
.p2align 8
.type %s,@function
%s:
"""
FOOTER = """
.section .rodata,"a"
.p2align 6
.amdhsa_kernel %s
  .amdhsa_next_free_vgpr 512
  .amdhsa_next_free_sgpr 102
  .amdhsa_accum_offset 256
  .amdhsa_group_segment_fixed_size 0
  .amdhsa_kernarg_size 80
  .amdhsa_user_sgpr_count 2
  .amdhsa_user_sgpr_kernarg_segment_ptr 1
  .amdhsa_system_sgpr_workgroup_id_x 1
.end_amdhsa_kernel
"""

def generate(prof=False):
    g = Gen(prof=prof)
    body = g.build()
    return HEADER % (LDS_BYTES, KNAME, KNAME, KNAME) + body + "\n" + FOOTER % KNAME

if __name__ == "__main__":
    prof = "--prof" in sys.argv
    out = [x for x in sys.argv[1:] if not x.startswith("--")]
    txt = generate(prof)
    path = out[0] if out else "parallel_sum__linear_attn_block__glu_gated_reglu__prompt.s"
    open(path, "w").write(txt)
    print("wrote", path, len(txt), "bytes")
```

```python
import re

TRANS = ("v_exp_f32", "v_log_f32", "v_rcp_f32", "v_rsq_f32", "v_sqrt_f32", "v_sin_f32", "v_cos_f32")

def expand_reg(tok):
    tok = tok.strip()
    neg = tok.startswith("-")
    if neg: tok = tok[1:]
    m = re.fullmatch(r"abs\((.*)\)", tok)
    if m: tok = m.group(1)
    m = re.fullmatch(r"([vas])\[(\d+):(\d+)\]", tok)
    if m:
        return [(m.group(1), i) for i in range(int(m.group(2)), int(m.group(3)) + 1)]
    m = re.fullmatch(r"([vas])(\d+)", tok)
    if m:
        return [(m.group(1), int(m.group(2)))]
    if tok == "vcc": return [("vcc", 0)]
    if tok in ("vcc_lo", "vcc_hi"): return [("vcc", 0)]
    if tok == "m0": return [("m0", 0)]
    if tok == "exec": return [("exec", 0)]
    return []

class Ins:
    __slots__ = ("text", "op", "kind", "dst", "src", "passes", "srcc", "nstates", "is_label")
    def __init__(self, text):
        self.text = text
        self.is_label = False
        t = text.split(";")[0].strip()
        self.nstates = 1
        self.passes = 0
        self.srcc = []
        self.dst = []; self.src = []
        if t.endswith(":") or t == "" or t.startswith("."):
            self.kind = "label" if t.endswith(":") else "none"
            self.op = ""
            self.nstates = 0
            self.is_label = t.endswith(":")
            return
        parts = t.split(None, 1)
        op = parts[0]
        self.op = op
        rest = parts[1] if len(parts) > 1 else ""
        ops = []
        depth = 0; cur = ""
        for ch in rest:
            if ch in "[(": depth += 1
            if ch in "])": depth -= 1
            if ch == "," and depth == 0:
                ops.append(cur.strip()); cur = ""
            else:
                cur += ch
        if cur.strip(): ops.append(cur.strip())
        mods = ""
        if ops:
            last = ops[-1].split()
            ops[-1] = last[0]
            mods = " ".join(last[1:])
        regs = [expand_reg(o) for o in ops]
        if op == "s_nop":
            self.kind = "nop"; self.nstates = int(ops[0], 0) + 1
        elif op.startswith("v_mfma"):
            self.kind = "mfma"
            self.passes = 8 if "32x32x16" in op else 4
            self.dst = regs[0]; self.src = regs[1] + regs[2]; self.srcc = regs[3]
        elif op.startswith("v_cmp"):
            self.kind = "valu"
            self.dst = regs[0]; self.src = sum(regs[1:], [])
        elif op in ("v_readlane_b32", "v_readfirstlane_b32"):
            self.kind = "valu"; self.dst = regs[0]; self.src = sum(regs[1:], [])
        elif op.startswith("v_permlane"):
            self.kind = "valu"; self.dst = regs[0] + regs[1]; self.src = regs[0] + regs[1]
        elif op.startswith("v_"):
            self.kind = "valu"
            self.dst = regs[0]; self.src = sum(regs[1:], [])
            if op.startswith(("v_fmac", "v_dot2c", "v_writelane")): self.src += regs[0]
            if op.startswith("v_cndmask") and len(ops) == 3: self.src += [("vcc", 0)]
            if op.startswith(("v_add_co", "v_sub_co", "v_addc_co")):
                self.dst = regs[0] + regs[1]; self.src = sum(regs[2:], [])
            if "dpp" in op or "row_" in mods or "quad_perm" in mods: self.kind = "dpp"
        elif op.startswith("ds_read"):
            self.kind = "ds"; self.dst = regs[0]; self.src = sum(regs[1:], [])
        elif op.startswith("ds_write"):
            self.kind = "ds"; self.src = sum(regs, [])
        elif op.startswith(("buffer_load", "global_load")):
            self.kind = "vmem"
            if "lds" in mods.split() or op.startswith("global_load_lds"):
                self.src = sum(regs, []) + [("m0", 0)]
                self.kind = "vmem_lds"
            else:
                self.dst = regs[0]; self.src = sum(regs[1:], [])
        elif op.startswith(("buffer_store", "buffer_atomic", "global_store", "global_atomic")):
            self.kind = "vmem_st"; self.src = sum(regs, [])
            wide = ("x4" in op) or ("x3" in op)
            self.srcc = regs[0] if (wide and op.startswith("buffer")) else []
        elif op.startswith(("buffer_inv", "buffer_wbl2")):
            self.kind = "vmem"
        elif op.startswith("s_"):
            self.kind = "salu"
            if op.startswith(("s_cmp", "s_cbranch", "s_branch", "s_waitcnt", "s_barrier", "s_sleep", "s_setprio", "s_endpgm")):
                self.src = sum(regs, [])
            else:
                self.dst = regs[0] if regs else []; self.src = sum(regs[1:], [])
                if "saveexec" in op: self.dst = self.dst + [("exec", 0)]
            if op.startswith(("s_cbranch", "s_branch")): self.kind = "branch"
        else:
            raise ValueError("unknown instruction: " + text)

def is_vec(r): return r[0] in ("v", "a")
def is_sreg(r): return r[0] in ("s", "vcc")

class Asm:
    def __init__(self):
        self.lines = []
        self.vm_issued = 0
        self.lg_issued = 0
        self.vm_floor = 0
        self.lg_floor = 0
        self.nlabel = 0
        self.protect = set()

    def __call__(self, text):
        for t in text.strip("\n").split("\n"):
            t = t.strip()
            if not t: continue
            ins = Ins(t)
            for r in ins.dst:
                if r in self.protect: raise ValueError(f"write to protected register {r}: {t}")
            self.lines.append(ins)
    def comment(self, c):
        self.lines.append(Ins("; " + c))
    def label(self, name):
        self.lines.append(Ins(name + ":"))
    def newlabel(self, p="L"):
        self.nlabel += 1
        return f"{p}_{self.nlabel}"

    def vm(self, text):
        self(text); self.vm_issued += 1
        return self.vm_issued - 1
    def lg(self, text):
        self(text); self.lg_issued += 1
        return self.lg_issued - 1
    def wait(self, vm=None, lg=None):
        parts = []
        if vm is not None and vm >= self.vm_floor:
            n = self.vm_issued - vm - 1
            n = min(n, 63)
            parts.append(f"vmcnt({n})")
            self.vm_floor = max(self.vm_floor, self.vm_issued - n)
        if lg is not None and lg >= self.lg_floor:
            n = self.lg_issued - lg - 1
            n = min(n, 15)
            parts.append(f"lgkmcnt({n})")
            self.lg_floor = max(self.lg_floor, self.lg_issued - n)
        if parts: self("s_waitcnt " + " ".join(parts))
    def wait_all(self, vm=True, lg=True):
        parts = []
        if vm: parts.append("vmcnt(0)"); self.vm_floor = self.vm_issued
        if lg: parts.append("lgkmcnt(0)"); self.lg_floor = self.lg_issued
        self("s_waitcnt " + " ".join(parts))

    def finalize(self):
        out = []
        hist = []
        snaps = {}; seen = set()
        def need(n, dist):
            return max(0, n - dist)
        for ins in self.lines:
            if ins.kind in ("none",):
                out.append(ins); continue
            if ins.kind == "label":
                name = ins.text.strip()[:-1]
                seen.add(name)
                hist = hist + snaps.pop(name, [])
                out.append(ins); continue
            req = 0
            vsrc = set(r for r in ins.src if is_vec(r))
            vsrcc = set(r for r in ins.srcc if is_vec(r)) if ins.kind == "mfma" else set()
            vdst = set(r for r in ins.dst if is_vec(r))
            ssrc = set(r for r in ins.src if is_sreg(r))
            for dist, p in hist:
                pd = set(r for r in p.dst if is_vec(r))
                psd = set(r for r in p.dst if is_sreg(r))
                if p.kind in ("valu", "dpp"):
                    if ins.kind == "mfma" and (pd & (vsrc | vsrcc)): req = max(req, need(2, dist))
                    if ins.kind == "dpp" and (pd & vsrc): req = max(req, need(2, dist))
                    if ins.op.startswith("v_permlane") and (pd & vsrc): req = max(req, need(2, dist))
                    if ins.op in ("v_readlane_b32", "v_readfirstlane_b32") and (pd & vsrc): req = max(req, need(1, dist))
                    if p.op.startswith(TRANS) and ins.kind in ("valu", "dpp", "mfma", "vmem_st", "ds", "vmem") and (pd & (vsrc | vsrcc)): req = max(req, need(1, dist))
                    if psd:
                        if ins.kind in ("valu", "dpp") and (psd & ssrc): req = max(req, need(2, dist))
                        if ins.kind.startswith("vmem") and (psd & ssrc): req = max(req, need(5, dist))
                        if ins.op in ("v_readlane_b32", "v_writelane_b32") and (psd & ssrc): req = max(req, need(4, dist))
                        if ins.kind in ("salu", "branch") and (psd & ssrc): req = max(req, need(1, dist))
                if p.kind == "mfma":
                    n_rw = 12 if p.passes == 8 else 8
                    n_ov = 10 if p.passes == 8 else 6
                    n_war = 7 if p.passes == 8 else 3
                    if ins.kind == "mfma":
                        if pd & vsrc: req = max(req, need(n_rw, dist))
                        if pd & vsrcc:
                            same = (p.dst == ins.srcc) and (p.passes == ins.passes)
                            if not same: req = max(req, need(n_ov, dist))
                        if (pd & vdst) and not (p.dst == ins.dst and p.passes == ins.passes):
                            req = max(req, need(n_ov, dist))
                        if (pd & vdst) and not (pd & vsrcc):
                            req = max(req, need(n_ov, dist))
                    else:
                        if pd & (vsrc | vdst): req = max(req, need(n_rw, dist))
                        pc = set(r for r in p.srcc if is_vec(r))
                        if ins.kind in ("valu", "dpp") and (pc & vdst): req = max(req, need(n_war, dist))
                if p.kind == "vmem_st" and p.srcc:
                    pc = set(p.srcc)
                    if pc & vdst: req = max(req, need(2 if ins.kind in ("valu", "dpp") else 1, dist))
                if p.kind == "salu" and ("m0", 0) in p.dst and ins.kind == "vmem_lds":
                    req = max(req, need(1, dist))
            if req > 0:
                k = req
                while k > 0:
                    n = min(k, 16)
                    nop = Ins(f"s_nop {n-1}")
                    out.append(nop)
                    hist = [[d + n, p] for d, p in hist]
                    k -= n
            out.append(ins)
            hist = [[d + ins.nstates, p] for d, p in hist if d + ins.nstates < 16]
            hist.append([0, ins])
            if ins.kind == "branch":
                tgt = ins.text.split(";")[0].split()[1]
                if tgt not in seen:
                    snaps.setdefault(tgt, []).extend([[d, p] for d, p in hist])
                if ins.op == "s_branch":
                    hist = []
        self.lines = out
    def text(self):
        return "\n".join(("    " + i.text) if not i.is_label else i.text for i in self.lines)
```

```python
import sys, os
sys.path.insert(0, os.path.dirname(os.path.abspath(__file__)))
from asmlib import Asm

KNAME = "parallel_sum__linear_attn_block__glu_gated_reglu__prompt_kernel"

WS_EPOCH = 0x0
WS_ZF    = 0x1000
WS_HF    = 0x2000
WS_STAT  = 0x10000
WS_ACC   = 0x20000
ACC_CNT_KV = 1408
ACC_KV     = 2048
WS_CSP   = 0x40000
WS_CSPA  = 0xC0000
WS_H     = 0x100000
WS_PROF  = 0xF00000
OOB      = 0x7FFFFFF0

NW = 5
L_X   = 0x14000
L_C   = 0x20000
L_KVS = 0x1F000
KVP   = 136
L_CST = 0x27800
W2SLOT = [0x14000, 0x0, 0x8000, 0x1C000]
LDS_BYTES = 0x28000

LOOK = 6
NFR  = 8
NF1  = 320
NF   = NF1 + 144

S_X, S_WS, S_OUT, S_U1, S_U2, S_U3, S_WD, S_WO = 8, 12, 16, 20, 24, 28, 32, 36
def srd(b): return f"s[{b}:{b+3}]"
sC1B, sC2B, sP1, sP3, sC3B, sJ = "s40", "s41", "s42", "s43", "s44", "s45"
sW, sR, sCG, sM, sPAR, sWLDS = "s46", "s47", "s48", "s49", "s50", "s51"
sU1b, sU1c64, sU2b, sU3c64 = "s52", "s53", "s54", "s55"
sXB, sW8K = "s56", "s57"
sTAGL, sTAGH = "s60", "s61"
sACC = "s62"
sROT = "s4"
sQA, sQB, sQC = "s5", "s3", "s63"
sT, sC2, sR2, sHALF = "s80", "s81", "s82", "s83"
sHB = "s70"

vLANE, vL16 = "v1", "v2"
vWA = [["v3", "v4"], ["v5", "v6"]]
vSA = ["v7", "v8"]
vXA = ["v9", "v10", "v11", "v12"]
vB2 = ["v9", "v10"]
vU1 = [13, 14, 15, 16]; vU2 = [17, 18, 19, 20]; vU3 = [21, 22, 23, 24]; vX = [25, 26, 27, 28]
vW2 = vX
vOUT, vPOLL, vDUM = "v29", "v30", "v31"
BAUG = 32
vRSTD, vRL, vG16, vCSA = "v36", "v37", "v38", "v39"
TAG = 40
vTAGL, vTAGH = "v40", "v41"
FLD = 42
AAUG = [44, 48]
ACCA, ACCB = 128, 192

class Task:
    def __init__(self, g, wake, name):
        self.g = g; self.wake = wake; self.done = False; self.wb = False; self.name = name

class Gen:
    def __init__(self, prof=None, opts=None):
        self.a = Asm()
        self.slow = []
        self.prof = prof
        self.tasks = []
        self.pre_bar = []
        self.log = {}
        self.o = dict(codepf=1, budget1=7, budget2=14)
        if opts: self.o.update(opts)

    def stamp(self, name):
        if self.prof is None or name not in self.prof: return
        i = self.prof.index(name)
        assert i < 9
        op = "s_memrealtime" if name.startswith("rt") else "s_memtime"
        self.a(f"{op} s[{84+2*i}:{85+2*i}]")
    def spawn(self, g, wake, name, front=False):
        t = Task(g, wake, name)
        if front: self.tasks.insert(0, t)
        else: self.tasks.append(t)
        return t
    def step(self, t, f):
        try: r = next(t.g)
        except StopIteration:
            t.done = True; return
        if r is None: return
        if r == "barrier": t.wb = True
        else: t.wake = r
    def pump(self, f, start, budget):
        a = self.a
        while len(a.lines) - start < budget:
            t = next((t for t in self.tasks if not t.done and not t.wb and t.wake <= f), None)
            if t is None: break
            self.step(t, f)
        self.tasks = [t for t in self.tasks if not t.done]
    def barrier(self):
        for fn in self.pre_bar: fn()
        self.pre_bar = []
        self.a("s_barrier")
        for t in self.tasks: t.wb = False
    def active(self, name):
        return any(t.name == name and not t.done for t in self.tasks)

    def poll_check(self, tok, cmp_lines, reissue, name="x"):
        a = self.a
        slow = a.newlabel("Lslow"); back = a.newlabel("Lback")
        self.stamp(name + "_in")
        a.wait(vm=tok)
        a(cmp_lines)
        a("s_cmp_eq_u64 vcc, -1")
        a(f"s_cbranch_scc0 {slow}")
        a.label(back)
        self.stamp(name + "_out")
        def emit():
            loop = a.newlabel("Lspin")
            a.label(slow)
            a("s_mov_b32 s66, 0x4000")
            a.label(loop)
            a("s_sleep 1")
            a(reissue)
            a("s_waitcnt vmcnt(0)")
            a(cmp_lines)
            a("s_cmp_eq_u64 vcc, -1")
            a(f"s_cbranch_scc1 {back}")
            a("s_sub_u32 s66, s66, 1")
            a("s_cmp_lg_u32 s66, 0")
            a(f"s_cbranch_scc1 {loop}")
            a(f"s_branch {back}")
        self.slow.append(emit)
    def tagcmp(self, d):
        return (f"v_cmp_eq_u32 vcc, v{d}, {vTAGL}\n"
                f"v_cmp_eq_u32 s[64:65], v{d+1}, {vTAGH}\n"
                f"s_and_b64 vcc, vcc, s[64:65]")
    def lane0_off(self, dst, tmp, val=0):
        a = self.a
        a(f"v_cmp_eq_u32 vcc, 0, {vLANE}")
        a(f"v_mov_b32 v{dst}, {OOB}"); a(f"v_mov_b32 v{tmp}, {val}")
        a(f"v_cndmask_b32 v{dst}, v{dst}, v{tmp}, vcc")

    def prologue(self):
        a = self.a
        a("s_cmp_ge_u32 s2, 256")
        a("s_cbranch_scc1 Lend")
        a(f"s_load_dwordx2 s[{S_X}:{S_X+1}], s[0:1], 0")
        a("s_load_dwordx2 s[64:65], s[0:1], 8")
        a("s_load_dwordx4 s[68:71], s[0:1], 32")
        a(f"s_load_dwordx2 s[{S_WS}:{S_WS+1}], s[0:1], 72")
        a(f"s_load_dwordx2 s[{S_WD}:{S_WD+1}], s[0:1], 48")
        a(f"s_load_dwordx2 s[{S_WO}:{S_WO+1}], s[0:1], 16")
        a(f"s_load_dwordx2 s[{S_OUT}:{S_OUT+1}], s[0:1], 56")
        a.protect = {("s", i) for i in (64, 65, 68, 69, 70, 71)}
        self.stamp("start"); self.stamp("rtstart")
        for b, size in ((S_X, 2097152), (S_WS, 0x10000000), (S_OUT, 2097152), (S_WD, 1792*1024), (S_WO, 524288), (S_U2, 512*3584)):
            a(f"s_mov_b32 s{b+2}, {size}"); a(f"s_mov_b32 s{b+3}, 0x00020000")
        a(f"s_mov_b32 s{S_U1+3}, 0x00020000"); a(f"s_mov_b32 s{S_U3+3}, 0x00020000")
        a(f"v_and_b32 {vLANE}, 63, v0")
        a("v_lshrrev_b32 v52, 6, v0")
        a(f"v_lshlrev_b32 {vL16}, 4, {vLANE}")
        a(f"v_readfirstlane_b32 {sW}, v52")
        a("s_and_b32 s3, s2, 7")
        a(f"s_lshr_b32 {sJ}, s2, 3")
        a("s_lshr_b32 s7, s3, 2")
        a(f"s_lshl_b32 {sR}, s7, 3")
        a(f"s_lshr_b32 s7, {sJ}, 2")
        a(f"s_add_u32 {sR}, {sR}, s7")
        a("s_and_b32 s7, s3, 3")
        a(f"s_lshl_b32 {sCG}, s7, 2")
        a(f"s_and_b32 s7, {sJ}, 3")
        a(f"s_add_u32 {sCG}, {sCG}, s7")
        a(f"s_lshr_b32 {sM}, {sCG}, 1")
        a(f"s_and_b32 {sPAR}, {sCG}, 1")
        a(f"s_lshl_b32 {sT}, s3, 2")
        a(f"s_lshr_b32 s7, {sJ}, 3")
        a(f"s_add_u32 {sT}, {sT}, s7")
        a(f"s_and_b32 {sC2}, {sJ}, 7")
        a(f"s_lshr_b32 {sR2}, {sT}, 1")
        a(f"s_and_b32 {sHALF}, {sT}, 1")
        a(f"s_lshl_b32 {sWLDS}, {sW}, 12")
        a(f"s_lshl_b32 {sW8K}, {sW}, 13")
        a(f"s_add_u32 s6, {sCG}, {sR}")
        a(f"s_and_b32 {sROT}, s6, 3")
        if not self.o.get("rot1", 1): a(f"s_mov_b32 {sROT}, 0")
        a(f"s_lshl_b32 s6, {sR}, 7"); a(f"s_lshl_b32 s7, {sW}, 5"); a("s_add_u32 s6, s6, s7")
        a(f"s_lshl_b32 {sXB}, s6, 10")
        a(f"s_cmp_eq_u32 {sPAR}, 0")
        a("s_movk_i32 s6, 3072"); a("s_movk_i32 s7, 3584")
        a(f"s_cselect_b32 {sP1}, s6, s7"); a(f"s_cselect_b32 {sP3}, s7, s6")
        a(f"s_mov_b32 s6, {512*3072}"); a(f"s_mov_b32 s7, {512*3584}")
        a(f"s_cselect_b32 s{S_U1+2}, s6, s7"); a(f"s_cselect_b32 s{S_U3+2}, s7, s6")
        a(f"v_and_b32 v52, 31, {vLANE}")
        a(f"v_lshrrev_b32 v53, 5, {vLANE}")
        a(f"v_bfe_u32 v54, {vLANE}, 2, 2")
        a(f"v_and_b32 v55, 3, {vLANE}")
        a(f"v_bfe_u32 v56, {vLANE}, 4, 1")
        a(f"v_lshrrev_b32 v60, 3, {vLANE}")
        a(f"v_and_b32 v61, 7, {vLANE}")
        a(f"v_lshrrev_b32 v63, 4, {vLANE}")
        a("v_xor_b32 v63, v61, v63"); a("v_lshlrev_b32 v63, 4, v63")
        a(f"v_lshl_add_u32 v{vX[0]}, v60, 10, v63")
        a(f"v_xor_b32 v63, 64, v{vX[0]}")
        a(f"v_add_u32 v{vX[1]}, {7*1024}, v63")
        a(f"v_add_u32 v{vX[2]}, {14*1024}, v{vX[0]}")
        a(f"v_add_u32 v{vX[3]}, {21*1024}, v63")
        a("v_lshlrev_b32 v62, 2, v56"); a("v_xor_b32 v62, v61, v62"); a("v_lshlrev_b32 v62, 4, v62")
        a(f"v_mul_lo_u32 v63, v60, {sP1}"); a(f"v_add_u32 v{vU1[0]}, v63, v62")
        a(f"s_lshl_b32 s6, {sP1}, 3"); a("s_sub_u32 s6, s6, 1024")
        for i in range(1, 4): a(f"v_add_u32 v{vU1[i]}, s6, v{vU1[i-1]}")
        a(f"s_lshr_b32 s72, {sW}, 1")
        a("s_lshl_b32 s73, s72, 10"); a("s_add_u32 s73, s73, 1024")
        a(f"s_lshl_b32 s7, {sM}, 7"); a("s_add_u32 s73, s73, s7")
        a(f"s_lshl_b32 s6, {sM}, 8"); a("s_add_u32 s6, s6, 1024")
        a(f"s_cmp_eq_u32 {sPAR}, 0")
        a(f"s_cselect_b32 {sC1B}, s73, s6")
        a("s_add_u32 s6, s6, 128")
        a(f"s_cmp_eq_u32 {sPAR}, 0")
        a(f"s_cselect_b32 {sC2B}, s7, s6")
        a(f"s_lshr_b32 s6, {sM}, 1"); a("s_lshl_b32 s6, s6, 7"); a("s_add_u32 s6, s6, 3072")
        a(f"s_and_b32 s73, {sM}, 1"); a("s_lshl_b32 s73, s73, 6"); a("s_add_u32 s6, s6, s73")
        a("s_lshl_b32 s73, s72, 6"); a("s_add_u32 s73, s73, s7")
        a(f"s_cmp_eq_u32 {sPAR}, 0")
        a(f"s_cselect_b32 {sC3B}, s6, s73")
        a(f"s_and_b32 s72, {sW}, 1")
        a(f"s_lshl_b32 {sU1c64}, {sP1}, 6")
        a(f"s_mul_i32 s6, s72, {sP1}"); a("s_lshl_b32 s7, s6, 5")
        a(f"s_add_u32 {sU1b}, {sC1B}, s7")
        a("s_waitcnt lgkmcnt(0)")
        self.stamp("kargs")
        a(f"s_load_dwordx2 s[60:61], s[{S_WS}:{S_WS+1}], 0")
        self.xtok = {}; self.wtok = {}
        self.dma_x(0)
        a(f"s_cmp_lt_u32 {sW}, 2")
        a(f"s_cselect_b32 s{S_U2}, s68, s70")
        a(f"s_cselect_b32 s{S_U2+1}, s69, s71")
        a(f"s_cmp_eq_u32 {sPAR}, 0")
        a(f"s_cselect_b32 s{S_U1}, s64, s{S_U2}"); a(f"s_cselect_b32 s{S_U1+1}, s65, s{S_U2+1}")
        a(f"s_cselect_b32 s{S_U3}, s{S_U2}, s64"); a(f"s_cselect_b32 s{S_U3+1}, s{S_U2+1}, s65")
        a.protect = set()
        self.dma_w(0)
        self.dma_x(1); self.dma_w(1)
        self.stamp("i4")
        a("v_lshlrev_b32 v57, 5, v56"); a("v_lshl_add_u32 v57, v55, 3, v57")
        a("v_lshrrev_b32 v58, 1, v54"); a("v_lshlrev_b32 v58, 6, v58")
        a("v_lshl_add_u32 v59, v53, 3, v54")
        a("v_lshlrev_b32 v63, 7, v59")
        a("v_xor_b32 v64, v57, v58"); a(f"v_add_u32 {vWA[0][0]}, v63, v64")
        a("v_or_b32 v64, 64, v57"); a("v_xor_b32 v64, v64, v58"); a(f"v_add_u32 {vWA[0][1]}, v63, v64")
        a(f"v_add_u32 {vWA[1][0]}, 0x10000, {vWA[0][0]}"); a(f"v_add_u32 {vWA[1][1]}, 0x10000, {vWA[0][1]}")
        a("v_lshlrev_b32 v63, 6, v59"); a(f"v_add_u32 {vSA[0]}, v63, v57"); a(f"v_add_u32 {vSA[1]}, 0x10000, {vSA[0]}")
        a("v_bfe_u32 v63, v52, 1, 3"); a("v_xor_b32 v63, v63, v53")
        a("v_lshlrev_b32 v64, 7, v52"); a(f"s_add_u32 s7, {sWLDS}, {L_X}"); a("v_add_u32 v64, s7, v64")
        for s in range(4):
            a(f"v_xor_b32 v65, {2*s}, v63"); a(f"v_lshl_add_u32 {vXA[s]}, v65, 4, v64")
        a(f"v_lshlrev_b32 {vG16}, 4, v53")
        a("s_movk_i32 s7, 3584"); a("v_mul_lo_u32 v63, v60, s7"); a(f"v_add_u32 v{vU2[0]}, v63, v62")
        for i in range(1, 4): a(f"v_add_u32 v{vU2[i]}, {8*3584-1024}, v{vU2[i-1]}")
        a(f"s_mul_i32 s7, s72, {32*3584}"); a(f"s_add_u32 {sU2b}, {sC2B}, s7")
        a(f"v_lshrrev_b32 v66, 2, {vLANE}"); a(f"v_mul_lo_u32 v63, v66, {sP3}"); a(f"v_lshl_add_u32 v{vU3[0]}, v55, 4, v63")
        a(f"s_lshl_b32 s6, {sP3}, 4"); a("s_sub_u32 s6, s6, 1024")
        for i in range(1, 4): a(f"v_add_u32 v{vU3[i]}, s6, v{vU3[i-1]}")
        a(f"s_lshl_b32 {sU3c64}, {sP3}, 6")
        a(f"v_mul_lo_u32 v63, v66, {sP1}"); a("v_lshl_add_u32 v96, v55, 4, v63")
        a(f"s_lshl_b32 s6, {sP1}, 4"); a("s_sub_u32 s6, s6, 1024"); a("v_add_u32 v97, s6, v96")
        a("s_movk_i32 s7, 3584"); a("v_mul_lo_u32 v63, v66, s7"); a("v_lshl_add_u32 v98, v55, 4, v63")
        a(f"v_add_u32 v99, {16*3584-1024}, v98")
        a(f"s_and_b32 s6, {sR}, 7"); a("s_lshl_b32 s6, s6, 6"); a(f"s_lshr_b32 s7, {sR}, 3"); a("s_lshl_b32 s7, s7, 5")
        a("s_add_u32 s6, s6, s7")
        a("s_lshl_b32 s7, s72, 6")
        a(f"s_mul_i32 s73, s6, {sP1}"); a(f"s_add_u32 s73, s73, {sC1B}"); a("s_add_u32 s73, s73, s7")
        a("s_mul_i32 s74, s6, 3584"); a(f"s_add_u32 s74, s74, {sC2B}"); a("s_add_u32 s74, s74, s7")
        a(f"s_mul_i32 s75, s6, {sP3}"); a(f"s_add_u32 s75, s75, {sC3B}")
        a(f"s_lshl_b32 {sACC}, {sCG}, 13"); a(f"s_add_u32 {sACC}, {sACC}, {WS_ACC}")
        a(f"s_lshl_b32 s6, {sR}, 7"); a(f"s_lshl_b32 s7, {sCG}, 3"); a("s_add_u32 s6, s6, s7")
        a(f"s_lshl_b32 s7, {sW}, 1"); a("s_add_u32 s76, s6, s7")
        for g in AAUG: a(f"v_mov_b32 v{g+2}, 0"); a(f"v_mov_b32 v{g+3}, 0")
        a(f"v_mov_b32 v{BAUG+2}, 0"); a(f"v_mov_b32 v{BAUG+3}, 0")
        a(f"v_and_b32 {vCSA}, 31, {vLANE}"); a(f"v_lshlrev_b32 {vCSA}, 2, {vCSA}"); a(f"v_add_u32 {vCSA}, {L_CST}, {vCSA}")
        for _ in self.t_s2_q(): pass
        a("s_waitcnt lgkmcnt(0)")
        a(f"s_add_u32 {sTAGL}, {sTAGL}, 1"); a(f"s_addc_u32 {sTAGH}, {sTAGH}, 0")
        a(f"v_mov_b32 {vTAGL}, {sTAGL}"); a(f"v_mov_b32 {vTAGH}, {sTAGH}")

    def slab_base(self, u, dst):
        a = self.a
        if u == 0:
            a(f"s_mul_i32 {dst}, {sW}, 6144"); a(f"s_add_u32 {dst}, {dst}, {L_C}")
        else:
            a(f"s_add_u32 {dst}, {sWLDS}, {L_X + (u-1)*2048}")
    def slab(self, u, v0, v1, sr, so):
        a = self.a
        self.slab_base(u, "s6"); a("s_mov_b32 m0, s6")
        self.m0_clobber()
        a("s_nop 0")
        a.vm(f"buffer_load_dwordx4 v{v0}, {srd(sr)}, {so} offen lds")
        return a.vm(f"buffer_load_dwordx4 v{v1}, {srd(sr)}, {so} offen offset:1024 lds")
    def t_early(self):
        a = self.a; o = self.o
        self.ctokA = self.slab(0, 96, 97, S_U1, "s73"); yield
        if o["codepf"]:
            a("s_getpc_b64 s[64:65]")
            a.label("Lpc0")
            a(f"s_sub_u32 s64, s64, Lpc0-{KNAME}"); a("s_subb_u32 s65, s65, 0")
            a(f"v_min_u32 v64, 2, {vLANE}")
            a(f"s_mul_i32 s6, {sJ}, 12"); a(f"s_mul_i32 s7, {sW}, 3"); a("s_add_u32 s6, s6, s7")
            a("v_add_u32 v64, s6, v64"); a("v_lshlrev_b32 v64, 7, v64")
            a(f"s_mov_b32 s66, Lcode_end-{KNAME}-4")
            a("v_min_u32 v64, s66, v64")
            a.vm(f"global_load_dword {vDUM}, v64, s[64:65]"); yield
        yield o.get("strow_f", 18)
        a("s_lshl_b32 s6, s76, 10")
        a.vm(f"buffer_load_dwordx4 v[52:55], {vL16}, {srd(S_X)}, s6 offen")
        self.strow = a.vm(f"buffer_load_dwordx4 v[56:59], {vL16}, {srd(S_X)}, s6 offen offset:1024"); yield
        a("v_mov_b32 v60, 0"); a("v_mov_b32 v61, 0"); a("v_mov_b32 v62, 0"); a("v_mov_b32 v63, 0"); yield
        a("v_lshlrev_b32 v64, 4, v0"); a(f"v_mov_b32 v65, {OOB}")
        a(f"s_cmp_eq_u32 {sR}, 0"); a("s_cselect_b64 vcc, -1, 0")
        a("v_cndmask_b32 v64, v65, v64, vcc"); yield
        a.vm(f"buffer_store_dwordx4 v[60:63], v64, {srd(S_WS)}, {sACC} offen sc1")
        a(f"s_add_u32 s6, {sACC}, 4096")
        self.z1 = a.vm(f"buffer_store_dwordx4 v[60:63], v64, {srd(S_WS)}, s6 offen sc1"); yield
    def t_slabB(self):
        a = self.a
        a.wait(lg=self.xrtok[6])
        self.slab(1, 98, 99, S_U2, "s74"); yield
        self.ctokB = self.slab(2, vU3[0], vU3[1], S_U3, "s75"); yield

    def t_zf(self):
        a = self.a
        a(f"s_lshl_b32 s6, {sCG}, 7"); a(f"s_lshl_b32 s7, {sW}, 3"); a("s_add_u32 s6, s6, s7")
        a(f"s_add_u32 s6, s6, {WS_ZF}")
        a(f"v_cmp_eq_u32 s[64:65], 0, {vLANE}")
        a(f"s_cmp_eq_u32 {sR}, 0")
        a("s_cselect_b64 vcc, s[64:65], 0")
        a(f"v_mov_b32 v92, 0"); a(f"v_mov_b32 v93, {OOB}")
        a("v_cndmask_b32 v92, v93, v92, vcc")
        a.wait(vm=self.z1)
        a.vm(f"buffer_store_dwordx2 v[{TAG}:{TAG+1}], v92, {srd(S_WS)}, s6 offen sc1"); yield

    DPPM = ("quad_perm:[1,0,3,2] row_mask:0xf", "quad_perm:[2,3,0,1] row_mask:0xf", "row_half_mirror row_mask:0xf",
            "row_mirror row_mask:0xf", "row_bcast:15 row_mask:0xa", "row_bcast:31 row_mask:0xc")
    def t_stats(self):
        a = self.a
        a.wait(vm=self.strow); yield
        D = 64
        for r in range(2):
            for k in range(4):
                a(f"v_lshlrev_b32 v{D+8*r+2*k}, 16, v{52+4*r+k}"); yield
                a(f"v_and_b32 v{D+8*r+2*k+1}, 0xffff0000, v{52+4*r+k}"); yield
        for k in range(1, 8):
            for r in range(2):
                d = D + 8*r; t = 80 + r
                if k == 1: a(f"v_add_f32 v{t}, v{d}, v{d+1}")
                else: a(f"v_add_f32 v{t}, v{t}, v{d+k}")
                yield
        for mod in self.DPPM:
            for v in ("v80", "v81"): a(f"v_add_f32_dpp {v}, {v}, {v} {mod} bank_mask:0xf")
            yield
        a("v_readlane_b32 s78, v80, 63"); a("v_readlane_b32 s79, v81, 63"); yield
        a("s_mov_b32 s71, 0x3b000000")
        a("v_mov_b32 v82, s78"); a("v_mov_b32 v83, s79"); yield
        a("v_mul_f32 v82, s71, v82"); a("v_mul_f32 v83, s71, v83"); yield
        for k in range(8):
            for r in range(2):
                a(f"v_sub_f32 v{D+8*r+k}, v{D+8*r+k}, v{82+r}"); yield
        for k in range(8):
            for r in range(2):
                d = D + 8*r; t = 80 + r
                if k == 0: a(f"v_mul_f32 v{t}, v{d}, v{d}")
                else: a(f"v_fmac_f32 v{t}, v{d+k}, v{d+k}")
                yield
        for mod in self.DPPM:
            for v in ("v80", "v81"): a(f"v_add_f32_dpp {v}, {v}, {v} {mod} bank_mask:0xf")
            yield
        a("v_readlane_b32 s78, v80, 63"); a("v_readlane_b32 s79, v81, 63"); yield
        a("v_mov_b32 v84, s78"); a("v_mov_b32 v85, s79"); a("v_mov_b32 v86, 0x3727c5ac"); yield
        a("v_fma_f32 v84, v84, s71, v86"); a("v_fma_f32 v85, v85, s71, v86"); yield
        a("v_rsq_f32 v84, v84"); a("v_rsq_f32 v85, v85"); yield
        a(f"v_cmp_eq_u32 vcc, 1, {vLANE}")
        a(f"v_mov_b32 v90, {vTAGL}"); a(f"v_mov_b32 v91, {vTAGH}")
        a("v_cndmask_b32 v88, v82, v83, vcc")
        a("v_cndmask_b32 v89, v84, v85, vcc"); yield
        a(f"v_cmp_gt_u32 vcc, 2, {vLANE}")
        a(f"v_mov_b32 v87, {OOB}")
        a("s_lshl_b32 s6, s76, 4"); a(f"s_add_u32 s6, s6, {WS_STAT}")
        a(f"v_cndmask_b32 v86, v87, {vL16}, vcc")
        a.vm(f"buffer_store_dwordx4 v[88:91], v86, {srd(S_WS)}, s6 offen sc1"); yield
        self.stats_done = True

    def dma_x_parts(self, c):
        a = self.a
        def head():
            a(f"s_add_u32 s7, {sROT}, {c & 3}"); a("s_and_b32 s7, s7, 3")
            if c & 4: a("s_or_b32 s7, s7, 4")
            a("s_lshl_b32 s7, s7, 7")
            a(f"s_add_u32 s58, {sXB}, s7")
            a(f"s_add_u32 m0, {sWLDS}, {L_X + (c % 3)*16384}")
        return self.mkparts(head, vX, S_X, "s58", lambda t: self.xtok.__setitem__(c, t), L_X + (c % 3)*16384)
    def dma_w_parts(self, G):
        a = self.a
        slot = G % NW
        if G < 8:    vs, sr, b, c64 = vU1, S_U1, sU1b, sU1c64
        elif G < 16: vs, sr, b, c64 = vU2, S_U2, sU2b, str(64*3584)
        else:        vs, sr, b, c64 = vU3, S_U3, sC3B, sU3c64
        def head():
            if G < 16:
                pos = G % 8
                a(f"s_add_u32 s7, {sROT}, {pos & 3}")
            else:
                pos = 2*(G-16)
                a(f"s_and_b32 s7, {sW}, 1"); a(f"s_add_u32 s7, s7, {sROT}"); a(f"s_add_u32 s7, s7, {pos & 3}")
            a("s_and_b32 s7, s7, 3")
            if pos & 4: a("s_or_b32 s7, s7, 4")
            a(f"s_mul_i32 s7, s7, {c64}")
            a(f"s_add_u32 s59, {b}, s7")
            a(f"s_add_u32 m0, {sWLDS}, {slot*16384}")
        return self.mkparts(head, vs, sr, "s59", lambda t: self.wtok.__setitem__(G, t), slot*16384)
    def mkparts(self, head, vs, sr, so, settok, ldsbase):
        a = self.a
        parts = []
        for i in range(4):
            def p(i=i):
                key = (so, ldsbase)
                if i == 0:
                    assert self.open_item.get(so) is None, "interleaved DMA items on " + so
                    self.open_item[so] = key
                assert self.open_item[so] == key
                if i == 3: self.open_item[so] = None
                if i == 0: head()
                elif self.m0_owner != so or self.m0_val != ldsbase:
                    a(f"s_add_u32 m0, {sWLDS}, {ldsbase}")
                self.m0_owner = so; self.m0_val = ldsbase
                if i == 0: a("s_nop 0")
                settok(a.vm(f"buffer_load_dwordx4 v{vs[i]}, {srd(sr)}, {so} offen{' offset:%d' % (1024*i) if i else ''} lds"))
            parts.append(p)
        return parts
    m0_owner = None; m0_val = None
    open_item = {}
    def m0_clobber(self): self.m0_owner = None
    def dma_x(self, c):
        for p in self.dma_x_parts(c): p()
    def dma_w(self, G):
        for p in self.dma_w_parts(G): p()

    def finfo(self, f):
        if f < NF1:
            G, m = divmod(f, 16)
            if G < 16:
                c = G % 8; s = m // 4; tile = m % 4; ks = c*4 + s
                acc = (ACCA if G < 8 else ACCB) + 16*tile
            else:
                s = m // 2; tile = m % 2; ks = (G-16)*8 + s
                acc = ACCA + 16*tile
            return dict(phi=f, acc=acc, b=ks*4, first=(ks == 0))
        f2 = f - NF1
        i, m = divmod(f2, 16)
        s, r = divmod(m, 4); cb, rf = divmod(r, 2)
        return dict(phi=NF1 + 8*i + 2*s + cb, acc=(cb*2+rf)*16, areg="a", b=160 + (i % 3)*32 + rf*16 + s*4, first=(i == 0 and s == 0), chunk=i, m=m)
    def phi_first_use(self, phi):
        return phi if phi < NF1 else NF1 + 2*(phi - NF1)
    def frag_read(self, phi):
        a = self.a
        r = 128 + 4*(phi % NFR)
        if phi < NF1:
            G, m = divmod(phi, 16)
            slot = G % NW; rng = slot // 4; sb = (slot % 4)*16384
            if G < 16:
                s = m // 4; cbk = m % 4; panel, cb = divmod(cbk, 2)
                base = vWA[rng][cb]; imm = [sb + panel*8192 + (16*s + 4*q)*128 for q in range(2)]
            else:
                s = m // 2; b = m % 2
                base = vSA[rng]; imm = [sb + b*8192 + (16*s + 4*q)*64 for q in range(2)]
        else:
            i, r2 = divmod(phi - NF1, 8); s, cb = divmod(r2, 2)
            if r2 == 0:
                self.stamp(f"w2w{i}_in"); a.wait(vm=self.w2tok[i]); self.stamp(f"w2w{i}_out")
            so = W2SLOT[i % 4]
            base = vB2[cb] if so < 0x10000 else vB2H[cb]
            imm = [(so % 0x10000) + (16*s + 8*q)*128 for q in range(2)]
        a.lg(f"ds_read_b64_tr_b16 a[{r}:{r+1}], {base} offset:{imm[0]}")
        self.ftok[phi] = a.lg(f"ds_read_b64_tr_b16 a[{r+2}:{r+3}], {base} offset:{imm[1]}")
    def x_read_parts(self, c):
        a = self.a
        parts = []
        for s in range(4):
            def p(s=s):
                r = (c*4 + s)*4
                self.xrtok[c] = a.lg(f"ds_read_b128 a[{r}:{r+3}], {vXA[s]} offset:{(c % 3)*16384}")
            parts.append(p)
        return parts

    def fixed_extras(self):
        a = self.a
        ex = {}
        def at(f, fn): ex.setdefault(f, []).append(fn)
        def spread(maker, positions, pre=None):
            hd = {}
            def get(i):
                if "p" not in hd:
                    if pre: pre()
                    hd["p"] = maker()
                hd["p"][i]()
            for i, pos in enumerate(positions): at(pos, (lambda i=i: get(i)))
        wsched = {2: (0, (5, 6, 7, 8)), 3: (1, (5, 6, 7, 8)), 4: (1, (10, 11, 12, 13))}
        for G in range(5, 20): wsched[G] = (G - 4 + (1 if G <= 6 else 0), (10, 11, 12, 13))
        wsched[7] = (4, (5, 6, 7, 8))
        for G, (per, pos) in wsched.items():
            spread(lambda G=G: self.dma_w_parts(G), [per*16 + p for p in pos])
        spread(lambda: self.dma_x_parts(2), (1, 2, 3, 4))
        for c in range(3, 8):
            pos = (11, 12, 13, 14) if c == 3 else (1, 2, 3, 4)
            spread(lambda c=c: self.dma_x_parts(c), [(c-3)*16 + p for p in pos], lambda c=c: a.wait(lg=self.xrtok[c-3]))
        for c in range(0):
            spread(lambda c=c: self.dma_x_parts(c), [(c-3)*16 + p for p in (1, 2, 3, 4)], lambda c=c: a.wait(lg=self.xrtok[c-3]))
        for G in range(20):
            f0 = G*16
            if G + 1 < 20:
                def bar(G=G):
                    self.stamp(f"bw{G}_in"); a.wait(vm=self.wtok[G+1]); self.stamp(f"bw{G}_mid"); self.barrier(); self.stamp(f"bw{G}_out")
                at(f0 + 16 - LOOK - 1, bar)
            if G < 7:
                c = G
                spread(lambda c=c: self.x_read_parts(c+1), [f0 + i for i in (11, 12, 13, 14)], pre=lambda c=c: a.wait(vm=self.xtok[c+1]))
        at(19*16 + 16 - LOOK - 1, self.barrier)
        at(NF1 - 1, self.barrier)
        return ex

    def run(self, f0, f1):
        a = self.a
        for f in range(f0, f1):
            self.fcur = f
            inf = self.finfo(f)
            self.stamp(f"f{f}")
            ph = inf["phi"]
            if ph >= a_floor(self.a, self.ftok, ph):
                nxt = ph + 1
                a.wait(lg=self.ftok[nxt] if (nxt in self.ftok and f % 2 == 0 and f < NF1) else self.ftok[ph])
            if f < 128 and f % 16 == 0: a.wait(lg=self.xrtok[f // 16])
            if f >= NF1 and inf["m"] == 0:
                self.stamp(f"hw{inf['chunk']}_in"); a.wait(vm=self.htok[inf["chunk"]]); self.stamp(f"hw{inf['chunk']}_out")
            r = 128 + 4*(ph % NFR)
            acc = f"{inf.get('areg', 'v')}[{inf['acc']}:{inf['acc']+15}]"
            a(f"v_mfma_f32_32x32x16_bf16 {acc}, a[{r}:{r+3}], a[{inf['b']}:{inf['b']+3}], {'0' if inf['first'] else acc}")
            start = len(a.lines)
            for fn in self.ex.get(f, []): fn()
            fu = f + LOOK
            if fu < NF:
                p = self.finfo(fu)["phi"]
                if self.phi_first_use(p) == fu: self.frag_read(p)
            self.pump(f, start, self.budget(f))
    def budget(self, f):
        o = self.o
        if f >= NF1: return o["budget2"]
        if f < 128: return o["budget1"]
        if f >= 256: return o.get("budget3_even", 7) if self.par == 0 else o.get("budget3_odd", 6)
        return o.get("budget_even", 7) if self.par == 0 else o.get("budget_odd", 6)

    def t_cs(self, rnd):
        a = self.a
        A = rnd == "A"
        units = (0,) if A else (1, 2)
        if A: FR, ONES, D0, AD, RES = 100, 124, ACCB, 120, 100
        else: FR, ONES, D0, AD, RES = 72, 80, 56, 84, 88
        self.slab_base(units[0], "s6")
        a(f"v_add_u32 v{AD}, s6, {vSA[0]}"); yield
        for k in range(4): a(f"v_mov_b32 v{ONES+k}, 0x3f803f80"); yield
        a(f"v_and_b32 v{AD+1}, 31, {vLANE}"); a(f"v_lshlrev_b32 v{AD+1}, {3 if A else 4}, v{AD+1}"); yield
        a(f"v_cmp_gt_u32 vcc, 32, {vLANE}"); a(f"v_mov_b32 v{AD+2}, {OOB}"); a("s_nop 0")
        a(f"v_cndmask_b32 v{AD+1}, v{AD+2}, v{AD+1}, vcc"); yield
        a.wait(vm=self.ctokA if A else self.ctokB)
        for ui, u in enumerate(units):
            for s in range(2):
                for q in range(2):
                    r = FR + s*4 + q*2
                    t = a.lg(f"ds_read_b64_tr_b16 v[{r}:{r+1}], v{AD} offset:{ui*2048 + (16*s + 4*q)*64}"); yield
            yield self.fcur + 2
            a.wait(lg=t)
            for s in range(2):
                r = FR + s*4
                a(f"v_mfma_f32_32x32x16_bf16 v[{D0}:{D0+15}], v[{ONES}:{ONES+3}], v[{r}:{r+3}], {'0' if s == 0 else f'v[{D0}:{D0+15}]'}"); yield
            yield self.fcur + 2
            a(f"v_mov_b32 v{RES+ui}, v{D0}"); yield
        a(f"s_lshl_b32 s6, {sCG}, 4"); a(f"s_add_u32 s6, s6, {sR}"); a("s_lshl_b32 s6, s6, 2"); a(f"s_add_u32 s6, s6, {sW}")
        a(f"s_lshl_b32 s6, s6, {8 if A else 9}"); a(f"s_add_u32 s6, s6, {WS_CSPA if A else WS_CSP}")
        if A:
            a(f"v_mov_b32 v{RES+1}, {vTAGL}")
            a.vm(f"buffer_store_dwordx2 v[{RES}:{RES+1}], v{AD+1}, {srd(S_WS)}, s6 offen sc1"); yield
        else:
            a(f"v_mov_b32 v{RES+2}, {vTAGL}"); a(f"v_mov_b32 v{RES+3}, {vTAGL}")
            a.vm(f"buffer_store_dwordx4 v[{RES}:{RES+3}], v{AD+1}, {srd(S_WS)}, s6 offen sc1"); yield
        self.log["cs_pub" + rnd + str(self.par)] = self.fcur

    def t_csum(self, rnd):
        a = self.a
        A = rnd == "A"
        if A: assert self.stats_done
        B = 56; W = 2 if A else 4
        AD = 112 if A else 88
        SB, ST = ('s68', 's69') if A else ('s78', 's79')
        a(f"v_and_b32 v{AD}, 31, {vLANE}"); a(f"v_lshlrev_b32 v{AD}, {3 if A else 4}, v{AD}"); yield
        a(f"v_lshrrev_b32 v{AD+1}, 5, {vLANE}"); a(f"v_lshl_add_u32 v{AD}, v{AD+1}, {10 if A else 11}, v{AD}"); yield
        a(f"s_lshl_b32 s6, {sCG}, {14 if A else 15}"); a(f"s_lshl_b32 s7, {sW}, {8 if A else 9}"); a("s_add_u32 s6, s6, s7")
        a(f"s_add_u32 {SB}, s6, {WS_CSPA if A else WS_CSP}"); yield
        def loads():
            return [f"s_add_u32 {ST}, {SB}, {i*(2048 if A else 4096)}\nbuffer_load_dwordx{W} v[{B+W*i}:{B+W*i+W-1}], v{AD}, {srd(S_WS)}, {ST} offen sc1" for i in range(8)]
        for t in loads():
            l0, l1 = t.split("\n"); a(l0); tok = a.vm(l1); yield
        yield self.o.get("csum_f", 104) if A else self.o.get("csumB_f", 214)
        tg = W - 1
        cmp = f"v_cmp_eq_u32 vcc, v{B+tg}, {vTAGL}\n"
        for i in range(1, 8): cmp += f"v_cmp_eq_u32 s[64:65], v{B+tg+W*i}, {vTAGL}\ns_and_b64 vcc, vcc, s[64:65]\n"
        self.log["cs_chk" + rnd + str(self.par)] = self.fcur
        self.poll_check(tok, cmp.strip(), "\n".join(loads()), "csp" + rnd)
        nv = 1 if A else 2
        for i in range(1, 8):
            for k in range(nv): a(f"v_add_f32 v{B+k}, v{B+k}, v{B+W*i+k}"); yield
        T = B + 4
        for k in range(nv): a(f"v_mov_b32 v{T+k}, v{B+k}"); yield
        for k in range(nv): a(f"v_permlane32_swap_b32 v{B+k}, v{T+k}"); yield
        for k in range(nv): a(f"v_add_f32 v{B+k}, v{B+k}, v{T+k}"); yield
        for k in range(nv): a(f"v_cvt_pk_bf16_f32 v{T+k}, v{B+k}, v{B+k}"); yield
        for k in range(nv): a(f"v_lshlrev_b32 v{T+k}, 16, v{T+k}"); yield
        for k in range(nv): a(f"v_sub_f32 v{T+k}, v{B+k}, v{T+k}"); yield
        for k in range(nv): a(f"v_cvt_pk_bf16_f32 v{B+k}, v{B+k}, v{T+k}"); yield
        a(f"s_lshl_b32 s6, {sW}, 7"); a(f"v_add_u32 v{AD+1}, s6, {vCSA}"); yield
        if A:
            wt = a.lg(f"ds_write_b32 v{AD+1}, v{B}"); yield
        else:
            a.lg(f"ds_write_b32 v{AD+1}, v{B} offset:512"); yield
            a(f"s_lshr_b32 s6, {sW}, 1"); a("s_lshl_b32 s6, s6, 7"); a(f"v_add_u32 v{AD+1}, s6, {vCSA}")
            wt = a.lg(f"ds_write_b32 v{AD+1}, v{B+1} offset:1024"); yield
        self.pre_bar.append(lambda: a.wait(lg=wt))
        yield "barrier"
        self.cs_ready.add(rnd)

    def t_zfchk(self):
        a = self.a
        a(f"v_and_b32 v92, 3, {vLANE}"); a("v_lshlrev_b32 v92, 3, v92"); yield
        a(f"s_lshl_b32 s77, {sCG}, 7"); a(f"s_add_u32 s77, s77, {WS_ZF}")
        txt = f"buffer_load_dwordx2 v[94:95], v92, {srd(S_WS)}, s77 offen sc1"
        tok = a.vm(txt)
        yield self.o.get("zfchk_f", 124)
        self.poll_check(tok, self.tagcmp(94), txt, "zfp")

    def t_prep1(self):
        a = self.a
        assert self.stats_done
        a(f"v_and_b32 v114, 31, {vLANE}"); a("v_lshlrev_b32 v114, 4, v114"); yield
        a(f"s_lshl_b32 s6, {sR}, 7"); a(f"s_lshl_b32 s7, {sW}, 5"); a("s_add_u32 s6, s6, s7")
        a("s_lshl_b32 s73, s6, 4"); a(f"s_add_u32 s73, s73, {WS_STAT}")
        st_txt = f"buffer_load_dwordx4 v[88:91], v114, {srd(S_WS)}, s73 offen sc1"
        st = a.vm(st_txt)
        yield self.o.get("stchk_f", 118)
        self.poll_check(st, self.tagcmp(90), st_txt, "stp")
        a(f"v_mov_b32 {vRSTD}, v89"); a("v_sub_f32 v88, 0, v88"); yield
        a("s_mov_b32 s71, 0x3fb8aa3b"); a("s_mov_b32 s72, 0x358637bd")
        a(f"v_mul_f32 {vRL}, s71, v89"); yield
        a(f"v_cvt_pk_bf16_f32 v{BAUG}, v88, v88"); yield
        a(f"v_lshlrev_b32 v90, 16, v{BAUG}"); a("v_sub_f32 v90, v88, v90"); yield
        a(f"v_cvt_pk_bf16_f32 v{BAUG+1}, v90, v90"); yield
        a(f"v_cmp_gt_u32 vcc, 32, {vLANE}"); a("v_mov_b32 v91, 0"); a("s_nop 0")
        a(f"v_cndmask_b32 v{BAUG}, v91, v{BAUG}, vcc"); a(f"v_cndmask_b32 v{BAUG+1}, v91, v{BAUG+1}, vcc"); yield

    def aug_all(self, p, acc, ntile):
        for t in range(0, ntile, 2):
            a = self.a
            toks = []
            for k in (0, 1):
                g = AAUG[k]; off = (p*128 + 32*(t+k))*4
                a.lg(f"ds_read_b32 v{g}, {vCSA} offset:{off}")
                toks.append(a.lg(f"ds_read_b32 v{g+1}, {vCSA} offset:{off}")); yield
            yield self.fcur + 2
            for k in (0, 1):
                g = AAUG[k]; A = acc + 16*(t+k)
                a.wait(lg=toks[k])
                a(f"v_mfma_f32_32x32x16_bf16 v[{A}:{A+15}], v[{g}:{g+3}], v[{BAUG}:{BAUG+3}], v[{A}:{A+15}]"); yield
        yield self.fcur + 1

    def hbase_q(self, q):
        a = self.a
        a(f"s_mul_i32 s7, {sR}, 36"); a(f"s_add_u32 s7, s7, {q}")
        a("s_lshl_b32 s7, s7, 2"); a(f"s_add_u32 s7, s7, {sW}")
        a("s_lshl_b32 s7, s7, 12"); a(f"s_add_u32 {sHB}, s7, {WS_H}")
    def publish(self, phase, tok, delay):
        a = self.a
        yield self.fcur + delay
        a(f"s_lshl_b32 s6, {sR}, 1"); a(f"s_lshr_b32 s7, {sW}, 1"); a("s_add_u32 s6, s6, s7")
        a("s_mul_i32 s6, s6, 768"); a(f"s_add_u32 s6, s6, {WS_HF + phase*256}")
        a(f"s_lshl_b32 s7, {sCG}, 4"); a("s_add_u32 s6, s6, s7")
        a(f"s_and_b32 s7, {sW}, 1"); a("s_lshl_b32 s7, s7, 3"); a("s_add_u32 s6, s6, s7")
        self.lane0_off(97, 98)
        self.stamp(f"pub{phase}_in")
        a.wait(vm=tok)
        self.stamp(f"pub{phase}_out")
        a.vm(f"buffer_store_dwordx2 v[{TAG}:{TAG+1}], v97, {srd(S_WS)}, s6 offen sc1")
        self.log[(self.par, "pub", phase)] = self.fcur
        yield
    def ffn_block(self, tg, tu, dst):
        a = self.a
        for i in range(0, 16, 2):
            for k in (i, i+1): a(f"v_max_f32 v{tg+k}, 0, v{tg+k}"); yield
            for k in (i, i+1): a(f"v_mul_f32 v{tg+k}, v{tg+k}, v{tu+k}"); yield
            a(f"v_cvt_pk_bf16_f32 v{dst+i//2}, v{tg+i}, v{tg+i+1}"); yield
    def t_epi_ffn(self, p, acc, qexpr, phase):
        a = self.a
        yield from self.aug_all(p, acc, 4)
        qexpr(); self.hbase_q("s6"); yield
        for cb in range(2):
            d = 96 + 8*cb
            yield from self.ffn_block(acc + 16*cb, acc + 32 + 16*cb, d)
            for h in range(2):
                tok = a.vm(f"buffer_store_dwordx4 v[{d+4*h}:{d+4*h+3}], {vL16}, {srd(S_WS)}, {sHB} offen offset:{(2*cb+h)*1024} sc1"); yield
        self.epi_done.add(p)
        yield from self.publish(phase, tok, self.o.get("pub_delay", 20) if p == 0 else self.o.get("pub_delay1", 10))
    def t_epi_ffn_side(self):
        a = self.a
        yield from self.aug_all(2, ACCA, 2)
        a(f"s_lshr_b32 s6, {sM}, 1"); a("s_add_u32 s6, s6, 24")
        self.hbase_q("s6")
        a(f"s_and_b32 s6, {sM}, 1"); a("s_lshl_b32 s6, s6, 11"); a(f"s_add_u32 {sHB}, {sHB}, s6"); yield
        yield from self.ffn_block(ACCA, ACCA + 16, 96)
        for h in range(2):
            tok = a.vm(f"buffer_store_dwordx4 v[{96+4*h}:{96+4*h+3}], {vL16}, {srd(S_WS)}, {sHB} offen offset:{h*1024} sc1"); yield
        yield from self.publish(2, tok, self.o.get("pub_delay2", 8))
    def phi4(self, T):
        a = self.a
        for k in range(4): a(f"v_mul_f32 v{100+k}, {vRL}, v{T+k}"); yield
        for k in range(4): a(f"v_exp_f32 v{100+k}, v{100+k} clamp"); yield
        for k in range(4): a(f"v_fma_f32 v{T+k}, v{T+k}, {vRSTD}, s72"); yield
        for k in range(4): a(f"v_max_f32 v{T+k}, s72, v{T+k}"); yield
        for k in range(4): a(f"v_add_f32 v{T+k}, v{T+k}, v{100+k}"); yield

    def t_epi_kv(self):
        a = self.a
        yield from self.aug_all(0, ACCA, 4)
        a(f"v_and_b32 v112, 31, {vLANE}")
        a(f"s_lshl_b32 s6, {sW}, 5"); a("v_add_u32 v112, s6, v112"); yield
        a(f"s_movk_i32 s7, {KVP}"); a("v_mul_lo_u32 v112, v112, s7"); yield
        a(f"v_lshrrev_b32 v113, 1, {vG16}")
        a("v_add_u32 v112, v112, v113"); a(f"v_add_u32 v112, {L_KVS}, v112"); yield
        for t in range(4):
            T = ACCA + 16*t
            for g4 in range(4):
                if t < 2: yield from self.phi4(T + 4*g4)
                else:
                    for k in range(4*g4, 4*g4+4): a(f"v_mul_f32 v{T+k}, {vRSTD}, v{T+k}"); yield
                d = 104 + 2*(g4 % 2)
                a(f"v_cvt_pk_bf16_f32 v{d}, v{T+4*g4}, v{T+4*g4+1}"); yield
                a(f"v_cvt_pk_bf16_f32 v{d+1}, v{T+4*g4+2}, v{T+4*g4+3}"); yield
                off = (t // 2)*128*KVP + (32*(t % 2) + 8*g4)*2
                wt = a.lg(f"ds_write_b64 v112, v[{d}:{d+1}] offset:{off}"); yield
            if t == 1: self.k_done_f = self.fcur
        self.epi_done.add(0)
        self.pre_bar.append(lambda: a.wait(lg=wt))
        a(f"v_lshrrev_b32 v112, 4, {vLANE}"); a("v_lshlrev_b32 v112, 3, v112"); yield
        a(f"v_bfe_u32 v113, {vLANE}, 2, 2"); a("v_add_u32 v112, v112, v113"); yield
        a(f"s_movk_i32 s7, {KVP}"); a("v_mul_lo_u32 v112, v112, s7"); yield
        a(f"v_and_b32 v113, 3, {vLANE}"); a("v_lshl_add_u32 v112, v113, 3, v112"); yield
        a(f"s_lshl_b32 s6, {sW}, 5"); a(f"s_add_u32 s6, s6, {L_KVS}"); a("v_add_u32 v112, s6, v112"); yield
        yield "barrier"
        F = ACCA + 32
        for ks in range(4):
            for tile in range(2):
                for q in range(2):
                    r = F + ks*8 + tile*4 + q*2
                    t = a.lg(f"ds_read_b64_tr_b16 v[{r}:{r+1}], v112 offset:{tile*128*KVP + (32*ks + 4*q)*KVP}"); yield
        for k in range(4): a(f"v_mov_b32 v{124+k}, 0x3f803f80"); yield
        a.wait(lg=t)
        self.kv_reads_done = True
        a(f"v_lshrrev_b32 v112, 4, {vLANE}"); a("v_lshlrev_b32 v112, 8, v112"); yield
        a(f"v_and_b32 v113, 15, {vLANE}"); a("v_lshl_add_u32 v112, v113, 2, v112"); yield
        a(f"s_mul_i32 s6, {sW}, 1088"); a(f"s_add_u32 s6, s6, {sACC}"); a(f"s_add_u32 s73, s6, {ACC_KV}"); yield
        a(f"v_cmp_gt_u32 vcc, 16, {vLANE}")
        a(f"v_mov_b32 v114, {OOB}"); a("v_lshlrev_b32 v113, 2, v113")
        a("v_cndmask_b32 v113, v114, v113, vcc"); yield
        for ks in range(4):
            pk = F + ks*8; vv = pk + 4
            a(f"v_mfma_f32_16x16x32_bf16 v[52:55], v[{vv}:{vv+3}], v[{pk}:{pk+3}], {'0' if ks == 0 else 'v[52:55]'}"); yield
            a(f"v_mfma_f32_16x16x32_bf16 v[56:59], v[124:127], v[{pk}:{pk+3}], {'0' if ks == 0 else 'v[56:59]'}"); yield
        yield self.fcur + 1
        for v in range(4):
            a.vm(f"buffer_atomic_add_f32 v{52+v}, v112, {srd(S_WS)}, s73 offen offset:{v*64} sc1"); yield
        tok = a.vm(f"buffer_atomic_add_f32 v56, v113, {srd(S_WS)}, s73 offen offset:1024 sc1"); yield
        yield self.fcur + self.o.get("kv_delay", 20)
        self.lane0_off(112, 113, ACC_CNT_KV)
        a("v_mov_b32 v113, 1")
        self.stamp("kvc_in")
        a.wait(vm=tok)
        self.stamp("kvc_out")
        a.vm(f"buffer_atomic_add v113, v112, {srd(S_WS)}, {sACC} offen sc1")
        self.log[(0, "kvcnt")] = self.fcur
        yield

    def t_q_prep(self):
        a = self.a
        a(f"s_sub_u32 s73, {sACC}, 8192")
        a(f"v_mov_b32 v112, {ACC_CNT_KV}")
        txt = f"buffer_load_dword v113, v112, {srd(S_WS)}, s73 offen sc1"
        tok = a.vm(txt)
        yield self.o.get("kvchk_f", 316)
        self.log[(1, "kvchk")] = self.fcur
        self.poll_check(tok, "v_cmp_eq_u32 vcc, 64, v113", txt, "kvp")
        a(f"v_and_b32 v113, 31, {vLANE}"); a("v_min_u32 v113, 16, v113")
        a(f"v_lshl_add_u32 v113, v113, 6, {vG16}")
        a(f"s_add_u32 s73, s73, {ACC_KV}"); yield
        for h in range(4):
            for j in range(2):
                r = 56 + h*8 + j*4
                self.kvtok = a.vm(f"buffer_load_dwordx4 v[{r}:{r+3}], v113, {srd(S_WS)}, s73 offen offset:{h*1088 + j*32} sc1"); yield
    def t_epi_q(self):
        a = self.a
        yield from self.aug_all(2, ACCA, 2)
        a(f"s_add_u32 s6, {sM}, 28"); self.hbase_q("s6"); yield
        for t in range(2):
            T = ACCA + 16*t
            for g4 in range(4):
                yield from self.phi4(T + 4*g4)
                a(f"v_cvt_pk_bf16_f32 v{88+8*t+2*g4 if t == 0 else 104+2*g4}, v{T+4*g4}, v{T+4*g4+1}"); yield
                a(f"v_cvt_pk_bf16_f32 v{88+8*t+2*g4+1 if t == 0 else 104+2*g4+1}, v{T+4*g4+2}, v{T+4*g4+3}"); yield
        PQ = [88, 92, 104, 108]
        a(f"v_mul_f32 v96, {vRSTD}, {vRSTD}"); yield
        a.wait(vm=self.kvtok)
        for h in range(4):
            for k in range(4):
                a(f"v_cvt_pk_bf16_f32 v{56+4*h+k}, v{56+8*h+2*k}, v{56+8*h+2*k+1}"); yield
        for h in range(4):
            d = ACCA + 16*h
            a(f"v_mfma_f32_32x32x16_bf16 v[{d}:{d+15}], v[{56+4*h}:{56+4*h+3}], v[{PQ[h]}:{PQ[h]+3}], 0"); yield
        yield self.fcur + 1
        for h in range(4):
            d = ACCA + 16*h
            a(f"v_add_f32 v{d+8}, s72, v{d+8}"); yield
            a(f"v_mul_f32 v{d+8}, v{d+8}, v96"); yield
            a(f"v_rcp_f32 v{d+8}, v{d+8}"); yield
            for k in range(8): a(f"v_mul_f32 v{d+k}, v{d+k}, v{d+8}"); yield
            for k in range(4): a(f"v_cvt_pk_bf16_f32 v{72+4*h+k}, v{d+2*k}, v{d+2*k+1}"); yield
            tok = a.vm(f"buffer_store_dwordx4 v[{72+4*h}:{72+4*h+3}], {vL16}, {srd(S_WS)}, {sHB} offen offset:{h*1024} sc1"); yield
        yield from self.publish(2, tok, self.o.get("pub_delay2", 8))

    def qget(self, i, dst):
        reg = (sQA, sQB, sQC)[i // 4]
        self.a(f"s_bfe_u32 {dst}, {reg}, {(8 << 16) | (8*(i % 4))}")
    def s2_w_dma(self, i):
        a = self.a
        self.qget(i, "s6")
        if i < 6: sr = S_WD
        else:
            sr = S_U1
            a("s_cmp_lt_u32 s6, 28")
            a(f"s_cselect_b32 s{S_U1}, s{S_WD}, s{S_WO}"); a(f"s_cselect_b32 s{S_U1+1}, s{S_WD+1}, s{S_WO+1}")
            a(f"s_cselect_b32 s{S_U1+2}, s{S_WD+2}, s{S_WO+2}")
            a("s_cselect_b32 s7, 0, 28"); a("s_sub_u32 s6, s6, s7")
        a("s_lshl_b32 s6, s6, 16"); a(f"s_lshl_b32 s7, {sC2}, 7"); a("s_add_u32 s74, s6, s7"); yield
        base = W2SLOT[i % 4]
        for g in range(2):
            for k in range(4):
                if k == 0 or self.m0_owner != ("w2", i, g):
                    a(f"s_add_u32 m0, {sW8K}, {base + g*4096}")
                    if k == 0 and g == 1: a("s_add_u32 s74, s74, 32768")
                    else: a("s_nop 0")
                    self.m0_owner = ("w2", i, g)
                self.w2tok[i] = a.vm(f"buffer_load_dwordx4 v{vW2[k]}, {srd(sr)}, s74 offen{' offset:%d' % (1024*k) if k else ''} lds"); yield
    def s2_h_load(self, i):
        a = self.a
        self.qget(i, "s6")
        a(f"s_add_u32 s6, s6, s76")
        a("s_lshl_b32 s6, s6, 14"); a("s_add_u32 s78, s6, s77")
        a("s_add_u32 s79, s78, 4096"); yield
        for rf in range(2):
            for s in range(4):
                r = 160 + (i % 3)*32 + rf*16 + s*4
                self.htok[i] = a.vm(f"buffer_load_dwordx4 a[{r}:{r+3}], {vL16}, {srd(S_WS)}, {'s78' if rf == 0 else 's79'} offen offset:{s*1024} sc1"); yield
    def t_s2_q(self):
        a = self.a
        a(f"s_and_b32 s68, {sT}, 3"); a(f"s_add_u32 s68, s68, {sC2}")
        if not self.o.get("rot2", 1): a("s_mov_b32 s68, 0")
        tab = sum(((k % 3) << (2*k)) for k in range(12))
        a(f"s_lshl_b32 s69, s68, 1"); a(f"s_lshr_b32 s69, {tab}, s69"); a("s_and_b32 s69, s69, 3"); yield
        for i in range(9):
            reg = (sQA, sQB, sQC)[i // 4]
            if i < 2:
                a(f"s_add_u32 s6, s68, {i}"); a("s_and_b32 s6, s6, 1"); a("s_lshl_b32 s6, s6, 3")
                a(f"s_lshl_b32 s7, {sW}, 1"); a("s_add_u32 s6, s6, s7"); a("s_add_u32 s6, s6, 8")
            elif i < 6:
                a(f"s_add_u32 s6, s68, {i-2}"); a("s_and_b32 s6, s6, 3"); a("s_lshl_b32 s6, s6, 2"); a(f"s_add_u32 s6, s6, {sW}")
                a("s_lshl_b32 s7, s6, 1"); a("s_sub_u32 s7, s7, 7")
                a("s_cmp_lt_u32 s6, 8"); a("s_cselect_b32 s6, s6, s7")
            else:
                a(f"s_add_u32 s6, s69, {i-6}"); a("s_sub_u32 s7, s6, 3")
                a("s_cmp_lt_u32 s6, 3"); a("s_cselect_b32 s6, s6, s7")
                a("s_lshl_b32 s6, s6, 2"); a(f"s_add_u32 s6, s6, {sW}"); a("s_add_u32 s6, s6, 24")
            if i % 4 == 0: a(f"s_mov_b32 {reg}, s6")
            else: a(f"s_lshl_b32 s6, s6, {8*(i % 4)}"); a(f"s_or_b32 {reg}, {reg}, s6")
            yield
    def s2_flag_issue(self, phase):
        a = self.a
        if phase == 0:
            a(f"v_bfe_u32 {vPOLL}, {vLANE}, 1, 3"); a(f"v_lshlrev_b32 {vPOLL}, 2, {vPOLL}")
            a(f"v_and_b32 v{FLD}, 1, {vLANE}"); a(f"v_add_u32 {vPOLL}, {vPOLL}, v{FLD}"); a(f"v_add_u32 {vPOLL}, 2, {vPOLL}")
            a(f"v_lshlrev_b32 {vPOLL}, 3, {vPOLL}")
        else:
            a(f"v_and_b32 {vPOLL}, 31, {vLANE}"); a(f"v_lshlrev_b32 {vPOLL}, 3, {vPOLL}")
        a(f"s_mul_i32 s68, {sT}, 768"); a(f"s_add_u32 s68, s68, {WS_HF + phase*256}")
        self.fl_txt = f"buffer_load_dwordx2 v[{FLD}:{FLD+1}], {vPOLL}, {srd(S_WS)}, s68 offen sc1"
        self.fltok = a.vm(self.fl_txt)
    def s2_flag_check(self, phase):
        self.log[(self.par, "chk", phase)] = self.fcur
        self.poll_check(self.fltok, self.tagcmp(FLD), self.fl_txt, f"fl{phase}")
    def wait_pub(self, phase):
        while (self.par, "pub", phase) not in self.log: yield self.fcur + 1

    def t_s2_consts(self):
        a = self.a
        a(f"v_lshrrev_b32 v116, 5, {vLANE}"); a(f"v_bfe_u32 v117, {vLANE}, 2, 2"); yield
        a(f"v_and_b32 v118, 3, {vLANE}"); a(f"v_bfe_u32 v119, {vLANE}, 4, 1"); yield
        a("v_lshlrev_b32 v120, 5, v119"); a("v_lshl_add_u32 v120, v118, 3, v120"); yield
        a("v_lshrrev_b32 v118, 1, v117"); a("v_lshlrev_b32 v118, 6, v118"); yield
        a("v_lshl_add_u32 v116, v116, 2, v117"); a("v_lshlrev_b32 v116, 7, v116"); yield
        a(f"v_add_u32 v116, {sW8K}, v116"); yield
        a(f"v_xor_b32 v117, v120, v118"); a(f"v_add_u32 {vB2[0]}, v116, v117"); yield
        a(f"v_or_b32 v120, 64, v120"); a("v_xor_b32 v117, v120, v118"); a(f"v_add_u32 {vB2[1]}, v116, v117"); yield
        a(f"v_add_u32 {vB2H[0]}, 0x10000, {vB2[0]}"); a(f"v_add_u32 {vB2H[1]}, 0x10000, {vB2[1]}"); yield
        a(f"v_lshrrev_b32 v116, 3, {vLANE}"); a(f"v_and_b32 v117, 7, {vLANE}"); yield
        a("v_lshlrev_b32 v119, 2, v119"); a("v_xor_b32 v117, v117, v119"); a("v_lshlrev_b32 v117, 4, v117"); yield
        a(f"v_lshl_add_u32 v{vW2[0]}, v116, 10, v117"); yield
        for k in range(1, 4): a(f"v_add_u32 v{vW2[k]}, {7*1024*k}, v{vW2[0]}"); yield
        a(f"s_mul_i32 s76, {sR2}, 36")
        a(f"s_lshl_b32 s77, {sHALF}, 13"); a(f"s_add_u32 s77, s77, {WS_H}"); yield
        a("v_lshrrev_b32 v116, 3, v0"); a("v_and_b32 v117, 7, v0"); yield
        a(f"v_lshlrev_b32 {vOUT}, 10, v116"); a(f"v_lshl_add_u32 {vOUT}, v117, 4, {vOUT}"); yield

    def t_touch_w2(self, part):
        a = self.a
        for k in part:
            a(f"v_and_b32 v122, 31, {vLANE}"); a(f"v_add_u32 v122, {k*32}, v122"); yield
            a(f"s_mul_i32 s6, {sJ}, 576"); a(f"s_mul_i32 s7, {sW}, 144"); a("s_add_u32 s6, s6, s7")
            a("v_add_u32 v123, s6, v122"); yield
            a("v_lshlrev_b32 v123, 7, v123"); yield
            a(f"v_cmp_gt_u32 vcc, 144, v122"); a(f"v_cmp_gt_u32 s[64:65], 32, {vLANE}"); a("s_and_b64 vcc, vcc, s[64:65]")
            a(f"v_mov_b32 v122, {OOB}"); a("v_cndmask_b32 v123, v122, v123, vcc"); yield
            a.vm(f"buffer_load_dword {vDUM}, v123, {srd(S_WD)}, 0 offen")
            a(f"v_subrev_u32 v123, {1792*1024}, v123")
            a.vm(f"buffer_load_dword {vDUM}, v123, {srd(S_WO)}, 0 offen"); yield
            if k != part[-1]: yield self.fcur + self.o.get("touch_gap", 40)

    def t_s2_early(self):
        a = self.a; o = self.o
        yield from self.s2_w_dma(0)
        yield o.get("fl0_f", 266)
        self.s2_flag_issue(0)
        yield o.get("w2c1_f", 282)
        yield from self.s2_w_dma(1)
        yield o.get("fl0chk_f", 292)
        self.s2_flag_check(0)
        yield from self.s2_h_load(0)
        yield from self.s2_h_load(1)
        yield o.get("w2c2_f", 314)
        yield from self.s2_w_dma(2)
    def t_s2_loads(self):
        a = self.a; o = self.o
        yield from self.s2_w_dma(3)
        yield from self.wait_pub(1)
        self.s2_flag_issue(1)
        yield self.fcur + o.get("fl1_gap", 8)
        self.s2_flag_check(1)
        yield from self.s2_h_load(2)
        for i in range(3, 9):
            yield NF1 + 16*(i-2)
            if i == 5:
                yield from self.wait_pub(2)
                self.s2_flag_issue(2); yield
            if i == 6: self.s2_flag_check(2)
            yield from self.s2_h_load(i)
            if i + 1 < 9: yield from self.s2_w_dma(i + 1)
        assert not self.active("epi3"), "epi3 still running"
        a(f"s_lshl_b32 s64, {sT}, 16"); a(f"s_lshl_b32 s7, {sC2}, 7"); a("s_add_u32 s64, s64, s7")
        a.vm(f"buffer_load_dwordx4 v[120:123], {vOUT}, {srd(S_X)}, s64 offen")
        a("s_add_u32 s64, s64, 32768")
        a.vm(f"buffer_load_dwordx4 v[124:127], {vOUT}, {srd(S_X)}, s64 offen"); yield
        a("v_lshrrev_b32 v116, 3, v0"); a("v_lshlrev_b32 v116, 4, v116")
        a(f"s_lshl_b32 s64, {sT}, 10"); a(f"s_add_u32 s64, s64, {WS_STAT + 4}")
        a.vm(f"buffer_load_dword v118, v116, {srd(S_WS)}, s64 offen sc1")
        self.xrtk = a.vm(f"buffer_load_dword v119, v116, {srd(S_WS)}, s64 offen offset:512 sc1"); yield

    def final(self):
        a = self.a
        self.stamp("loopend")
        a("s_barrier")
        a(f"v_and_b32 v116, 31, {vLANE}"); a("s_movk_i32 s7, 272"); a("v_mul_lo_u32 v116, v116, s7")
        a(f"v_add_u32 v116, v116, {vG16}")
        a(f"s_mul_i32 s6, {sW}, 17408"); a("v_add_u32 v116, s6, v116")
        for cb in range(2):
            for rf in range(2):
                for t in range(4):
                    r = (cb*2+rf)*16 + 4*t
                    a.lg(f"ds_write_b128 v116, a[{r}:{r+3}] offset:{rf*8704 + cb*128 + t*32}")
        a("v_lshrrev_b32 v117, 3, v0"); a("v_mul_lo_u32 v117, v117, s7")
        a("v_and_b32 v44, 7, v0"); a("v_lshl_add_u32 v117, v44, 5, v117")
        a(f"s_lshl_b32 s64, {sT}, 16"); a(f"s_lshl_b32 s7, {sC2}, 7"); a("s_add_u32 s64, s64, s7"); a("s_add_u32 s65, s64, 32768")
        a.wait_all(vm=False)
        a("s_barrier")
        toks = {}
        for it in range(2):
            for p in range(4):
                for hh in range(2):
                    r = 52 + it*32 + p*8 + hh*4
                    toks[it] = a.lg(f"ds_read_b128 v[{r}:{r+3}], v117 offset:{p*17408 + it*8704 + hh*16}")
        for it in range(2):
            a.wait(vm=self.xrtk, lg=toks[it])
            b = 52 + it*32; x = 120 + 4*it
            for k in range(8):
                a(f"v_add_f32 v{b+k}, v{b+k}, v{b+8+k}")
                a(f"v_add_f32 v{b+16+k}, v{b+16+k}, v{b+24+k}")
            a(f"v_mul_f32 v44, v{118+it}, v{118+it}")
            for k in range(8): a(f"v_add_f32 v{b+k}, v{b+k}, v{b+16+k}")
            for k in range(4):
                a(f"v_lshlrev_b32 v45, 16, v{x+k}"); a(f"v_and_b32 v46, 0xffff0000, v{x+k}")
                a(f"v_fma_f32 v{b+2*k}, v{b+2*k}, v44, v45"); a(f"v_fma_f32 v{b+2*k+1}, v{b+2*k+1}, v44, v46")
            for k in range(4): a(f"v_cvt_pk_bf16_f32 v{48+k}, v{b+2*k}, v{b+2*k+1}")
            a.vm(f"buffer_store_dwordx4 v[48:51], {vOUT}, {srd(S_OUT)}, {'s64' if it == 0 else 's65'} offen")
        a("v_cmp_eq_u32 vcc, 0, v0")
        a("s_cmp_eq_u32 s2, 0"); a("s_cselect_b64 vcc, vcc, 0")
        a(f"v_mov_b32 v96, {OOB}"); a("v_mov_b32 v97, 0")
        a("v_cndmask_b32 v96, v96, v97, vcc")
        a.vm(f"buffer_store_dwordx2 v[{TAG}:{TAG+1}], v96, {srd(S_WS)}, 0 offen sc1")
        self.stamp("end"); self.stamp("rtend")
        self.prof_out()
        a("s_endpgm")

    def prof_out(self):
        if self.prof is None: return
        a = self.a
        a.wait_all()
        a(f"s_lshl_b32 s6, s2, 2"); a(f"s_add_u32 s6, s6, {sW}"); a("s_lshl_b32 s6, s6, 7"); a(f"s_add_u32 s6, s6, {WS_PROF}")
        self.lane0_off(96, 97)
        for i in range(len(self.prof)):
            a(f"v_mov_b32 v98, s{84+2*i}"); a(f"v_mov_b32 v99, s{85+2*i}")
            a.vm(f"buffer_store_dwordx2 v[98:99], v96, {srd(S_WS)}, s6 offen offset:{i*8}")
            a("s_nop 1")

    def path(self, par):
        a = self.a; o = self.o
        self.par = par
        self.epi_done = set()
        self.w2tok = {}; self.htok = {}
        self.ex = self.fixed_extras()
        self.tasks = []
        self.kv_reads_done = False
        if o.get("touchw2", 1): self.spawn(self.t_touch_w2((2, 3, 4)), o.get("touch_f2", 146), "touchB")
        self.cs_ready = {"A"}
        self.spawn(self.t_cs("B"), o.get("csB_f", 132), "csB")
        self.spawn(self.t_csum("B"), o.get("csumB_i", 184), "csumB")
        self.spawn(self.t_s2_consts(), 140, "s2c")
        e1 = o.get("epi1_f", 129)
        if par == 0: self.spawn(self.t_epi_kv(), e1, "epi1kv")
        else:
            def qe():
                a(f"s_lshl_b32 s6, {sM}, 1"); a("s_add_u32 s6, s6, 8")
            self.spawn(self.t_epi_ffn(0, ACCA, qe, 0), e1, "epi1")
        self.run(128, 256)
        if par == 0: assert getattr(self, "k_done_f", 999) < 256, "K tiles not finished before pass 3"
        else: assert 0 in self.epi_done
        def qe2():
            a(f"s_lshl_b32 s6, {sM}, 1"); a("s_add_u32 s6, s6, 9")
            a(f"s_cmp_eq_u32 {sPAR}, 0"); a(f"s_cselect_b32 s6, {sM}, s6")
        assert "B" in self.cs_ready, "cs round B not ready before pass 3"
        def epi2():
            while 0 not in self.epi_done: yield self.fcur + 1
            yield from self.t_epi_ffn(1, ACCB, qe2, 1)
        self.spawn(self.t_s2_early(), 257, "s2early", front=True)
        self.spawn(epi2(), 257, "epi2")
        self.run(256, 300)
        if par == 1: self.spawn(self.t_q_prep(), 300, "qprep", front=True)
        self.run(300, NF1)
        assert par == 1 or self.kv_reads_done, "KV scratch still in use at stage 2 start"
        self.spawn(self.t_s2_loads(), NF1, "s2loads")
        def epi3():
            while 1 not in self.epi_done: yield self.fcur + 1
            yield from (self.t_epi_q() if par == 1 else self.t_epi_ffn_side())
        self.spawn(epi3(), NF1 + 1, "epi3")
        self.run(NF1, NF)
        for t in list(self.tasks):
            while not t.done:
                assert not t.wb
                self.step(t, NF)
        self.tasks = []
        self.final()

    def build(self):
        a = self.a; o = self.o
        self.prologue()
        self.ftok = {}; self.xrtok = {}
        self.ex = self.fixed_extras()
        a.wait(vm=self.xtok[0])
        self.stamp("x0")
        for p in self.x_read_parts(0): p()
        a.wait(vm=self.wtok[0])
        self.stamp("w0")
        a("s_barrier")
        for f in range(LOOK): self.frag_read(f)
        self.stamp("go"); self.stamp("rtgo")
        self.par = None; self.stats_done = False; self.cs_ready = set()
        self.spawn(self.t_early(), 0, "early")
        self.spawn(self.t_cs("A"), o.get("cs_f", 30), "cs")
        self.spawn(self.t_stats(), o.get("stats_f", 44), "stats")
        self.spawn(self.t_zf(), o.get("zf_f", 60), "zf")
        self.spawn(self.t_csum("A"), o.get("csum_i", 76), "csum")
        self.spawn(self.t_slabB(), o.get("slabB_f", 96), "slabB", front=True)
        self.spawn(self.t_prep1(), o.get("prep1_f", 90), "prep1")
        self.spawn(self.t_zfchk(), o.get("zfchk_i", 94), "zfchk")
        if o.get("touchw2", 1): self.spawn(self.t_touch_w2((0, 1)), o.get("touch_f", 66), "touchA", front=True)
        self.run(0, 128)
        assert not self.tasks, [t.name for t in self.tasks]
        assert "A" in self.cs_ready
        st = (a.vm_issued, a.lg_issued, a.vm_floor, a.lg_floor)
        saved = (dict(self.ftok), dict(self.wtok), dict(self.xtok), dict(self.xrtok))
        m0s = (self.m0_owner, self.m0_val)
        a(f"s_cmp_eq_u32 {sPAR}, 0")
        a("s_cbranch_scc0 Lodd")
        self.path(0)
        a.label("Lodd")
        a.vm_issued, a.lg_issued, a.vm_floor, a.lg_floor = st
        self.ftok, self.wtok, self.xtok, self.xrtok = (dict(x) for x in saved)
        self.m0_owner, self.m0_val = m0s
        self.path(1)
        a.label("Lend")
        a("s_endpgm")
        L = self.log
        print("schedule:", {str(k): v for k, v in sorted(L.items(), key=str)}, file=sys.stderr)
        for ph in range(3):
            for c in (0, 1):
                for p in ([1] if ph == 0 else [0, 1]):
                    assert L[(p, "pub", ph)] < L[(c, "chk", ph)], ("deadlock order", ph, p, c)
        assert L[(0, "kvcnt")] < L[(1, "kvchk")], "kv count after kv check"
        assert L["cs_pubANone"] < L["cs_chkANone"]
        assert max(L["cs_pubB0"], L["cs_pubB1"]) < min(L["cs_chkB0"], L["cs_chkB1"])
        for e in self.slow: e()
        a.label("Lcode_end")
        a.finalize()
        return a.text()

vB2H = ["v11", "v12"]
def a_floor(a, ftok, ph):
    return ph + 1 if ftok[ph] < a.lg_floor else ph

HEADER = """; Kernarg layout for this problem (80 bytes, ptrs only, base s[0:1]):
; @launch grid=(256,1,1) block=(256,1,1) lds=%d
.amdgcn_target "amdgcn-amd-amdhsa--gfx950"
.text
.globl %s
.p2align 8
.type %s,@function
%s:
"""
FOOTER = """
.section .rodata,"a"
.p2align 6
.amdhsa_kernel %s
  .amdhsa_next_free_vgpr 512
  .amdhsa_next_free_sgpr 102
  .amdhsa_accum_offset 256
  .amdhsa_group_segment_fixed_size 0
  .amdhsa_kernarg_size 80
  .amdhsa_user_sgpr_count 2
  .amdhsa_user_sgpr_kernarg_segment_ptr 1
  .amdhsa_system_sgpr_workgroup_id_x 1
.end_amdhsa_kernel
"""
def generate(prof=None, opts=None):
    g = Gen(prof=prof, opts=opts)
    body = g.build()
    return HEADER % (LDS_BYTES, KNAME, KNAME, KNAME) + body + "\n" + FOOTER % KNAME

if __name__ == "__main__":
    prof = None; opts = {}; out = None
    for x in sys.argv[1:]:
        if x.startswith("--prof="): prof = x[7:].split(",")
        elif x.startswith("--opt="):
            for kv in x[6:].split(","):
                k, v = kv.split("="); opts[k] = int(v)
        else: out = x
    txt = generate(prof, opts)
    path = out or "parallel_sum__linear_attn_block__glu_gated_reglu__prompt.s"
    open(path, "w").write(txt)
    print("wrote", path, len(txt), "bytes")
```

```python
import sys, os
sys.path.insert(0, os.path.dirname(os.path.abspath(__file__)))
from asmlib import Asm

KNAME = "parallel_sum__linear_attn_block__glu_gated_reglu__prompt_kernel"

WS_EPOCH = 0x0
WS_ZF    = 0x1000
WS_HF    = 0x2000
WS_STAT  = 0x10000
WS_ACC   = 0x20000
ACC_CNT_KV = 1408
ACC_KV     = 2048
KVH, KVR = 1088, 64
WS_CSP   = 0x40000
WS_CSPA  = 0xC0000
WS_H     = 0x100000
WS_KVP   = 0xA00000
WS_KVZP  = 0xA80000
WS_KVF   = 0xA90000
WS_PROF  = 0xF00000
OOB      = 0x7FFFFFF0

NW = 5
L_X    = 0x14000
L_CA   = 0x20000
L_KVS  = 0x1C000
KVP    = 136
L_CST  = 0x24800
L_STT  = 0x24E00
L_KVZ  = 0x25400
L_KVO  = 0x26400
W2SLOT = [0x14000, 0x0, 0x8000, 0x1C000]
LDS_BYTES = 0x28000

LOOK = 6
NFR  = 8
NF1  = 320
NF   = NF1 + 144

S_X, S_WS, S_OUT, S_U1, S_U2, S_U3, S_WD, S_WO = 8, 12, 16, 20, 24, 28, 32, 36
def srd(b): return f"s[{b}:{b+3}]"
sC1B, sC2B, sP1, sP3, sC3B, sJ = "s40", "s41", "s42", "s43", "s44", "s45"
sW, sR, sCG, sM, sPAR, sWLDS = "s46", "s47", "s48", "s49", "s50", "s51"
sU1b, sU1c64, sU2b, sU3c64 = "s52", "s53", "s54", "s55"
sXB, sW8K = "s56", "s57"
sTAGL, sTAGH = "s60", "s61"
sACC = "s62"
sROT = "s4"
sQA, sQB, sQC = "s5", "s3", "s63"
sT, sC2, sR2, sHALF = "s80", "s81", "s82", "s83"
sHB = "s70"
vLANE, vL16 = "v1", "v2"

cWA = [["v3", "v4"], ["v5", "v6"]]
cSA = ["v7", "v8"]
cXA = ["v9", "v10", "v11", "v12"]
cB2 = ["v9", "v10"]; cB2H = ["v11", "v12"]
cRSTD, cRL, cG16, cCSA = "v13", "v14", "v15", "v48"
RING = 16
BAUG = 52
cOUT = "v49"
TMP = 56
ACC = 64
hSA = "v3"
vU1 = [4, 5, 6, 7]; vU2 = [8, 9, 10, 11]; vU3 = [12, 13, 14, 15]; vX = [16, 17, 18, 19]; vW2 = [20, 21, 22, 23]
hG16, hCSA, hL0, vPOLL, vDUM = "v24", "v25", "v26", "v27", "v28"
TAG = 30
vTAGL, vTAGH = "v30", "v31"
FLD = 32

class Task:
    def __init__(self, g, wake, name):
        self.g = g; self.wake = wake; self.done = False; self.name = name

class Gen:
    def __init__(self, prof=None, opts=None):
        self.a = Asm()
        self.slow = []
        self.prof = prof
        self.tasks = []
        self.log = {}
        self.o = dict(codepf=1, hbudget=3)
        if opts: self.o.update(opts)
        self.nbar = {"c": 0, "h0": 0, "h1": 0}
        self.m0_owner = None; self.m0_val = None; self.open_item = {}

    def stamp(self, name):
        if self.prof is None or name not in self.prof: return
        i = self.prof.index(name)
        assert i < 9
        op = "s_memrealtime" if name.startswith("rt") else "s_memtime"
        self.a(f"{op} s[{84+2*i}:{85+2*i}]")
    def spawn(self, g, wake, name, front=False):
        t = Task(g, wake, name)
        if front: self.tasks.insert(0, t)
        else: self.tasks.append(t)
        return t
    def step(self, t):
        try: r = next(t.g)
        except StopIteration:
            t.done = True; return
        if r is not None: t.wake = r
    def pump(self, f, start, budget):
        a = self.a
        while len(a.lines) - start < budget:
            t = next((t for t in self.tasks if not t.done and t.wake <= f), None)
            if t is None: break
            self.step(t)
        self.tasks = [t for t in self.tasks if not t.done]
    def finish(self, name):
        for t in list(self.tasks):
            if t.name == name:
                while not t.done: self.step(t)
        self.tasks = [t for t in self.tasks if not t.done]
    def active(self, name): return any(t.name == name and not t.done for t in self.tasks)
    def barrier(self, who, name):
        self.bars.setdefault(who, []).append(name)
        self.stamp(f"{who[0]}{name}_in")
        self.a("s_barrier")
        self.stamp(f"{who[0]}{name}_out")

    def poll_check(self, tok, cmp_lines, reissue, name="x"):
        a = self.a
        slow = a.newlabel("Lslow"); back = a.newlabel("Lback")
        self.stamp(name + "_in")
        a.wait(vm=tok)
        a(cmp_lines)
        a("s_cmp_eq_u64 vcc, -1")
        a(f"s_cbranch_scc0 {slow}")
        a.label(back)
        self.stamp(name + "_out")
        def emit():
            loop = a.newlabel("Lspin")
            a.label(slow)
            a("s_mov_b32 s66, 0x4000")
            a.label(loop)
            a("s_sleep 1")
            a(reissue)
            a("s_waitcnt vmcnt(0)")
            a(cmp_lines)
            a("s_cmp_eq_u64 vcc, -1")
            a(f"s_cbranch_scc1 {back}")
            a("s_sub_u32 s66, s66, 1")
            a("s_cmp_lg_u32 s66, 0")
            a(f"s_cbranch_scc1 {loop}")
            a(f"s_branch {back}")
        self.slow.append(emit)
    def tagcmp(self, d):
        return (f"v_cmp_eq_u32 vcc, v{d}, {vTAGL}\n"
                f"v_cmp_eq_u32 s[64:65], v{d+1}, {vTAGH}\n"
                f"s_and_b64 vcc, vcc, s[64:65]")
    def reset_track(self):
        a = self.a
        a.vm_floor = a.vm_issued; a.lg_floor = a.lg_issued

    def prologue(self):
        a = self.a
        a("s_cmp_ge_u32 s2, 256")
        a("s_cbranch_scc1 Lend")
        a(f"s_load_dwordx2 s[{S_X}:{S_X+1}], s[0:1], 0")
        a("s_load_dwordx2 s[64:65], s[0:1], 8")
        a("s_load_dwordx4 s[68:71], s[0:1], 32")
        a(f"s_load_dwordx2 s[{S_WS}:{S_WS+1}], s[0:1], 72")
        a(f"s_load_dwordx2 s[{S_WD}:{S_WD+1}], s[0:1], 48")
        a(f"s_load_dwordx2 s[{S_WO}:{S_WO+1}], s[0:1], 16")
        a(f"s_load_dwordx2 s[{S_OUT}:{S_OUT+1}], s[0:1], 56")
        a.protect = {("s", i) for i in (64, 65, 68, 69, 70, 71)}
        self.stamp("start"); self.stamp("rtstart")
        for b, size in ((S_X, 2097152), (S_WS, 0x10000000), (S_OUT, 2097152), (S_WD, 1792*1024), (S_WO, 524288), (S_U2, 512*3584)):
            a(f"s_mov_b32 s{b+2}, {size}"); a(f"s_mov_b32 s{b+3}, 0x00020000")
        a(f"s_mov_b32 s{S_U1+3}, 0x00020000"); a(f"s_mov_b32 s{S_U3+3}, 0x00020000")
        a(f"v_and_b32 {vLANE}, 63, v0")
        a("v_lshrrev_b32 v32, 6, v0")
        a(f"v_lshlrev_b32 {vL16}, 4, {vLANE}")
        a("v_readfirstlane_b32 s72, v32")
        a(f"s_and_b32 {sW}, s72, 3")
        a("s_and_b32 s3, s2, 7")
        a(f"s_lshr_b32 {sJ}, s2, 3")
        a("s_lshr_b32 s7, s3, 2"); a(f"s_lshl_b32 {sR}, s7, 3")
        a(f"s_lshr_b32 s7, {sJ}, 2"); a(f"s_add_u32 {sR}, {sR}, s7")
        a("s_and_b32 s7, s3, 3"); a(f"s_lshl_b32 {sCG}, s7, 2")
        a(f"s_and_b32 s7, {sJ}, 3"); a(f"s_add_u32 {sCG}, {sCG}, s7")
        a(f"s_lshr_b32 {sM}, {sCG}, 1"); a(f"s_and_b32 {sPAR}, {sCG}, 1")
        a(f"s_bfe_u32 {sHALF}, s3, {(1 << 16) | 1}"); a(f"s_lshl_b32 {sT}, {sR}, 1"); a(f"s_add_u32 {sT}, {sT}, {sHALF}")
        a(f"s_and_b32 {sC2}, s3, 1"); a(f"s_lshl_b32 {sC2}, {sC2}, 2"); a(f"s_and_b32 s7, {sJ}, 3"); a(f"s_add_u32 {sC2}, {sC2}, s7")
        a(f"s_mov_b32 {sR2}, {sR}")
        a(f"s_lshl_b32 {sWLDS}, {sW}, 12"); a(f"s_lshl_b32 {sW8K}, {sW}, 13")
        a("s_cmp_lt_u32 s72, 4")
        a("s_cbranch_scc1 Lcompute")

    def h_setup(self):
        a = self.a
        a(f"s_add_u32 s6, {sCG}, {sR}"); a(f"s_and_b32 {sROT}, s6, 3")
        a(f"s_lshl_b32 s6, {sR}, 7"); a(f"s_lshl_b32 s7, {sW}, 5"); a("s_add_u32 s6, s6, s7")
        a(f"s_lshl_b32 {sXB}, s6, 10")
        a(f"s_cmp_eq_u32 {sPAR}, 0")
        a("s_movk_i32 s6, 3072"); a("s_movk_i32 s7, 3584")
        a(f"s_cselect_b32 {sP1}, s6, s7"); a(f"s_cselect_b32 {sP3}, s7, s6")
        a(f"s_mov_b32 s6, {512*3072}"); a(f"s_mov_b32 s7, {512*3584}")
        a(f"s_cselect_b32 s{S_U1+2}, s6, s7"); a(f"s_cselect_b32 s{S_U3+2}, s7, s6")
        a(f"v_lshrrev_b32 v40, 5, {vLANE}"); a(f"v_bfe_u32 v41, {vLANE}, 2, 2"); a(f"v_and_b32 v42, 3, {vLANE}"); a(f"v_bfe_u32 v43, {vLANE}, 4, 1")
        a(f"v_lshrrev_b32 v44, 3, {vLANE}"); a(f"v_and_b32 v45, 7, {vLANE}")
        a(f"v_lshrrev_b32 v47, 4, {vLANE}"); a("v_xor_b32 v47, v45, v47"); a("v_lshlrev_b32 v47, 4, v47")
        a(f"v_lshl_add_u32 v{vX[0]}, v44, 10, v47")
        a(f"v_xor_b32 v47, 64, v{vX[0]}")
        a(f"v_add_u32 v{vX[1]}, {7*1024}, v47"); a(f"v_add_u32 v{vX[2]}, {14*1024}, v{vX[0]}"); a(f"v_add_u32 v{vX[3]}, {21*1024}, v47")
        a("v_lshlrev_b32 v46, 2, v43"); a("v_xor_b32 v46, v45, v46"); a("v_lshlrev_b32 v46, 4, v46")
        a(f"v_mul_lo_u32 v47, v44, {sP1}"); a(f"v_add_u32 v{vU1[0]}, v47, v46")
        a(f"s_lshl_b32 s6, {sP1}, 3"); a("s_sub_u32 s6, s6, 1024")
        for i in range(1, 4): a(f"v_add_u32 v{vU1[i]}, s6, v{vU1[i-1]}")
        a(f"s_lshr_b32 s72, {sW}, 1")
        a("s_lshl_b32 s73, s72, 10"); a("s_add_u32 s73, s73, 1024")
        a(f"s_lshl_b32 s7, {sM}, 7"); a("s_add_u32 s73, s73, s7")
        a(f"s_lshl_b32 s6, {sM}, 8"); a("s_add_u32 s6, s6, 1024")
        a(f"s_cmp_eq_u32 {sPAR}, 0"); a(f"s_cselect_b32 {sC1B}, s73, s6")
        a("s_add_u32 s6, s6, 128")
        a(f"s_cmp_eq_u32 {sPAR}, 0"); a(f"s_cselect_b32 {sC2B}, s7, s6")
        a(f"s_lshr_b32 s6, {sM}, 1"); a("s_lshl_b32 s6, s6, 7"); a("s_add_u32 s6, s6, 3072")
        a(f"s_and_b32 s73, {sM}, 1"); a("s_lshl_b32 s73, s73, 6"); a("s_add_u32 s6, s6, s73")
        a("s_lshl_b32 s73, s72, 6"); a("s_add_u32 s73, s73, s7")
        a(f"s_cmp_eq_u32 {sPAR}, 0"); a(f"s_cselect_b32 {sC3B}, s6, s73")
        a(f"s_and_b32 s72, {sW}, 1")
        a(f"s_lshl_b32 {sU1c64}, {sP1}, 6")
        a(f"s_mul_i32 s6, s72, {sP1}"); a("s_lshl_b32 s7, s6, 5"); a(f"s_add_u32 {sU1b}, {sC1B}, s7")
        a("s_waitcnt lgkmcnt(0)")
        self.stamp("kargs")
        a(f"s_load_dwordx2 s[60:61], s[{S_WS}:{S_WS+1}], 0")
        self.xtok = {}; self.wtok = {}
        self.dma_x(0)
        a(f"s_cmp_lt_u32 {sW}, 2")
        a(f"s_cselect_b32 s{S_U2}, s68, s70"); a(f"s_cselect_b32 s{S_U2+1}, s69, s71")
        a(f"s_cmp_eq_u32 {sPAR}, 0")
        a(f"s_cselect_b32 s{S_U1}, s64, s{S_U2}"); a(f"s_cselect_b32 s{S_U1+1}, s65, s{S_U2+1}")
        a(f"s_cselect_b32 s{S_U3}, s{S_U2}, s64"); a(f"s_cselect_b32 s{S_U3+1}, s{S_U2+1}, s65")
        a.protect = set()
        self.dma_w(0); self.dma_x(1); self.dma_w(1)
        a("v_lshlrev_b32 v47, 5, v43"); a("v_lshl_add_u32 v47, v42, 3, v47")
        a("v_lshl_add_u32 v48, v40, 3, v41"); a("v_lshlrev_b32 v48, 6, v48"); a(f"v_add_u32 {hSA}, v48, v47")
        a(f"v_lshlrev_b32 {hG16}, 4, v40")
        a("s_movk_i32 s7, 3584"); a("v_mul_lo_u32 v47, v44, s7"); a(f"v_add_u32 v{vU2[0]}, v47, v46")
        for i in range(1, 4): a(f"v_add_u32 v{vU2[i]}, {8*3584-1024}, v{vU2[i-1]}")
        a(f"s_mul_i32 s7, s72, {32*3584}"); a(f"s_add_u32 {sU2b}, {sC2B}, s7")
        a(f"v_lshrrev_b32 v49, 2, {vLANE}"); a(f"v_mul_lo_u32 v47, v49, {sP3}"); a(f"v_lshl_add_u32 v{vU3[0]}, v42, 4, v47")
        a(f"s_lshl_b32 s6, {sP3}, 4"); a("s_sub_u32 s6, s6, 1024")
        for i in range(1, 4): a(f"v_add_u32 v{vU3[i]}, s6, v{vU3[i-1]}")
        a(f"s_lshl_b32 {sU3c64}, {sP3}, 6")
        a(f"v_lshl_add_u32 v{vW2[0]}, v44, 10, v46")
        for k in range(1, 4): a(f"v_add_u32 v{vW2[k]}, {7*1024*k}, v{vW2[0]}")
        a(f"v_mul_lo_u32 v47, v49, {sP1}"); a("v_lshl_add_u32 v34, v42, 4, v47")
        a(f"s_lshl_b32 s6, {sP1}, 4"); a("s_sub_u32 s6, s6, 1024"); a("v_add_u32 v35, s6, v34")
        a("s_movk_i32 s7, 3584"); a("v_mul_lo_u32 v47, v49, s7"); a("v_lshl_add_u32 v36, v42, 4, v47"); a(f"v_add_u32 v37, {16*3584-1024}, v36")
        a(f"s_and_b32 s6, {sR}, 7"); a("s_lshl_b32 s6, s6, 6"); a(f"s_lshr_b32 s7, {sR}, 3"); a("s_lshl_b32 s7, s7, 5"); a("s_add_u32 s6, s6, s7")
        a("s_lshl_b32 s7, s72, 6")
        a(f"s_mul_i32 s73, s6, {sP1}"); a(f"s_add_u32 s73, s73, {sC1B}"); a("s_add_u32 s73, s73, s7")
        a("s_mul_i32 s74, s6, 3584"); a(f"s_add_u32 s74, s74, {sC2B}"); a("s_add_u32 s74, s74, s7")
        a(f"s_mul_i32 s75, s6, {sP3}"); a(f"s_add_u32 s75, s75, {sC3B}")
        a(f"s_lshl_b32 {sACC}, {sCG}, 13"); a(f"s_add_u32 {sACC}, {sACC}, {WS_ACC}")
        a(f"s_lshl_b32 s6, {sR}, 7"); a(f"s_lshl_b32 s7, {sCG}, 3"); a("s_add_u32 s6, s6, s7")
        a(f"s_lshl_b32 s7, {sW}, 1"); a("s_add_u32 s76, s6, s7")
        a(f"v_and_b32 {hCSA}, 31, {vLANE}"); a(f"v_lshlrev_b32 {hCSA}, 2, {hCSA}"); a(f"v_add_u32 {hCSA}, {L_CST}, {hCSA}")
        a(f"v_cmp_eq_u32 vcc, 0, {vLANE}"); a(f"v_mov_b32 {hL0}, {OOB}"); a("v_mov_b32 v47, 0"); a(f"v_cndmask_b32 {hL0}, {hL0}, v47, vcc")
        a(f"s_lshl_b32 s6, {sR}, 1"); a(f"s_lshr_b32 s7, {sW}, 1"); a("s_add_u32 s6, s6, s7"); a("s_mul_i32 s6, s6, 768")
        a(f"s_lshl_b32 s7, {sCG}, 4"); a("s_add_u32 s6, s6, s7"); a("s_lshl_b32 s7, s72, 3"); a("s_add_u32 s6, s6, s7"); a(f"s_add_u32 s77, s6, {WS_HF}")
        for _ in self.t_s2_q(): pass
        a("s_waitcnt lgkmcnt(0)")
        a(f"s_add_u32 {sTAGL}, {sTAGL}, 1"); a(f"s_addc_u32 {sTAGH}, {sTAGH}, 0")
        a(f"v_mov_b32 {vTAGL}, {sTAGL}"); a(f"v_mov_b32 {vTAGH}, {sTAGH}")

    def mkparts(self, head, vs, sr, so, settok, ldsbase):
        a = self.a
        parts = []
        for i in range(4):
            def p(i=i):
                key = (so, ldsbase)
                if i == 0:
                    assert self.open_item.get(so) is None
                    self.open_item[so] = key
                assert self.open_item[so] == key
                if i == 3: self.open_item[so] = None
                if i == 0: head()
                elif self.m0_owner != so or self.m0_val != ldsbase: a(f"s_add_u32 m0, {sWLDS}, {ldsbase}")
                self.m0_owner = so; self.m0_val = ldsbase
                settok(a.vm(f"buffer_load_dwordx4 v{vs[i]}, {srd(sr)}, {so} offen{' offset:%d' % (1024*i) if i else ''} lds"))
            parts.append(p)
        return parts
    def m0_clobber(self): self.m0_owner = None
    def dma_x_parts(self, c):
        a = self.a
        def head():
            a(f"s_add_u32 m0, {sWLDS}, {L_X + (c % 3)*16384}")
            a(f"s_add_u32 s7, {sROT}, {c & 3}"); a("s_and_b32 s7, s7, 3")
            if c & 4: a("s_or_b32 s7, s7, 4")
            a("s_lshl_b32 s7, s7, 7"); a(f"s_add_u32 s58, {sXB}, s7")
        return self.mkparts(head, vX, S_X, "s58", lambda t: self.xtok.__setitem__(c, t), L_X + (c % 3)*16384)
    def dma_w_parts(self, G):
        a = self.a
        slot = G % NW
        if G < 8:    vs, sr, b, c64 = vU1, S_U1, sU1b, sU1c64
        elif G < 16: vs, sr, b, c64 = vU2, S_U2, sU2b, str(64*3584)
        else:        vs, sr, b, c64 = vU3, S_U3, sC3B, sU3c64
        def head():
            a(f"s_add_u32 m0, {sWLDS}, {slot*16384}")
            if G < 16:
                pos = G % 8; a(f"s_add_u32 s7, {sROT}, {pos & 3}")
            else:
                pos = 2*(G-16)
                a(f"s_and_b32 s7, {sW}, 1"); a(f"s_add_u32 s7, s7, {sROT}"); a(f"s_add_u32 s7, s7, {pos & 3}")
            a("s_and_b32 s7, s7, 3")
            if pos & 4: a("s_or_b32 s7, s7, 4")
            a(f"s_mul_i32 s7, s7, {c64}"); a(f"s_add_u32 s59, {b}, s7")
        return self.mkparts(head, vs, sr, "s59", lambda t: self.wtok.__setitem__(G, t), slot*16384)
    def dma_x(self, c):
        for p in self.dma_x_parts(c): p()
    def dma_w(self, G):
        for p in self.dma_w_parts(G): p()
    def slab(self, base_expr, v0, v1, sr, so):
        a = self.a
        a(base_expr); self.m0_clobber(); a("s_nop 0")
        a.vm(f"buffer_load_dwordx4 v{v0}, {srd(sr)}, {so} offen lds")
        return a.vm(f"buffer_load_dwordx4 v{v1}, {srd(sr)}, {so} offen offset:1024 lds")

    def t_early(self):
        a = self.a; o = self.o
        a(f"s_lshl_b32 s6, {sW}, 11")
        self.ctokA = self.slab(f"s_add_u32 m0, s6, {L_CA}", 34, 35, S_U1, "s73"); yield
        if o["codepf"]:
            a("s_getpc_b64 s[64:65]")
            a.label("Lpc0" + self.sfx)
            a(f"s_sub_u32 s64, s64, Lpc0{self.sfx}-{KNAME}"); a("s_subb_u32 s65, s65, 0")
            a(f"v_min_u32 v40, 2, {vLANE}")
            a(f"s_mul_i32 s6, {sJ}, 12"); a(f"s_mul_i32 s7, {sW}, 3"); a("s_add_u32 s6, s6, s7")
            a("v_add_u32 v40, s6, v40"); a("v_lshlrev_b32 v40, 7, v40")
            a(f"s_mov_b32 s66, Lcode_end-{KNAME}-4"); a("v_min_u32 v40, s66, v40")
            a.vm(f"global_load_dword {vDUM}, v40, s[64:65]"); yield

    DPPM = ("quad_perm:[1,0,3,2] row_mask:0xf", "quad_perm:[2,3,0,1] row_mask:0xf", "row_half_mirror row_mask:0xf",
            "row_mirror row_mask:0xf", "row_bcast:15 row_mask:0xa", "row_bcast:31 row_mask:0xc")
    def c_stats(self):
        a = self.a
        D = 64
        for r in range(2):
            for k in range(4):
                a(f"v_lshlrev_b32 v{D+8*r+2*k}, 16, v{16+4*r+k}"); a(f"v_and_b32 v{D+8*r+2*k+1}, 0xffff0000, v{16+4*r+k}")
        for k in range(1, 8):
            for r in range(2):
                d = D + 8*r; t = 80 + r
                a(f"v_add_f32 v{t}, v{d}, v{d+1}" if k == 1 else f"v_add_f32 v{t}, v{t}, v{d+k}")
        for mod in self.DPPM:
            for v in ("v80", "v81"): a(f"v_add_f32_dpp {v}, {v}, {v} {mod} bank_mask:0xf")
        a("v_readlane_b32 s78, v80, 63"); a("v_readlane_b32 s79, v81, 63")
        a("s_mov_b32 s66, 0x3b000000"); a("v_mov_b32 v82, s78"); a("v_mov_b32 v83, s79")
        a("v_mul_f32 v82, s66, v82"); a("v_mul_f32 v83, s66, v83")
        for k in range(8):
            for r in range(2): a(f"v_sub_f32 v{D+8*r+k}, v{D+8*r+k}, v{82+r}")
        for k in range(8):
            for r in range(2):
                d = D + 8*r; t = 80 + r
                a(f"v_mul_f32 v{t}, v{d}, v{d}" if k == 0 else f"v_fmac_f32 v{t}, v{d+k}, v{d+k}")
        for mod in self.DPPM:
            for v in ("v80", "v81"): a(f"v_add_f32_dpp {v}, {v}, {v} {mod} bank_mask:0xf")
        a("v_readlane_b32 s78, v80, 63"); a("v_readlane_b32 s79, v81, 63")
        a("v_mov_b32 v84, s78"); a("v_mov_b32 v85, s79"); a("v_mov_b32 v86, 0x3727c5ac")
        a("v_fma_f32 v84, v84, s66, v86"); a("v_fma_f32 v85, v85, s66, v86")
        a("v_rsq_f32 v84, v84"); a("v_rsq_f32 v85, v85")
        a(f"v_cmp_eq_u32 vcc, 1, {vLANE}"); a("v_mov_b32 v90, s60"); a("v_mov_b32 v91, s61")
        a("v_cndmask_b32 v88, v82, v83, vcc"); a("v_cndmask_b32 v89, v84, v85, vcc")
        a(f"v_cmp_gt_u32 vcc, 2, {vLANE}"); a(f"v_mov_b32 v87, {OOB}")
        a("s_lshl_b32 s6, s75, 4"); a(f"s_add_u32 s6, s6, {WS_STAT}")
        a(f"v_cndmask_b32 v86, v87, {vL16}, vcc")
        a.vm(f"buffer_store_dwordx4 v[88:91], v86, {srd(S_WS)}, s6 offen sc1")

    def t_cs(self, rnd):
        a = self.a
        A = rnd == "A"
        units = (0,) if A else (1, 2)
        FR, ONES, D0, AD, RES = 96, 104, 108, 92, 124
        if A: a(f"s_lshl_b32 s6, {sW}, 11"); a(f"s_add_u32 s6, s6, {L_CA}")
        else: a(f"s_add_u32 s6, {sWLDS}, {L_X}")
        a(f"v_add_u32 v{AD}, s6, {hSA}"); yield
        for k in range(4): a(f"v_mov_b32 v{ONES+k}, 0x3f803f80")
        yield
        a(f"v_and_b32 v{AD+1}, 31, {vLANE}"); a(f"v_lshlrev_b32 v{AD+1}, {3 if A else 4}, v{AD+1}")
        a(f"v_cmp_gt_u32 vcc, 32, {vLANE}"); a(f"v_mov_b32 v{AD+2}, {OOB}"); a("s_nop 0")
        a(f"v_cndmask_b32 v{AD+1}, v{AD+2}, v{AD+1}, vcc"); yield
        a.wait(vm=self.ctokA if A else self.ctokB)
        for ui, u in enumerate(units):
            for s in range(2):
                for q in range(2):
                    r = FR + s*4 + q*2
                    t = a.lg(f"ds_read_b64_tr_b16 v[{r}:{r+1}], v{AD} offset:{ui*2048 + (16*s + 4*q)*64}")
            yield self.f + 4
            a.wait(lg=t)
            for s in range(2):
                r = FR + s*4
                a(f"v_mfma_f32_32x32x16_bf16 v[{D0}:{D0+15}], v[{ONES}:{ONES+3}], v[{r}:{r+3}], {'0' if s == 0 else f'v[{D0}:{D0+15}]'}")
            yield self.f + 4
            a(f"v_mov_b32 v{RES+ui}, v{D0}"); yield
        a(f"s_lshl_b32 s6, {sCG}, 4"); a(f"s_add_u32 s6, s6, {sR}"); a("s_lshl_b32 s6, s6, 2"); a(f"s_add_u32 s6, s6, {sW}")
        a(f"s_lshl_b32 s6, s6, {8 if A else 9}"); a(f"s_add_u32 s6, s6, {WS_CSPA if A else WS_CSP}")
        if A:
            a(f"v_mov_b32 v{RES+1}, {vTAGL}")
            a.vm(f"buffer_store_dwordx2 v[{RES}:{RES+1}], v{AD+1}, {srd(S_WS)}, s6 offen sc1"); yield
        else:
            a(f"v_mov_b32 v{RES+2}, {vTAGL}"); a(f"v_mov_b32 v{RES+3}, {vTAGL}")
            a.vm(f"buffer_store_dwordx4 v[{RES}:{RES+3}], v{AD+1}, {srd(S_WS)}, s6 offen sc1"); yield
        self.log["cs_pub" + rnd + self.sfx] = self.f

    def t_csum(self, rnd, chk_f):
        a = self.a
        A = rnd == "A"
        B = 52; W = 2 if A else 4; AD = 92
        SB, ST = "s68", "s69"
        a(f"v_and_b32 v{AD}, 31, {vLANE}"); a(f"v_lshlrev_b32 v{AD}, {3 if A else 4}, v{AD}")
        a(f"v_lshrrev_b32 v{AD+1}, 5, {vLANE}"); a(f"v_lshl_add_u32 v{AD}, v{AD+1}, {10 if A else 11}, v{AD}"); yield
        a(f"s_lshl_b32 s6, {sCG}, {14 if A else 15}"); a(f"s_lshl_b32 s7, {sW}, {8 if A else 9}"); a("s_add_u32 s6, s6, s7")
        a(f"s_add_u32 {SB}, s6, {WS_CSPA if A else WS_CSP}"); yield
        def loads():
            return [f"s_add_u32 {ST}, {SB}, {i*(2048 if A else 4096)}\nbuffer_load_dwordx{W} v[{B+W*i}:{B+W*i+W-1}], v{AD}, {srd(S_WS)}, {ST} offen sc1" for i in range(8)]
        for t in loads():
            yield from self.vmslot()
            l0, l1 = t.split("\n"); a(l0); tok = a.vm(l1); yield
        yield max(chk_f, self.f + 24)
        tg = W - 1
        cmp = f"v_cmp_eq_u32 vcc, v{B+tg}, {vTAGL}\n"
        for i in range(1, 8): cmp += f"v_cmp_eq_u32 s[64:65], v{B+tg+W*i}, {vTAGL}\ns_and_b64 vcc, vcc, s[64:65]\n"
        self.log["cs_chk" + rnd + self.sfx] = self.f
        self.poll_check(tok, cmp.strip(), "\n".join(loads()), "csp" + rnd)
        nv = 1 if A else 2
        for i in range(1, 8):
            for k in range(nv): a(f"v_add_f32 v{B+k}, v{B+k}, v{B+W*i+k}")
            yield
        T = B + 4
        for k in range(nv): a(f"v_mov_b32 v{T+k}, v{B+k}")
        for k in range(nv): a(f"v_permlane32_swap_b32 v{B+k}, v{T+k}")
        for k in range(nv): a(f"v_add_f32 v{B+k}, v{B+k}, v{T+k}")
        yield
        for k in range(nv): a(f"v_cvt_pk_bf16_f32 v{T+k}, v{B+k}, v{B+k}")
        for k in range(nv): a(f"v_lshlrev_b32 v{T+k}, 16, v{T+k}")
        for k in range(nv): a(f"v_sub_f32 v{T+k}, v{B+k}, v{T+k}")
        for k in range(nv): a(f"v_cvt_pk_bf16_f32 v{B+k}, v{B+k}, v{T+k}")
        yield
        a(f"s_lshl_b32 s6, {sW}, 7"); a(f"v_add_u32 v{AD+1}, s6, {hCSA}")
        if A: a.lg(f"ds_write_b32 v{AD+1}, v{B}")
        else:
            a.lg(f"ds_write_b32 v{AD+1}, v{B} offset:512")
            a(f"s_lshr_b32 s6, {sW}, 1"); a("s_lshl_b32 s6, s6, 7"); a(f"v_add_u32 v{AD+1}, s6, {hCSA}")
            a.lg(f"ds_write_b32 v{AD+1}, v{B+1} offset:1024")
        yield

    def t_stt(self, chk_f):
        a = self.a
        a(f"v_and_b32 v44, 31, {vLANE}"); a("v_lshlrev_b32 v45, 4, v44"); yield
        a(f"s_lshl_b32 s6, {sR}, 7"); a(f"s_lshl_b32 s7, {sW}, 5"); a("s_add_u32 s6, s6, s7")
        a("s_lshl_b32 s72, s6, 4"); a(f"s_add_u32 s72, s72, {WS_STAT}")
        txt = f"buffer_load_dwordx4 v[48:51], v45, {srd(S_WS)}, s72 offen sc1"
        tok = a.vm(txt)
        yield chk_f
        self.log["st_chk" + self.sfx] = self.f
        self.poll_check(tok, self.tagcmp(50), txt, "stp")
        a("v_sub_f32 v48, 0, v48")
        a("v_lshlrev_b32 v44, 3, v44"); a(f"s_lshl_b32 s6, {sW}, 8"); a(f"s_add_u32 s6, s6, {L_STT}"); a("v_add_u32 v44, s6, v44")
        a.lg("ds_write_b64 v44, v[48:49]"); yield

    def t_slabB(self):
        a = self.a
        yield from self.vmslot()
        self.slab(f"s_add_u32 m0, {sWLDS}, {L_X}", 36, 37, S_U2, "s74"); yield
        yield from self.vmslot()
        self.ctokB = self.slab(f"s_add_u32 m0, {sWLDS}, {L_X + 2048}", vU3[0], vU3[1], S_U3, "s75"); yield

    def publish(self, phase):
        a = self.a
        a.vm(f"buffer_store_dwordx2 v[{TAG}:{TAG+1}], {hL0}, {srd(S_WS)}, s77 offen offset:{phase*256} sc1")
        self.log[(self.par, "pub", phase)] = self.f

    def t_kv_tail(self):
        a = self.a; o = self.o
        a(f"v_lshrrev_b32 v38, 4, {vLANE}"); a("v_lshlrev_b32 v38, 3, v38")
        a(f"v_bfe_u32 v39, {vLANE}, 2, 2"); a("v_add_u32 v38, v38, v39"); yield
        a(f"s_movk_i32 s7, {KVP}"); a("v_mul_lo_u32 v38, v38, s7")
        a(f"v_and_b32 v39, 3, {vLANE}"); a("v_lshl_add_u32 v38, v39, 3, v38"); yield
        a(f"s_lshl_b32 s6, {sW}, 5"); a(f"s_add_u32 s6, s6, {L_KVS}"); a("v_add_u32 v38, s6, v38"); yield
        F = 52
        for ks in range(4):
            for tile in range(2):
                for q in range(2):
                    r = F + ks*8 + tile*4 + q*2
                    t = a.lg(f"ds_read_b64_tr_b16 v[{r}:{r+1}], v38 offset:{tile*128*KVP + (32*ks + 4*q)*KVP}")
                yield
        for k in range(4): a(f"v_mov_b32 v{84+k}, 0x3f803f80")
        yield self.int_end
        a.wait(lg=t)
        self.kv_reads_f = self.f
        for ks in range(4):
            pk = F + ks*8; vv = pk + 4
            a(f"v_mfma_f32_16x16x32_bf16 v[88:91], v[{vv}:{vv+3}], v[{pk}:{pk+3}], {'0' if ks == 0 else 'v[88:91]'}")
            a(f"v_mfma_f32_16x16x32_bf16 v[48:51], v[84:87], v[{pk}:{pk+3}], {'0' if ks == 0 else 'v[48:51]'}")
            yield
        a(f"s_lshl_b32 s6, {sM}, 2"); a(f"s_add_u32 s6, s6, {sW}")
        a("s_lshl_b32 s7, s6, 4"); a(f"s_add_u32 s7, s7, {sR}"); a("s_lshl_b32 s7, s7, 10"); a(f"s_add_u32 s73, s7, {WS_KVP}")
        a("s_lshl_b32 s7, s6, 10"); a(f"s_lshl_b32 s72, {sR}, 6"); a("s_add_u32 s7, s7, s72"); a(f"s_add_u32 s72, s7, {WS_KVZP}")
        a("s_lshl_b32 s7, s6, 7"); a(f"s_lshl_b32 s6, {sR}, 3"); a("s_add_u32 s7, s7, s6"); a(f"s_add_u32 s71, s7, {WS_KVF}")
        a(f"v_cmp_gt_u32 vcc, 16, {vLANE}"); a(f"v_mov_b32 v39, {OOB}"); a(f"v_lshlrev_b32 v38, 2, {vLANE}")
        a("v_cndmask_b32 v38, v39, v38, vcc")
        yield self.f + 2
        a.vm(f"buffer_store_dwordx4 v[88:91], {vL16}, {srd(S_WS)}, s73 offen sc1")
        tok = a.vm(f"buffer_store_dword v48, v38, {srd(S_WS)}, s72 offen sc1"); yield
        yield self.int_end + 16
        a.wait(vm=tok)
        a.vm(f"buffer_store_dwordx2 v[{TAG}:{TAG+1}], {hL0}, {srd(S_WS)}, s71 offen sc1")
        self.log[(0, "kvcnt")] = self.f
        yield

    def t_q_prep(self, chk_f):
        a = self.a
        a(f"s_lshl_b32 s6, {sM}, 2"); a(f"s_add_u32 s6, s6, {sW}")
        a("s_lshl_b32 s7, s6, 7"); a(f"s_add_u32 s71, s7, {WS_KVF}")
        a("s_lshl_b32 s7, s6, 14"); a(f"s_add_u32 s73, s7, {WS_KVP}")
        a("s_lshl_b32 s7, s6, 10"); a(f"s_add_u32 s75, s7, {WS_KVZP}")
        a(f"v_and_b32 v40, 15, {vLANE}"); a("v_lshlrev_b32 v40, 3, v40")
        txt = f"buffer_load_dwordx2 v[42:43], v40, {srd(S_WS)}, s71 offen sc1"
        tok = a.vm(txt)
        yield chk_f
        self.log[(1, "kvchk")] = self.f
        self.poll_check(tok, self.tagcmp(42), txt, "kvp")
        B = 52
        ztok = a.vm(f"buffer_load_dwordx4 v[116:119], {vL16}, {srd(S_WS)}, s75 offen sc1"); yield
        toks = []
        for r in range(16):
            yield from self.vmslot()
            if r % 4 == 0 and r: a("s_add_u32 s73, s73, 4096")
            toks.append(a.vm(f"buffer_load_dwordx4 v[{B+4*r}:{B+4*r+3}], {vL16}, {srd(S_WS)}, s73 offen offset:{(r % 4)*1024} sc1")); yield
        yield self.int_end
        a.wait(vm=ztok)
        for mod in ("row_shr:4", "row_shr:8"):
            for k in range(4): a(f"v_add_f32_dpp v{116+k}, v{116+k}, v{116+k} {mod} row_mask:0xf bank_mask:0xf bound_ctrl:0")
            yield
        for k in range(4):
            a(f"v_mov_b32 v{120+k}, v{116+k}")
        for k in range(4): a(f"v_permlane16_swap_b32 v{116+k}, v{120+k}")
        for k in range(4): a(f"v_add_f32 v{116+k}, v{116+k}, v{120+k}")
        yield
        for k in range(4): a(f"v_mov_b32 v{120+k}, v{116+k}")
        for k in range(4): a(f"v_permlane32_swap_b32 v{116+k}, v{120+k}")
        for k in range(4): a(f"v_add_f32 v{116+k}, v{116+k}, v{120+k}")
        yield
        for r in range(1, 16):
            a.wait(vm=toks[r])
            for k in range(0, 4, 2): a(f"v_pk_add_f32 v[{B+k}:{B+k+1}], v[{B+k}:{B+k+1}], v[{B+4*r+k}:{B+4*r+k+1}]")
            yield
        a(f"s_mul_i32 s6, {sW}, 1280"); a(f"s_add_u32 s6, s6, {L_KVO}")
        a(f"v_lshrrev_b32 v40, 4, {vLANE}"); a("v_lshlrev_b32 v40, 8, v40"); a(f"v_and_b32 v41, 15, {vLANE}"); a("v_lshl_add_u32 v40, v41, 2, v40")
        a("v_add_u32 v40, s6, v40")
        for v in range(4): a.lg(f"ds_write_b32 v40, v{B+v} offset:{v*64}")
        a(f"v_and_b32 v41, 3, {vLANE}"); a("v_lshlrev_b32 v41, 4, v41"); a("v_add_u32 v41, s6, v41"); a("v_add_u32 v41, 1024, v41")
        a(f"v_and_b32 v42, 15, {vLANE}"); a("v_cmp_le_u32 vcc, 12, v42"); a(f"v_mov_b32 v43, {L_KVO + 4*1280}")
        a("v_cndmask_b32 v41, v43, v41, vcc")
        t = a.lg("ds_write_b128 v41, v[116:119]"); yield
        yield self.f + 3
        a(f"v_and_b32 v41, 31, {vLANE}"); a("v_min_u32 v41, 16, v41"); a(f"v_lshl_add_u32 v41, v41, 6, {hG16}"); a("v_add_u32 v41, s6, v41")
        a.wait(lg=t)
        a.lg("ds_read_b128 v[52:55], v41"); t = a.lg("ds_read_b128 v[56:59], v41 offset:32"); yield
        yield self.f + 3
        a.wait(lg=t)
        for k in range(4): a(f"v_cvt_pk_bf16_f32 v{60+k}, v{52+2*k}, v{53+2*k}")
        a(f"s_lshl_b32 s6, {sW}, 10"); a(f"s_add_u32 s6, s6, {L_KVZ}"); a(f"v_add_u32 v41, s6, {vL16}")
        a.lg("ds_write_b128 v41, v[60:63]"); yield

    def qget(self, i, dst):
        reg = (sQA, sQB, sQC)[i // 4]
        self.a(f"s_bfe_u32 {dst}, {reg}, {(8 << 16) | (8*(i % 4))}")
    def t_s2_q(self):
        a = self.a
        a(f"s_lshr_b32 s68, {sJ}, 2"); a(f"s_add_u32 s68, s68, {sC2}"); a("s_and_b32 s68, s68, 7")
        tab = sum(((k % 3) << (2*k)) for k in range(12))
        a(f"s_lshl_b32 s69, s68, 1"); a(f"s_lshr_b32 s69, {tab}, s69"); a("s_and_b32 s69, s69, 3"); yield
        for i in range(9):
            reg = (sQA, sQB, sQC)[i // 4]
            if i < 2:
                a(f"s_add_u32 s6, s68, {i}"); a("s_and_b32 s6, s6, 1"); a("s_lshl_b32 s6, s6, 3")
                a(f"s_lshl_b32 s7, {sW}, 1"); a("s_add_u32 s6, s6, s7"); a("s_add_u32 s6, s6, 8")
            elif i < 6:
                a(f"s_add_u32 s6, s68, {i-2}"); a("s_and_b32 s6, s6, 3"); a("s_lshl_b32 s6, s6, 2"); a(f"s_add_u32 s6, s6, {sW}")
                a("s_lshl_b32 s7, s6, 1"); a("s_sub_u32 s7, s7, 7"); a("s_cmp_lt_u32 s6, 8"); a("s_cselect_b32 s6, s6, s7")
            else:
                a(f"s_add_u32 s6, s69, {i-6}"); a("s_sub_u32 s7, s6, 3"); a("s_cmp_lt_u32 s6, 3"); a("s_cselect_b32 s6, s6, s7")
                a("s_lshl_b32 s6, s6, 2"); a(f"s_add_u32 s6, s6, {sW}"); a("s_add_u32 s6, s6, 24")
            if i % 4 == 0: a(f"s_mov_b32 {reg}, s6")
            else: a(f"s_lshl_b32 s6, s6, {8*(i % 4)}"); a(f"s_or_b32 {reg}, {reg}, s6")
            yield
    def s2_w_dma(self, i):
        a = self.a
        self.qget(i, "s6")
        if i < 6: sr = S_WD
        else:
            sr = S_U1
            a("s_cmp_lt_u32 s6, 28")
            a(f"s_cselect_b32 s{S_U1}, s{S_WD}, s{S_WO}"); a(f"s_cselect_b32 s{S_U1+1}, s{S_WD+1}, s{S_WO+1}")
            a(f"s_cselect_b32 s{S_U1+2}, s{S_WD+2}, s{S_WO+2}")
            a("s_cselect_b32 s7, 0, 28"); a("s_sub_u32 s6, s6, s7")
        a("s_lshl_b32 s6, s6, 16"); a(f"s_lshl_b32 s7, {sC2}, 7"); a("s_add_u32 s74, s6, s7"); yield
        base = W2SLOT[i % 4]
        for g in range(2):
            for k in range(4):
                if i < 3: yield from self.vmslot()
                if k == 0 or self.m0_owner != ("w2", i, g):
                    a(f"s_add_u32 m0, {sW8K}, {base + g*4096}")
                    if k == 0 and g == 1: a("s_add_u32 s74, s74, 32768")
                    self.m0_owner = ("w2", i, g)
                self.w2tok[i] = a.vm(f"buffer_load_dwordx4 v{vW2[k]}, {srd(sr)}, s74 offen{' offset:%d' % (1024*k) if k else ''} lds"); yield
    def flag_issue(self, phase):
        a = self.a
        if phase == 0:
            a(f"v_bfe_u32 {vPOLL}, {vLANE}, 1, 3"); a(f"v_lshlrev_b32 {vPOLL}, 2, {vPOLL}")
            a(f"v_and_b32 v{FLD}, 1, {vLANE}"); a(f"v_add_u32 {vPOLL}, {vPOLL}, v{FLD}"); a(f"v_add_u32 {vPOLL}, 2, {vPOLL}")
            a(f"v_lshlrev_b32 {vPOLL}, 3, {vPOLL}")
        else:
            a(f"v_and_b32 {vPOLL}, 31, {vLANE}"); a(f"v_lshlrev_b32 {vPOLL}, 3, {vPOLL}")
        a(f"s_mul_i32 s72, {sT}, 768"); a(f"s_add_u32 s72, s72, {WS_HF + phase*256}")
        self.fl_txt = f"buffer_load_dwordx2 v[{FLD}:{FLD+1}], {vPOLL}, {srd(S_WS)}, s72 offen sc1"
        self.fltok = a.vm(self.fl_txt)
    def flag_check(self, phase):
        self.log[(self.par, "chk", phase)] = self.f
        self.poll_check(self.fltok, self.tagcmp(FLD), self.fl_txt, f"fl{phase}")

    def vmslot(self):
        while self.a.vm_issued - self.int_vm0 >= self.int_cap: yield self.int_end
    def h_interval(self, f0, n, extras, budget=None, cap=None):
        a = self.a
        nfix = sum(len(extras.get(f0 + g, [])) for g in range(n))
        self.int_vm0 = a.vm_issued + nfix*0; self.int_end = f0 + n
        self.int_cap = (cap or self.o.get("vmcap", 8))
        self.int_vm0 = a.vm_issued
        for g in range(n):
            self.f = f0 + g
            start = len(a.lines)
            for fn in extras.get(f0 + g, []): fn()
            self.pump(self.f, start, budget or self.o["hbudget"])

    def helper(self, par):
        a = self.a; o = self.o
        self.par = par; self.sfx = f"_{par}"
        who = f"h{par}"
        self.tasks = []; self.w2tok = {}
        self.kvz_done = False
        ex = {}
        def at(f, fn): ex.setdefault(f, []).append(fn)
        def spread(maker, positions):
            hd = {}
            def get(i):
                if "p" not in hd: hd["p"] = maker()
                hd["p"][i]()
            for i, pos in enumerate(positions): at(pos, (lambda i=i: get(i)))
        spread(lambda: self.dma_x_parts(2), (0, 1, 2, 3)); spread(lambda: self.dma_w_parts(2), (4, 5, 6, 7))
        spread(lambda: self.dma_w_parts(3), (10, 12, 14, 16))
        for G in range(0, 16):
            spread(lambda G=G: self.dma_w_parts(G+4), [16*G + 10 + p for p in ((1, 5, 9, 13) if G == 0 else (0, 2, 4, 6))] if G > 0 else [18, 20, 22, 24])
        for G in range(0, 5):
            spread(lambda G=G: self.dma_x_parts(G+3), [16*G + 10 + p for p in (1, 3, 5, 7)])
        self.spawn(self.t_early(), 0, "early")
        self.spawn(self.t_cs("A"), o.get("cs_f", 28), "csA")
        self.log["st_pub" + self.sfx] = 0
        self.spawn(self.t_csum("A", o.get("csumA_chk", 100)), o.get("csumA_f", 72), "csumA")
        self.spawn(self.t_stt(o.get("st_chk", 104)), o.get("stt_f", 80), "stt")
        self.spawn(self.t_slabB(), o.get("slabB_f", 106), "slabB")
        self.spawn(self.t_cs("B"), o.get("csB_f", 130), "csB")
        self.spawn(self.t_csum("B", o.get("csumB_chk", 210)), o.get("csumB_f", 180), "csumB")
        if o.get("hprio", 0): a(f"s_setprio {o['hprio']}")
        a.wait(vm=self.wtok[0])
        self.barrier(who, "P0")
        self.h_interval(0, 10, ex)
        for G in range(20):
            self.f = 16*G + 9
            if G + 1 < 20: a.wait(vm=self.wtok[G+1])
            if G + 1 < 8: a.wait(vm=self.xtok[G+1])
            if G == 7: self.finish("csumA"); self.finish("stt"); a.wait_all(vm=False)
            if G == 15: self.finish("csumB"); a.wait_all(vm=False)
            if G == 17: self.flag_check(0)
            if G == 19:
                if par == 1: self.finish("qprep"); a.wait_all(vm=False)
            self.barrier(who, f"B{G}")
            self.f = 16*G + 10
            if G == o.get("pub0_G", 9) and par == 1: self.publish(0)
            if G == 9 and par == 0:
                assert not self.active("csB"), "csB must be finished before the kv tail"
                self.spawn(self.t_kv_tail(), self.f, "kvtail", front=True)
            if G == o.get("pub1_G", 17): self.publish(1)
            if G == 10: self.spawn(self.s2_w_dma(0), self.f, "w2_0")
            if G == 11 and par == 0: assert self.kv_reads_f < 180, "kv tail fragments overlap csumB registers"
            if G == 16 and par == 1: assert not self.active("csumB")
            if G == 15: self.flag_issue(0)
            if G == 17:
                self.spawn(self.s2_w_dma(1), self.f, "w2_1")
            if G == o.get("qprep_G", 15) and par == 1: self.spawn(self.t_q_prep(self.f + o.get("kvchk_gap", 17)), self.f, "qprep")
            if G == 19: self.spawn(self.s2_w_dma(2), self.f, "w2_2")
            if G < 19: self.h_interval(16*G + 10, 16, ex, cap=(10 if G >= 16 else None), budget=(5 if G >= 16 else None))
        self.h_interval(314, 6, ex)
        self.barrier(who, "H0")
        if par == 0: assert not self.active("kvtail"), "kv tail still running at H0"
        self.spawn(self.s2_w_dma(3), self.f, "w2_3")
        self.flag_issue(1)
        base = 336
        for i in range(9):
            self.h_interval(base + 16*i - 16, 16, ex, budget=8)
            self.f = base + 16*i
            self.finish(f"w2_{i}")
            a.wait(vm=self.w2tok[i])
            if i + 2 == 2: self.flag_check(1)
            if i + 2 == 6: self.flag_check(2)
            self.barrier(who, f"S{i}")
            self.f = base + 16*i + 1
            if i == o.get("pub2_i", 2): self.publish(2)
            if i == 3: self.flag_issue(2)
            if i >= 1 and i + 3 < 9: self.spawn(self.s2_w_dma(i + 3), self.f, f"w2_{i+3}")
        a("s_cmp_eq_u32 s2, 0"); a("s_cselect_b64 vcc, -1, 0"); a(f"s_cmp_eq_u32 {sW}, 0"); a("s_cselect_b64 vcc, vcc, 0")
        a(f"v_mov_b32 v40, {OOB}"); a("s_nop 0"); a(f"v_cndmask_b32 v40, v40, {hL0}, vcc")
        a.vm(f"buffer_store_dwordx2 v[{TAG}:{TAG+1}], v40, {srd(S_WS)}, 0 offen sc1")
        self.prof_out(4)
        a("s_endpgm")

    def c_lane_consts(self):
        a = self.a
        a(f"v_and_b32 v56, 31, {vLANE}"); a(f"v_lshrrev_b32 v57, 5, {vLANE}"); a(f"v_bfe_u32 v58, {vLANE}, 2, 2")
        a(f"v_and_b32 v59, 3, {vLANE}"); a(f"v_bfe_u32 v60, {vLANE}, 4, 1")
        a("v_lshlrev_b32 v61, 5, v60"); a("v_lshl_add_u32 v61, v59, 3, v61")
        a("v_lshrrev_b32 v62, 1, v58"); a("v_lshlrev_b32 v62, 6, v62")
        a("v_lshl_add_u32 v63, v57, 3, v58")
        a("v_lshlrev_b32 v64, 7, v63")
        a("v_xor_b32 v65, v61, v62"); a(f"v_add_u32 {cWA[0][0]}, v64, v65")
        a("v_or_b32 v65, 64, v61"); a("v_xor_b32 v65, v65, v62"); a(f"v_add_u32 {cWA[0][1]}, v64, v65")
        a(f"v_add_u32 {cWA[1][0]}, 0x10000, {cWA[0][0]}"); a(f"v_add_u32 {cWA[1][1]}, 0x10000, {cWA[0][1]}")
        a("v_lshlrev_b32 v64, 6, v63"); a(f"v_add_u32 {cSA[0]}, v64, v61"); a(f"v_add_u32 {cSA[1]}, 0x10000, {cSA[0]}")
        a("v_bfe_u32 v64, v56, 1, 3"); a("v_xor_b32 v64, v64, v57")
        a("v_lshlrev_b32 v65, 7, v56"); a(f"s_add_u32 s7, {sWLDS}, {L_X}"); a("v_add_u32 v65, s7, v65")
        for s in range(4):
            a(f"v_xor_b32 v66, {2*s}, v64"); a(f"v_lshl_add_u32 {cXA[s]}, v66, 4, v65")
        a(f"v_lshlrev_b32 {cG16}, 4, v57")
        a(f"v_lshlrev_b32 {cCSA}, 2, v56"); a(f"v_add_u32 {cCSA}, {L_CST}, {cCSA}")
        a(f"v_mov_b32 v{BAUG+2}, 0"); a(f"v_mov_b32 v{BAUG+3}, 0")
        a("v_lshrrev_b32 v64, 3, v0"); a("v_and_b32 v65, 7, v0")
        a(f"v_lshlrev_b32 {cOUT}, 10, v64"); a(f"v_lshl_add_u32 {cOUT}, v65, 4, {cOUT}")

    def c_setup(self):
        a = self.a
        a("s_waitcnt lgkmcnt(0)")
        a.protect = set()
        a(f"s_lshl_b32 s6, {sR}, 7"); a(f"s_lshl_b32 s7, {sCG}, 3"); a("s_add_u32 s6, s6, s7")
        a(f"s_lshl_b32 s7, {sW}, 1"); a("s_add_u32 s75, s6, s7"); a("s_lshl_b32 s6, s75, 10")
        a.vm(f"buffer_load_dwordx4 v[16:19], {vL16}, {srd(S_X)}, s6 offen")
        a.vm(f"buffer_load_dwordx4 v[20:23], {vL16}, {srd(S_X)}, s6 offen offset:1024")
        a(f"s_load_dwordx2 s[60:61], s[{S_WS}:{S_WS+1}], 0")
        a("s_mov_b32 s71, 0x3fb8aa3b"); a("s_mov_b32 s72, 0x358637bd")
        a(f"s_mul_i32 s76, {sR2}, 36"); a(f"s_lshl_b32 s77, {sHALF}, 13"); a(f"s_add_u32 s77, s77, {WS_H}")
        for _ in self.t_s2_q(): pass
        self.c_lane_consts()
        a("s_waitcnt vmcnt(0) lgkmcnt(0)")
        a("s_add_u32 s60, s60, 1"); a("s_addc_u32 s61, s61, 0")
        self.c_stats()

    def finfo(self, f):
        if f < NF1:
            G, m = divmod(f, 16)
            if G < 16:
                c = G % 8; s = m // 4; tile = m % 4; ks = c*4 + s
            else:
                s = m // 2; tile = m % 2; ks = (G-16)*8 + s
            return dict(phi=f, acc=ACC + 16*tile, b=ks*4, first=(ks == 0))
        i, m = divmod(f - NF1, 16)
        s, r = divmod(m, 4); cb, rf = divmod(r, 2)
        return dict(phi=NF1 + 8*i + 2*s + cb, acc=ACC + (cb*2+rf)*16, b=(i % 3)*32 + rf*16 + s*4, first=(i == 0 and s == 0), chunk=i, m=m)
    def phi_first_use(self, phi): return phi if phi < NF1 else NF1 + 2*(phi - NF1)
    def frag_read(self, phi):
        a = self.a
        r = RING + 4*(phi % NFR)
        if phi < NF1:
            G, m = divmod(phi, 16)
            slot = G % NW; rng = slot // 4; sb = (slot % 4)*16384
            if G < 16:
                s = m // 4; cbk = m % 4; panel, cb = divmod(cbk, 2)
                base = cWA[rng][cb]; imm = [sb + panel*8192 + (16*s + 4*q)*128 for q in range(2)]
            else:
                s = m // 2; b = m % 2
                base = cSA[rng]; imm = [sb + b*8192 + (16*s + 4*q)*64 for q in range(2)]
        else:
            i, r2 = divmod(phi - NF1, 8); s, cb = divmod(r2, 2)
            so = W2SLOT[i % 4]
            base = cB2[cb] if so < 0x10000 else cB2H[cb]
            imm = [(so % 0x10000) + (16*s + 8*q)*128 for q in range(2)]
        a.lg(f"ds_read_b64_tr_b16 v[{r}:{r+1}], {base} offset:{imm[0]}")
        self.ftok[phi] = a.lg(f"ds_read_b64_tr_b16 v[{r+2}:{r+3}], {base} offset:{imm[1]}")
    def x_read(self, c, s):
        r = (c*4 + s)*4
        self.xrtok[c] = self.a.lg(f"ds_read_b128 a[{r}:{r+3}], {cXA[s]} offset:{(c % 3)*16384}")

    def c_run(self, f0, f1, ex, fend):
        a = self.a
        for f in range(f0, f1):
            inf = self.finfo(f)
            self.stamp(f"f{f}")
            ph = inf["phi"]
            nxt = ph + 1
            a.wait(lg=self.ftok[nxt] if (nxt in self.ftok and f % 2 == 0 and f < NF1) else self.ftok[ph])
            if f < 128 and f % 16 == 0: a.wait(lg=self.xrtok[f // 16])
            if f >= NF1 and inf["m"] == 0: a.wait(vm=self.htok[inf["chunk"]])
            r = RING + 4*(ph % NFR)
            acc = f"v[{inf['acc']}:{inf['acc']+15}]"
            a(f"v_mfma_f32_32x32x16_bf16 {acc}, v[{r}:{r+3}], a[{inf['b']}:{inf['b']+3}], {'0' if inf['first'] else acc}")
            for fn in ex.get(f, []): fn()
            fu = f + LOOK
            if fu < fend:
                p = self.finfo(fu)["phi"]
                if self.phi_first_use(p) == fu: self.frag_read(p)
    def c_prime(self, f0):
        for f in range(f0, f0 + LOOK):
            p = self.finfo(f)["phi"]
            if self.phi_first_use(p) == f: self.frag_read(p)

    def aug(self, p, ntile):
        a = self.a
        toks = []
        for t in range(ntile):
            g = RING + 4*t; off = (p*128 + 32*t)*4
            a.lg(f"ds_read_b32 v{g}, {cCSA} offset:{off}")
            toks.append(a.lg(f"ds_read_b32 v{g+1}, {cCSA} offset:{off}"))
            a(f"v_mov_b32 v{g+2}, 0"); a(f"v_mov_b32 v{g+3}, 0")
        for t in range(ntile):
            g = RING + 4*t; A = ACC + 16*t
            a.wait(lg=toks[t])
            a(f"v_mfma_f32_32x32x16_bf16 v[{A}:{A+15}], v[{g}:{g+3}], v[{BAUG}:{BAUG+3}], v[{A}:{A+15}]")
    def hbase_q(self, q):
        a = self.a
        a(f"s_mul_i32 s7, {sR}, 36"); a(f"s_add_u32 s7, s7, {q}")
        a("s_lshl_b32 s7, s7, 2"); a(f"s_add_u32 s7, s7, {sW}")
        a("s_lshl_b32 s7, s7, 12"); a(f"s_add_u32 {sHB}, s7, {WS_H}")
    def ffn_block(self, tg, tu, dst):
        a = self.a
        for k in range(16): a(f"v_max_f32 v{tg+k}, 0, v{tg+k}")
        for k in range(0, 16, 2): a(f"v_pk_mul_f32 v[{tg+k}:{tg+k+1}], v[{tg+k}:{tg+k+1}], v[{tu+k}:{tu+k+1}]")
        for k in range(8): a(f"v_cvt_pk_bf16_f32 v{dst+k}, v{tg+2*k}, v{tg+2*k+1}")
    def epi_ffn(self, p):
        a = self.a
        self.aug(p, 4)
        a(f"s_lshl_b32 s6, {sM}, 1"); a(f"s_add_u32 s6, s6, {8 if p == 0 else 9}")
        if p == 1: a(f"s_cmp_eq_u32 {sPAR}, 0"); a(f"s_cselect_b32 s6, {sM}, s6")
        self.hbase_q("s6")
        for cb in range(2):
            d = 32 + 8*cb
            self.ffn_block(ACC + 16*cb, ACC + 32 + 16*cb, d)
            for h in range(2):
                a.vm(f"buffer_store_dwordx4 v[{d+4*h}:{d+4*h+3}], {vL16}, {srd(S_WS)}, {sHB} offen offset:{(2*cb+h)*1024} sc1")
    def epi_side(self):
        a = self.a
        self.aug(2, 2)
        a(f"s_lshr_b32 s6, {sM}, 1"); a("s_add_u32 s6, s6, 24"); self.hbase_q("s6")
        a(f"s_and_b32 s6, {sM}, 1"); a("s_lshl_b32 s6, s6, 11"); a(f"s_add_u32 {sHB}, {sHB}, s6")
        self.ffn_block(ACC, ACC + 16, 32)
        for h in range(2):
            a.vm(f"buffer_store_dwordx4 v[{32+4*h}:{32+4*h+3}], {vL16}, {srd(S_WS)}, {sHB} offen offset:{h*1024} sc1")
    def phi_tile(self, T):
        a = self.a
        for h in range(2):
            B = T + 8*h
            for k in range(8): a(f"v_mul_f32 v{TMP+k}, {cRL}, v{B+k}")
            for k in range(8): a(f"v_exp_f32 v{TMP+k}, v{TMP+k} clamp")
            for k in range(8): a(f"v_fma_f32 v{B+k}, v{B+k}, {cRSTD}, s72")
            for k in range(8): a(f"v_max_f32 v{B+k}, s72, v{B+k}")
            for k in range(0, 8, 2): a(f"v_pk_add_f32 v[{B+k}:{B+k+1}], v[{B+k}:{B+k+1}], v[{TMP+k}:{TMP+k+1}]")
    def epi_kv(self):
        a = self.a
        self.aug(0, 4)
        a(f"v_and_b32 v32, 31, {vLANE}"); a(f"s_lshl_b32 s6, {sW}, 5"); a("v_add_u32 v32, s6, v32")
        a(f"s_movk_i32 s7, {KVP}"); a("v_mul_lo_u32 v32, v32, s7")
        a(f"v_lshrrev_b32 v33, 1, {cG16}"); a("v_add_u32 v32, v32, v33"); a(f"v_add_u32 v32, {L_KVS}, v32")
        a(f"v_mov_b32 v34, {cRSTD}"); a(f"v_mov_b32 v35, {cRSTD}")
        for t in range(4):
            T = ACC + 16*t
            if t < 2: self.phi_tile(T)
            else:
                for k in range(0, 16, 2): a(f"v_pk_mul_f32 v[{T+k}:{T+k+1}], v[{T+k}:{T+k+1}], v[34:35]")
            for g4 in range(4):
                d = 36 + 2*g4
                a(f"v_cvt_pk_bf16_f32 v{d}, v{T+4*g4}, v{T+4*g4+1}"); a(f"v_cvt_pk_bf16_f32 v{d+1}, v{T+4*g4+2}, v{T+4*g4+3}")
            for g4 in range(4):
                d = 36 + 2*g4
                off = (t // 2)*128*KVP + (32*(t % 2) + 8*g4)*2
                a.lg(f"ds_write_b64 v32, v[{d}:{d+1}] offset:{off}")
    def epi_q(self):
        a = self.a
        self.aug(2, 2)
        a(f"s_add_u32 s6, {sM}, 28"); self.hbase_q("s6")
        toks = []
        a(f"v_add_u32 v44, {L_KVZ}, {vL16}")
        for h in range(4): toks.append(a.lg(f"ds_read_b128 v[{16+4*h}:{16+4*h+3}], v44 offset:{h*1024}"))
        for t in range(2):
            T = ACC + 16*t
            self.phi_tile(T)
            for k in range(8): a(f"v_cvt_pk_bf16_f32 v{32+8*t+k}, v{T+2*k}, v{T+2*k+1}") if t == 0 else a(f"v_cvt_pk_bf16_f32 v{TMP+k}, v{T+2*k}, v{T+2*k+1}")
        PQ = [32, 36, TMP, TMP + 4]
        a(f"v_mul_f32 v45, {cRSTD}, {cRSTD}")
        a.wait(lg=toks[-1])
        for h in range(4):
            d = ACC + 16*h
            a(f"v_mfma_f32_32x32x16_bf16 v[{d}:{d+15}], v[{16+4*h}:{16+4*h+3}], v[{PQ[h]}:{PQ[h]+3}], 0")
        for h in range(4):
            d = ACC + 16*h
            a(f"v_add_f32 v{d+8}, s72, v{d+8}"); a(f"v_mul_f32 v{d+8}, v{d+8}, v45"); a(f"v_rcp_f32 v{d+8}, v{d+8}")
            a(f"v_mov_b32 v{d+9}, v{d+8}")
            for k in range(0, 8, 2): a(f"v_pk_mul_f32 v[{d+k}:{d+k+1}], v[{d+k}:{d+k+1}], v[{d+8}:{d+9}]")
            for k in range(4): a(f"v_cvt_pk_bf16_f32 v{16+4*h+k}, v{d+2*k}, v{d+2*k+1}")
            a.vm(f"buffer_store_dwordx4 v[{16+4*h}:{16+4*h+3}], {vL16}, {srd(S_WS)}, {sHB} offen offset:{h*1024} sc1")
    def branch2(self, even, odd):
        a = self.a
        lo = a.newlabel("Lo"); lj = a.newlabel("Lj")
        a(f"s_cmp_eq_u32 {sPAR}, 0"); a(f"s_cbranch_scc0 {lo}")
        st = (a.vm_issued, a.lg_issued, a.vm_floor, a.lg_floor)
        even(); sa = (a.vm_issued, a.lg_issued)
        a(f"s_branch {lj}"); a.label(lo)
        a.vm_issued, a.lg_issued, a.vm_floor, a.lg_floor = st
        odd(); sb = (a.vm_issued, a.lg_issued)
        a.label(lj)
        a.vm_issued = min(sa[0], sb[0]); a.lg_issued = min(sa[1], sb[1])
        a.vm_floor = min(a.vm_floor, st[2]) if False else st[2]; a.lg_floor = st[3]
    def h_load(self, i):
        a = self.a
        parts = []
        def head():
            self.qget(i, "s6"); a("s_add_u32 s6, s6, s76"); a("s_lshl_b32 s6, s6, 14"); a("s_add_u32 s78, s6, s77"); a("s_add_u32 s79, s78, 4096")
        for rf in range(2):
            for s in range(4):
                def p(rf=rf, s=s):
                    if rf == 0 and s == 0: head()
                    r = (i % 3)*32 + rf*16 + s*4
                    self.htok[i] = a.vm(f"buffer_load_dwordx4 a[{r}:{r+3}], {vL16}, {srd(S_WS)}, {'s78' if rf == 0 else 's79'} offen offset:{s*1024} sc1")
                parts.append(p)
        return parts

    def compute(self):
        a = self.a; o = self.o
        who = "c"
        self.c_setup()
        self.ftok = {}; self.xrtok = {}; self.htok = {}
        ex = {}
        def at(f, fn): ex.setdefault(f, []).append(fn)
        for G in range(20):
            at(16*G + 9, lambda G=G: self.c_bar(G))
            if G < 7:
                for s in range(4): at(16*G + 11 + s, lambda G=G, s=s: self.x_read(G+1, s))
        for i, f0 in ((0, 290), (1, 303)):
            hd = {}
            def get(k, i=i, hd=hd):
                if "p" not in hd: hd["p"] = self.h_load(i)
                hd["p"][k]()
            for k in range(8): at(f0 + k + (k // 4), lambda k=k, get=get: get(k))
        self.barrier(who, "P0")
        self.stamp("go"); self.stamp("rtgo")
        for s in range(4): self.x_read(0, s)
        self.c_prime(0)
        self.c_run(0, 128, ex, 128)
        self.stamp("e1")
        a(f"v_and_b32 v44, 31, {vLANE}"); a("v_lshlrev_b32 v44, 3, v44"); a(f"s_lshl_b32 s6, {sW}, 8"); a(f"s_add_u32 s6, s6, {L_STT}"); a("v_add_u32 v44, s6, v44")
        t = a.lg("ds_read_b64 v[46:47], v44")
        a.wait(lg=t)
        a(f"v_mov_b32 {cRSTD}, v47"); a(f"v_mul_f32 {cRL}, s71, v47")
        a(f"v_cvt_pk_bf16_f32 v{BAUG}, v46, v46"); a(f"v_lshlrev_b32 v45, 16, v{BAUG}"); a("v_sub_f32 v45, v46, v45")
        a(f"v_cvt_pk_bf16_f32 v{BAUG+1}, v45, v45")
        a(f"v_cmp_gt_u32 vcc, 32, {vLANE}"); a("v_mov_b32 v45, 0"); a("s_nop 0")
        a(f"v_cndmask_b32 v{BAUG}, v45, v{BAUG}, vcc"); a(f"v_cndmask_b32 v{BAUG+1}, v45, v{BAUG+1}, vcc")
        self.branch2(self.epi_kv, lambda: self.epi_ffn(0))
        a.wait_all(vm=False)
        self.stamp("e1end")
        self.c_prime(128)
        self.c_run(128, 256, ex, 256)
        self.stamp("e2")
        self.epi_ffn(1)
        self.stamp("e2end")
        self.c_prime(256)
        self.c_run(256, 320, ex, 320)
        self.barrier(who, "H0")
        a(f"v_lshrrev_b32 v56, 5, {vLANE}"); a(f"v_bfe_u32 v57, {vLANE}, 2, 2"); a(f"v_and_b32 v58, 3, {vLANE}"); a(f"v_bfe_u32 v59, {vLANE}, 4, 1")
        a("v_lshlrev_b32 v60, 5, v59"); a("v_lshl_add_u32 v60, v58, 3, v60")
        a("v_lshrrev_b32 v58, 1, v57"); a("v_lshlrev_b32 v58, 6, v58")
        a("v_lshl_add_u32 v56, v56, 2, v57"); a("v_lshlrev_b32 v56, 7, v56"); a(f"v_add_u32 v56, {sW8K}, v56")
        a("v_xor_b32 v57, v60, v58"); a(f"v_add_u32 {cB2[0]}, v56, v57")
        a("v_or_b32 v60, 64, v60"); a("v_xor_b32 v57, v60, v58"); a(f"v_add_u32 {cB2[1]}, v56, v57")
        a(f"v_add_u32 {cB2H[0]}, 0x10000, {cB2[0]}"); a(f"v_add_u32 {cB2H[1]}, 0x10000, {cB2[1]}")
        self.stamp("e3")
        self.branch2(self.epi_side, self.epi_q)
        self.stamp("e3end")
        self.e3_mark = a.vm_issued
        ex2 = {}
        def at2(f, fn): ex2.setdefault(f, []).append(fn)
        for i in range(9):
            f0 = NF1 + 16*i
            if i > 0: at2(f0 - LOOK - 1, lambda i=i: self.c_sbar(i))
            if i + 2 < 9:
                hd = {}
                def get(k, i=i, hd=hd):
                    if "p" not in hd: hd["p"] = self.h_load(i + 2)
                    hd["p"][k]()
                for k in range(8): at2(f0 + 1 + k, lambda k=k, get=get: get(k))
        def resid():
            a(f"s_lshl_b32 s64, {sT}, 16"); a(f"s_lshl_b32 s7, {sC2}, 7"); a("s_add_u32 s64, s64, s7"); a("s_add_u32 s65, s64, 32768")
            a.vm(f"buffer_load_dwordx4 a[96:99], {cOUT}, {srd(S_X)}, s64 offen")
            a.vm(f"buffer_load_dwordx4 a[100:103], {cOUT}, {srd(S_X)}, s65 offen")
            a("v_lshrrev_b32 v56, 3, v0"); a("v_lshlrev_b32 v56, 4, v56")
            a(f"s_lshl_b32 s6, {sT}, 10"); a(f"s_add_u32 s6, s6, {WS_STAT + 4}")
            a.vm(f"buffer_load_dword v50, v56, {srd(S_WS)}, s6 offen sc1")
            self.xrtk = a.vm(f"buffer_load_dword v51, v56, {srd(S_WS)}, s6 offen offset:512 sc1")
        at2(NF1 + 16*7 + 2, resid)
        self.c_sbar(0)
        self.c_prime(NF1)
        self.c_run(NF1, NF, ex2, NF)
        self.final()

    def c_bar(self, G):
        a = self.a; o = self.o
        if G == o.get("pub0_G", 9) or G == o.get("pub1_G", 17): a.wait_all(lg=False)
        if G == 8: a.wait_all(vm=False)
        self.barrier("c", f"B{G}")
    def c_kv_read(self):
        a = self.a
        a(f"s_mul_i32 s6, {sW}, 1280"); a(f"s_add_u32 s6, s6, {L_KVO}"); a(f"v_lshlrev_b32 v{TMP}, 2, {vLANE}"); a(f"v_add_u32 v{TMP}, s6, v{TMP}")
        for v in range(5): self.kvrt = a.lg(f"ds_read_b32 v{TMP+1+v}, v{TMP} offset:{v*256}")
    def c_kv_atomics(self):
        a = self.a
        a(f"v_lshrrev_b32 v{TMP}, 4, {vLANE}"); a(f"v_lshlrev_b32 v{TMP}, 8, v{TMP}")
        a(f"v_and_b32 v{TMP+6}, 15, {vLANE}"); a(f"v_lshl_add_u32 v{TMP}, v{TMP+6}, 2, v{TMP}")
        a(f"v_lshlrev_b32 v{TMP+6}, 2, v{TMP+6}")
        a(f"v_cmp_gt_u32 vcc, 16, {vLANE}"); a(f"v_mov_b32 v{TMP+7}, {OOB}")
        a(f"s_lshl_b32 s64, {sCG}, 13"); a(f"s_mul_i32 s65, {sW}, {KVH}"); a("s_add_u32 s64, s64, s65"); a(f"s_add_u32 s64, s64, {WS_ACC + ACC_KV}")
        a(f"v_cndmask_b32 v{TMP+6}, v{TMP+7}, v{TMP+6}, vcc")
        a(f"s_cmp_eq_u32 {sPAR}, 0"); a("s_cselect_b64 vcc, -1, 0")
        a(f"v_cndmask_b32 v{TMP}, v{TMP+7}, v{TMP}, vcc"); a(f"v_cndmask_b32 v{TMP+6}, v{TMP+7}, v{TMP+6}, vcc")
        a.wait(lg=self.kvrt)
        for v in range(4): a.vm(f"buffer_atomic_add_f32 v{TMP+1+v}, v{TMP}, {srd(S_WS)}, s64 offen offset:{v*64} sc1")
        a.vm(f"buffer_atomic_add_f32 v{TMP+5}, v{TMP+6}, {srd(S_WS)}, s64 offen offset:1024 sc1")

    def c_sbar(self, i):
        a = self.a; o = self.o
        if i == o.get("pub2_i", 2):
            a(f"s_waitcnt vmcnt({min(63, self.younger_than_e3())})")
        self.barrier("c", f"S{i}")
    def younger_than_e3(self):
        return self.a.vm_issued - self.e3_mark

    def final(self):
        a = self.a
        self.stamp("loopend")
        a("s_barrier")
        a(f"v_and_b32 v56, 31, {vLANE}"); a("s_movk_i32 s7, 272"); a("v_mul_lo_u32 v56, v56, s7")
        a(f"v_add_u32 v56, v56, {cG16}"); a(f"s_mul_i32 s6, {sW}, 17408"); a("v_add_u32 v56, s6, v56")
        for cb in range(2):
            for rf in range(2):
                for t in range(4):
                    r = ACC + (cb*2+rf)*16 + 4*t
                    a.lg(f"ds_write_b128 v56, v[{r}:{r+3}] offset:{rf*8704 + cb*128 + t*32}")
        a("v_lshrrev_b32 v57, 3, v0"); a("v_mul_lo_u32 v57, v57, s7")
        a("v_and_b32 v58, 7, v0"); a("v_lshl_add_u32 v57, v58, 5, v57")
        a.wait_all(vm=False)
        a("s_barrier")
        toks = {}
        for it in range(2):
            for p in range(4):
                for hh in range(2):
                    r = 64 + it*32 + p*8 + hh*4
                    toks[it] = a.lg(f"ds_read_b128 v[{r}:{r+3}], v57 offset:{p*17408 + it*8704 + hh*16}")
        a.wait(vm=self.xrtk)
        for k in range(8): a(f"v_accvgpr_read_b32 v{16+k}, a{96+k}")
        for it in range(2):
            a.wait(lg=toks[it])
            b = 64 + it*32; x = 16 + 4*it
            for k in range(0, 8, 2):
                a(f"v_pk_add_f32 v[{b+k}:{b+k+1}], v[{b+k}:{b+k+1}], v[{b+8+k}:{b+8+k+1}]")
                a(f"v_pk_add_f32 v[{b+16+k}:{b+16+k+1}], v[{b+16+k}:{b+16+k+1}], v[{b+24+k}:{b+24+k+1}]")
            a(f"v_mul_f32 v58, v{50+it}, v{50+it}")
            for k in range(0, 8, 2): a(f"v_pk_add_f32 v[{b+k}:{b+k+1}], v[{b+k}:{b+k+1}], v[{b+16+k}:{b+16+k+1}]")
            for k in range(4):
                a(f"v_lshlrev_b32 v59, 16, v{x+k}"); a(f"v_and_b32 v60, 0xffff0000, v{x+k}")
                a(f"v_fma_f32 v{b+2*k}, v{b+2*k}, v58, v59"); a(f"v_fma_f32 v{b+2*k+1}, v{b+2*k+1}, v58, v60")
            for k in range(4): a(f"v_cvt_pk_bf16_f32 v{24+4*it+k}, v{b+2*k}, v{b+2*k+1}")
            a.vm(f"buffer_store_dwordx4 v[{24+4*it}:{24+4*it+3}], {cOUT}, {srd(S_OUT)}, {'s64' if it == 0 else 's65'} offen")
        self.stamp("end"); self.stamp("rtend")
        self.prof_out(0)
        a("s_endpgm")

    def prof_out(self, woff):
        if self.prof is None: return
        a = self.a
        a.wait_all()
        a(f"s_lshl_b32 s6, s2, 3"); a(f"s_add_u32 s6, s6, {sW}"); a(f"s_add_u32 s6, s6, {woff}"); a("s_lshl_b32 s6, s6, 7"); a(f"s_add_u32 s6, s6, {WS_PROF}")
        a(f"v_cmp_eq_u32 vcc, 0, {vLANE}"); a(f"v_mov_b32 v40, {OOB}"); a("v_mov_b32 v41, 0"); a("v_cndmask_b32 v40, v40, v41, vcc")
        for i in range(len(self.prof)):
            a(f"v_mov_b32 v42, s{84+2*i}"); a(f"v_mov_b32 v43, s{85+2*i}")
            a.vm(f"buffer_store_dwordx2 v[42:43], v40, {srd(S_WS)}, s6 offen offset:{i*8}")
            a("s_nop 1")

    def build(self):
        a = self.a
        self.bars = {}
        self.prologue()
        prot = set(a.protect)
        self.sfx = "_c"
        self.h_setup()
        st = (a.vm_issued, a.lg_issued, a.vm_floor, a.lg_floor)
        saved = (dict(self.xtok), dict(self.wtok)); m0s = (self.m0_owner, self.m0_val)
        a(f"s_cmp_eq_u32 {sPAR}, 0"); a("s_cbranch_scc0 Lhodd")
        self.helper(0)
        a.label("Lhodd")
        a.vm_issued, a.lg_issued, a.vm_floor, a.lg_floor = st
        self.xtok, self.wtok = dict(saved[0]), dict(saved[1]); self.m0_owner, self.m0_val = m0s; self.open_item = {}
        self.helper(1)
        a.label("Lcompute")
        a.vm_issued = a.lg_issued = a.vm_floor = a.lg_floor = 0
        a.protect = prot
        self.compute()
        a.label("Lend")
        a("s_endpgm")
        assert self.bars["c"] == self.bars["h0"] == self.bars["h1"], (self.bars["c"], self.bars["h0"])
        L = self.log
        print("schedule:", {str(k): v for k, v in sorted(L.items(), key=str)}, file=sys.stderr)
        for c in (0, 1):
            assert L[(1, "pub", 0)] < L[(c, "chk", 0)]
            for ph in (1, 2):
                for p in (0, 1): assert L[(p, "pub", ph)] < L[(c, "chk", ph)], ("order", ph, p, c)
            for d in (0, 1):
                assert L[f"cs_pubA_{c}"] < L[f"cs_chkA_{d}"] and L[f"cs_pubB_{c}"] < L[f"cs_chkB_{d}"] and L[f"st_pub_{c}"] < L[f"st_chk_{d}"]
        assert L[(0, "kvcnt")] < L[(1, "kvchk")]
        for e in self.slow: e()
        a.label("Lcode_end")
        a.finalize()
        return a.text()

HEADER = """; Kernarg layout for this problem (80 bytes, ptrs only, base s[0:1]):
; @launch grid=(256,1,1) block=(512,1,1) lds=%d
.amdgcn_target "amdgcn-amd-amdhsa--gfx950"
.text
.globl %s
.p2align 8
.type %s,@function
%s:
"""
FOOTER = """
.section .rodata,"a"
.p2align 6
.amdhsa_kernel %s
  .amdhsa_next_free_vgpr 256
  .amdhsa_next_free_sgpr 102
  .amdhsa_accum_offset 128
  .amdhsa_group_segment_fixed_size 0
  .amdhsa_kernarg_size 80
  .amdhsa_user_sgpr_count 2
  .amdhsa_user_sgpr_kernarg_segment_ptr 1
  .amdhsa_system_sgpr_workgroup_id_x 1
.end_amdhsa_kernel
"""
BLOCK = 512
def generate(prof=None, opts=None):
    g = Gen(prof=prof, opts=opts)
    body = g.build()
    return HEADER % (LDS_BYTES, KNAME, KNAME, KNAME) + body + "\n" + FOOTER % KNAME

if __name__ == "__main__":
    prof = None; opts = {}; out = None
    for x in sys.argv[1:]:
        if x.startswith("--prof="): prof = x[7:].split(",")
        elif x.startswith("--opt="):
            for kv in x[6:].split(","):
                k, v = kv.split("="); opts[k] = int(v)
        else: out = x
    txt = generate(prof, opts)
    path = out or "parallel_sum__linear_attn_block__glu_gated_reglu__prompt.s"
    open(path, "w").write(txt)
    print("wrote", path, len(txt), "bytes")
```

```python
import sys, os
sys.path.insert(0, os.path.dirname(os.path.abspath(__file__)))
from asmlib import Asm

KNAME = "parallel_sum__linear_attn_block__glu_gated_reglu__prompt_kernel"

WS_EPOCH = 0x0
WS_ZF    = 0x1000
WS_HF    = 0x2000
WS_STAT  = 0x10000
WS_ACC   = 0x20000
ACC_CNT_KV = 1408
ACC_KV     = 2048
KVH, KVR = 1088, 64
WS_CSP   = 0x40000
WS_CSPA  = 0xC0000
WS_H     = 0x100000
WS_KVP   = 0xA00000
WS_KVZP  = 0xA80000
WS_KVF   = 0xA90000
WS_PROF  = 0xF00000
OOB      = 0x7FFFFFF0

NW = 5
L_X    = 0x14000
L_CA   = 0x20000
L_KVS  = 0x14000
KVP    = 136
L_CST  = 0x24800
L_STT  = 0x24E00
L_KVZ  = 0x25400
L_KVO  = 0x26400
W2SLOT = [0x14000, 0x0, 0x8000, 0x1C000]
LDS_BYTES = 0x28000

LOOK = 6
NFR  = 8
NF1  = 320
NF   = NF1 + 144

S_X, S_WS, S_OUT, S_U1, S_U2, S_U3, S_WD, S_WO = 8, 12, 16, 20, 24, 28, 32, 36
def srd(b): return f"s[{b}:{b+3}]"
sC1B, sC2B, sP1, sP3, sC3B, sJ = "s40", "s41", "s42", "s43", "s44", "s45"
sW, sR, sCG, sM, sPAR, sWLDS = "s46", "s47", "s48", "s49", "s50", "s51"
sU1b, sU1c64, sU2b, sU3c64 = "s52", "s53", "s54", "s55"
sXB, sW8K = "s56", "s57"
sTAGL, sTAGH = "s60", "s61"
sACC = "s62"
sROT = "s4"
sQA, sQB, sQC = "s5", "s3", "s63"
sT, sC2, sR2, sHALF = "s80", "s81", "s82", "s83"
sHB = "s70"
vLANE, vL16 = "v1", "v2"

cWA = [["v3", "v4"], ["v5", "v6"]]
cSA = ["v7", "v8"]
cXA = ["v9", "v10", "v11", "v12"]
cB2 = ["v9", "v10"]; cB2H = ["v11", "v12"]
cRSTD, cRL, cG16, cCSA = "v13", "v14", "v15", "v48"
RING = 16
BAUG = 52
cOUT = "v49"
TMP = 56
ACC = 64
hSA = "v3"
vU1 = [4, 5, 6, 7]; vU2 = [8, 9, 10, 11]; vU3 = [12, 13, 14, 15]; vX = [16, 17, 18, 19]; vW2 = [20, 21, 22, 23]
hG16, hCSA, hL0, vPOLL, vDUM = "v24", "v25", "v26", "v27", "v28"
TAG = 30
vTAGL, vTAGH = "v30", "v31"
FLD = 32

class Task:
    def __init__(self, g, wake, name):
        self.g = g; self.wake = wake; self.done = False; self.name = name

class Gen:
    def __init__(self, prof=None, opts=None):
        self.a = Asm()
        self.slow = []
        self.prof = prof
        self.tasks = []
        self.log = {}
        self.o = dict(codepf=1, hbudget=3)
        if opts: self.o.update(opts)
        self.nbar = {"c": 0, "h0": 0, "h1": 0}
        self.m0_owner = None; self.m0_val = None; self.open_item = {}

    def stamp(self, name):
        if self.prof is None or name not in self.prof: return
        i = self.prof.index(name)
        assert i < 9
        op = "s_memrealtime" if name.startswith("rt") else "s_memtime"
        self.a(f"{op} s[{84+2*i}:{85+2*i}]")
    def spawn(self, g, wake, name, front=False):
        t = Task(g, wake, name)
        if front: self.tasks.insert(0, t)
        else: self.tasks.append(t)
        return t
    def step(self, t):
        try: r = next(t.g)
        except StopIteration:
            t.done = True; return
        if r is not None: t.wake = r
    def pump(self, f, start, budget):
        a = self.a
        while len(a.lines) - start < budget:
            t = next((t for t in self.tasks if not t.done and t.wake <= f), None)
            if t is None: break
            self.step(t)
        self.tasks = [t for t in self.tasks if not t.done]
    def finish(self, name):
        cap = getattr(self, "int_cap", 0); self.int_cap = 10**9
        for t in list(self.tasks):
            if t.name == name:
                while not t.done: self.step(t)
        self.int_cap = cap
        self.tasks = [t for t in self.tasks if not t.done]
    def active(self, name): return any(t.name == name and not t.done for t in self.tasks)
    def barrier(self, who, name):
        self.bars.setdefault(who, []).append(name)
        self.stamp(f"{who[0]}{name}_in")
        self.a("s_barrier")
        self.stamp(f"{who[0]}{name}_out")

    def poll_check(self, tok, cmp_lines, reissue, name="x"):
        a = self.a
        slow = a.newlabel("Lslow"); back = a.newlabel("Lback")
        self.stamp(name + "_in")
        a.wait(vm=tok)
        a(cmp_lines)
        a("s_cmp_eq_u64 vcc, -1")
        a(f"s_cbranch_scc0 {slow}")
        a.label(back)
        self.stamp(name + "_out")
        def emit():
            loop = a.newlabel("Lspin")
            a.label(slow)
            a("s_mov_b32 s66, 0x4000")
            a.label(loop)
            a("s_sleep 1")
            a(reissue)
            a("s_waitcnt vmcnt(0)")
            a(cmp_lines)
            a("s_cmp_eq_u64 vcc, -1")
            a(f"s_cbranch_scc1 {back}")
            a("s_sub_u32 s66, s66, 1")
            a("s_cmp_lg_u32 s66, 0")
            a(f"s_cbranch_scc1 {loop}")
            a(f"s_branch {back}")
        self.slow.append(emit)
    def tagcmp(self, d):
        return (f"v_cmp_eq_u32 vcc, v{d}, {vTAGL}\n"
                f"v_cmp_eq_u32 s[64:65], v{d+1}, {vTAGH}\n"
                f"s_and_b64 vcc, vcc, s[64:65]")
    def reset_track(self):
        a = self.a
        a.vm_floor = a.vm_issued; a.lg_floor = a.lg_issued

    def prologue(self):
        a = self.a
        a("s_cmp_ge_u32 s2, 256")
        a("s_cbranch_scc1 Lend")
        a(f"s_load_dwordx2 s[{S_X}:{S_X+1}], s[0:1], 0")
        a("s_load_dwordx2 s[64:65], s[0:1], 8")
        a("s_load_dwordx4 s[68:71], s[0:1], 32")
        a(f"s_load_dwordx2 s[{S_WS}:{S_WS+1}], s[0:1], 72")
        a(f"s_load_dwordx2 s[{S_WD}:{S_WD+1}], s[0:1], 48")
        a(f"s_load_dwordx2 s[{S_WO}:{S_WO+1}], s[0:1], 16")
        a(f"s_load_dwordx2 s[{S_OUT}:{S_OUT+1}], s[0:1], 56")
        a.protect = {("s", i) for i in (64, 65, 68, 69, 70, 71)}
        self.stamp("start"); self.stamp("rtstart")
        for b, size in ((S_X, 2097152), (S_WS, 0x10000000), (S_OUT, 2097152), (S_WD, 1792*1024), (S_WO, 524288), (S_U2, 512*3584)):
            a(f"s_mov_b32 s{b+2}, {size}"); a(f"s_mov_b32 s{b+3}, 0x00020000")
        a(f"s_mov_b32 s{S_U1+3}, 0x00020000"); a(f"s_mov_b32 s{S_U3+3}, 0x00020000")
        a(f"v_and_b32 {vLANE}, 63, v0")
        a("v_lshrrev_b32 v32, 6, v0")
        a(f"v_lshlrev_b32 {vL16}, 4, {vLANE}")
        a("v_readfirstlane_b32 s72, v32")
        a(f"s_and_b32 {sW}, s72, 3")
        a("s_and_b32 s3, s2, 7")
        a(f"s_lshr_b32 {sJ}, s2, 3")
        a("s_lshr_b32 s7, s3, 2"); a(f"s_lshl_b32 {sR}, s7, 3")
        a(f"s_lshr_b32 s7, {sJ}, 2"); a(f"s_add_u32 {sR}, {sR}, s7")
        a("s_and_b32 s7, s3, 3"); a(f"s_lshl_b32 {sCG}, s7, 2")
        a(f"s_and_b32 s7, {sJ}, 3"); a(f"s_add_u32 {sCG}, {sCG}, s7")
        a(f"s_lshr_b32 {sM}, {sCG}, 1"); a(f"s_and_b32 {sPAR}, {sCG}, 1")
        a(f"s_bfe_u32 {sHALF}, s3, {(1 << 16) | 1}"); a(f"s_lshl_b32 {sT}, {sR}, 1"); a(f"s_add_u32 {sT}, {sT}, {sHALF}")
        a(f"s_and_b32 {sC2}, s3, 1"); a(f"s_lshl_b32 {sC2}, {sC2}, 2"); a(f"s_and_b32 s7, {sJ}, 3"); a(f"s_add_u32 {sC2}, {sC2}, s7")
        a(f"s_mov_b32 {sR2}, {sR}")
        a(f"s_lshl_b32 {sWLDS}, {sW}, 12"); a(f"s_lshl_b32 {sW8K}, {sW}, 13")
        a("s_cmp_lt_u32 s72, 4")
        a("s_cbranch_scc1 Lcompute")

    def h_setup(self):
        a = self.a
        a(f"s_add_u32 s6, {sCG}, {sR}"); a(f"s_and_b32 {sROT}, s6, 3")
        a(f"s_lshl_b32 s6, {sR}, 7"); a(f"s_lshl_b32 s7, {sW}, 5"); a("s_add_u32 s6, s6, s7")
        a(f"s_lshl_b32 {sXB}, s6, 10")
        a(f"s_cmp_eq_u32 {sPAR}, 0")
        a("s_movk_i32 s6, 3072"); a("s_movk_i32 s7, 3584")
        a(f"s_cselect_b32 {sP1}, s6, s7"); a(f"s_cselect_b32 {sP3}, s7, s6")
        a(f"s_mov_b32 s6, {512*3072}"); a(f"s_mov_b32 s7, {512*3584}")
        a(f"s_cselect_b32 s{S_U1+2}, s6, s7"); a(f"s_cselect_b32 s{S_U3+2}, s7, s6")
        a(f"v_lshrrev_b32 v40, 5, {vLANE}"); a(f"v_bfe_u32 v41, {vLANE}, 2, 2"); a(f"v_and_b32 v42, 3, {vLANE}"); a(f"v_bfe_u32 v43, {vLANE}, 4, 1")
        a(f"v_lshrrev_b32 v44, 3, {vLANE}"); a(f"v_and_b32 v45, 7, {vLANE}")
        a(f"v_lshrrev_b32 v47, 4, {vLANE}"); a("v_xor_b32 v47, v45, v47"); a("v_lshlrev_b32 v47, 4, v47")
        a(f"v_lshl_add_u32 v{vX[0]}, v44, 10, v47")
        a(f"v_xor_b32 v47, 64, v{vX[0]}")
        a(f"v_add_u32 v{vX[1]}, {7*1024}, v47"); a(f"v_add_u32 v{vX[2]}, {14*1024}, v{vX[0]}"); a(f"v_add_u32 v{vX[3]}, {21*1024}, v47")
        a("v_lshlrev_b32 v46, 2, v43"); a("v_xor_b32 v46, v45, v46"); a("v_lshlrev_b32 v46, 4, v46")
        a(f"v_mul_lo_u32 v47, v44, {sP1}"); a(f"v_add_u32 v{vU1[0]}, v47, v46")
        a(f"s_lshl_b32 s6, {sP1}, 3"); a("s_sub_u32 s6, s6, 1024")
        for i in range(1, 4): a(f"v_add_u32 v{vU1[i]}, s6, v{vU1[i-1]}")
        a(f"s_lshr_b32 s72, {sW}, 1")
        a("s_lshl_b32 s73, s72, 10"); a("s_add_u32 s73, s73, 1024")
        a(f"s_lshl_b32 s7, {sM}, 7"); a("s_add_u32 s73, s73, s7")
        a(f"s_lshl_b32 s6, {sM}, 8"); a("s_add_u32 s6, s6, 1024")
        a(f"s_cmp_eq_u32 {sPAR}, 0"); a(f"s_cselect_b32 {sC1B}, s73, s6")
        a("s_add_u32 s6, s6, 128")
        a(f"s_cmp_eq_u32 {sPAR}, 0"); a(f"s_cselect_b32 {sC2B}, s7, s6")
        a(f"s_lshr_b32 s6, {sM}, 1"); a("s_lshl_b32 s6, s6, 7"); a("s_add_u32 s6, s6, 3072")
        a(f"s_and_b32 s73, {sM}, 1"); a("s_lshl_b32 s73, s73, 6"); a("s_add_u32 s6, s6, s73")
        a("s_lshl_b32 s73, s72, 6"); a("s_add_u32 s73, s73, s7")
        a(f"s_cmp_eq_u32 {sPAR}, 0"); a(f"s_cselect_b32 {sC3B}, s6, s73")
        a(f"s_and_b32 s72, {sW}, 1")
        a(f"s_lshl_b32 {sU1c64}, {sP1}, 6")
        a(f"s_mul_i32 s6, s72, {sP1}"); a("s_lshl_b32 s7, s6, 5"); a(f"s_add_u32 {sU1b}, {sC1B}, s7")
        a("s_waitcnt lgkmcnt(0)")
        self.stamp("kargs")
        a(f"s_load_dwordx2 s[60:61], s[{S_WS}:{S_WS+1}], 0")
        self.xtok = {}; self.wtok = {}
        self.dma_x(0)
        a(f"s_cmp_lt_u32 {sW}, 2")
        a(f"s_cselect_b32 s{S_U2}, s68, s70"); a(f"s_cselect_b32 s{S_U2+1}, s69, s71")
        a(f"s_cmp_eq_u32 {sPAR}, 0")
        a(f"s_cselect_b32 s{S_U1}, s64, s{S_U2}"); a(f"s_cselect_b32 s{S_U1+1}, s65, s{S_U2+1}")
        a(f"s_cselect_b32 s{S_U3}, s{S_U2}, s64"); a(f"s_cselect_b32 s{S_U3+1}, s{S_U2+1}, s65")
        a.protect = set()
        self.dma_w(0); self.dma_x(1); self.dma_w(1)
        if self.o.get("touch1", 0): self.touch1()
        a("v_lshlrev_b32 v47, 5, v43"); a("v_lshl_add_u32 v47, v42, 3, v47")
        a("v_lshl_add_u32 v48, v40, 3, v41"); a("v_lshlrev_b32 v48, 6, v48"); a(f"v_add_u32 {hSA}, v48, v47")
        a(f"v_lshlrev_b32 {hG16}, 4, v40")
        a("s_movk_i32 s7, 3584"); a("v_mul_lo_u32 v47, v44, s7"); a(f"v_add_u32 v{vU2[0]}, v47, v46")
        for i in range(1, 4): a(f"v_add_u32 v{vU2[i]}, {8*3584-1024}, v{vU2[i-1]}")
        a(f"s_mul_i32 s7, s72, {32*3584}"); a(f"s_add_u32 {sU2b}, {sC2B}, s7")
        a(f"v_lshrrev_b32 v49, 2, {vLANE}"); a(f"v_mul_lo_u32 v47, v49, {sP3}"); a(f"v_lshl_add_u32 v{vU3[0]}, v42, 4, v47")
        a(f"s_lshl_b32 s6, {sP3}, 4"); a("s_sub_u32 s6, s6, 1024")
        for i in range(1, 4): a(f"v_add_u32 v{vU3[i]}, s6, v{vU3[i-1]}")
        a(f"s_lshl_b32 {sU3c64}, {sP3}, 6")
        a(f"v_lshl_add_u32 v{vW2[0]}, v44, 10, v46")
        for k in range(1, 4): a(f"v_add_u32 v{vW2[k]}, {7*1024*k}, v{vW2[0]}")
        a(f"v_mul_lo_u32 v47, v49, {sP1}"); a("v_lshl_add_u32 v34, v42, 4, v47")
        a(f"s_lshl_b32 s6, {sP1}, 4"); a("s_sub_u32 s6, s6, 1024"); a("v_add_u32 v35, s6, v34")
        a("s_movk_i32 s7, 3584"); a("v_mul_lo_u32 v47, v49, s7"); a("v_lshl_add_u32 v36, v42, 4, v47"); a(f"v_add_u32 v37, {16*3584-1024}, v36")
        a(f"s_and_b32 s6, {sR}, 7"); a("s_lshl_b32 s6, s6, 6"); a(f"s_lshr_b32 s7, {sR}, 3"); a("s_lshl_b32 s7, s7, 5"); a("s_add_u32 s6, s6, s7")
        a("s_lshl_b32 s7, s72, 6")
        a(f"s_mul_i32 s73, s6, {sP1}"); a(f"s_add_u32 s73, s73, {sC1B}"); a("s_add_u32 s73, s73, s7")
        a("s_mul_i32 s74, s6, 3584"); a(f"s_add_u32 s74, s74, {sC2B}"); a("s_add_u32 s74, s74, s7")
        a(f"s_mul_i32 s75, s6, {sP3}"); a(f"s_add_u32 s75, s75, {sC3B}")
        a(f"s_lshl_b32 {sACC}, {sCG}, 13"); a(f"s_add_u32 {sACC}, {sACC}, {WS_ACC}")
        a(f"s_lshl_b32 s6, {sR}, 7"); a(f"s_lshl_b32 s7, {sCG}, 3"); a("s_add_u32 s6, s6, s7")
        a(f"s_lshl_b32 s7, {sW}, 1"); a("s_add_u32 s76, s6, s7")
        a(f"v_and_b32 {hCSA}, 31, {vLANE}"); a(f"v_lshlrev_b32 {hCSA}, 2, {hCSA}"); a(f"v_add_u32 {hCSA}, {L_CST}, {hCSA}")
        a(f"v_cmp_eq_u32 vcc, 0, {vLANE}"); a(f"v_mov_b32 {hL0}, {OOB}"); a("v_mov_b32 v47, 0"); a(f"v_cndmask_b32 {hL0}, {hL0}, v47, vcc")
        a(f"s_lshl_b32 s6, {sR}, 1"); a(f"s_lshr_b32 s7, {sW}, 1"); a("s_add_u32 s6, s6, s7"); a("s_mul_i32 s6, s6, 768")
        a(f"s_lshl_b32 s7, {sCG}, 4"); a("s_add_u32 s6, s6, s7"); a("s_lshl_b32 s7, s72, 3"); a("s_add_u32 s6, s6, s7"); a(f"s_add_u32 s77, s6, {WS_HF}")
        for _ in self.t_s2_q(): pass
        a("s_waitcnt lgkmcnt(0)")
        a(f"s_add_u32 {sTAGL}, {sTAGL}, 1"); a(f"s_addc_u32 {sTAGH}, {sTAGH}, 0")
        a(f"v_mov_b32 {vTAGL}, {sTAGL}"); a(f"v_mov_b32 {vTAGH}, {sTAGH}")

    def touch1(self):
        a = self.a
        a(f"s_and_b32 s6, {sR}, 7"); a("s_lshl_b32 s6, s6, 6"); a(f"s_and_b32 s7, {sW}, 1"); a("s_lshl_b32 s7, s7, 5"); a("s_add_u32 s6, s6, s7")
        a(f"v_and_b32 v50, 31, {vLANE}"); a("v_add_u32 v50, s6, v50")
        a(f"v_mul_lo_u32 v51, v50, {sP1}")
        a.vm(f"buffer_load_dword {vDUM}, v51, {srd(S_U1)}, {sC1B} offen")
        a(f"v_and_b32 v52, 31, {vLANE}"); a(f"v_lshrrev_b32 v53, 5, {vLANE}"); a(f"s_lshl_b32 s6, {sW}, 1"); a("s_add_u32 s6, s6, 2"); a("v_add_u32 v53, s6, v53")
        a("v_lshlrev_b32 v52, 10, v52"); a("v_lshl_add_u32 v52, v53, 7, v52")
        a("v_cmp_lt_u32 vcc, 7, v53"); a(f"v_mov_b32 v53, {OOB}"); a("s_nop 0"); a("v_cndmask_b32 v52, v52, v53, vcc")
        a(f"s_lshl_b32 s6, {sR}, 7"); a(f"s_and_b32 s7, {sCG}, 3"); a("s_lshl_b32 s7, s7, 5"); a("s_add_u32 s6, s6, s7"); a("s_lshl_b32 s6, s6, 10")
        a.vm(f"buffer_load_dword {vDUM}, v52, {srd(S_X)}, s6 offen")
        a("s_movk_i32 s7, 3584"); a("v_mul_lo_u32 v51, v50, s7")
        a.vm(f"buffer_load_dword {vDUM}, v51, {srd(S_U2)}, {sC2B} offen")
        a(f"v_mul_lo_u32 v51, v50, {sP3}")
        a.vm(f"buffer_load_dword {vDUM}, v51, {srd(S_U3)}, {sC3B} offen")

    def mkparts(self, head, vs, sr, so, settok, ldsbase):
        a = self.a
        parts = []
        for i in range(4):
            def p(i=i):
                key = (so, ldsbase)
                if i == 0:
                    assert self.open_item.get(so) is None
                    self.open_item[so] = key
                assert self.open_item[so] == key
                if i == 3: self.open_item[so] = None
                if i == 0: head()
                elif self.m0_owner != so or self.m0_val != ldsbase: a(f"s_add_u32 m0, {sWLDS}, {ldsbase}")
                self.m0_owner = so; self.m0_val = ldsbase
                settok(a.vm(f"buffer_load_dwordx4 v{vs[i]}, {srd(sr)}, {so} offen{' offset:%d' % (1024*i) if i else ''} lds"))
            parts.append(p)
        return parts
    def m0_clobber(self): self.m0_owner = None
    def dma_x_parts(self, c):
        a = self.a
        def head():
            a(f"s_add_u32 m0, {sWLDS}, {L_X + (c % 3)*16384}")
            a(f"s_add_u32 s7, {sROT}, {c & 3}"); a("s_and_b32 s7, s7, 3")
            if c & 4: a("s_or_b32 s7, s7, 4")
            a("s_lshl_b32 s7, s7, 7"); a(f"s_add_u32 s58, {sXB}, s7")
        return self.mkparts(head, vX, S_X, "s58", lambda t: self.xtok.__setitem__(c, t), L_X + (c % 3)*16384)
    def dma_w_parts(self, G):
        a = self.a
        slot = G % NW
        if G < 8:    vs, sr, b, c64 = vU1, S_U1, sU1b, sU1c64
        elif G < 16: vs, sr, b, c64 = vU2, S_U2, sU2b, str(64*3584)
        else:        vs, sr, b, c64 = vU3, S_U3, sC3B, sU3c64
        def head():
            a(f"s_add_u32 m0, {sWLDS}, {slot*16384}")
            if G < 16:
                pos = G % 8; a(f"s_add_u32 s7, {sROT}, {pos & 3}")
            else:
                pos = 2*(G-16)
                a(f"s_and_b32 s7, {sW}, 1"); a(f"s_add_u32 s7, s7, {sROT}"); a(f"s_add_u32 s7, s7, {pos & 3}")
            a("s_and_b32 s7, s7, 3")
            if pos & 4: a("s_or_b32 s7, s7, 4")
            a(f"s_mul_i32 s7, s7, {c64}"); a(f"s_add_u32 s59, {b}, s7")
        return self.mkparts(head, vs, sr, "s59", lambda t: self.wtok.__setitem__(G, t), slot*16384)
    def dma_x(self, c):
        for p in self.dma_x_parts(c): p()
    def dma_w(self, G):
        for p in self.dma_w_parts(G): p()
    def slab(self, base_expr, v0, v1, sr, so):
        a = self.a
        a(base_expr); self.m0_clobber(); a("s_nop 0")
        a.vm(f"buffer_load_dwordx4 v{v0}, {srd(sr)}, {so} offen lds")
        return a.vm(f"buffer_load_dwordx4 v{v1}, {srd(sr)}, {so} offen offset:1024 lds")

    def t_early(self):
        a = self.a; o = self.o
        a(f"s_lshl_b32 s6, {sW}, 11")
        self.ctokA = self.slab(f"s_add_u32 m0, s6, {L_CA}", 34, 35, S_U1, "s73"); yield
        if o["codepf"]:
            a("s_getpc_b64 s[64:65]")
            a.label("Lpc0" + self.sfx)
            a(f"s_sub_u32 s64, s64, Lpc0{self.sfx}-{KNAME}"); a("s_subb_u32 s65, s65, 0")
            a(f"v_min_u32 v40, 2, {vLANE}")
            a(f"s_mul_i32 s6, {sJ}, 12"); a(f"s_mul_i32 s7, {sW}, 3"); a("s_add_u32 s6, s6, s7")
            a("v_add_u32 v40, s6, v40"); a("v_lshlrev_b32 v40, 7, v40")
            a(f"s_mov_b32 s66, Lcode_end-{KNAME}-4"); a("v_min_u32 v40, s66, v40")
            a.vm(f"global_load_dword {vDUM}, v40, s[64:65]"); yield

    DPPM = ("quad_perm:[1,0,3,2] row_mask:0xf", "quad_perm:[2,3,0,1] row_mask:0xf", "row_half_mirror row_mask:0xf",
            "row_mirror row_mask:0xf", "row_bcast:15 row_mask:0xa", "row_bcast:31 row_mask:0xc")
    def c_stats(self):
        a = self.a
        D = 64
        for r in range(2):
            for k in range(4):
                a(f"v_lshlrev_b32 v{D+8*r+2*k}, 16, v{16+4*r+k}"); a(f"v_and_b32 v{D+8*r+2*k+1}, 0xffff0000, v{16+4*r+k}")
        for k in range(1, 8):
            for r in range(2):
                d = D + 8*r; t = 80 + r
                a(f"v_add_f32 v{t}, v{d}, v{d+1}" if k == 1 else f"v_add_f32 v{t}, v{t}, v{d+k}")
        for mod in self.DPPM:
            for v in ("v80", "v81"): a(f"v_add_f32_dpp {v}, {v}, {v} {mod} bank_mask:0xf")
        a("v_readlane_b32 s78, v80, 63"); a("v_readlane_b32 s79, v81, 63")
        a("s_mov_b32 s66, 0x3b000000"); a("v_mov_b32 v82, s78"); a("v_mov_b32 v83, s79")
        a("v_mul_f32 v82, s66, v82"); a("v_mul_f32 v83, s66, v83")
        for k in range(8):
            for r in range(2): a(f"v_sub_f32 v{D+8*r+k}, v{D+8*r+k}, v{82+r}")
        for k in range(8):
            for r in range(2):
                d = D + 8*r; t = 80 + r
                a(f"v_mul_f32 v{t}, v{d}, v{d}" if k == 0 else f"v_fmac_f32 v{t}, v{d+k}, v{d+k}")
        for mod in self.DPPM:
            for v in ("v80", "v81"): a(f"v_add_f32_dpp {v}, {v}, {v} {mod} bank_mask:0xf")
        a("v_readlane_b32 s78, v80, 63"); a("v_readlane_b32 s79, v81, 63")
        a("v_mov_b32 v84, s78"); a("v_mov_b32 v85, s79"); a("v_mov_b32 v86, 0x3727c5ac")
        a("v_fma_f32 v84, v84, s66, v86"); a("v_fma_f32 v85, v85, s66, v86")
        a("v_rsq_f32 v84, v84"); a("v_rsq_f32 v85, v85")
        a(f"v_cmp_eq_u32 vcc, 1, {vLANE}"); a("v_mov_b32 v90, s60"); a("v_mov_b32 v91, s61")
        a("v_cndmask_b32 v88, v82, v83, vcc"); a("v_cndmask_b32 v89, v84, v85, vcc")
        a(f"v_cmp_gt_u32 vcc, 2, {vLANE}"); a(f"v_mov_b32 v87, {OOB}")
        a("s_lshl_b32 s6, s75, 4"); a(f"s_add_u32 s6, s6, {WS_STAT}")
        a(f"v_cndmask_b32 v86, v87, {vL16}, vcc")
        a.vm(f"buffer_store_dwordx4 v[88:91], v86, {srd(S_WS)}, s6 offen sc1")

    def t_cs(self, rnd):
        a = self.a
        A = rnd == "A"
        nu = 1 if A else 2
        FR, ONES, D0, AD, RES = 96, 112, 116, 88, 84
        a(f"s_lshl_b32 s6, {sW}, {11 if A else 12}"); a(f"s_add_u32 s6, s6, {L_CA}")
        a(f"v_add_u32 v{AD}, s6, {hSA}"); yield
        for k in range(4): a(f"v_mov_b32 v{ONES+k}, 0x3f803f80")
        yield
        a(f"v_and_b32 v{AD+1}, 31, {vLANE}"); a(f"v_lshlrev_b32 v{AD+1}, {3 if A else 4}, v{AD+1}")
        a(f"v_cmp_gt_u32 vcc, 32, {vLANE}"); a(f"v_mov_b32 v{AD+2}, {OOB}"); a("s_nop 0")
        a(f"v_cndmask_b32 v{AD+1}, v{AD+2}, v{AD+1}, vcc"); yield
        a.wait(vm=self.ctokA if A else self.ctokB)
        for ui in range(nu):
            for s in range(2):
                for q in range(2):
                    r = FR + ui*8 + s*4 + q*2
                    t = a.lg(f"ds_read_b64_tr_b16 v[{r}:{r+1}], v{AD} offset:{ui*2048 + (16*s + 4*q)*64}")
            yield
        yield self.int_end
        a.wait(lg=t)
        DT = [116, 60]
        DT = [52, 68]
        for ui in range(nu):
            d = DT[ui]
            for s in range(2):
                r = FR + ui*8 + s*4
                a(f"v_mfma_f32_32x32x16_bf16 v[{d}:{d+15}], v[{ONES}:{ONES+3}], v[{r}:{r+3}], {'0' if s == 0 else f'v[{d}:{d+15}]'}")
            yield
        a(f"s_lshl_b32 s6, {sCG}, 4"); a(f"s_add_u32 s6, s6, {sR}"); a("s_lshl_b32 s6, s6, 2"); a(f"s_add_u32 s6, s6, {sW}")
        a(f"s_lshl_b32 s6, s6, {8 if A else 9}"); a(f"s_add_u32 s71, s6, {WS_CSPA if A else WS_CSP}"); yield
        yield self.int_end
        if A:
            a(f"v_mov_b32 v{RES}, v52"); a(f"v_mov_b32 v{RES+1}, {vTAGL}")
            a.vm(f"buffer_store_dwordx2 v[{RES}:{RES+1}], v{AD+1}, {srd(S_WS)}, s71 offen sc1"); yield
        else:
            a(f"v_mov_b32 v{RES}, v52"); a(f"v_mov_b32 v{RES+1}, v68"); a(f"v_mov_b32 v{RES+2}, {vTAGL}"); a(f"v_mov_b32 v{RES+3}, {vTAGL}")
            a.vm(f"buffer_store_dwordx4 v[{RES}:{RES+3}], v{AD+1}, {srd(S_WS)}, s71 offen sc1"); yield
        self.log["cs_pub" + rnd + self.sfx] = self.f

    def t_csum(self, rnd, chk_f):
        a = self.a
        A = rnd == "A"
        B = 52; W = 2 if A else 4; AD = 92
        SB, ST = "s68", "s69"
        a(f"v_and_b32 v{AD}, 31, {vLANE}"); a(f"v_lshlrev_b32 v{AD}, {3 if A else 4}, v{AD}")
        a(f"v_lshrrev_b32 v{AD+1}, 5, {vLANE}"); a(f"v_lshl_add_u32 v{AD}, v{AD+1}, {10 if A else 11}, v{AD}"); yield
        a(f"s_lshl_b32 s6, {sCG}, {14 if A else 15}"); a(f"s_lshl_b32 s7, {sW}, {8 if A else 9}"); a("s_add_u32 s6, s6, s7")
        a(f"s_add_u32 {SB}, s6, {WS_CSPA if A else WS_CSP}"); yield
        def loads():
            return [f"s_add_u32 {ST}, {SB}, {i*(2048 if A else 4096)}\nbuffer_load_dwordx{W} v[{B+W*i}:{B+W*i+W-1}], v{AD}, {srd(S_WS)}, {ST} offen sc1" for i in range(8)]
        for t in loads():
            yield from self.vmslot()
            l0, l1 = t.split("\n"); a(l0); tok = a.vm(l1); yield
        yield max(chk_f, self.f + 24)
        tg = W - 1
        cmp = f"v_cmp_eq_u32 vcc, v{B+tg}, {vTAGL}\n"
        for i in range(1, 8): cmp += f"v_cmp_eq_u32 s[64:65], v{B+tg+W*i}, {vTAGL}\ns_and_b64 vcc, vcc, s[64:65]\n"
        self.log["cs_chk" + rnd + self.sfx] = self.f
        self.poll_check(tok, cmp.strip(), "\n".join(loads()), "csp" + rnd)
        nv = 1 if A else 2
        for i in range(1, 8):
            for k in range(nv): a(f"v_add_f32 v{B+k}, v{B+k}, v{B+W*i+k}")
            yield
        T = B + 4
        for k in range(nv): a(f"v_mov_b32 v{T+k}, v{B+k}")
        for k in range(nv): a(f"v_permlane32_swap_b32 v{B+k}, v{T+k}")
        for k in range(nv): a(f"v_add_f32 v{B+k}, v{B+k}, v{T+k}")
        yield
        for k in range(nv): a(f"v_cvt_pk_bf16_f32 v{T+k}, v{B+k}, v{B+k}")
        for k in range(nv): a(f"v_lshlrev_b32 v{T+k}, 16, v{T+k}")
        for k in range(nv): a(f"v_sub_f32 v{T+k}, v{B+k}, v{T+k}")
        for k in range(nv): a(f"v_cvt_pk_bf16_f32 v{B+k}, v{B+k}, v{T+k}")
        yield
        a(f"s_lshl_b32 s6, {sW}, 7"); a(f"v_add_u32 v{AD+1}, s6, {hCSA}")
        if A: a.lg(f"ds_write_b32 v{AD+1}, v{B}")
        else:
            a.lg(f"ds_write_b32 v{AD+1}, v{B} offset:512")
            a(f"s_lshr_b32 s6, {sW}, 1"); a("s_lshl_b32 s6, s6, 7"); a(f"v_add_u32 v{AD+1}, s6, {hCSA}")
            a.lg(f"ds_write_b32 v{AD+1}, v{B+1} offset:1024")
        yield

    def t_stt(self, chk_f):
        a = self.a
        a(f"v_and_b32 v44, 31, {vLANE}"); a("v_lshlrev_b32 v45, 4, v44"); yield
        a(f"s_lshl_b32 s6, {sR}, 7"); a(f"s_lshl_b32 s7, {sW}, 5"); a("s_add_u32 s6, s6, s7")
        a("s_lshl_b32 s72, s6, 4"); a(f"s_add_u32 s72, s72, {WS_STAT}")
        txt = f"buffer_load_dwordx4 v[48:51], v45, {srd(S_WS)}, s72 offen sc1"
        tok = a.vm(txt)
        yield chk_f
        self.log["st_chk" + self.sfx] = self.f
        self.poll_check(tok, self.tagcmp(50), txt, "stp")
        a("v_sub_f32 v48, 0, v48")
        a("v_lshlrev_b32 v44, 3, v44"); a(f"s_lshl_b32 s6, {sW}, 8"); a(f"s_add_u32 s6, s6, {L_STT}"); a("v_add_u32 v44, s6, v44")
        a.lg("ds_write_b64 v44, v[48:49]"); yield

    def t_slabB(self):
        a = self.a
        yield from self.vmslot()
        self.slab(f"s_add_u32 m0, {sWLDS}, {L_CA}", 36, 37, S_U2, "s74"); yield
        yield from self.vmslot()
        self.ctokB = self.slab(f"s_add_u32 m0, {sWLDS}, {L_CA + 2048}", vU3[0], vU3[1], S_U3, "s75"); yield

    def publish(self, phase):
        a = self.a
        a.vm(f"buffer_store_dwordx2 v[{TAG}:{TAG+1}], {hL0}, {srd(S_WS)}, s77 offen offset:{phase*256} sc1")
        self.log[(self.par, "pub", phase)] = self.f

    def t_kv_tail(self):
        a = self.a; o = self.o
        a(f"v_lshrrev_b32 v38, 4, {vLANE}"); a("v_lshlrev_b32 v38, 3, v38")
        a(f"v_bfe_u32 v39, {vLANE}, 2, 2"); a("v_add_u32 v38, v38, v39"); yield
        a(f"s_movk_i32 s7, {KVP}"); a("v_mul_lo_u32 v38, v38, s7")
        a(f"v_and_b32 v39, 3, {vLANE}"); a("v_lshl_add_u32 v38, v39, 3, v38"); yield
        a(f"s_lshl_b32 s6, {sW}, 5"); a(f"s_add_u32 s6, s6, {L_KVS}"); a("v_add_u32 v38, s6, v38"); yield
        F = 52
        for ks in range(4):
            for tile in range(2):
                for q in range(2):
                    r = F + ks*8 + tile*4 + q*2
                    t = a.lg(f"ds_read_b64_tr_b16 v[{r}:{r+1}], v38 offset:{tile*128*KVP + (32*ks + 4*q)*KVP}")
                yield
        for k in range(4): a(f"v_mov_b32 v{84+k}, 0x3f803f80")
        yield self.int_end
        a.wait(lg=t)
        self.kv_reads_f = self.f
        for ks in range(4):
            pk = F + ks*8; vv = pk + 4
            a(f"v_mfma_f32_16x16x32_bf16 v[88:91], v[{vv}:{vv+3}], v[{pk}:{pk+3}], {'0' if ks == 0 else 'v[88:91]'}")
            a(f"v_mfma_f32_16x16x32_bf16 v[48:51], v[84:87], v[{pk}:{pk+3}], {'0' if ks == 0 else 'v[48:51]'}")
            yield
        a(f"s_lshl_b32 s6, {sM}, 2"); a(f"s_add_u32 s6, s6, {sW}")
        a("s_lshl_b32 s7, s6, 4"); a(f"s_add_u32 s7, s7, {sR}"); a("s_lshl_b32 s7, s7, 10"); a(f"s_add_u32 s73, s7, {WS_KVP}")
        a("s_lshl_b32 s7, s6, 10"); a(f"s_lshl_b32 s72, {sR}, 6"); a("s_add_u32 s7, s7, s72"); a(f"s_add_u32 s72, s7, {WS_KVZP}")
        a("s_lshl_b32 s7, s6, 7"); a(f"s_lshl_b32 s6, {sR}, 3"); a("s_add_u32 s7, s7, s6"); a(f"s_add_u32 s71, s7, {WS_KVF}")
        a(f"v_cmp_gt_u32 vcc, 16, {vLANE}"); a(f"v_mov_b32 v39, {OOB}"); a(f"v_lshlrev_b32 v38, 2, {vLANE}")
        a("v_cndmask_b32 v38, v39, v38, vcc")
        yield self.f + 2
        a.vm(f"buffer_store_dwordx4 v[88:91], {vL16}, {srd(S_WS)}, s73 offen sc1")
        tok = a.vm(f"buffer_store_dword v48, v38, {srd(S_WS)}, s72 offen sc1"); yield
        yield self.int_end + 16
        a.wait(vm=tok)
        a.vm(f"buffer_store_dwordx2 v[{TAG}:{TAG+1}], {hL0}, {srd(S_WS)}, s71 offen sc1")
        self.log[(0, "kvcnt")] = self.f
        yield

    def t_q_prep(self, chk_f):
        a = self.a
        a(f"s_lshl_b32 s6, {sM}, 2"); a(f"s_add_u32 s6, s6, {sW}")
        a("s_lshl_b32 s7, s6, 7"); a(f"s_add_u32 s71, s7, {WS_KVF}")
        a("s_lshl_b32 s7, s6, 14"); a(f"s_add_u32 s73, s7, {WS_KVP}")
        a("s_lshl_b32 s7, s6, 10"); a(f"s_add_u32 s76, s7, {WS_KVZP}")
        a(f"v_and_b32 v40, 15, {vLANE}"); a("v_lshlrev_b32 v40, 3, v40")
        txt = f"buffer_load_dwordx2 v[42:43], v40, {srd(S_WS)}, s71 offen sc1"
        tok = a.vm(txt)
        yield chk_f
        self.log[(1, "kvchk")] = self.f
        self.poll_check(tok, self.tagcmp(42), txt, "kvp")
        while self.active("csumB"): yield self.f + 1
        B = 52
        ztok = a.vm(f"buffer_load_dwordx4 v[116:119], {vL16}, {srd(S_WS)}, s76 offen sc1"); yield
        toks = []
        for r in range(16):
            yield from self.vmslot()
            if r % 4 == 0 and r: a("s_add_u32 s73, s73, 4096")
            toks.append(a.vm(f"buffer_load_dwordx4 v[{B+4*r}:{B+4*r+3}], {vL16}, {srd(S_WS)}, s73 offen offset:{(r % 4)*1024} sc1")); yield
        yield self.int_end
        a.wait(vm=ztok)
        for mod in ("row_shr:4", "row_shr:8"):
            for k in range(4): a(f"v_add_f32_dpp v{116+k}, v{116+k}, v{116+k} {mod} row_mask:0xf bank_mask:0xf bound_ctrl:0")
            yield
        for k in range(4):
            a(f"v_mov_b32 v{120+k}, v{116+k}")
        for k in range(4): a(f"v_permlane16_swap_b32 v{116+k}, v{120+k}")
        for k in range(4): a(f"v_add_f32 v{116+k}, v{116+k}, v{120+k}")
        yield
        for k in range(4): a(f"v_mov_b32 v{120+k}, v{116+k}")
        for k in range(4): a(f"v_permlane32_swap_b32 v{116+k}, v{120+k}")
        for k in range(4): a(f"v_add_f32 v{116+k}, v{116+k}, v{120+k}")
        yield
        for r in range(1, 16):
            a.wait(vm=toks[r])
            for k in range(0, 4, 2): a(f"v_pk_add_f32 v[{B+k}:{B+k+1}], v[{B+k}:{B+k+1}], v[{B+4*r+k}:{B+4*r+k+1}]")
            yield
        a(f"s_mul_i32 s6, {sW}, 1280"); a(f"s_add_u32 s6, s6, {L_KVO}")
        a(f"v_lshrrev_b32 v40, 4, {vLANE}"); a("v_lshlrev_b32 v40, 8, v40"); a(f"v_and_b32 v41, 15, {vLANE}"); a("v_lshl_add_u32 v40, v41, 2, v40")
        a("v_add_u32 v40, s6, v40")
        for v in range(4): a.lg(f"ds_write_b32 v40, v{B+v} offset:{v*64}")
        a(f"v_and_b32 v41, 3, {vLANE}"); a("v_lshlrev_b32 v41, 4, v41"); a("v_add_u32 v41, s6, v41"); a("v_add_u32 v41, 1024, v41")
        a(f"v_and_b32 v42, 15, {vLANE}"); a("v_cmp_le_u32 vcc, 12, v42"); a(f"v_mov_b32 v43, {L_KVO + 4*1280}")
        a("v_cndmask_b32 v41, v43, v41, vcc")
        t = a.lg("ds_write_b128 v41, v[116:119]"); yield
        yield self.f + 3
        a(f"v_and_b32 v41, 31, {vLANE}"); a("v_min_u32 v41, 16, v41"); a(f"v_lshl_add_u32 v41, v41, 6, {hG16}"); a("v_add_u32 v41, s6, v41")
        a.wait(lg=t)
        a.lg("ds_read_b128 v[52:55], v41"); t = a.lg("ds_read_b128 v[56:59], v41 offset:32"); yield
        yield self.f + 3
        a.wait(lg=t)
        for k in range(4): a(f"v_cvt_pk_bf16_f32 v{60+k}, v{52+2*k}, v{53+2*k}")
        a(f"s_lshl_b32 s6, {sW}, 10"); a(f"s_add_u32 s6, s6, {L_KVZ}"); a(f"v_add_u32 v41, s6, {vL16}")
        a.lg("ds_write_b128 v41, v[60:63]"); yield

    def qget(self, i, dst):
        reg = (sQA, sQB, sQC)[i // 4]
        self.a(f"s_bfe_u32 {dst}, {reg}, {(8 << 16) | (8*(i % 4))}")
    def t_s2_q(self):
        a = self.a
        a(f"s_lshr_b32 s68, {sJ}, 2"); a(f"s_add_u32 s68, s68, {sC2}"); a("s_and_b32 s68, s68, 7")
        tab = sum(((k % 3) << (2*k)) for k in range(12))
        a(f"s_lshl_b32 s69, s68, 1"); a(f"s_lshr_b32 s69, {tab}, s69"); a("s_and_b32 s69, s69, 3"); yield
        for i in range(9):
            reg = (sQA, sQB, sQC)[i // 4]
            if i < 2:
                a(f"s_add_u32 s6, s68, {i}"); a("s_and_b32 s6, s6, 1"); a("s_lshl_b32 s6, s6, 3")
                a(f"s_lshl_b32 s7, {sW}, 1"); a("s_add_u32 s6, s6, s7"); a("s_add_u32 s6, s6, 8")
            elif i < 6:
                a(f"s_add_u32 s6, s68, {i-2}"); a("s_and_b32 s6, s6, 3"); a("s_lshl_b32 s6, s6, 2"); a(f"s_add_u32 s6, s6, {sW}")
                a("s_lshl_b32 s7, s6, 1"); a("s_sub_u32 s7, s7, 7"); a("s_cmp_lt_u32 s6, 8"); a("s_cselect_b32 s6, s6, s7")
            else:
                a(f"s_add_u32 s6, s69, {i-6}"); a("s_sub_u32 s7, s6, 3"); a("s_cmp_lt_u32 s6, 3"); a("s_cselect_b32 s6, s6, s7")
                a("s_lshl_b32 s6, s6, 2"); a(f"s_add_u32 s6, s6, {sW}"); a("s_add_u32 s6, s6, 24")
            if i % 4 == 0: a(f"s_mov_b32 {reg}, s6")
            else: a(f"s_lshl_b32 s6, s6, {8*(i % 4)}"); a(f"s_or_b32 {reg}, {reg}, s6")
            yield
    def s2_w_dma(self, i):
        a = self.a
        self.qget(i, "s6")
        if i < 6: sr = S_WD
        else:
            sr = S_U1
            a("s_cmp_lt_u32 s6, 28")
            a(f"s_cselect_b32 s{S_U1}, s{S_WD}, s{S_WO}"); a(f"s_cselect_b32 s{S_U1+1}, s{S_WD+1}, s{S_WO+1}")
            a(f"s_cselect_b32 s{S_U1+2}, s{S_WD+2}, s{S_WO+2}")
            a("s_cselect_b32 s7, 0, 28"); a("s_sub_u32 s6, s6, s7")
        a("s_lshl_b32 s6, s6, 16"); a(f"s_lshl_b32 s7, {sC2}, 7"); a("s_add_u32 s74, s6, s7"); yield
        base = W2SLOT[i % 4]
        for g in range(2):
            for k in range(4):
                if i < 3: yield from self.vmslot()
                if k == 0 or self.m0_owner != ("w2", i, g):
                    a(f"s_add_u32 m0, {sW8K}, {base + g*4096}")
                    if k == 0 and g == 1: a("s_add_u32 s74, s74, 32768")
                    self.m0_owner = ("w2", i, g)
                self.w2tok[i] = a.vm(f"buffer_load_dwordx4 v{vW2[k]}, {srd(sr)}, s74 offen{' offset:%d' % (1024*k) if k else ''} lds"); yield
    def t_w2reg(self, i, areg):
        a = self.a
        self.qget(i, "s6")
        if i < 6: sr = S_WD
        else:
            sr = S_U1
            a("s_cmp_lt_u32 s6, 28")
            a(f"s_cselect_b32 s{S_U1}, s{S_WD}, s{S_WO}"); a(f"s_cselect_b32 s{S_U1+1}, s{S_WD+1}, s{S_WO+1}")
            a(f"s_cselect_b32 s{S_U1+2}, s{S_WD+2}, s{S_WO+2}")
            a("s_cselect_b32 s7, 0, 28"); a("s_sub_u32 s6, s6, s7")
        a("s_lshl_b32 s6, s6, 16"); a(f"s_lshl_b32 s7, {sC2}, 7"); a("s_add_u32 s75, s6, s7"); yield
        for g in range(2):
            for k in range(4):
                yield from self.vmslot()
                if k == 0 and g == 1: a("s_add_u32 s75, s75, 32768")
                r = areg + (g*4 + k)*4
                self.w2rtok[i] = a.vm(f"buffer_load_dwordx4 a[{r}:{r+3}], v{vW2[k]}, {srd(sr)}, s75 offen{' offset:%d' % (1024*k) if k else ''}"); yield
    def w2put(self, i, areg):
        a = self.a
        a.wait(vm=self.w2rtok[i])
        a(f"s_add_u32 s6, {sW8K}, {W2SLOT[i % 4]}"); a(f"v_add_u32 v40, s6, {vL16}")
        for k in range(8):
            r = areg + k*4
            self.w2ptok[i] = a.lg(f"ds_write_b128 v40, a[{r}:{r+3}] offset:{k*1024}")

    def flag_issue(self, phase):
        a = self.a
        if phase == 0:
            a(f"v_bfe_u32 {vPOLL}, {vLANE}, 1, 3"); a(f"v_lshlrev_b32 {vPOLL}, 2, {vPOLL}")
            a(f"v_and_b32 v{FLD}, 1, {vLANE}"); a(f"v_add_u32 {vPOLL}, {vPOLL}, v{FLD}"); a(f"v_add_u32 {vPOLL}, 2, {vPOLL}")
            a(f"v_lshlrev_b32 {vPOLL}, 3, {vPOLL}")
        else:
            a(f"v_and_b32 {vPOLL}, 31, {vLANE}"); a(f"v_lshlrev_b32 {vPOLL}, 3, {vPOLL}")
        a(f"s_mul_i32 s72, {sT}, 768"); a(f"s_add_u32 s72, s72, {WS_HF + phase*256}")
        self.fl_txt = f"buffer_load_dwordx2 v[{FLD}:{FLD+1}], {vPOLL}, {srd(S_WS)}, s72 offen sc1"
        self.fltok = a.vm(self.fl_txt)
    def flag_check(self, phase):
        self.log[(self.par, "chk", phase)] = self.f
        self.poll_check(self.fltok, self.tagcmp(FLD), self.fl_txt, f"fl{phase}")
        if not self.o.get("touchh", 0): return
        a = self.a
        n = (8, 16, 12)[phase]
        a(f"s_and_b32 s6, {sJ}, 3"); a(f"s_lshl_b32 s7, {sW}, 2"); a("s_add_u32 s6, s6, s7")
        if phase == 0: a("s_lshl_b32 s7, s6, 1"); a("s_add_u32 s7, s7, 8")
        elif phase == 1:
            a("s_lshl_b32 s7, s6, 1"); a("s_sub_u32 s7, s7, 7"); a("s_cmp_lt_u32 s6, 8"); a("s_cselect_b32 s7, s6, s7")
        else: a("s_add_u32 s7, s6, 24")
        a(f"s_mul_i32 s64, {sR}, 36"); a("s_add_u32 s7, s7, s64"); a("s_lshl_b32 s7, s7, 14")
        a(f"s_lshl_b32 s64, {sHALF}, 13"); a("s_add_u32 s7, s7, s64"); a(f"s_add_u32 s7, s7, {WS_H}")
        a(f"v_lshlrev_b32 v40, 7, {vLANE}"); a(f"v_mov_b32 v41, {OOB}")
        a(f"s_cmp_lt_u32 s6, {n}"); a("s_cselect_b64 vcc, -1, 0"); a("v_cndmask_b32 v40, v41, v40, vcc")
        a.vm(f"buffer_load_dword {vDUM}, v40, {srd(S_WS)}, s7 offen sc1")

    def vmslot(self):
        while self.a.vm_issued - self.int_vm0 >= self.int_cap: yield self.int_end
    def h_interval(self, f0, n, extras, budget=None, cap=None):
        a = self.a
        nfix = sum(len(extras.get(f0 + g, [])) for g in range(n))
        self.int_vm0 = a.vm_issued + nfix*0; self.int_end = f0 + n
        self.int_cap = (cap or self.o.get("vmcap", 8))
        self.int_vm0 = a.vm_issued
        for g in range(n):
            self.f = f0 + g
            start = len(a.lines)
            for fn in extras.get(f0 + g, []): fn()
            self.pump(self.f, start, budget or self.o["hbudget"])

    def helper(self, par):
        a = self.a; o = self.o
        self.par = par; self.sfx = f"_{par}"
        who = f"h{par}"
        self.tasks = []; self.w2tok = {}; self.w2rtok = {}; self.w2ptok = {}
        REGCH = {3: 0, 4: 32, 5: 64, 6: 96} if o.get("w2reg", 1) else {}
        self.kvz_done = False
        ex = {}
        def at(f, fn): ex.setdefault(f, []).append(fn)
        def spread(maker, positions):
            hd = {}
            def get(i):
                if "p" not in hd: hd["p"] = maker()
                hd["p"][i]()
            for i, pos in enumerate(positions): at(pos, (lambda i=i: get(i)))
        spread(lambda: self.dma_x_parts(2), (0, 1, 2, 3)); spread(lambda: self.dma_w_parts(2), (4, 5, 6, 7))
        spread(lambda: self.dma_w_parts(3), (10, 12, 14, 16))
        for G in range(0, 16):
            spread(lambda G=G: self.dma_w_parts(G+4), [16*G + 10 + p for p in ((1, 5, 9, 13) if G == 0 else (0, 2, 4, 6))] if G > 0 else [18, 20, 22, 24])
        for G in range(0, 5):
            spread(lambda G=G: self.dma_x_parts(G+3), [16*G + 10 + p for p in (1, 3, 5, 7)])
        self.spawn(self.t_early(), 0, "early")
        self.spawn(self.t_cs("A"), o.get("cs_f", 26), "csA")
        self.log["st_pub" + self.sfx] = 0
        self.spawn(self.t_csum("A", o.get("csumA_chk", 116)), o.get("csumA_f", 90), "csumA")
        self.spawn(self.t_stt(o.get("st_chk", 104)), o.get("stt_f", 80), "stt")
        self.spawn(self.t_slabB(), o.get("slabB_f", 58), "slabB")
        self.spawn(self.t_cs("B"), o.get("csB_f", 106), "csB")
        self.spawn(self.t_csum("B", o.get("csumB_chk", 214)), o.get("csumB_f", 186), "csumB")
        if o.get("hprio", 0): a(f"s_setprio {o['hprio']}")
        a.wait(vm=self.wtok[0])
        self.barrier(who, "P0")
        self.h_interval(0, 10, ex)
        for G in range(20):
            self.f = 16*G + 9
            if G + 1 < 20: a.wait(vm=self.wtok[G+1])
            if G + 1 < 8: a.wait(vm=self.xtok[G+1])
            if G == 7: self.finish("csumA"); self.finish("stt"); a.wait_all(vm=False)
            if G == 15: self.finish("csumB"); a.wait_all(vm=False)
            if G == 17: self.flag_check(0)
            if G == 19:
                if par == 1: self.finish("qprep"); a.wait_all(vm=False)
            self.barrier(who, f"B{G}")
            self.f = 16*G + 10
            if G == o.get("pub0_G", 9) and par == 1: self.publish(0)
            if G == 8 and par == 0:
                self.finish("csB")
                self.spawn(self.t_kv_tail(), self.f, "kvtail", front=True)
            if G == o.get("pub1_G", 17): self.publish(1)
            if G == 11:
                if par == 0: assert self.kv_reads_f < self.f
                self.spawn(self.s2_w_dma(0), self.f, "w2_0")
            if G == 11 and par == 0: assert self.kv_reads_f < 180, "kv tail fragments overlap csumB registers"
            if G == 16 and par == 1: assert not self.active("csumB")
            if REGCH:
                if G == 9: self.spawn(self.t_w2reg(3, 0), self.f, "w2r3")
                if G == 11: self.finish("w2r3"); self.spawn(self.t_w2reg(4, 32), self.f, "w2r4")
                if G == 13: self.finish("w2r4"); self.spawn(self.t_w2reg(5, 64), self.f, "w2r5")
                if G == 16: self.finish("w2r5"); self.spawn(self.t_w2reg(6, 96), self.f, "w2r6")
            if G == 15: self.flag_issue(0)
            if G == 17:
                self.spawn(self.s2_w_dma(1), self.f, "w2_1")
            if G == o.get("qprep_G", 13) and par == 1: self.spawn(self.t_q_prep(self.f + o.get("kvchk_gap", 17)), self.f, "qprep")
            if G == 19: self.spawn(self.s2_w_dma(2), self.f, "w2_2")
            if G < 19: self.h_interval(16*G + 10, 16, ex, cap=(10 if G >= 16 else None), budget=(5 if G >= 16 else None))
        self.h_interval(314, 6, ex)
        self.barrier(who, "H0")
        if par == 0: assert not self.active("kvtail"), "kv tail still running at H0"
        if 3 in REGCH:
            for n in ("w2r3", "w2r4", "w2r5", "w2r6"): self.finish(n)
            self.w2put(3, REGCH[3])
        else: self.spawn(self.s2_w_dma(3), self.f, "w2_3")
        self.flag_issue(1)
        base = 336
        for i in range(9):
            self.h_interval(base + 16*i - 16, 16, ex, budget=8)
            self.f = base + 16*i
            if i in REGCH: a.wait(lg=self.w2ptok[i])
            else:
                self.finish(f"w2_{i}")
                a.wait(vm=self.w2tok[i])
            if i + 2 == 2: self.flag_check(1)
            if i == o.get("fl2_i", 5): self.flag_check(2)
            self.barrier(who, f"S{i}")
            self.f = base + 16*i + 1
            if i == o.get("pub2_i", 1): self.publish(2)
            if i == o.get("fl2_i", 5) - 1: self.flag_issue(2)
            if i >= 1 and i + 3 < 9:
                if i + 3 in REGCH: self.w2put(i + 3, REGCH[i + 3])
                else: self.spawn(self.s2_w_dma(i + 3), self.f, f"w2_{i+3}")
        a("s_cmp_eq_u32 s2, 0"); a("s_cselect_b64 vcc, -1, 0"); a(f"s_cmp_eq_u32 {sW}, 0"); a("s_cselect_b64 vcc, vcc, 0")
        a(f"v_mov_b32 v40, {OOB}"); a("s_nop 0"); a(f"v_cndmask_b32 v40, v40, {hL0}, vcc")
        a.vm(f"buffer_store_dwordx2 v[{TAG}:{TAG+1}], v40, {srd(S_WS)}, 0 offen sc1")
        self.prof_out(4)
        a("s_endpgm")

    def c_lane_consts(self):
        a = self.a
        a(f"v_and_b32 v56, 31, {vLANE}"); a(f"v_lshrrev_b32 v57, 5, {vLANE}"); a(f"v_bfe_u32 v58, {vLANE}, 2, 2")
        a(f"v_and_b32 v59, 3, {vLANE}"); a(f"v_bfe_u32 v60, {vLANE}, 4, 1")
        a("v_lshlrev_b32 v61, 5, v60"); a("v_lshl_add_u32 v61, v59, 3, v61")
        a("v_lshrrev_b32 v62, 1, v58"); a("v_lshlrev_b32 v62, 6, v62")
        a("v_lshl_add_u32 v63, v57, 3, v58")
        a("v_lshlrev_b32 v64, 7, v63")
        a("v_xor_b32 v65, v61, v62"); a(f"v_add_u32 {cWA[0][0]}, v64, v65")
        a("v_or_b32 v65, 64, v61"); a("v_xor_b32 v65, v65, v62"); a(f"v_add_u32 {cWA[0][1]}, v64, v65")
        a(f"v_add_u32 {cWA[1][0]}, 0x10000, {cWA[0][0]}"); a(f"v_add_u32 {cWA[1][1]}, 0x10000, {cWA[0][1]}")
        a("v_lshlrev_b32 v64, 6, v63"); a(f"v_add_u32 {cSA[0]}, v64, v61"); a(f"v_add_u32 {cSA[1]}, 0x10000, {cSA[0]}")
        a("v_bfe_u32 v64, v56, 1, 3"); a("v_xor_b32 v64, v64, v57")
        a("v_lshlrev_b32 v65, 7, v56"); a(f"s_add_u32 s7, {sWLDS}, {L_X}"); a("v_add_u32 v65, s7, v65")
        for s in range(4):
            a(f"v_xor_b32 v66, {2*s}, v64"); a(f"v_lshl_add_u32 {cXA[s]}, v66, 4, v65")
        a(f"v_lshlrev_b32 {cG16}, 4, v57")
        a(f"v_lshlrev_b32 {cCSA}, 2, v56"); a(f"v_add_u32 {cCSA}, {L_CST}, {cCSA}")
        a(f"v_mov_b32 v{BAUG+2}, 0"); a(f"v_mov_b32 v{BAUG+3}, 0")
        a("v_lshrrev_b32 v64, 3, v0"); a("v_and_b32 v65, 7, v0")
        a(f"v_lshlrev_b32 {cOUT}, 10, v64"); a(f"v_lshl_add_u32 {cOUT}, v65, 4, {cOUT}")

    def c_setup(self):
        a = self.a
        a("s_waitcnt lgkmcnt(0)")
        a.protect = set()
        a(f"s_lshl_b32 s6, {sR}, 7"); a(f"s_lshl_b32 s7, {sCG}, 3"); a("s_add_u32 s6, s6, s7")
        a(f"s_lshl_b32 s7, {sW}, 1"); a("s_add_u32 s75, s6, s7"); a("s_lshl_b32 s6, s75, 10")
        a.vm(f"buffer_load_dwordx4 v[16:19], {vL16}, {srd(S_X)}, s6 offen")
        a.vm(f"buffer_load_dwordx4 v[20:23], {vL16}, {srd(S_X)}, s6 offen offset:1024")
        a(f"s_load_dwordx2 s[60:61], s[{S_WS}:{S_WS+1}], 0")
        a("s_mov_b32 s71, 0x3fb8aa3b"); a("s_mov_b32 s72, 0x358637bd")
        a(f"s_mul_i32 s76, {sR2}, 36"); a(f"s_lshl_b32 s77, {sHALF}, 13"); a(f"s_add_u32 s77, s77, {WS_H}")
        for _ in self.t_s2_q(): pass
        self.c_lane_consts()
        a("s_waitcnt vmcnt(0) lgkmcnt(0)")
        a("s_add_u32 s60, s60, 1"); a("s_addc_u32 s61, s61, 0")
        self.c_stats()

    def finfo(self, f):
        if f < NF1:
            G, m = divmod(f, 16)
            if G < 16:
                c = G % 8; s = m // 4; tile = m % 4; ks = c*4 + s
            else:
                s = m // 2; tile = m % 2; ks = (G-16)*8 + s
            return dict(phi=f, acc=ACC + 16*tile, b=ks*4, first=(ks == 0))
        i, m = divmod(f - NF1, 16)
        s, r = divmod(m, 4); cb, rf = divmod(r, 2)
        return dict(phi=NF1 + 8*i + 2*s + cb, acc=ACC + (cb*2+rf)*16, b=(i % 3)*32 + rf*16 + s*4, first=(i == 0 and s == 0), chunk=i, m=m)
    def phi_first_use(self, phi): return phi if phi < NF1 else NF1 + 2*(phi - NF1)
    def frag_read(self, phi):
        a = self.a
        r = RING + 4*(phi % NFR)
        if phi < NF1:
            G, m = divmod(phi, 16)
            slot = G % NW; rng = slot // 4; sb = (slot % 4)*16384
            if G < 16:
                s = m // 4; cbk = m % 4; panel, cb = divmod(cbk, 2)
                base = cWA[rng][cb]; imm = [sb + panel*8192 + (16*s + 4*q)*128 for q in range(2)]
            else:
                s = m // 2; b = m % 2
                base = cSA[rng]; imm = [sb + b*8192 + (16*s + 4*q)*64 for q in range(2)]
        else:
            i, r2 = divmod(phi - NF1, 8); s, cb = divmod(r2, 2)
            so = W2SLOT[i % 4]
            base = cB2[cb] if so < 0x10000 else cB2H[cb]
            imm = [(so % 0x10000) + (16*s + 8*q)*128 for q in range(2)]
        a.lg(f"ds_read_b64_tr_b16 v[{r}:{r+1}], {base} offset:{imm[0]}")
        self.ftok[phi] = a.lg(f"ds_read_b64_tr_b16 v[{r+2}:{r+3}], {base} offset:{imm[1]}")
    def x_read(self, c, s):
        r = (c*4 + s)*4
        self.xrtok[c] = self.a.lg(f"ds_read_b128 a[{r}:{r+3}], {cXA[s]} offset:{(c % 3)*16384}")

    def c_run(self, f0, f1, ex, fend):
        a = self.a
        for f in range(f0, f1):
            inf = self.finfo(f)
            self.stamp(f"f{f}")
            ph = inf["phi"]
            nxt = ph + 1
            a.wait(lg=self.ftok[nxt] if (nxt in self.ftok and f % 2 == 0 and f < NF1) else self.ftok[ph])
            if f < 128 and f % 16 == 0: a.wait(lg=self.xrtok[f // 16])
            if f >= NF1 and inf["m"] == 0:
                self.stamp(f"hw{inf['chunk']}_in"); a.wait(vm=self.htok[inf["chunk"]]); self.stamp(f"hw{inf['chunk']}_out")
            r = RING + 4*(ph % NFR)
            acc = f"v[{inf['acc']}:{inf['acc']+15}]"
            a(f"v_mfma_f32_32x32x16_bf16 {acc}, v[{r}:{r+3}], a[{inf['b']}:{inf['b']+3}], {'0' if inf['first'] else acc}")
            for fn in ex.get(f, []): fn()
            fu = f + LOOK
            if fu < fend:
                p = self.finfo(fu)["phi"]
                if self.phi_first_use(p) == fu: self.frag_read(p)
    def c_prime(self, f0):
        for f in range(f0, f0 + LOOK):
            p = self.finfo(f)["phi"]
            if self.phi_first_use(p) == f: self.frag_read(p)

    def aug(self, p, ntile):
        a = self.a
        toks = []
        for t in range(ntile):
            g = RING + 4*t; off = (p*128 + 32*t)*4
            a.lg(f"ds_read_b32 v{g}, {cCSA} offset:{off}")
            toks.append(a.lg(f"ds_read_b32 v{g+1}, {cCSA} offset:{off}"))
            a(f"v_mov_b32 v{g+2}, 0"); a(f"v_mov_b32 v{g+3}, 0")
        for t in range(ntile):
            g = RING + 4*t; A = ACC + 16*t
            a.wait(lg=toks[t])
            a(f"v_mfma_f32_32x32x16_bf16 v[{A}:{A+15}], v[{g}:{g+3}], v[{BAUG}:{BAUG+3}], v[{A}:{A+15}]")
    def hbase_q(self, q):
        a = self.a
        a(f"s_mul_i32 s7, {sR}, 36"); a(f"s_add_u32 s7, s7, {q}")
        a("s_lshl_b32 s7, s7, 2"); a(f"s_add_u32 s7, s7, {sW}")
        a("s_lshl_b32 s7, s7, 12"); a(f"s_add_u32 {sHB}, s7, {WS_H}")
    def ffn_block(self, tg, tu, dst):
        a = self.a
        for k in range(16): a(f"v_max_f32 v{tg+k}, 0, v{tg+k}")
        for k in range(0, 16, 2): a(f"v_pk_mul_f32 v[{tg+k}:{tg+k+1}], v[{tg+k}:{tg+k+1}], v[{tu+k}:{tu+k+1}]")
        for k in range(8): a(f"v_cvt_pk_bf16_f32 v{dst+k}, v{tg+2*k}, v{tg+2*k+1}")
    def epi_ffn(self, p):
        a = self.a
        self.aug(p, 4)
        a(f"s_lshl_b32 s6, {sM}, 1"); a(f"s_add_u32 s6, s6, {8 if p == 0 else 9}")
        if p == 1: a(f"s_cmp_eq_u32 {sPAR}, 0"); a(f"s_cselect_b32 s6, {sM}, s6")
        self.hbase_q("s6")
        for cb in range(2):
            d = 32 + 8*cb
            self.ffn_block(ACC + 16*cb, ACC + 32 + 16*cb, d)
            for h in range(2):
                a.vm(f"buffer_store_dwordx4 v[{d+4*h}:{d+4*h+3}], {vL16}, {srd(S_WS)}, {sHB} offen offset:{(2*cb+h)*1024} sc1")
    def epi_side(self):
        a = self.a
        self.aug(2, 2)
        a(f"s_lshr_b32 s6, {sM}, 1"); a("s_add_u32 s6, s6, 24"); self.hbase_q("s6")
        a(f"s_and_b32 s6, {sM}, 1"); a("s_lshl_b32 s6, s6, 11"); a(f"s_add_u32 {sHB}, {sHB}, s6")
        self.ffn_block(ACC, ACC + 16, 32)
        for h in range(2):
            a.vm(f"buffer_store_dwordx4 v[{32+4*h}:{32+4*h+3}], {vL16}, {srd(S_WS)}, {sHB} offen offset:{h*1024} sc1")
    def phi_tile(self, T):
        a = self.a
        for h in range(2):
            B = T + 8*h
            for k in range(8): a(f"v_mul_f32 v{TMP+k}, {cRL}, v{B+k}")
            for k in range(8): a(f"v_exp_f32 v{TMP+k}, v{TMP+k} clamp")
            for k in range(8): a(f"v_fma_f32 v{B+k}, v{B+k}, {cRSTD}, s72")
            for k in range(8): a(f"v_max_f32 v{B+k}, s72, v{B+k}")
            for k in range(0, 8, 2): a(f"v_pk_add_f32 v[{B+k}:{B+k+1}], v[{B+k}:{B+k+1}], v[{TMP+k}:{TMP+k+1}]")
    def epi_kv(self):
        a = self.a
        self.aug(0, 4)
        a(f"v_and_b32 v32, 31, {vLANE}"); a(f"s_lshl_b32 s6, {sW}, 5"); a("v_add_u32 v32, s6, v32")
        a(f"s_movk_i32 s7, {KVP}"); a("v_mul_lo_u32 v32, v32, s7")
        a(f"v_lshrrev_b32 v33, 1, {cG16}"); a("v_add_u32 v32, v32, v33"); a(f"v_add_u32 v32, {L_KVS}, v32")
        a(f"v_mov_b32 v34, {cRSTD}"); a(f"v_mov_b32 v35, {cRSTD}")
        for t in range(4):
            T = ACC + 16*t
            if t < 2: self.phi_tile(T)
            else:
                for k in range(0, 16, 2): a(f"v_pk_mul_f32 v[{T+k}:{T+k+1}], v[{T+k}:{T+k+1}], v[34:35]")
            for g4 in range(4):
                d = 36 + 2*g4
                a(f"v_cvt_pk_bf16_f32 v{d}, v{T+4*g4}, v{T+4*g4+1}"); a(f"v_cvt_pk_bf16_f32 v{d+1}, v{T+4*g4+2}, v{T+4*g4+3}")
            for g4 in range(4):
                d = 36 + 2*g4
                off = (t // 2)*128*KVP + (32*(t % 2) + 8*g4)*2
                a.lg(f"ds_write_b64 v32, v[{d}:{d+1}] offset:{off}")
    def epi_q(self):
        a = self.a
        self.aug(2, 2)
        a(f"s_add_u32 s6, {sM}, 28"); self.hbase_q("s6")
        toks = []
        a(f"v_add_u32 v44, {L_KVZ}, {vL16}")
        for h in range(4): toks.append(a.lg(f"ds_read_b128 v[{16+4*h}:{16+4*h+3}], v44 offset:{h*1024}"))
        for t in range(2):
            T = ACC + 16*t
            self.phi_tile(T)
            for k in range(8): a(f"v_cvt_pk_bf16_f32 v{32+8*t+k}, v{T+2*k}, v{T+2*k+1}") if t == 0 else a(f"v_cvt_pk_bf16_f32 v{TMP+k}, v{T+2*k}, v{T+2*k+1}")
        PQ = [32, 36, TMP, TMP + 4]
        a(f"v_mul_f32 v45, {cRSTD}, {cRSTD}")
        a.wait(lg=toks[-1])
        for h in range(4):
            d = ACC + 16*h
            a(f"v_mfma_f32_32x32x16_bf16 v[{d}:{d+15}], v[{16+4*h}:{16+4*h+3}], v[{PQ[h]}:{PQ[h]+3}], 0")
        for h in range(4):
            d = ACC + 16*h
            a(f"v_add_f32 v{d+8}, s72, v{d+8}"); a(f"v_mul_f32 v{d+8}, v{d+8}, v45"); a(f"v_rcp_f32 v{d+8}, v{d+8}")
            a(f"v_mov_b32 v{d+9}, v{d+8}")
            for k in range(0, 8, 2): a(f"v_pk_mul_f32 v[{d+k}:{d+k+1}], v[{d+k}:{d+k+1}], v[{d+8}:{d+9}]")
            for k in range(4): a(f"v_cvt_pk_bf16_f32 v{16+4*h+k}, v{d+2*k}, v{d+2*k+1}")
            a.vm(f"buffer_store_dwordx4 v[{16+4*h}:{16+4*h+3}], {vL16}, {srd(S_WS)}, {sHB} offen offset:{h*1024} sc1")
    def branch2(self, even, odd):
        a = self.a
        lo = a.newlabel("Lo"); lj = a.newlabel("Lj")
        a(f"s_cmp_eq_u32 {sPAR}, 0"); a(f"s_cbranch_scc0 {lo}")
        st = (a.vm_issued, a.lg_issued, a.vm_floor, a.lg_floor)
        even(); sa = (a.vm_issued, a.lg_issued)
        a(f"s_branch {lj}"); a.label(lo)
        a.vm_issued, a.lg_issued, a.vm_floor, a.lg_floor = st
        odd(); sb = (a.vm_issued, a.lg_issued)
        a.label(lj)
        a.vm_issued = min(sa[0], sb[0]); a.lg_issued = min(sa[1], sb[1])
        a.vm_floor = min(a.vm_floor, st[2]) if False else st[2]; a.lg_floor = st[3]
    def h_load(self, i):
        a = self.a
        parts = []
        def head():
            self.qget(i, "s6"); a("s_add_u32 s6, s6, s76"); a("s_lshl_b32 s6, s6, 14"); a("s_add_u32 s78, s6, s77"); a("s_add_u32 s79, s78, 4096")
        for rf in range(2):
            for s in range(4):
                def p(rf=rf, s=s):
                    if rf == 0 and s == 0: head()
                    r = (i % 3)*32 + rf*16 + s*4
                    self.htok[i] = a.vm(f"buffer_load_dwordx4 a[{r}:{r+3}], {vL16}, {srd(S_WS)}, {'s78' if rf == 0 else 's79'} offen offset:{s*1024} sc1")
                parts.append(p)
        return parts

    def compute(self):
        a = self.a; o = self.o
        who = "c"
        self.c_setup()
        self.ftok = {}; self.xrtok = {}; self.htok = {}
        ex = {}
        def at(f, fn): ex.setdefault(f, []).append(fn)
        for G in range(20):
            at(16*G + 9, lambda G=G: self.c_bar(G))
            if G < 7:
                for s in range(4): at(16*G + 11 + s, lambda G=G, s=s: self.x_read(G+1, s))
        for i, f0 in ((0, 290), (1, 303)):
            hd = {}
            def get(k, i=i, hd=hd):
                if "p" not in hd: hd["p"] = self.h_load(i)
                hd["p"][k]()
            for k in range(8): at(f0 + k + (k // 4), lambda k=k, get=get: get(k))
        self.barrier(who, "P0")
        self.stamp("go"); self.stamp("rtgo")
        for s in range(4): self.x_read(0, s)
        self.c_prime(0)
        self.c_run(0, 128, ex, 128)
        self.stamp("e1")
        if o.get("touchw2", 1):
            self.c_touch_w2()
            for k in range(4): self.c_touch_step(k)
        a(f"v_and_b32 v44, 31, {vLANE}"); a("v_lshlrev_b32 v44, 3, v44"); a(f"s_lshl_b32 s6, {sW}, 8"); a(f"s_add_u32 s6, s6, {L_STT}"); a("v_add_u32 v44, s6, v44")
        t = a.lg("ds_read_b64 v[46:47], v44")
        a.wait(lg=t)
        a(f"v_mov_b32 {cRSTD}, v47"); a(f"v_mul_f32 {cRL}, s71, v47")
        a(f"v_cvt_pk_bf16_f32 v{BAUG}, v46, v46"); a(f"v_lshlrev_b32 v45, 16, v{BAUG}"); a("v_sub_f32 v45, v46, v45")
        a(f"v_cvt_pk_bf16_f32 v{BAUG+1}, v45, v45")
        a(f"v_cmp_gt_u32 vcc, 32, {vLANE}"); a("v_mov_b32 v45, 0"); a("s_nop 0")
        a(f"v_cndmask_b32 v{BAUG}, v45, v{BAUG}, vcc"); a(f"v_cndmask_b32 v{BAUG+1}, v45, v{BAUG+1}, vcc")
        self.branch2(self.epi_kv, lambda: self.epi_ffn(0))
        a.wait_all(vm=False)
        self.stamp("e1end")
        self.c_prime(128)
        self.c_run(128, 256, ex, 256)
        self.stamp("e2")
        self.epi_ffn(1)
        self.stamp("e2end")
        self.c_prime(256)
        self.c_run(256, 320, ex, 320)
        self.barrier(who, "H0")
        a(f"v_lshrrev_b32 v56, 5, {vLANE}"); a(f"v_bfe_u32 v57, {vLANE}, 2, 2"); a(f"v_and_b32 v58, 3, {vLANE}"); a(f"v_bfe_u32 v59, {vLANE}, 4, 1")
        a("v_lshlrev_b32 v60, 5, v59"); a("v_lshl_add_u32 v60, v58, 3, v60")
        a("v_lshrrev_b32 v58, 1, v57"); a("v_lshlrev_b32 v58, 6, v58")
        a("v_lshl_add_u32 v56, v56, 2, v57"); a("v_lshlrev_b32 v56, 7, v56"); a(f"v_add_u32 v56, {sW8K}, v56")
        a("v_xor_b32 v57, v60, v58"); a(f"v_add_u32 {cB2[0]}, v56, v57")
        a("v_or_b32 v60, 64, v60"); a("v_xor_b32 v57, v60, v58"); a(f"v_add_u32 {cB2[1]}, v56, v57")
        a(f"v_add_u32 {cB2H[0]}, 0x10000, {cB2[0]}"); a(f"v_add_u32 {cB2H[1]}, 0x10000, {cB2[1]}")
        self.stamp("e3")
        self.branch2(self.epi_side, self.epi_q)
        self.stamp("e3end")
        self.e3_mark = a.vm_issued
        ex2 = {}
        def at2(f, fn): ex2.setdefault(f, []).append(fn)
        for i in range(9):
            f0 = NF1 + 16*i
            if i > 0: at2(f0 - LOOK - 1, lambda i=i: self.c_sbar(i))
            late = o.get("fl2_i", 5) == 5
            todo = []
            if i + 2 < 9 and not (late and i + 2 == 6): todo.append(i + 2)
            if late and i == 5: todo.insert(0, 6)
            for n, j in enumerate(todo):
                hd = {}
                def get(k, j=j, hd=hd):
                    if "p" not in hd: hd["p"] = self.h_load(j)
                    hd["p"][k]()
                for k in range(8): at2(f0 + (1 + k if len(todo) == 1 else (k + 8*n) * 15 // 16), lambda k=k, get=get: get(k))
        def resid():
            a(f"s_lshl_b32 s64, {sT}, 16"); a(f"s_lshl_b32 s7, {sC2}, 7"); a("s_add_u32 s64, s64, s7"); a("s_add_u32 s65, s64, 32768")
            a.vm(f"buffer_load_dwordx4 a[96:99], {cOUT}, {srd(S_X)}, s64 offen")
            a.vm(f"buffer_load_dwordx4 a[100:103], {cOUT}, {srd(S_X)}, s65 offen")
            a("v_lshrrev_b32 v56, 3, v0"); a("v_lshlrev_b32 v56, 4, v56")
            a(f"s_lshl_b32 s6, {sT}, 10"); a(f"s_add_u32 s6, s6, {WS_STAT + 4}")
            a.vm(f"buffer_load_dword v50, v56, {srd(S_WS)}, s6 offen sc1")
            self.xrtk = a.vm(f"buffer_load_dword v51, v56, {srd(S_WS)}, s6 offen offset:512 sc1")
        at2(NF1 + 16*7 + 2, resid)
        self.c_sbar(0)
        self.c_prime(NF1)
        self.c_run(NF1, NF, ex2, NF)
        self.final()

    def c_bar(self, G):
        a = self.a; o = self.o
        if G == o.get("pub0_G", 9) or G == o.get("pub1_G", 17): a.wait_all(lg=False)
        if G == 8: a.wait_all(vm=False)
        self.barrier("c", f"B{G}")
    def c_kv_read(self):
        a = self.a
        a(f"s_mul_i32 s6, {sW}, 1280"); a(f"s_add_u32 s6, s6, {L_KVO}"); a(f"v_lshlrev_b32 v{TMP}, 2, {vLANE}"); a(f"v_add_u32 v{TMP}, s6, v{TMP}")
        for v in range(5): self.kvrt = a.lg(f"ds_read_b32 v{TMP+1+v}, v{TMP} offset:{v*256}")
    def c_kv_atomics(self):
        a = self.a
        a(f"v_lshrrev_b32 v{TMP}, 4, {vLANE}"); a(f"v_lshlrev_b32 v{TMP}, 8, v{TMP}")
        a(f"v_and_b32 v{TMP+6}, 15, {vLANE}"); a(f"v_lshl_add_u32 v{TMP}, v{TMP+6}, 2, v{TMP}")
        a(f"v_lshlrev_b32 v{TMP+6}, 2, v{TMP+6}")
        a(f"v_cmp_gt_u32 vcc, 16, {vLANE}"); a(f"v_mov_b32 v{TMP+7}, {OOB}")
        a(f"s_lshl_b32 s64, {sCG}, 13"); a(f"s_mul_i32 s65, {sW}, {KVH}"); a("s_add_u32 s64, s64, s65"); a(f"s_add_u32 s64, s64, {WS_ACC + ACC_KV}")
        a(f"v_cndmask_b32 v{TMP+6}, v{TMP+7}, v{TMP+6}, vcc")
        a(f"s_cmp_eq_u32 {sPAR}, 0"); a("s_cselect_b64 vcc, -1, 0")
        a(f"v_cndmask_b32 v{TMP}, v{TMP+7}, v{TMP}, vcc"); a(f"v_cndmask_b32 v{TMP+6}, v{TMP+7}, v{TMP+6}, vcc")
        a.wait(lg=self.kvrt)
        for v in range(4): a.vm(f"buffer_atomic_add_f32 v{TMP+1+v}, v{TMP}, {srd(S_WS)}, s64 offen offset:{v*64} sc1")
        a.vm(f"buffer_atomic_add_f32 v{TMP+5}, v{TMP+6}, {srd(S_WS)}, s64 offen offset:1024 sc1")

    def c_touch_w2(self):
        a = self.a
        a(f"s_lshr_b32 s6, {sJ}, 2"); a("s_mul_i32 s6, s6, 288"); a(f"s_mul_i32 s7, {sW}, 72"); a("s_add_u32 s6, s6, s7")
        a(f"v_add_u32 v{TMP}, s6, {vLANE}"); a(f"v_lshlrev_b32 v{TMP}, 10, v{TMP}")
        a(f"s_lshl_b32 s6, {sC2}, 7")
        a(f"v_add_u32 v{TMP+1}, {64*1024}, v{TMP}")
        a(f"v_cmp_gt_u32 vcc, 8, {vLANE}"); a(f"v_mov_b32 v{TMP+2}, {OOB}"); a("s_nop 0")
        a(f"v_cndmask_b32 v{TMP+1}, v{TMP+2}, v{TMP+1}, vcc")
        a(f"s_mov_b32 s65, s6")
    def c_touch_step(self, k):
        a = self.a
        r = TMP + (k // 2)
        if k % 2 == 0: a.vm(f"buffer_load_dword v50, v{r}, {srd(S_WD)}, s65 offen")
        else:
            a(f"v_subrev_u32 v{TMP+4}, {1792*1024}, v{r}")
            a.vm(f"buffer_load_dword v50, v{TMP+4}, {srd(S_WO)}, s65 offen")

    def c_sbar(self, i):
        a = self.a; o = self.o
        if i == o.get("pub2_i", 1):
            a(f"s_waitcnt vmcnt({min(63, self.younger_than_e3())})")
        self.barrier("c", f"S{i}")
    def younger_than_e3(self):
        return self.a.vm_issued - self.e3_mark

    def final(self):
        a = self.a
        self.stamp("loopend")
        a("s_barrier")
        a(f"v_and_b32 v56, 31, {vLANE}"); a("s_movk_i32 s7, 272"); a("v_mul_lo_u32 v56, v56, s7")
        a(f"v_add_u32 v56, v56, {cG16}"); a(f"s_mul_i32 s6, {sW}, 17408"); a("v_add_u32 v56, s6, v56")
        for cb in range(2):
            for rf in range(2):
                for t in range(4):
                    r = ACC + (cb*2+rf)*16 + 4*t
                    a.lg(f"ds_write_b128 v56, v[{r}:{r+3}] offset:{rf*8704 + cb*128 + t*32}")
        a("v_lshrrev_b32 v57, 3, v0"); a("v_mul_lo_u32 v57, v57, s7")
        a("v_and_b32 v58, 7, v0"); a("v_lshl_add_u32 v57, v58, 5, v57")
        a.wait_all(vm=False)
        a("s_barrier")
        toks = {}
        for it in range(2):
            for p in range(4):
                for hh in range(2):
                    r = 64 + it*32 + p*8 + hh*4
                    toks[it] = a.lg(f"ds_read_b128 v[{r}:{r+3}], v57 offset:{p*17408 + it*8704 + hh*16}")
        a.wait(vm=self.xrtk)
        for k in range(8): a(f"v_accvgpr_read_b32 v{16+k}, a{96+k}")
        for it in range(2):
            a.wait(lg=toks[it])
            b = 64 + it*32; x = 16 + 4*it
            for k in range(0, 8, 2):
                a(f"v_pk_add_f32 v[{b+k}:{b+k+1}], v[{b+k}:{b+k+1}], v[{b+8+k}:{b+8+k+1}]")
                a(f"v_pk_add_f32 v[{b+16+k}:{b+16+k+1}], v[{b+16+k}:{b+16+k+1}], v[{b+24+k}:{b+24+k+1}]")
            a(f"v_mul_f32 v58, v{50+it}, v{50+it}")
            for k in range(0, 8, 2): a(f"v_pk_add_f32 v[{b+k}:{b+k+1}], v[{b+k}:{b+k+1}], v[{b+16+k}:{b+16+k+1}]")
            for k in range(4):
                a(f"v_lshlrev_b32 v59, 16, v{x+k}"); a(f"v_and_b32 v60, 0xffff0000, v{x+k}")
                a(f"v_fma_f32 v{b+2*k}, v{b+2*k}, v58, v59"); a(f"v_fma_f32 v{b+2*k+1}, v{b+2*k+1}, v58, v60")
            for k in range(4): a(f"v_cvt_pk_bf16_f32 v{24+4*it+k}, v{b+2*k}, v{b+2*k+1}")
            a.vm(f"buffer_store_dwordx4 v[{24+4*it}:{24+4*it+3}], {cOUT}, {srd(S_OUT)}, {'s64' if it == 0 else 's65'} offen")
        self.stamp("end"); self.stamp("rtend")
        self.prof_out(0)
        a("s_endpgm")

    def prof_out(self, woff):
        if self.prof is None: return
        a = self.a
        a.wait_all()
        a(f"s_lshl_b32 s6, s2, 3"); a(f"s_add_u32 s6, s6, {sW}"); a(f"s_add_u32 s6, s6, {woff}"); a("s_lshl_b32 s6, s6, 7"); a(f"s_add_u32 s6, s6, {WS_PROF}")
        a(f"v_cmp_eq_u32 vcc, 0, {vLANE}"); a(f"v_mov_b32 v40, {OOB}"); a("v_mov_b32 v41, 0"); a("v_cndmask_b32 v40, v40, v41, vcc")
        for i in range(len(self.prof)):
            a(f"v_mov_b32 v42, s{84+2*i}"); a(f"v_mov_b32 v43, s{85+2*i}")
            a.vm(f"buffer_store_dwordx2 v[42:43], v40, {srd(S_WS)}, s6 offen offset:{i*8}")
            a("s_nop 1")

    def build(self):
        a = self.a
        self.bars = {}
        self.prologue()
        prot = set(a.protect)
        self.sfx = "_c"
        self.h_setup()
        st = (a.vm_issued, a.lg_issued, a.vm_floor, a.lg_floor)
        saved = (dict(self.xtok), dict(self.wtok)); m0s = (self.m0_owner, self.m0_val)
        a(f"s_cmp_eq_u32 {sPAR}, 0"); a("s_cbranch_scc0 Lhodd")
        self.helper(0)
        a.label("Lhodd")
        a.vm_issued, a.lg_issued, a.vm_floor, a.lg_floor = st
        self.xtok, self.wtok = dict(saved[0]), dict(saved[1]); self.m0_owner, self.m0_val = m0s; self.open_item = {}
        self.helper(1)
        a.label("Lcompute")
        a.vm_issued = a.lg_issued = a.vm_floor = a.lg_floor = 0
        a.protect = prot
        self.compute()
        a.label("Lend")
        a("s_endpgm")
        assert self.bars["c"] == self.bars["h0"] == self.bars["h1"], (self.bars["c"], self.bars["h0"])
        L = self.log
        print("schedule:", {str(k): v for k, v in sorted(L.items(), key=str)}, file=sys.stderr)
        for c in (0, 1):
            assert L[(1, "pub", 0)] < L[(c, "chk", 0)]
            for ph in (1, 2):
                for p in (0, 1): assert L[(p, "pub", ph)] < L[(c, "chk", ph)], ("order", ph, p, c)
            for d in (0, 1):
                assert L[f"cs_pubA_{c}"] < L[f"cs_chkA_{d}"] and L[f"cs_pubB_{c}"] < L[f"cs_chkB_{d}"] and L[f"st_pub_{c}"] < L[f"st_chk_{d}"]
        assert L[(0, "kvcnt")] < L[(1, "kvchk")]
        for e in self.slow: e()
        a.label("Lcode_end")
        a.finalize()
        return a.text()

HEADER = """; Kernarg layout for this problem (80 bytes, ptrs only, base s[0:1]):
; @launch grid=(256,1,1) block=(512,1,1) lds=%d
.amdgcn_target "amdgcn-amd-amdhsa--gfx950"
.text
.globl %s
.p2align 8
.type %s,@function
%s:
"""
FOOTER = """
.section .rodata,"a"
.p2align 6
.amdhsa_kernel %s
  .amdhsa_next_free_vgpr 256
  .amdhsa_next_free_sgpr 102
  .amdhsa_accum_offset 128
  .amdhsa_group_segment_fixed_size 0
  .amdhsa_kernarg_size 80
  .amdhsa_user_sgpr_count 2
  .amdhsa_user_sgpr_kernarg_segment_ptr 1
  .amdhsa_system_sgpr_workgroup_id_x 1
.end_amdhsa_kernel
"""
BLOCK = 512
def generate(prof=None, opts=None):
    g = Gen(prof=prof, opts=opts)
    body = g.build()
    return HEADER % (LDS_BYTES, KNAME, KNAME, KNAME) + body + "\n" + FOOTER % KNAME

if __name__ == "__main__":
    prof = None; opts = {}; out = None
    for x in sys.argv[1:]:
        if x.startswith("--prof="): prof = x[7:].split(",")
        elif x.startswith("--opt="):
            for kv in x[6:].split(","):
                k, v = kv.split("="); opts[k] = int(v)
        else: out = x
    txt = generate(prof, opts)
    path = out or "parallel_sum__linear_attn_block__glu_gated_reglu__prompt.s"
    open(path, "w").write(txt)
    print("wrote", path, len(txt), "bytes")
```

```python
import sys, os
sys.path.insert(0, os.path.dirname(os.path.abspath(__file__)))
from asmlib import Asm

KNAME = "parallel_sum__linear_attn_block__glu_gated_reglu__prompt_kernel"

WS_EPOCH = 0x0
WS_ZF    = 0x1000
WS_HF    = 0x2000
WS_STAT  = 0x10000
WS_ACC   = 0x20000
ACC_CNT_KV = 1408
ACC_KV     = 2048
KVH, KVR = 1088, 64
WS_CSP   = 0x40000
WS_CSPA  = 0xC0000
WS_H     = 0x100000
WS_KVP   = 0xA00000
WS_KVZP  = 0xA80000
WS_KVF   = 0xA90000
WS_PROF  = 0xF00000
OOB      = 0x7FFFFFF0

NW = 5
L_X    = 0x14000
L_CA   = 0x20000
L_KVS  = 0x14000
KVP    = 136
L_CST  = 0x24800
L_STT  = 0x24E00
L_KVZ  = 0x25400
L_KVO  = 0x26400
W2SLOT = [0x14000, 0x0, 0x8000, 0x1C000]
LDS_BYTES = 0x28000

LOOK = 6
NFR  = 8
NF1  = 320
NF   = NF1 + 144

S_X, S_WS, S_OUT, S_U1, S_U2, S_U3, S_WD, S_WO = 8, 12, 16, 20, 24, 28, 32, 36
def srd(b): return f"s[{b}:{b+3}]"
sC1B, sC2B, sP1, sP3, sC3B, sJ = "s40", "s41", "s42", "s43", "s44", "s45"
sW, sR, sCG, sM, sPAR, sWLDS = "s46", "s47", "s48", "s49", "s50", "s51"
sU1b, sU1c64, sU2b, sU3c64 = "s52", "s53", "s54", "s55"
sXB, sW8K = "s56", "s57"
sTAGL, sTAGH = "s60", "s61"
sACC = "s62"
sROT = "s4"
sQA, sQB, sQC = "s5", "s3", "s63"
sT, sC2, sR2, sHALF = "s80", "s81", "s82", "s83"
sHB = "s70"
vLANE, vL16 = "v1", "v2"

cWA = [["v3", "v4"], ["v5", "v6"]]
cSA = ["v7", "v8"]
cXA = ["v9", "v10", "v11", "v12"]
cB2 = ["v9", "v10"]; cB2H = ["v11", "v12"]
cRSTD, cRL, cG16, cCSA = "v13", "v14", "v15", "v48"
RING = 16
BAUG = 52
cOUT = "v49"
TMP = 56
ACC = 64
hSA = "v3"
vU1 = [4, 5, 6, 7]; vU2 = [8, 9, 10, 11]; vU3 = [12, 13, 14, 15]; vX = [16, 17, 18, 19]; vW2 = [20, 21, 22, 23]
hG16, hCSA, hL0, vPOLL, vDUM = "v24", "v25", "v26", "v27", "v28"
TAG = 30
vTAGL, vTAGH = "v30", "v31"
FLD = 32

class Task:
    def __init__(self, g, wake, name):
        self.g = g; self.wake = wake; self.done = False; self.name = name

class Gen:
    def __init__(self, prof=None, opts=None):
        self.a = Asm()
        self.slow = []
        self.prof = prof
        self.tasks = []
        self.log = {}
        self.o = dict(codepf=1, hbudget=3)
        if opts: self.o.update(opts)
        self.nbar = {"c": 0, "h0": 0, "h1": 0}
        self.m0_owner = None; self.m0_val = None; self.open_item = {}

    def stamp(self, name):
        if self.prof is None or name not in self.prof: return
        i = self.prof.index(name)
        assert i < 9
        op = "s_memrealtime" if name.startswith("rt") else "s_memtime"
        self.a(f"{op} s[{84+2*i}:{85+2*i}]")
    def spawn(self, g, wake, name, front=False):
        t = Task(g, wake, name)
        if front: self.tasks.insert(0, t)
        else: self.tasks.append(t)
        return t
    def step(self, t):
        try: r = next(t.g)
        except StopIteration:
            t.done = True; return
        if r is not None: t.wake = r
    def pump(self, f, start, budget):
        a = self.a
        while len(a.lines) - start < budget:
            t = next((t for t in self.tasks if not t.done and t.wake <= f), None)
            if t is None: break
            self.step(t)
        self.tasks = [t for t in self.tasks if not t.done]
    def finish(self, name):
        cap = getattr(self, "int_cap", 0); self.int_cap = 10**9
        for t in list(self.tasks):
            if t.name == name:
                while not t.done: self.step(t)
        self.int_cap = cap
        self.tasks = [t for t in self.tasks if not t.done]
    def active(self, name): return any(t.name == name and not t.done for t in self.tasks)
    def barrier(self, who, name):
        self.bars.setdefault(who, []).append(name)
        self.stamp(f"{who[0]}{name}_in")
        self.a("s_barrier")
        self.stamp(f"{who[0]}{name}_out")

    def poll_check(self, tok, cmp_lines, reissue, name="x"):
        a = self.a
        slow = a.newlabel("Lslow"); back = a.newlabel("Lback")
        self.stamp(name + "_in")
        a.wait(vm=tok)
        a(cmp_lines)
        a("s_cmp_eq_u64 vcc, -1")
        a(f"s_cbranch_scc0 {slow}")
        a.label(back)
        self.stamp(name + "_out")
        def emit():
            loop = a.newlabel("Lspin")
            a.label(slow)
            a("s_mov_b32 s66, 0x4000")
            a.label(loop)
            a("s_sleep 1")
            a(reissue)
            a("s_waitcnt vmcnt(0)")
            a(cmp_lines)
            a("s_cmp_eq_u64 vcc, -1")
            a(f"s_cbranch_scc1 {back}")
            a("s_sub_u32 s66, s66, 1")
            a("s_cmp_lg_u32 s66, 0")
            a(f"s_cbranch_scc1 {loop}")
            a(f"s_branch {back}")
        self.slow.append(emit)
    def tagcmp(self, d):
        return (f"v_cmp_eq_u32 vcc, v{d}, {vTAGL}\n"
                f"v_cmp_eq_u32 s[64:65], v{d+1}, {vTAGH}\n"
                f"s_and_b64 vcc, vcc, s[64:65]")
    def reset_track(self):
        a = self.a
        a.vm_floor = a.vm_issued; a.lg_floor = a.lg_issued

    def prologue(self):
        a = self.a
        a("s_cmp_ge_u32 s2, 256")
        a("s_cbranch_scc1 Lend")
        a(f"s_load_dwordx2 s[{S_X}:{S_X+1}], s[0:1], 0")
        a("s_load_dwordx2 s[64:65], s[0:1], 8")
        a("s_load_dwordx4 s[68:71], s[0:1], 32")
        a(f"s_load_dwordx2 s[{S_WS}:{S_WS+1}], s[0:1], 72")
        a(f"s_load_dwordx2 s[{S_WD}:{S_WD+1}], s[0:1], 48")
        a(f"s_load_dwordx2 s[{S_WO}:{S_WO+1}], s[0:1], 16")
        a(f"s_load_dwordx2 s[{S_OUT}:{S_OUT+1}], s[0:1], 56")
        a.protect = {("s", i) for i in (64, 65, 68, 69, 70, 71)}
        self.stamp("start"); self.stamp("rtstart")
        for b, size in ((S_X, 2097152), (S_WS, 0x10000000), (S_OUT, 2097152), (S_WD, 1792*1024), (S_WO, 524288), (S_U2, 512*3584)):
            a(f"s_mov_b32 s{b+2}, {size}"); a(f"s_mov_b32 s{b+3}, 0x00020000")
        a(f"s_mov_b32 s{S_U1+3}, 0x00020000"); a(f"s_mov_b32 s{S_U3+3}, 0x00020000")
        a(f"v_and_b32 {vLANE}, 63, v0")
        a("v_lshrrev_b32 v32, 6, v0")
        a(f"v_lshlrev_b32 {vL16}, 4, {vLANE}")
        a("v_readfirstlane_b32 s72, v32")
        a(f"s_and_b32 {sW}, s72, 3")
        a("s_and_b32 s3, s2, 7")
        a(f"s_lshr_b32 {sJ}, s2, 3")
        a("s_lshr_b32 s7, s3, 2"); a(f"s_lshl_b32 {sR}, s7, 3")
        a(f"s_lshr_b32 s7, {sJ}, 2"); a(f"s_add_u32 {sR}, {sR}, s7")
        a("s_and_b32 s7, s3, 3"); a(f"s_lshl_b32 {sCG}, s7, 2")
        a(f"s_and_b32 s7, {sJ}, 3"); a(f"s_add_u32 {sCG}, {sCG}, s7")
        a(f"s_lshr_b32 {sM}, {sCG}, 1"); a(f"s_and_b32 {sPAR}, {sCG}, 1")
        a(f"s_bfe_u32 {sHALF}, s3, {(1 << 16) | 1}"); a(f"s_lshl_b32 {sT}, {sR}, 1"); a(f"s_add_u32 {sT}, {sT}, {sHALF}")
        a(f"s_and_b32 {sC2}, s3, 1"); a(f"s_lshl_b32 {sC2}, {sC2}, 2"); a(f"s_and_b32 s7, {sJ}, 3"); a(f"s_add_u32 {sC2}, {sC2}, s7")
        a(f"s_mov_b32 {sR2}, {sR}")
        a(f"s_lshl_b32 {sWLDS}, {sW}, 12"); a(f"s_lshl_b32 {sW8K}, {sW}, 13")
        a("s_cmp_lt_u32 s72, 4")
        a("s_cbranch_scc1 Lcompute")

    def h_setup(self):
        a = self.a
        a(f"s_add_u32 s6, {sCG}, {sR}"); a(f"s_and_b32 {sROT}, s6, 3")
        a(f"s_lshl_b32 s6, {sR}, 7"); a(f"s_lshl_b32 s7, {sW}, 5"); a("s_add_u32 s6, s6, s7")
        a(f"s_lshl_b32 {sXB}, s6, 10")
        a(f"s_cmp_eq_u32 {sPAR}, 0")
        a("s_movk_i32 s6, 3072"); a("s_movk_i32 s7, 3584")
        a(f"s_cselect_b32 {sP1}, s6, s7"); a(f"s_cselect_b32 {sP3}, s7, s6")
        a(f"s_mov_b32 s6, {512*3072}"); a(f"s_mov_b32 s7, {512*3584}")
        a(f"s_cselect_b32 s{S_U1+2}, s6, s7"); a(f"s_cselect_b32 s{S_U3+2}, s7, s6")
        a(f"v_lshrrev_b32 v40, 5, {vLANE}"); a(f"v_bfe_u32 v41, {vLANE}, 2, 2"); a(f"v_and_b32 v42, 3, {vLANE}"); a(f"v_bfe_u32 v43, {vLANE}, 4, 1")
        a(f"v_lshrrev_b32 v44, 3, {vLANE}"); a(f"v_and_b32 v45, 7, {vLANE}")
        a(f"v_lshrrev_b32 v47, 4, {vLANE}"); a("v_xor_b32 v47, v45, v47"); a("v_lshlrev_b32 v47, 4, v47")
        a(f"v_lshl_add_u32 v{vX[0]}, v44, 10, v47")
        a(f"v_xor_b32 v47, 64, v{vX[0]}")
        a(f"v_add_u32 v{vX[1]}, {7*1024}, v47"); a(f"v_add_u32 v{vX[2]}, {14*1024}, v{vX[0]}"); a(f"v_add_u32 v{vX[3]}, {21*1024}, v47")
        a("v_lshlrev_b32 v46, 2, v43"); a("v_xor_b32 v46, v45, v46"); a("v_lshlrev_b32 v46, 4, v46")
        a(f"v_mul_lo_u32 v47, v44, {sP1}"); a(f"v_add_u32 v{vU1[0]}, v47, v46")
        a(f"s_lshl_b32 s6, {sP1}, 3"); a("s_sub_u32 s6, s6, 1024")
        for i in range(1, 4): a(f"v_add_u32 v{vU1[i]}, s6, v{vU1[i-1]}")
        a(f"s_lshr_b32 s72, {sW}, 1")
        a("s_lshl_b32 s73, s72, 10"); a("s_add_u32 s73, s73, 1024")
        a(f"s_lshl_b32 s7, {sM}, 7"); a("s_add_u32 s73, s73, s7")
        a(f"s_lshl_b32 s6, {sM}, 8"); a("s_add_u32 s6, s6, 1024")
        a(f"s_cmp_eq_u32 {sPAR}, 0"); a(f"s_cselect_b32 {sC1B}, s73, s6")
        a("s_add_u32 s6, s6, 128")
        a(f"s_cmp_eq_u32 {sPAR}, 0"); a(f"s_cselect_b32 {sC2B}, s7, s6")
        a(f"s_lshr_b32 s6, {sM}, 1"); a("s_lshl_b32 s6, s6, 7"); a("s_add_u32 s6, s6, 3072")
        a(f"s_and_b32 s73, {sM}, 1"); a("s_lshl_b32 s73, s73, 6"); a("s_add_u32 s6, s6, s73")
        a("s_lshl_b32 s73, s72, 6"); a("s_add_u32 s73, s73, s7")
        a(f"s_cmp_eq_u32 {sPAR}, 0"); a(f"s_cselect_b32 {sC3B}, s6, s73")
        a(f"s_and_b32 s72, {sW}, 1")
        a(f"s_lshl_b32 {sU1c64}, {sP1}, 6")
        a(f"s_mul_i32 s6, s72, {sP1}"); a("s_lshl_b32 s7, s6, 5"); a(f"s_add_u32 {sU1b}, {sC1B}, s7")
        a("s_waitcnt lgkmcnt(0)")
        self.stamp("kargs")
        a(f"s_load_dwordx2 s[60:61], s[{S_WS}:{S_WS+1}], 0")
        self.xtok = {}; self.wtok = {}
        self.dma_x(0)
        a(f"s_cmp_lt_u32 {sW}, 2")
        a(f"s_cselect_b32 s{S_U2}, s68, s70"); a(f"s_cselect_b32 s{S_U2+1}, s69, s71")
        a(f"s_cmp_eq_u32 {sPAR}, 0")
        a(f"s_cselect_b32 s{S_U1}, s64, s{S_U2}"); a(f"s_cselect_b32 s{S_U1+1}, s65, s{S_U2+1}")
        a(f"s_cselect_b32 s{S_U3}, s{S_U2}, s64"); a(f"s_cselect_b32 s{S_U3+1}, s{S_U2+1}, s65")
        a.protect = set()
        self.dma_w(0); self.dma_x(1); self.dma_w(1)
        if self.o.get("touch1", 0): self.touch1()
        a("v_lshlrev_b32 v47, 5, v43"); a("v_lshl_add_u32 v47, v42, 3, v47")
        a("v_lshl_add_u32 v48, v40, 3, v41"); a("v_lshlrev_b32 v48, 6, v48"); a(f"v_add_u32 {hSA}, v48, v47")
        a(f"v_lshlrev_b32 {hG16}, 4, v40")
        a("s_movk_i32 s7, 3584"); a("v_mul_lo_u32 v47, v44, s7"); a(f"v_add_u32 v{vU2[0]}, v47, v46")
        for i in range(1, 4): a(f"v_add_u32 v{vU2[i]}, {8*3584-1024}, v{vU2[i-1]}")
        a(f"s_mul_i32 s7, s72, {32*3584}"); a(f"s_add_u32 {sU2b}, {sC2B}, s7")
        a(f"v_lshrrev_b32 v49, 2, {vLANE}"); a(f"v_mul_lo_u32 v47, v49, {sP3}"); a(f"v_lshl_add_u32 v{vU3[0]}, v42, 4, v47")
        a(f"s_lshl_b32 s6, {sP3}, 4"); a("s_sub_u32 s6, s6, 1024")
        for i in range(1, 4): a(f"v_add_u32 v{vU3[i]}, s6, v{vU3[i-1]}")
        a(f"s_lshl_b32 {sU3c64}, {sP3}, 6")
        a(f"v_lshl_add_u32 v{vW2[0]}, v44, 10, v46")
        for k in range(1, 4): a(f"v_add_u32 v{vW2[k]}, {7*1024*k}, v{vW2[0]}")
        a(f"v_mul_lo_u32 v47, v49, {sP1}"); a("v_lshl_add_u32 v34, v42, 4, v47")
        a(f"s_lshl_b32 s6, {sP1}, 4"); a("s_sub_u32 s6, s6, 1024"); a("v_add_u32 v35, s6, v34")
        a("s_movk_i32 s7, 3584"); a("v_mul_lo_u32 v47, v49, s7"); a("v_lshl_add_u32 v36, v42, 4, v47"); a(f"v_add_u32 v37, {16*3584-1024}, v36")
        a(f"s_and_b32 s6, {sR}, 7"); a("s_lshl_b32 s6, s6, 6"); a(f"s_lshr_b32 s7, {sR}, 3"); a("s_lshl_b32 s7, s7, 5"); a("s_add_u32 s6, s6, s7")
        a("s_lshl_b32 s7, s72, 6")
        a(f"s_mul_i32 s73, s6, {sP1}"); a(f"s_add_u32 s73, s73, {sC1B}"); a("s_add_u32 s73, s73, s7")
        a("s_mul_i32 s74, s6, 3584"); a(f"s_add_u32 s74, s74, {sC2B}"); a("s_add_u32 s74, s74, s7")
        a(f"s_mul_i32 s75, s6, {sP3}"); a(f"s_add_u32 s75, s75, {sC3B}")
        a(f"s_lshl_b32 {sACC}, {sCG}, 13"); a(f"s_add_u32 {sACC}, {sACC}, {WS_ACC}")
        a(f"s_lshl_b32 s6, {sR}, 7"); a(f"s_lshl_b32 s7, {sCG}, 3"); a("s_add_u32 s6, s6, s7")
        a(f"s_lshl_b32 s7, {sW}, 1"); a("s_add_u32 s76, s6, s7")
        a(f"v_and_b32 {hCSA}, 31, {vLANE}"); a(f"v_lshlrev_b32 {hCSA}, 2, {hCSA}"); a(f"v_add_u32 {hCSA}, {L_CST}, {hCSA}")
        a(f"v_cmp_eq_u32 vcc, 0, {vLANE}"); a(f"v_mov_b32 {hL0}, {OOB}"); a("v_mov_b32 v47, 0"); a(f"v_cndmask_b32 {hL0}, {hL0}, v47, vcc")
        a(f"s_lshl_b32 s6, {sR}, 1"); a(f"s_lshr_b32 s7, {sW}, 1"); a("s_add_u32 s6, s6, s7"); a("s_mul_i32 s6, s6, 768")
        a(f"s_lshl_b32 s7, {sCG}, 4"); a("s_add_u32 s6, s6, s7"); a("s_lshl_b32 s7, s72, 3"); a("s_add_u32 s6, s6, s7"); a(f"s_add_u32 s77, s6, {WS_HF}")
        for _ in self.t_s2_q(): pass
        a("s_waitcnt lgkmcnt(0)")
        a(f"s_add_u32 {sTAGL}, {sTAGL}, 1"); a(f"s_addc_u32 {sTAGH}, {sTAGH}, 0")
        a(f"v_mov_b32 {vTAGL}, {sTAGL}"); a(f"v_mov_b32 {vTAGH}, {sTAGH}")

    def touch1(self):
        a = self.a
        a(f"s_and_b32 s6, {sR}, 7"); a("s_lshl_b32 s6, s6, 6"); a(f"s_and_b32 s7, {sW}, 1"); a("s_lshl_b32 s7, s7, 5"); a("s_add_u32 s6, s6, s7")
        a(f"v_and_b32 v50, 31, {vLANE}"); a("v_add_u32 v50, s6, v50")
        a(f"v_mul_lo_u32 v51, v50, {sP1}")
        a.vm(f"buffer_load_dword {vDUM}, v51, {srd(S_U1)}, {sC1B} offen")
        a(f"v_and_b32 v52, 31, {vLANE}"); a(f"v_lshrrev_b32 v53, 5, {vLANE}"); a(f"s_lshl_b32 s6, {sW}, 1"); a("s_add_u32 s6, s6, 2"); a("v_add_u32 v53, s6, v53")
        a("v_lshlrev_b32 v52, 10, v52"); a("v_lshl_add_u32 v52, v53, 7, v52")
        a("v_cmp_lt_u32 vcc, 7, v53"); a(f"v_mov_b32 v53, {OOB}"); a("s_nop 0"); a("v_cndmask_b32 v52, v52, v53, vcc")
        a(f"s_lshl_b32 s6, {sR}, 7"); a(f"s_and_b32 s7, {sCG}, 3"); a("s_lshl_b32 s7, s7, 5"); a("s_add_u32 s6, s6, s7"); a("s_lshl_b32 s6, s6, 10")
        a.vm(f"buffer_load_dword {vDUM}, v52, {srd(S_X)}, s6 offen")
        a("s_movk_i32 s7, 3584"); a("v_mul_lo_u32 v51, v50, s7")
        a.vm(f"buffer_load_dword {vDUM}, v51, {srd(S_U2)}, {sC2B} offen")
        a(f"v_mul_lo_u32 v51, v50, {sP3}")
        a.vm(f"buffer_load_dword {vDUM}, v51, {srd(S_U3)}, {sC3B} offen")

    def mkparts(self, head, vs, sr, so, settok, ldsbase):
        a = self.a
        parts = []
        for i in range(4):
            def p(i=i):
                key = (so, ldsbase)
                if i == 0:
                    assert self.open_item.get(so) is None
                    self.open_item[so] = key
                assert self.open_item[so] == key
                if i == 3: self.open_item[so] = None
                if i == 0: head()
                elif self.m0_owner != so or self.m0_val != ldsbase: a(f"s_add_u32 m0, {sWLDS}, {ldsbase}")
                self.m0_owner = so; self.m0_val = ldsbase
                settok(a.vm(f"buffer_load_dwordx4 v{vs[i]}, {srd(sr)}, {so} offen{' offset:%d' % (1024*i) if i else ''} lds"))
            parts.append(p)
        return parts
    def m0_clobber(self): self.m0_owner = None
    def dma_x_parts(self, c):
        a = self.a
        def head():
            a(f"s_add_u32 m0, {sWLDS}, {L_X + (c % 3)*16384}")
            a(f"s_add_u32 s7, {sROT}, {c & 3}"); a("s_and_b32 s7, s7, 3")
            if c & 4: a("s_or_b32 s7, s7, 4")
            a("s_lshl_b32 s7, s7, 7"); a(f"s_add_u32 s58, {sXB}, s7")
        return self.mkparts(head, vX, S_X, "s58", lambda t: self.xtok.__setitem__(c, t), L_X + (c % 3)*16384)
    def dma_w_parts(self, G):
        a = self.a
        slot = G % NW
        if G < 8:    vs, sr, b, c64 = vU1, S_U1, sU1b, sU1c64
        elif G < 16: vs, sr, b, c64 = vU2, S_U2, sU2b, str(64*3584)
        else:        vs, sr, b, c64 = vU3, S_U3, sC3B, sU3c64
        def head():
            a(f"s_add_u32 m0, {sWLDS}, {slot*16384}")
            if G < 16:
                pos = G % 8; a(f"s_add_u32 s7, {sROT}, {pos & 3}")
            else:
                pos = 2*(G-16)
                a(f"s_and_b32 s7, {sW}, 1"); a(f"s_add_u32 s7, s7, {sROT}"); a(f"s_add_u32 s7, s7, {pos & 3}")
            a("s_and_b32 s7, s7, 3")
            if pos & 4: a("s_or_b32 s7, s7, 4")
            a(f"s_mul_i32 s7, s7, {c64}"); a(f"s_add_u32 s59, {b}, s7")
        return self.mkparts(head, vs, sr, "s59", lambda t: self.wtok.__setitem__(G, t), slot*16384)
    def dma_x(self, c):
        for p in self.dma_x_parts(c): p()
    def dma_w(self, G):
        for p in self.dma_w_parts(G): p()
    def slab(self, base_expr, v0, v1, sr, so):
        a = self.a
        a(base_expr); self.m0_clobber(); a("s_nop 0")
        a.vm(f"buffer_load_dwordx4 v{v0}, {srd(sr)}, {so} offen lds")
        return a.vm(f"buffer_load_dwordx4 v{v1}, {srd(sr)}, {so} offen offset:1024 lds")

    def t_early(self):
        a = self.a; o = self.o
        a(f"s_lshl_b32 s6, {sW}, 11")
        self.ctokA = self.slab(f"s_add_u32 m0, s6, {L_CA}", 34, 35, S_U1, "s73"); yield
        if o["codepf"]:
            a("s_getpc_b64 s[64:65]")
            a.label("Lpc0" + self.sfx)
            a(f"s_sub_u32 s64, s64, Lpc0{self.sfx}-{KNAME}"); a("s_subb_u32 s65, s65, 0")
            a(f"v_min_u32 v40, 2, {vLANE}")
            a(f"s_mul_i32 s6, {sJ}, 12"); a(f"s_mul_i32 s7, {sW}, 3"); a("s_add_u32 s6, s6, s7")
            a("v_add_u32 v40, s6, v40"); a("v_lshlrev_b32 v40, 7, v40")
            a(f"s_mov_b32 s66, Lcode_end-{KNAME}-4"); a("v_min_u32 v40, s66, v40")
            a.vm(f"global_load_dword {vDUM}, v40, s[64:65]"); yield

    DPPM = ("quad_perm:[1,0,3,2] row_mask:0xf", "quad_perm:[2,3,0,1] row_mask:0xf", "row_half_mirror row_mask:0xf",
            "row_mirror row_mask:0xf", "row_bcast:15 row_mask:0xa", "row_bcast:31 row_mask:0xc")
    def c_stats(self):
        a = self.a
        D = 64
        for r in range(2):
            for k in range(4):
                a(f"v_lshlrev_b32 v{D+8*r+2*k}, 16, v{16+4*r+k}"); a(f"v_and_b32 v{D+8*r+2*k+1}, 0xffff0000, v{16+4*r+k}")
        for k in range(1, 8):
            for r in range(2):
                d = D + 8*r; t = 80 + r
                a(f"v_add_f32 v{t}, v{d}, v{d+1}" if k == 1 else f"v_add_f32 v{t}, v{t}, v{d+k}")
        for mod in self.DPPM:
            for v in ("v80", "v81"): a(f"v_add_f32_dpp {v}, {v}, {v} {mod} bank_mask:0xf")
        a("v_readlane_b32 s78, v80, 63"); a("v_readlane_b32 s79, v81, 63")
        a("s_mov_b32 s66, 0x3b000000"); a("v_mov_b32 v82, s78"); a("v_mov_b32 v83, s79")
        a("v_mul_f32 v82, s66, v82"); a("v_mul_f32 v83, s66, v83")
        for k in range(8):
            for r in range(2): a(f"v_sub_f32 v{D+8*r+k}, v{D+8*r+k}, v{82+r}")
        for k in range(8):
            for r in range(2):
                d = D + 8*r; t = 80 + r
                a(f"v_mul_f32 v{t}, v{d}, v{d}" if k == 0 else f"v_fmac_f32 v{t}, v{d+k}, v{d+k}")
        for mod in self.DPPM:
            for v in ("v80", "v81"): a(f"v_add_f32_dpp {v}, {v}, {v} {mod} bank_mask:0xf")
        a("v_readlane_b32 s78, v80, 63"); a("v_readlane_b32 s79, v81, 63")
        a("v_mov_b32 v84, s78"); a("v_mov_b32 v85, s79"); a("v_mov_b32 v86, 0x3727c5ac")
        a("v_fma_f32 v84, v84, s66, v86"); a("v_fma_f32 v85, v85, s66, v86")
        a("v_rsq_f32 v84, v84"); a("v_rsq_f32 v85, v85")
        a(f"v_cmp_eq_u32 vcc, 1, {vLANE}"); a("v_mov_b32 v90, s60"); a("v_mov_b32 v91, s61")
        a("v_cndmask_b32 v88, v82, v83, vcc"); a("v_cndmask_b32 v89, v84, v85, vcc")
        a(f"v_cmp_gt_u32 vcc, 2, {vLANE}"); a(f"v_mov_b32 v87, {OOB}")
        a("s_lshl_b32 s6, s75, 4"); a(f"s_add_u32 s6, s6, {WS_STAT}")
        a(f"v_cndmask_b32 v86, v87, {vL16}, vcc")
        a.vm(f"buffer_store_dwordx4 v[88:91], v86, {srd(S_WS)}, s6 offen sc1")

    def t_cs(self, rnd):
        a = self.a
        A = rnd == "A"
        nu = 1 if A else 2
        FR, ONES, D0, AD, RES = 96, 112, 116, 88, 84
        a(f"s_lshl_b32 s6, {sW}, {11 if A else 12}"); a(f"s_add_u32 s6, s6, {L_CA}")
        a(f"v_add_u32 v{AD}, s6, {hSA}"); yield
        for k in range(4): a(f"v_mov_b32 v{ONES+k}, 0x3f803f80")
        yield
        a(f"v_and_b32 v{AD+1}, 31, {vLANE}"); a(f"v_lshlrev_b32 v{AD+1}, {3 if A else 4}, v{AD+1}")
        a(f"v_cmp_gt_u32 vcc, 32, {vLANE}"); a(f"v_mov_b32 v{AD+2}, {OOB}"); a("s_nop 0")
        a(f"v_cndmask_b32 v{AD+1}, v{AD+2}, v{AD+1}, vcc"); yield
        a.wait(vm=self.ctokA if A else self.ctokB)
        for ui in range(nu):
            for s in range(2):
                for q in range(2):
                    r = FR + ui*8 + s*4 + q*2
                    t = a.lg(f"ds_read_b64_tr_b16 v[{r}:{r+1}], v{AD} offset:{ui*2048 + (16*s + 4*q)*64}")
            yield
        if not A: yield self.int_end
        a.wait(lg=t)
        DT = [116, 60]
        DT = [52, 68]
        for ui in range(nu):
            d = DT[ui]
            for s in range(2):
                r = FR + ui*8 + s*4
                a(f"v_mfma_f32_32x32x16_bf16 v[{d}:{d+15}], v[{ONES}:{ONES+3}], v[{r}:{r+3}], {'0' if s == 0 else f'v[{d}:{d+15}]'}")
            yield
        a(f"s_lshl_b32 s6, {sCG}, 4"); a(f"s_add_u32 s6, s6, {sR}"); a("s_lshl_b32 s6, s6, 2"); a(f"s_add_u32 s6, s6, {sW}")
        a(f"s_lshl_b32 s6, s6, {8 if A else 9}"); a(f"s_add_u32 s71, s6, {WS_CSPA if A else WS_CSP}"); yield
        if not A: yield self.int_end
        if A:
            a(f"v_mov_b32 v{RES}, v52"); a(f"v_mov_b32 v{RES+1}, {vTAGL}")
            a.vm(f"buffer_store_dwordx2 v[{RES}:{RES+1}], v{AD+1}, {srd(S_WS)}, s71 offen sc1"); yield
        else:
            a(f"v_mov_b32 v{RES}, v52"); a(f"v_mov_b32 v{RES+1}, v68"); a(f"v_mov_b32 v{RES+2}, {vTAGL}"); a(f"v_mov_b32 v{RES+3}, {vTAGL}")
            a.vm(f"buffer_store_dwordx4 v[{RES}:{RES+3}], v{AD+1}, {srd(S_WS)}, s71 offen sc1"); yield
        self.log["cs_pub" + rnd + self.sfx] = self.f

    def t_csum(self, rnd, chk_f):
        a = self.a
        A = rnd == "A"
        B = 52; W = 2 if A else 4; AD = 92
        SB, ST = "s68", "s69"
        a(f"v_and_b32 v{AD}, 31, {vLANE}"); a(f"v_lshlrev_b32 v{AD}, {3 if A else 4}, v{AD}")
        a(f"v_lshrrev_b32 v{AD+1}, 5, {vLANE}"); a(f"v_lshl_add_u32 v{AD}, v{AD+1}, {10 if A else 11}, v{AD}"); yield
        a(f"s_lshl_b32 s6, {sCG}, {14 if A else 15}"); a(f"s_lshl_b32 s7, {sW}, {8 if A else 9}"); a("s_add_u32 s6, s6, s7")
        a(f"s_add_u32 {SB}, s6, {WS_CSPA if A else WS_CSP}"); yield
        def loads():
            return [f"s_add_u32 {ST}, {SB}, {i*(2048 if A else 4096)}\nbuffer_load_dwordx{W} v[{B+W*i}:{B+W*i+W-1}], v{AD}, {srd(S_WS)}, {ST} offen sc1" for i in range(8)]
        for t in loads():
            yield from self.vmslot()
            l0, l1 = t.split("\n"); a(l0); tok = a.vm(l1); yield
        yield max(chk_f, self.f + 24)
        tg = W - 1
        cmp = f"v_cmp_eq_u32 vcc, v{B+tg}, {vTAGL}\n"
        for i in range(1, 8): cmp += f"v_cmp_eq_u32 s[64:65], v{B+tg+W*i}, {vTAGL}\ns_and_b64 vcc, vcc, s[64:65]\n"
        self.log["cs_chk" + rnd + self.sfx] = self.f
        self.poll_check(tok, cmp.strip(), "\n".join(loads()), "csp" + rnd)
        nv = 1 if A else 2
        for i in range(1, 8):
            for k in range(nv): a(f"v_add_f32 v{B+k}, v{B+k}, v{B+W*i+k}")
            yield
        T = B + 4
        for k in range(nv): a(f"v_mov_b32 v{T+k}, v{B+k}")
        for k in range(nv): a(f"v_permlane32_swap_b32 v{B+k}, v{T+k}")
        for k in range(nv): a(f"v_add_f32 v{B+k}, v{B+k}, v{T+k}")
        yield
        for k in range(nv): a(f"v_cvt_pk_bf16_f32 v{T+k}, v{B+k}, v{B+k}")
        for k in range(nv): a(f"v_lshlrev_b32 v{T+k}, 16, v{T+k}")
        for k in range(nv): a(f"v_sub_f32 v{T+k}, v{B+k}, v{T+k}")
        for k in range(nv): a(f"v_cvt_pk_bf16_f32 v{B+k}, v{B+k}, v{T+k}")
        yield
        a(f"s_lshl_b32 s6, {sW}, 7"); a(f"v_add_u32 v{AD+1}, s6, {hCSA}")
        if A: a.lg(f"ds_write_b32 v{AD+1}, v{B}")
        else:
            a.lg(f"ds_write_b32 v{AD+1}, v{B} offset:512")
            a(f"s_lshr_b32 s6, {sW}, 1"); a("s_lshl_b32 s6, s6, 7"); a(f"v_add_u32 v{AD+1}, s6, {hCSA}")
            a.lg(f"ds_write_b32 v{AD+1}, v{B+1} offset:1024")
        yield

    def t_stt(self, chk_f):
        a = self.a
        a(f"v_and_b32 v44, 31, {vLANE}"); a("v_lshlrev_b32 v45, 4, v44"); yield
        a(f"s_lshl_b32 s6, {sR}, 7"); a(f"s_lshl_b32 s7, {sW}, 5"); a("s_add_u32 s6, s6, s7")
        a("s_lshl_b32 s72, s6, 4"); a(f"s_add_u32 s72, s72, {WS_STAT}")
        txt = f"buffer_load_dwordx4 v[48:51], v45, {srd(S_WS)}, s72 offen sc1"
        tok = a.vm(txt)
        yield chk_f
        self.log["st_chk" + self.sfx] = self.f
        self.poll_check(tok, self.tagcmp(50), txt, "stp")
        a("v_sub_f32 v48, 0, v48")
        a("v_lshlrev_b32 v44, 3, v44"); a(f"s_lshl_b32 s6, {sW}, 8"); a(f"s_add_u32 s6, s6, {L_STT}"); a("v_add_u32 v44, s6, v44")
        a.lg("ds_write_b64 v44, v[48:49]"); yield

    def t_slabB(self):
        a = self.a
        yield from self.vmslot()
        self.slab(f"s_add_u32 m0, {sWLDS}, {L_CA}", 36, 37, S_U2, "s74"); yield
        yield from self.vmslot()
        self.ctokB = self.slab(f"s_add_u32 m0, {sWLDS}, {L_CA + 2048}", vU3[0], vU3[1], S_U3, "s75"); yield

    def publish(self, phase):
        a = self.a
        a.vm(f"buffer_store_dwordx2 v[{TAG}:{TAG+1}], {hL0}, {srd(S_WS)}, s77 offen offset:{phase*256} sc1")
        self.log[(self.par, "pub", phase)] = self.f

    def t_kv_tail(self):
        a = self.a; o = self.o
        a(f"v_lshrrev_b32 v38, 4, {vLANE}"); a("v_lshlrev_b32 v38, 3, v38")
        a(f"v_bfe_u32 v39, {vLANE}, 2, 2"); a("v_add_u32 v38, v38, v39"); yield
        a(f"s_movk_i32 s7, {KVP}"); a("v_mul_lo_u32 v38, v38, s7")
        a(f"v_and_b32 v39, 3, {vLANE}"); a("v_lshl_add_u32 v38, v39, 3, v38"); yield
        a(f"s_lshl_b32 s6, {sW}, 5"); a(f"s_add_u32 s6, s6, {L_KVS}"); a("v_add_u32 v38, s6, v38"); yield
        F = 52
        for ks in range(4):
            for tile in range(2):
                for q in range(2):
                    r = F + ks*8 + tile*4 + q*2
                    t = a.lg(f"ds_read_b64_tr_b16 v[{r}:{r+1}], v38 offset:{tile*128*KVP + (32*ks + 4*q)*KVP}")
                yield
        for k in range(4): a(f"v_mov_b32 v{84+k}, 0x3f803f80")
        yield self.int_end
        a.wait(lg=t)
        self.kv_reads_f = self.f
        for ks in range(4):
            pk = F + ks*8; vv = pk + 4
            a(f"v_mfma_f32_16x16x32_bf16 v[88:91], v[{vv}:{vv+3}], v[{pk}:{pk+3}], {'0' if ks == 0 else 'v[88:91]'}")
            a(f"v_mfma_f32_16x16x32_bf16 v[48:51], v[84:87], v[{pk}:{pk+3}], {'0' if ks == 0 else 'v[48:51]'}")
            yield
        a(f"s_lshl_b32 s6, {sM}, 2"); a(f"s_add_u32 s6, s6, {sW}")
        a("s_lshl_b32 s7, s6, 4"); a(f"s_add_u32 s7, s7, {sR}"); a("s_lshl_b32 s7, s7, 10"); a(f"s_add_u32 s73, s7, {WS_KVP}")
        a("s_lshl_b32 s7, s6, 10"); a(f"s_lshl_b32 s72, {sR}, 6"); a("s_add_u32 s7, s7, s72"); a(f"s_add_u32 s72, s7, {WS_KVZP}")
        a("s_lshl_b32 s7, s6, 7"); a(f"s_lshl_b32 s6, {sR}, 3"); a("s_add_u32 s7, s7, s6"); a(f"s_add_u32 s71, s7, {WS_KVF}")
        a(f"v_cmp_gt_u32 vcc, 16, {vLANE}"); a(f"v_mov_b32 v39, {OOB}"); a(f"v_lshlrev_b32 v38, 2, {vLANE}")
        a("v_cndmask_b32 v38, v39, v38, vcc")
        yield self.f + 2
        a.vm(f"buffer_store_dwordx4 v[88:91], {vL16}, {srd(S_WS)}, s73 offen sc1")
        tok = a.vm(f"buffer_store_dword v48, v38, {srd(S_WS)}, s72 offen sc1"); yield
        yield self.int_end + 16
        a.wait(vm=tok)
        a.vm(f"buffer_store_dwordx2 v[{TAG}:{TAG+1}], {hL0}, {srd(S_WS)}, s71 offen sc1")
        self.log[(0, "kvcnt")] = self.f
        yield

    def t_q_prep(self, chk_f):
        a = self.a
        a(f"s_lshl_b32 s6, {sM}, 2"); a(f"s_add_u32 s6, s6, {sW}")
        a("s_lshl_b32 s7, s6, 7"); a(f"s_add_u32 s71, s7, {WS_KVF}")
        a("s_lshl_b32 s7, s6, 14"); a(f"s_add_u32 s73, s7, {WS_KVP}")
        a("s_lshl_b32 s7, s6, 10"); a(f"s_add_u32 s76, s7, {WS_KVZP}")
        a(f"v_and_b32 v40, 15, {vLANE}"); a("v_lshlrev_b32 v40, 3, v40")
        txt = f"buffer_load_dwordx2 v[42:43], v40, {srd(S_WS)}, s71 offen sc1"
        tok = a.vm(txt)
        yield chk_f
        self.log[(1, "kvchk")] = self.f
        self.poll_check(tok, self.tagcmp(42), txt, "kvp")
        while self.active("csumB"): yield self.f + 1
        B = 52
        ztok = a.vm(f"buffer_load_dwordx4 v[116:119], {vL16}, {srd(S_WS)}, s76 offen sc1"); yield
        toks = []
        for r in range(16):
            yield from self.vmslot()
            if r % 4 == 0 and r: a("s_add_u32 s73, s73, 4096")
            toks.append(a.vm(f"buffer_load_dwordx4 v[{B+4*r}:{B+4*r+3}], {vL16}, {srd(S_WS)}, s73 offen offset:{(r % 4)*1024} sc1")); yield
        yield self.int_end
        a.wait(vm=ztok)
        for mod in ("row_shr:4", "row_shr:8"):
            for k in range(4): a(f"v_add_f32_dpp v{116+k}, v{116+k}, v{116+k} {mod} row_mask:0xf bank_mask:0xf bound_ctrl:0")
            yield
        for k in range(4):
            a(f"v_mov_b32 v{120+k}, v{116+k}")
        for k in range(4): a(f"v_permlane16_swap_b32 v{116+k}, v{120+k}")
        for k in range(4): a(f"v_add_f32 v{116+k}, v{116+k}, v{120+k}")
        yield
        for k in range(4): a(f"v_mov_b32 v{120+k}, v{116+k}")
        for k in range(4): a(f"v_permlane32_swap_b32 v{116+k}, v{120+k}")
        for k in range(4): a(f"v_add_f32 v{116+k}, v{116+k}, v{120+k}")
        yield
        for r in range(1, 16):
            a.wait(vm=toks[r])
            for k in range(0, 4, 2): a(f"v_pk_add_f32 v[{B+k}:{B+k+1}], v[{B+k}:{B+k+1}], v[{B+4*r+k}:{B+4*r+k+1}]")
            yield
        a(f"s_mul_i32 s6, {sW}, 1280"); a(f"s_add_u32 s6, s6, {L_KVO}")
        a(f"v_lshrrev_b32 v40, 4, {vLANE}"); a("v_lshlrev_b32 v40, 8, v40"); a(f"v_and_b32 v41, 15, {vLANE}"); a("v_lshl_add_u32 v40, v41, 2, v40")
        a("v_add_u32 v40, s6, v40")
        for v in range(4): a.lg(f"ds_write_b32 v40, v{B+v} offset:{v*64}")
        a(f"v_and_b32 v41, 3, {vLANE}"); a("v_lshlrev_b32 v41, 4, v41"); a("v_add_u32 v41, s6, v41"); a("v_add_u32 v41, 1024, v41")
        a(f"v_and_b32 v42, 15, {vLANE}"); a("v_cmp_le_u32 vcc, 12, v42"); a(f"v_mov_b32 v43, {L_KVO + 4*1280}")
        a("v_cndmask_b32 v41, v43, v41, vcc")
        t = a.lg("ds_write_b128 v41, v[116:119]"); yield
        yield self.f + 3
        a(f"s_mul_i32 s6, {sW}, 1280"); a(f"s_add_u32 s6, s6, {L_KVO}")
        a(f"v_and_b32 v41, 31, {vLANE}"); a("v_min_u32 v41, 16, v41"); a(f"v_lshl_add_u32 v41, v41, 6, {hG16}"); a("v_add_u32 v41, s6, v41")
        a.wait(lg=t)
        a.lg("ds_read_b128 v[52:55], v41"); t = a.lg("ds_read_b128 v[56:59], v41 offset:32"); yield
        yield self.f + 3
        a.wait(lg=t)
        for k in range(4): a(f"v_cvt_pk_bf16_f32 v{60+k}, v{52+2*k}, v{53+2*k}")
        a(f"s_lshl_b32 s6, {sW}, 10"); a(f"s_add_u32 s6, s6, {L_KVZ}"); a(f"v_add_u32 v41, s6, {vL16}")
        a.lg("ds_write_b128 v41, v[60:63]"); yield

    def qget(self, i, dst):
        reg = (sQA, sQB, sQC)[i // 4]
        self.a(f"s_bfe_u32 {dst}, {reg}, {(8 << 16) | (8*(i % 4))}")
    def t_s2_q(self):
        a = self.a
        a(f"s_lshr_b32 s68, {sJ}, 2"); a(f"s_add_u32 s68, s68, {sC2}"); a("s_and_b32 s68, s68, 7")
        tab = sum(((k % 3) << (2*k)) for k in range(12))
        a(f"s_lshl_b32 s69, s68, 1"); a(f"s_lshr_b32 s69, {tab}, s69"); a("s_and_b32 s69, s69, 3"); yield
        for i in range(9):
            reg = (sQA, sQB, sQC)[i // 4]
            if i < 2:
                a(f"s_add_u32 s6, s68, {i}"); a("s_and_b32 s6, s6, 1"); a("s_lshl_b32 s6, s6, 3")
                a(f"s_lshl_b32 s7, {sW}, 1"); a("s_add_u32 s6, s6, s7"); a("s_add_u32 s6, s6, 8")
            elif i < 6:
                a(f"s_add_u32 s6, s68, {i-2}"); a("s_and_b32 s6, s6, 3"); a("s_lshl_b32 s6, s6, 2"); a(f"s_add_u32 s6, s6, {sW}")
                a("s_lshl_b32 s7, s6, 1"); a("s_sub_u32 s7, s7, 7"); a("s_cmp_lt_u32 s6, 8"); a("s_cselect_b32 s6, s6, s7")
            else:
                a(f"s_add_u32 s6, s69, {i-6}"); a("s_sub_u32 s7, s6, 3"); a("s_cmp_lt_u32 s6, 3"); a("s_cselect_b32 s6, s6, s7")
                a("s_lshl_b32 s6, s6, 2"); a(f"s_add_u32 s6, s6, {sW}"); a("s_add_u32 s6, s6, 24")
            if i % 4 == 0: a(f"s_mov_b32 {reg}, s6")
            else: a(f"s_lshl_b32 s6, s6, {8*(i % 4)}"); a(f"s_or_b32 {reg}, {reg}, s6")
            yield
    def s2_w_dma(self, i):
        a = self.a
        self.qget(i, "s6")
        if i < 6: sr = S_WD
        else:
            sr = S_U1
            a("s_cmp_lt_u32 s6, 28")
            a(f"s_cselect_b32 s{S_U1}, s{S_WD}, s{S_WO}"); a(f"s_cselect_b32 s{S_U1+1}, s{S_WD+1}, s{S_WO+1}")
            a(f"s_cselect_b32 s{S_U1+2}, s{S_WD+2}, s{S_WO+2}")
            a("s_cselect_b32 s7, 0, 28"); a("s_sub_u32 s6, s6, s7")
        a("s_lshl_b32 s6, s6, 16"); a(f"s_lshl_b32 s7, {sC2}, 7"); a("s_add_u32 s74, s6, s7"); yield
        base = W2SLOT[i % 4]
        for g in range(2):
            for k in range(4):
                if i < 3: yield from self.vmslot()
                if k == 0 or self.m0_owner != ("w2", i, g):
                    a(f"s_add_u32 m0, {sW8K}, {base + g*4096}")
                    if k == 0 and g == 1: a("s_add_u32 s74, s74, 32768")
                    self.m0_owner = ("w2", i, g)
                self.w2tok[i] = a.vm(f"buffer_load_dwordx4 v{vW2[k]}, {srd(sr)}, s74 offen{' offset:%d' % (1024*k) if k else ''} lds"); yield
    def t_w2reg(self, i, areg):
        a = self.a
        self.qget(i, "s6")
        if i < 6: sr = S_WD
        else:
            sr = S_U1
            a("s_cmp_lt_u32 s6, 28")
            a(f"s_cselect_b32 s{S_U1}, s{S_WD}, s{S_WO}"); a(f"s_cselect_b32 s{S_U1+1}, s{S_WD+1}, s{S_WO+1}")
            a(f"s_cselect_b32 s{S_U1+2}, s{S_WD+2}, s{S_WO+2}")
            a("s_cselect_b32 s7, 0, 28"); a("s_sub_u32 s6, s6, s7")
        a("s_lshl_b32 s6, s6, 16"); a(f"s_lshl_b32 s7, {sC2}, 7"); a("s_add_u32 s75, s6, s7"); yield
        for g in range(2):
            for k in range(4):
                yield from self.vmslot()
                if k == 0 and g == 1: a("s_add_u32 s75, s75, 32768")
                r = areg + (g*4 + k)*4
                self.w2rtok[i] = a.vm(f"buffer_load_dwordx4 a[{r}:{r+3}], v{vW2[k]}, {srd(sr)}, s75 offen{' offset:%d' % (1024*k) if k else ''}"); yield
    def w2put(self, i, areg):
        a = self.a
        a.wait(vm=self.w2rtok[i])
        a(f"s_add_u32 s6, {sW8K}, {W2SLOT[i % 4]}"); a(f"v_add_u32 v40, s6, {vL16}")
        for k in range(8):
            r = areg + k*4
            self.w2ptok[i] = a.lg(f"ds_write_b128 v40, a[{r}:{r+3}] offset:{k*1024}")

    def flag_issue(self, phase):
        a = self.a
        if phase == 0:
            a(f"v_bfe_u32 {vPOLL}, {vLANE}, 1, 3"); a(f"v_lshlrev_b32 {vPOLL}, 2, {vPOLL}")
            a(f"v_and_b32 v{FLD}, 1, {vLANE}"); a(f"v_add_u32 {vPOLL}, {vPOLL}, v{FLD}"); a(f"v_add_u32 {vPOLL}, 2, {vPOLL}")
            a(f"v_lshlrev_b32 {vPOLL}, 3, {vPOLL}")
        else:
            a(f"v_and_b32 {vPOLL}, 31, {vLANE}"); a(f"v_lshlrev_b32 {vPOLL}, 3, {vPOLL}")
        a(f"s_mul_i32 s72, {sT}, 768"); a(f"s_add_u32 s72, s72, {WS_HF + phase*256}")
        self.fl_txt = f"buffer_load_dwordx2 v[{FLD}:{FLD+1}], {vPOLL}, {srd(S_WS)}, s72 offen sc1"
        self.fltok = a.vm(self.fl_txt)
    def flag_check(self, phase):
        self.log[(self.par, "chk", phase)] = self.f
        self.poll_check(self.fltok, self.tagcmp(FLD), self.fl_txt, f"fl{phase}")
        if not self.o.get("touchh", 0): return
        a = self.a
        n = (8, 16, 12)[phase]
        a(f"s_and_b32 s6, {sJ}, 3"); a(f"s_lshl_b32 s7, {sW}, 2"); a("s_add_u32 s6, s6, s7")
        if phase == 0: a("s_lshl_b32 s7, s6, 1"); a("s_add_u32 s7, s7, 8")
        elif phase == 1:
            a("s_lshl_b32 s7, s6, 1"); a("s_sub_u32 s7, s7, 7"); a("s_cmp_lt_u32 s6, 8"); a("s_cselect_b32 s7, s6, s7")
        else: a("s_add_u32 s7, s6, 24")
        a(f"s_mul_i32 s64, {sR}, 36"); a("s_add_u32 s7, s7, s64"); a("s_lshl_b32 s7, s7, 14")
        a(f"s_lshl_b32 s64, {sHALF}, 13"); a("s_add_u32 s7, s7, s64"); a(f"s_add_u32 s7, s7, {WS_H}")
        a(f"v_lshlrev_b32 v40, 7, {vLANE}"); a(f"v_mov_b32 v41, {OOB}")
        a(f"s_cmp_lt_u32 s6, {n}"); a("s_cselect_b64 vcc, -1, 0"); a("v_cndmask_b32 v40, v41, v40, vcc")
        a.vm(f"buffer_load_dword {vDUM}, v40, {srd(S_WS)}, s7 offen sc1")

    def vmslot(self):
        while self.a.vm_issued - self.int_vm0 >= self.int_cap: yield self.int_end
    def h_interval(self, f0, n, extras, budget=None, cap=None):
        a = self.a
        nfix = sum(len(extras.get(f0 + g, [])) for g in range(n))
        self.int_vm0 = a.vm_issued + nfix*0; self.int_end = f0 + n
        self.int_cap = (cap or self.o.get("vmcap", 8))
        self.int_vm0 = a.vm_issued
        for g in range(n):
            self.f = f0 + g
            start = len(a.lines)
            for fn in extras.get(f0 + g, []): fn()
            self.pump(self.f, start, budget or self.o["hbudget"])

    def helper(self, par):
        a = self.a; o = self.o
        self.par = par; self.sfx = f"_{par}"
        who = f"h{par}"
        self.tasks = []; self.w2tok = {}; self.w2rtok = {}; self.w2ptok = {}
        REGCH = {3: 0, 4: 32, 5: 64, 6: 96} if o.get("w2reg", 1) else {}
        self.kvz_done = False
        ex = {}
        def at(f, fn): ex.setdefault(f, []).append(fn)
        def spread(maker, positions):
            hd = {}
            def get(i):
                if "p" not in hd: hd["p"] = maker()
                hd["p"][i]()
            for i, pos in enumerate(positions): at(pos, (lambda i=i: get(i)))
        spread(lambda: self.dma_x_parts(2), (0, 1, 2, 3)); spread(lambda: self.dma_w_parts(2), (4, 5, 6, 7))
        spread(lambda: self.dma_w_parts(3), (10, 12, 14, 16))
        for G in range(0, 16):
            spread(lambda G=G: self.dma_w_parts(G+4), [16*G + 10 + p for p in ((1, 5, 9, 13) if G == 0 else (0, 2, 4, 6))] if G > 0 else [18, 20, 22, 24])
        for G in range(0, 5):
            spread(lambda G=G: self.dma_x_parts(G+3), [16*G + 10 + p for p in (1, 3, 5, 7)])
        self.spawn(self.t_early(), 0, "early")
        self.spawn(self.t_cs("A"), o.get("cs_f", 26), "csA")
        self.log["st_pub" + self.sfx] = 0
        self.spawn(self.t_csum("A", o.get("csumA_chk", 104)), o.get("csumA_f", 74), "csumA")
        self.spawn(self.t_stt(o.get("st_chk", 104)), o.get("stt_f", 80), "stt")
        self.spawn(self.t_slabB(), o.get("slabB_f", 58), "slabB")
        self.spawn(self.t_cs("B"), o.get("csB_f", 106), "csB")
        self.spawn(self.t_csum("B", o.get("csumB_chk", 214)), o.get("csumB_f", 186), "csumB")
        if o.get("hprio", 0): a(f"s_setprio {o['hprio']}")
        a.wait(vm=self.wtok[0])
        self.barrier(who, "P0")
        self.h_interval(0, 10, ex)
        for G in range(20):
            self.f = 16*G + 9
            if G + 1 < 20: a.wait(vm=self.wtok[G+1])
            if G + 1 < 8: a.wait(vm=self.xtok[G+1])
            if G == 7: self.finish("csumA"); self.finish("stt"); a.wait_all(vm=False)
            if G == 15: self.finish("csumB"); a.wait_all(vm=False)
            if G == 17: self.flag_check(0)
            if G == 19:
                if par == 1: self.finish("qprep"); a.wait_all(vm=False)
            self.barrier(who, f"B{G}")
            self.f = 16*G + 10
            if G == o.get("pub0_G", 9) and par == 1: self.publish(0)
            if G == 8 and par == 0:
                self.finish("csB")
                self.spawn(self.t_kv_tail(), self.f, "kvtail", front=True)
            if G == o.get("pub1_G", 17): self.publish(1)
            if G == 11:
                if par == 0: assert self.kv_reads_f < self.f
                self.spawn(self.s2_w_dma(0), self.f, "w2_0")
            if G == 11 and par == 0: assert self.kv_reads_f < 180, "kv tail fragments overlap csumB registers"
            if G == 16 and par == 1: assert not self.active("csumB")
            if REGCH:
                if G == 7:
                    def r34():
                        yield from self.t_w2reg(3, 0); yield from self.t_w2reg(4, 32)
                    self.spawn(r34(), self.f, "w2r3")
                if G == 15:
                    self.finish("w2r3")
                    def r56():
                        yield from self.t_w2reg(5, 64); yield from self.t_w2reg(6, 96)
                    self.spawn(r56(), self.f, "w2r5")
            if G == 15: self.flag_issue(0)
            if G == 17:
                self.spawn(self.s2_w_dma(1), self.f, "w2_1")
            if G == o.get("qprep_G", 13) and par == 1: self.spawn(self.t_q_prep(self.f + o.get("kvchk_gap", 17)), self.f, "qprep")
            if G == 19: self.spawn(self.s2_w_dma(2), self.f, "w2_2")
            if G < 19:
                cap = 24 if G in (7, 15) else (10 if G >= 16 else (12 if G in (3, 4) else None))
                self.h_interval(16*G + 10, 16, ex, cap=cap, budget=(5 if G in (7, 15) else (4 if G >= 16 else None)))
        self.h_interval(314, 6, ex)
        self.barrier(who, "H0")
        if par == 0: assert not self.active("kvtail"), "kv tail still running at H0"
        if 3 in REGCH:
            for n in ("w2r3", "w2r5"): self.finish(n)
            self.w2put(3, REGCH[3])
        else: self.spawn(self.s2_w_dma(3), self.f, "w2_3")
        self.flag_issue(1)
        base = 336
        for i in range(9):
            self.h_interval(base + 16*i - 16, 16, ex, budget=8)
            self.f = base + 16*i
            if i in REGCH: a.wait(lg=self.w2ptok[i])
            else:
                self.finish(f"w2_{i}")
                a.wait(vm=self.w2tok[i])
            if i + 2 == 2: self.flag_check(1)
            if i == o.get("fl2_i", 5): self.flag_check(2)
            self.barrier(who, f"S{i}")
            self.f = base + 16*i + 1
            if i == o.get("pub2_i", 1): self.publish(2)
            if i == o.get("fl2_i", 5) - 1: self.flag_issue(2)
            if i >= 1 and i + 3 < 9:
                if i + 3 in REGCH: self.w2put(i + 3, REGCH[i + 3])
                else: self.spawn(self.s2_w_dma(i + 3), self.f, f"w2_{i+3}")
        a("s_cmp_eq_u32 s2, 0"); a("s_cselect_b64 vcc, -1, 0"); a(f"s_cmp_eq_u32 {sW}, 0"); a("s_cselect_b64 vcc, vcc, 0")
        a(f"v_mov_b32 v40, {OOB}"); a("s_nop 0"); a(f"v_cndmask_b32 v40, v40, {hL0}, vcc")
        a.vm(f"buffer_store_dwordx2 v[{TAG}:{TAG+1}], v40, {srd(S_WS)}, 0 offen sc1")
        self.prof_out(4)
        a("s_endpgm")

    def c_lane_consts(self):
        a = self.a
        a(f"v_and_b32 v56, 31, {vLANE}"); a(f"v_lshrrev_b32 v57, 5, {vLANE}"); a(f"v_bfe_u32 v58, {vLANE}, 2, 2")
        a(f"v_and_b32 v59, 3, {vLANE}"); a(f"v_bfe_u32 v60, {vLANE}, 4, 1")
        a("v_lshlrev_b32 v61, 5, v60"); a("v_lshl_add_u32 v61, v59, 3, v61")
        a("v_lshrrev_b32 v62, 1, v58"); a("v_lshlrev_b32 v62, 6, v62")
        a("v_lshl_add_u32 v63, v57, 3, v58")
        a("v_lshlrev_b32 v64, 7, v63")
        a("v_xor_b32 v65, v61, v62"); a(f"v_add_u32 {cWA[0][0]}, v64, v65")
        a("v_or_b32 v65, 64, v61"); a("v_xor_b32 v65, v65, v62"); a(f"v_add_u32 {cWA[0][1]}, v64, v65")
        a(f"v_add_u32 {cWA[1][0]}, 0x10000, {cWA[0][0]}"); a(f"v_add_u32 {cWA[1][1]}, 0x10000, {cWA[0][1]}")
        a("v_lshlrev_b32 v64, 6, v63"); a(f"v_add_u32 {cSA[0]}, v64, v61"); a(f"v_add_u32 {cSA[1]}, 0x10000, {cSA[0]}")
        a("v_bfe_u32 v64, v56, 1, 3"); a("v_xor_b32 v64, v64, v57")
        a("v_lshlrev_b32 v65, 7, v56"); a(f"s_add_u32 s7, {sWLDS}, {L_X}"); a("v_add_u32 v65, s7, v65")
        for s in range(4):
            a(f"v_xor_b32 v66, {2*s}, v64"); a(f"v_lshl_add_u32 {cXA[s]}, v66, 4, v65")
        a(f"v_lshlrev_b32 {cG16}, 4, v57")
        a(f"v_lshlrev_b32 {cCSA}, 2, v56"); a(f"v_add_u32 {cCSA}, {L_CST}, {cCSA}")
        a(f"v_mov_b32 v{BAUG+2}, 0"); a(f"v_mov_b32 v{BAUG+3}, 0")
        a("v_lshrrev_b32 v64, 3, v0"); a("v_and_b32 v65, 7, v0")
        a(f"v_lshlrev_b32 {cOUT}, 10, v64"); a(f"v_lshl_add_u32 {cOUT}, v65, 4, {cOUT}")

    def c_setup(self):
        a = self.a
        a("s_waitcnt lgkmcnt(0)")
        a.protect = set()
        a(f"s_lshl_b32 s6, {sR}, 7"); a(f"s_lshl_b32 s7, {sCG}, 3"); a("s_add_u32 s6, s6, s7")
        a(f"s_lshl_b32 s7, {sW}, 1"); a("s_add_u32 s75, s6, s7"); a("s_lshl_b32 s6, s75, 10")
        a.vm(f"buffer_load_dwordx4 v[16:19], {vL16}, {srd(S_X)}, s6 offen")
        a.vm(f"buffer_load_dwordx4 v[20:23], {vL16}, {srd(S_X)}, s6 offen offset:1024")
        a(f"s_load_dwordx2 s[60:61], s[{S_WS}:{S_WS+1}], 0")
        a("s_mov_b32 s71, 0x3fb8aa3b"); a("s_mov_b32 s72, 0x358637bd")
        a(f"s_mul_i32 s76, {sR2}, 36"); a(f"s_lshl_b32 s77, {sHALF}, 13"); a(f"s_add_u32 s77, s77, {WS_H}")
        for _ in self.t_s2_q(): pass
        self.c_lane_consts()
        a("s_waitcnt vmcnt(0) lgkmcnt(0)")
        a("s_add_u32 s60, s60, 1"); a("s_addc_u32 s61, s61, 0")
        self.c_stats()

    def finfo(self, f):
        if f < NF1:
            G, m = divmod(f, 16)
            if G < 16:
                c = G % 8; s = m // 4; tile = m % 4; ks = c*4 + s
            else:
                s = m // 2; tile = m % 2; ks = (G-16)*8 + s
            return dict(phi=f, acc=ACC + 16*tile, b=ks*4, first=(ks == 0))
        i, m = divmod(f - NF1, 16)
        s, r = divmod(m, 4); cb, rf = divmod(r, 2)
        return dict(phi=NF1 + 8*i + 2*s + cb, acc=ACC + (cb*2+rf)*16, b=(i % 3)*32 + rf*16 + s*4, first=(i == 0 and s == 0), chunk=i, m=m)
    def phi_first_use(self, phi): return phi if phi < NF1 else NF1 + 2*(phi - NF1)
    def frag_read(self, phi):
        a = self.a
        r = RING + 4*(phi % NFR)
        if phi < NF1:
            G, m = divmod(phi, 16)
            slot = G % NW; rng = slot // 4; sb = (slot % 4)*16384
            if G < 16:
                s = m // 4; cbk = m % 4; panel, cb = divmod(cbk, 2)
                base = cWA[rng][cb]; imm = [sb + panel*8192 + (16*s + 4*q)*128 for q in range(2)]
            else:
                s = m // 2; b = m % 2
                base = cSA[rng]; imm = [sb + b*8192 + (16*s + 4*q)*64 for q in range(2)]
        else:
            i, r2 = divmod(phi - NF1, 8); s, cb = divmod(r2, 2)
            so = W2SLOT[i % 4]
            base = cB2[cb] if so < 0x10000 else cB2H[cb]
            imm = [(so % 0x10000) + (16*s + 8*q)*128 for q in range(2)]
        a.lg(f"ds_read_b64_tr_b16 v[{r}:{r+1}], {base} offset:{imm[0]}")
        self.ftok[phi] = a.lg(f"ds_read_b64_tr_b16 v[{r+2}:{r+3}], {base} offset:{imm[1]}")
    def x_read(self, c, s):
        r = (c*4 + s)*4
        self.xrtok[c] = self.a.lg(f"ds_read_b128 a[{r}:{r+3}], {cXA[s]} offset:{(c % 3)*16384}")

    def c_run(self, f0, f1, ex, fend):
        a = self.a
        for f in range(f0, f1):
            inf = self.finfo(f)
            self.stamp(f"f{f}")
            ph = inf["phi"]
            nxt = ph + 1
            a.wait(lg=self.ftok[nxt] if (nxt in self.ftok and f % 2 == 0 and f < NF1) else self.ftok[ph])
            if f < 128 and f % 16 == 0: a.wait(lg=self.xrtok[f // 16])
            if f >= NF1 and inf["m"] == 0:
                self.stamp(f"hw{inf['chunk']}_in"); a.wait(vm=self.htok[inf["chunk"]]); self.stamp(f"hw{inf['chunk']}_out")
            r = RING + 4*(ph % NFR)
            acc = f"v[{inf['acc']}:{inf['acc']+15}]"
            a(f"v_mfma_f32_32x32x16_bf16 {acc}, v[{r}:{r+3}], a[{inf['b']}:{inf['b']+3}], {'0' if inf['first'] else acc}")
            for fn in ex.get(f, []): fn()
            fu = f + LOOK
            if fu < fend:
                p = self.finfo(fu)["phi"]
                if self.phi_first_use(p) == fu: self.frag_read(p)
    def c_prime(self, f0):
        for f in range(f0, f0 + LOOK):
            p = self.finfo(f)["phi"]
            if self.phi_first_use(p) == f: self.frag_read(p)

    def aug(self, p, ntile):
        a = self.a
        toks = []
        for t in range(ntile):
            g = RING + 4*t; off = (p*128 + 32*t)*4
            a.lg(f"ds_read_b32 v{g}, {cCSA} offset:{off}")
            toks.append(a.lg(f"ds_read_b32 v{g+1}, {cCSA} offset:{off}"))
            a(f"v_mov_b32 v{g+2}, 0"); a(f"v_mov_b32 v{g+3}, 0")
        for t in range(ntile):
            g = RING + 4*t; A = ACC + 16*t
            a.wait(lg=toks[t])
            a(f"v_mfma_f32_32x32x16_bf16 v[{A}:{A+15}], v[{g}:{g+3}], v[{BAUG}:{BAUG+3}], v[{A}:{A+15}]")
    def hbase_q(self, q):
        a = self.a
        a(f"s_mul_i32 s7, {sR}, 36"); a(f"s_add_u32 s7, s7, {q}")
        a("s_lshl_b32 s7, s7, 2"); a(f"s_add_u32 s7, s7, {sW}")
        a("s_lshl_b32 s7, s7, 12"); a(f"s_add_u32 {sHB}, s7, {WS_H}")
    def ffn_block(self, tg, tu, dst):
        a = self.a
        for k in range(16): a(f"v_max_f32 v{tg+k}, 0, v{tg+k}")
        for k in range(0, 16, 2): a(f"v_pk_mul_f32 v[{tg+k}:{tg+k+1}], v[{tg+k}:{tg+k+1}], v[{tu+k}:{tu+k+1}]")
        for k in range(8): a(f"v_cvt_pk_bf16_f32 v{dst+k}, v{tg+2*k}, v{tg+2*k+1}")
    def epi_ffn(self, p):
        a = self.a
        self.aug(p, 4)
        a(f"s_lshl_b32 s6, {sM}, 1"); a(f"s_add_u32 s6, s6, {8 if p == 0 else 9}")
        if p == 1: a(f"s_cmp_eq_u32 {sPAR}, 0"); a(f"s_cselect_b32 s6, {sM}, s6")
        self.hbase_q("s6")
        for cb in range(2):
            d = 32 + 8*cb
            self.ffn_block(ACC + 16*cb, ACC + 32 + 16*cb, d)
            for h in range(2):
                a.vm(f"buffer_store_dwordx4 v[{d+4*h}:{d+4*h+3}], {vL16}, {srd(S_WS)}, {sHB} offen offset:{(2*cb+h)*1024} sc1")
    def epi_side(self):
        a = self.a
        self.aug(2, 2)
        a(f"s_lshr_b32 s6, {sM}, 1"); a("s_add_u32 s6, s6, 24"); self.hbase_q("s6")
        a(f"s_and_b32 s6, {sM}, 1"); a("s_lshl_b32 s6, s6, 11"); a(f"s_add_u32 {sHB}, {sHB}, s6")
        self.ffn_block(ACC, ACC + 16, 32)
        for h in range(2):
            a.vm(f"buffer_store_dwordx4 v[{32+4*h}:{32+4*h+3}], {vL16}, {srd(S_WS)}, {sHB} offen offset:{h*1024} sc1")
    def phi_tile(self, T):
        a = self.a
        for h in range(2):
            B = T + 8*h
            for k in range(8): a(f"v_mul_f32 v{TMP+k}, {cRL}, v{B+k}")
            for k in range(8): a(f"v_exp_f32 v{TMP+k}, v{TMP+k} clamp")
            for k in range(8): a(f"v_fma_f32 v{B+k}, v{B+k}, {cRSTD}, s72")
            for k in range(8): a(f"v_max_f32 v{B+k}, s72, v{B+k}")
            for k in range(0, 8, 2): a(f"v_pk_add_f32 v[{B+k}:{B+k+1}], v[{B+k}:{B+k+1}], v[{TMP+k}:{TMP+k+1}]")
    def epi_kv(self):
        a = self.a
        self.aug(0, 4)
        a(f"v_and_b32 v32, 31, {vLANE}"); a(f"s_lshl_b32 s6, {sW}, 5"); a("v_add_u32 v32, s6, v32")
        a(f"s_movk_i32 s7, {KVP}"); a("v_mul_lo_u32 v32, v32, s7")
        a(f"v_lshrrev_b32 v33, 1, {cG16}"); a("v_add_u32 v32, v32, v33"); a(f"v_add_u32 v32, {L_KVS}, v32")
        a(f"v_mov_b32 v34, {cRSTD}"); a(f"v_mov_b32 v35, {cRSTD}")
        for t in range(4):
            T = ACC + 16*t
            if t < 2: self.phi_tile(T)
            else:
                for k in range(0, 16, 2): a(f"v_pk_mul_f32 v[{T+k}:{T+k+1}], v[{T+k}:{T+k+1}], v[34:35]")
            for g4 in range(4):
                d = 36 + 2*g4
                a(f"v_cvt_pk_bf16_f32 v{d}, v{T+4*g4}, v{T+4*g4+1}"); a(f"v_cvt_pk_bf16_f32 v{d+1}, v{T+4*g4+2}, v{T+4*g4+3}")
            for g4 in range(4):
                d = 36 + 2*g4
                off = (t // 2)*128*KVP + (32*(t % 2) + 8*g4)*2
                a.lg(f"ds_write_b64 v32, v[{d}:{d+1}] offset:{off}")
    def epi_q(self):
        a = self.a
        self.aug(2, 2)
        a(f"s_add_u32 s6, {sM}, 28"); self.hbase_q("s6")
        toks = []
        a(f"v_add_u32 v44, {L_KVZ}, {vL16}")
        for h in range(4): toks.append(a.lg(f"ds_read_b128 v[{16+4*h}:{16+4*h+3}], v44 offset:{h*1024}"))
        for t in range(2):
            T = ACC + 16*t
            self.phi_tile(T)
            for k in range(8): a(f"v_cvt_pk_bf16_f32 v{32+8*t+k}, v{T+2*k}, v{T+2*k+1}") if t == 0 else a(f"v_cvt_pk_bf16_f32 v{TMP+k}, v{T+2*k}, v{T+2*k+1}")
        PQ = [32, 36, TMP, TMP + 4]
        a(f"v_mul_f32 v45, {cRSTD}, {cRSTD}")
        a.wait(lg=toks[-1])
        for h in range(4):
            d = ACC + 16*h
            a(f"v_mfma_f32_32x32x16_bf16 v[{d}:{d+15}], v[{16+4*h}:{16+4*h+3}], v[{PQ[h]}:{PQ[h]+3}], 0")
        for h in range(4):
            d = ACC + 16*h
            a(f"v_add_f32 v{d+8}, s72, v{d+8}"); a(f"v_mul_f32 v{d+8}, v{d+8}, v45"); a(f"v_rcp_f32 v{d+8}, v{d+8}")
            a(f"v_mov_b32 v{d+9}, v{d+8}")
            for k in range(0, 8, 2): a(f"v_pk_mul_f32 v[{d+k}:{d+k+1}], v[{d+k}:{d+k+1}], v[{d+8}:{d+9}]")
            for k in range(4): a(f"v_cvt_pk_bf16_f32 v{16+4*h+k}, v{d+2*k}, v{d+2*k+1}")
            a.vm(f"buffer_store_dwordx4 v[{16+4*h}:{16+4*h+3}], {vL16}, {srd(S_WS)}, {sHB} offen offset:{h*1024} sc1")
    def branch2(self, even, odd):
        a = self.a
        lo = a.newlabel("Lo"); lj = a.newlabel("Lj")
        a(f"s_cmp_eq_u32 {sPAR}, 0"); a(f"s_cbranch_scc0 {lo}")
        st = (a.vm_issued, a.lg_issued, a.vm_floor, a.lg_floor)
        even(); sa = (a.vm_issued, a.lg_issued)
        a(f"s_branch {lj}"); a.label(lo)
        a.vm_issued, a.lg_issued, a.vm_floor, a.lg_floor = st
        odd(); sb = (a.vm_issued, a.lg_issued)
        a.label(lj)
        a.vm_issued = min(sa[0], sb[0]); a.lg_issued = min(sa[1], sb[1])
        a.vm_floor = min(a.vm_floor, st[2]) if False else st[2]; a.lg_floor = st[3]
    def h_load(self, i):
        a = self.a
        parts = []
        def head():
            self.qget(i, "s6"); a("s_add_u32 s6, s6, s76"); a("s_lshl_b32 s6, s6, 14"); a("s_add_u32 s78, s6, s77"); a("s_add_u32 s79, s78, 4096")
        for rf in range(2):
            for s in range(4):
                def p(rf=rf, s=s):
                    if rf == 0 and s == 0: head()
                    r = (i % 3)*32 + rf*16 + s*4
                    self.htok[i] = a.vm(f"buffer_load_dwordx4 a[{r}:{r+3}], {vL16}, {srd(S_WS)}, {'s78' if rf == 0 else 's79'} offen offset:{s*1024} sc1")
                parts.append(p)
        return parts

    def compute(self):
        a = self.a; o = self.o
        who = "c"
        self.c_setup()
        self.ftok = {}; self.xrtok = {}; self.htok = {}
        ex = {}
        def at(f, fn): ex.setdefault(f, []).append(fn)
        for G in range(20):
            at(16*G + 9, lambda G=G: self.c_bar(G))
            if G < 7:
                for s in range(4): at(16*G + 11 + s, lambda G=G, s=s: self.x_read(G+1, s))
        for i, f0 in ((0, 290), (1, 303)):
            hd = {}
            def get(k, i=i, hd=hd):
                if "p" not in hd: hd["p"] = self.h_load(i)
                hd["p"][k]()
            for k in range(8): at(f0 + k + (k // 4), lambda k=k, get=get: get(k))
        self.barrier(who, "P0")
        self.stamp("go"); self.stamp("rtgo")
        for s in range(4): self.x_read(0, s)
        self.c_prime(0)
        self.c_run(0, 128, ex, 128)
        self.stamp("e1")
        if o.get("touchw2", 1):
            self.c_touch_w2()
            for k in range(4): self.c_touch_step(k)
        a(f"v_and_b32 v44, 31, {vLANE}"); a("v_lshlrev_b32 v44, 3, v44"); a(f"s_lshl_b32 s6, {sW}, 8"); a(f"s_add_u32 s6, s6, {L_STT}"); a("v_add_u32 v44, s6, v44")
        t = a.lg("ds_read_b64 v[46:47], v44")
        a.wait(lg=t)
        a(f"v_mov_b32 {cRSTD}, v47"); a(f"v_mul_f32 {cRL}, s71, v47")
        a(f"v_cvt_pk_bf16_f32 v{BAUG}, v46, v46"); a(f"v_lshlrev_b32 v45, 16, v{BAUG}"); a("v_sub_f32 v45, v46, v45")
        a(f"v_cvt_pk_bf16_f32 v{BAUG+1}, v45, v45")
        a(f"v_cmp_gt_u32 vcc, 32, {vLANE}"); a("v_mov_b32 v45, 0"); a("s_nop 0")
        a(f"v_cndmask_b32 v{BAUG}, v45, v{BAUG}, vcc"); a(f"v_cndmask_b32 v{BAUG+1}, v45, v{BAUG+1}, vcc")
        self.branch2(self.epi_kv, lambda: self.epi_ffn(0))
        a.wait_all(vm=False)
        self.stamp("e1end")
        self.c_prime(128)
        self.c_run(128, 256, ex, 256)
        self.stamp("e2")
        self.epi_ffn(1)
        self.stamp("e2end")
        self.c_prime(256)
        self.c_run(256, 320, ex, 320)
        self.barrier(who, "H0")
        a(f"v_lshrrev_b32 v56, 5, {vLANE}"); a(f"v_bfe_u32 v57, {vLANE}, 2, 2"); a(f"v_and_b32 v58, 3, {vLANE}"); a(f"v_bfe_u32 v59, {vLANE}, 4, 1")
        a("v_lshlrev_b32 v60, 5, v59"); a("v_lshl_add_u32 v60, v58, 3, v60")
        a("v_lshrrev_b32 v58, 1, v57"); a("v_lshlrev_b32 v58, 6, v58")
        a("v_lshl_add_u32 v56, v56, 2, v57"); a("v_lshlrev_b32 v56, 7, v56"); a(f"v_add_u32 v56, {sW8K}, v56")
        a("v_xor_b32 v57, v60, v58"); a(f"v_add_u32 {cB2[0]}, v56, v57")
        a("v_or_b32 v60, 64, v60"); a("v_xor_b32 v57, v60, v58"); a(f"v_add_u32 {cB2[1]}, v56, v57")
        a(f"v_add_u32 {cB2H[0]}, 0x10000, {cB2[0]}"); a(f"v_add_u32 {cB2H[1]}, 0x10000, {cB2[1]}")
        self.stamp("e3")
        self.branch2(self.epi_side, self.epi_q)
        self.stamp("e3end")
        self.e3_mark = a.vm_issued
        ex2 = {}
        def at2(f, fn): ex2.setdefault(f, []).append(fn)
        for i in range(9):
            f0 = NF1 + 16*i
            if i > 0: at2(f0 - LOOK - 1, lambda i=i: self.c_sbar(i))
            late = o.get("fl2_i", 5) == 5
            todo = []
            if i + 2 < 9 and not (late and i + 2 == 6): todo.append(i + 2)
            if late and i == 5: todo.insert(0, 6)
            for n, j in enumerate(todo):
                hd = {}
                def get(k, j=j, hd=hd):
                    if "p" not in hd: hd["p"] = self.h_load(j)
                    hd["p"][k]()
                for k in range(8): at2(f0 + (1 + k if len(todo) == 1 else (k + 8*n) * 15 // 16), lambda k=k, get=get: get(k))
        def resid():
            a(f"s_lshl_b32 s64, {sT}, 16"); a(f"s_lshl_b32 s7, {sC2}, 7"); a("s_add_u32 s64, s64, s7"); a("s_add_u32 s65, s64, 32768")
            a.vm(f"buffer_load_dwordx4 a[96:99], {cOUT}, {srd(S_X)}, s64 offen")
            a.vm(f"buffer_load_dwordx4 a[100:103], {cOUT}, {srd(S_X)}, s65 offen")
            a("v_lshrrev_b32 v56, 3, v0"); a("v_lshlrev_b32 v56, 4, v56")
            a(f"s_lshl_b32 s6, {sT}, 10"); a(f"s_add_u32 s6, s6, {WS_STAT + 4}")
            a.vm(f"buffer_load_dword v50, v56, {srd(S_WS)}, s6 offen sc1")
            self.xrtk = a.vm(f"buffer_load_dword v51, v56, {srd(S_WS)}, s6 offen offset:512 sc1")
        at2(NF1 + 16*7 + 2, resid)
        self.c_sbar(0)
        self.c_prime(NF1)
        self.c_run(NF1, NF, ex2, NF)
        self.final()

    def c_bar(self, G):
        a = self.a; o = self.o
        if G == o.get("pub0_G", 9) or G == o.get("pub1_G", 17): a.wait_all(lg=False)
        if G == 8: a.wait_all(vm=False)
        self.barrier("c", f"B{G}")
    def c_kv_read(self):
        a = self.a
        a(f"s_mul_i32 s6, {sW}, 1280"); a(f"s_add_u32 s6, s6, {L_KVO}"); a(f"v_lshlrev_b32 v{TMP}, 2, {vLANE}"); a(f"v_add_u32 v{TMP}, s6, v{TMP}")
        for v in range(5): self.kvrt = a.lg(f"ds_read_b32 v{TMP+1+v}, v{TMP} offset:{v*256}")
    def c_kv_atomics(self):
        a = self.a
        a(f"v_lshrrev_b32 v{TMP}, 4, {vLANE}"); a(f"v_lshlrev_b32 v{TMP}, 8, v{TMP}")
        a(f"v_and_b32 v{TMP+6}, 15, {vLANE}"); a(f"v_lshl_add_u32 v{TMP}, v{TMP+6}, 2, v{TMP}")
        a(f"v_lshlrev_b32 v{TMP+6}, 2, v{TMP+6}")
        a(f"v_cmp_gt_u32 vcc, 16, {vLANE}"); a(f"v_mov_b32 v{TMP+7}, {OOB}")
        a(f"s_lshl_b32 s64, {sCG}, 13"); a(f"s_mul_i32 s65, {sW}, {KVH}"); a("s_add_u32 s64, s64, s65"); a(f"s_add_u32 s64, s64, {WS_ACC + ACC_KV}")
        a(f"v_cndmask_b32 v{TMP+6}, v{TMP+7}, v{TMP+6}, vcc")
        a(f"s_cmp_eq_u32 {sPAR}, 0"); a("s_cselect_b64 vcc, -1, 0")
        a(f"v_cndmask_b32 v{TMP}, v{TMP+7}, v{TMP}, vcc"); a(f"v_cndmask_b32 v{TMP+6}, v{TMP+7}, v{TMP+6}, vcc")
        a.wait(lg=self.kvrt)
        for v in range(4): a.vm(f"buffer_atomic_add_f32 v{TMP+1+v}, v{TMP}, {srd(S_WS)}, s64 offen offset:{v*64} sc1")
        a.vm(f"buffer_atomic_add_f32 v{TMP+5}, v{TMP+6}, {srd(S_WS)}, s64 offen offset:1024 sc1")

    def c_touch_w2(self):
        a = self.a
        a(f"s_lshr_b32 s6, {sJ}, 2"); a("s_mul_i32 s6, s6, 288"); a(f"s_mul_i32 s7, {sW}, 72"); a("s_add_u32 s6, s6, s7")
        a(f"v_add_u32 v{TMP}, s6, {vLANE}"); a(f"v_lshlrev_b32 v{TMP}, 10, v{TMP}")
        a(f"s_lshl_b32 s6, {sC2}, 7")
        a(f"v_add_u32 v{TMP+1}, {64*1024}, v{TMP}")
        a(f"v_cmp_gt_u32 vcc, 8, {vLANE}"); a(f"v_mov_b32 v{TMP+2}, {OOB}"); a("s_nop 0")
        a(f"v_cndmask_b32 v{TMP+1}, v{TMP+2}, v{TMP+1}, vcc")
        a(f"s_mov_b32 s65, s6")
    def c_touch_step(self, k):
        a = self.a
        r = TMP + (k // 2)
        if k % 2 == 0: a.vm(f"buffer_load_dword v50, v{r}, {srd(S_WD)}, s65 offen")
        else:
            a(f"v_subrev_u32 v{TMP+4}, {1792*1024}, v{r}")
            a.vm(f"buffer_load_dword v50, v{TMP+4}, {srd(S_WO)}, s65 offen")

    def c_sbar(self, i):
        a = self.a; o = self.o
        if i == o.get("pub2_i", 1):
            a(f"s_waitcnt vmcnt({min(63, self.younger_than_e3())})")
        self.barrier("c", f"S{i}")
    def younger_than_e3(self):
        return self.a.vm_issued - self.e3_mark

    def final(self):
        a = self.a
        self.stamp("loopend")
        a(f"v_and_b32 v56, 31, {vLANE}"); a("s_movk_i32 s7, 272"); a("v_mul_lo_u32 v56, v56, s7")
        a(f"v_add_u32 v56, v56, {cG16}"); a(f"s_mul_i32 s6, {sW}, 17408"); a("v_add_u32 v56, s6, v56")
        for cb in range(2):
            for rf in range(2):
                for t in range(4):
                    r = ACC + (cb*2+rf)*16 + 4*t
                    a.lg(f"ds_write_b128 v56, v[{r}:{r+3}] offset:{rf*8704 + cb*128 + t*32}")
        a("v_lshrrev_b32 v57, 3, v0"); a("v_mul_lo_u32 v57, v57, s7")
        a("v_and_b32 v58, 7, v0"); a("v_lshl_add_u32 v57, v58, 5, v57")
        a.wait_all(vm=False)
        a("s_barrier")
        toks = {}
        for it in range(2):
            for p in range(4):
                for hh in range(2):
                    r = 64 + it*32 + p*8 + hh*4
                    toks[it] = a.lg(f"ds_read_b128 v[{r}:{r+3}], v57 offset:{p*17408 + it*8704 + hh*16}")
        a.wait(vm=self.xrtk)
        for k in range(8): a(f"v_accvgpr_read_b32 v{16+k}, a{96+k}")
        for it in range(2):
            a.wait(lg=toks[it])
            b = 64 + it*32; x = 16 + 4*it
            for k in range(0, 8, 2):
                a(f"v_pk_add_f32 v[{b+k}:{b+k+1}], v[{b+k}:{b+k+1}], v[{b+8+k}:{b+8+k+1}]")
                a(f"v_pk_add_f32 v[{b+16+k}:{b+16+k+1}], v[{b+16+k}:{b+16+k+1}], v[{b+24+k}:{b+24+k+1}]")
            a(f"v_mul_f32 v58, v{50+it}, v{50+it}")
            for k in range(0, 8, 2): a(f"v_pk_add_f32 v[{b+k}:{b+k+1}], v[{b+k}:{b+k+1}], v[{b+16+k}:{b+16+k+1}]")
            for k in range(4):
                a(f"v_lshlrev_b32 v59, 16, v{x+k}"); a(f"v_and_b32 v60, 0xffff0000, v{x+k}")
                a(f"v_fma_f32 v{b+2*k}, v{b+2*k}, v58, v59"); a(f"v_fma_f32 v{b+2*k+1}, v{b+2*k+1}, v58, v60")
            for k in range(4): a(f"v_cvt_pk_bf16_f32 v{24+4*it+k}, v{b+2*k}, v{b+2*k+1}")
            a.vm(f"buffer_store_dwordx4 v[{24+4*it}:{24+4*it+3}], {cOUT}, {srd(S_OUT)}, {'s64' if it == 0 else 's65'} offen")
        self.stamp("end"); self.stamp("rtend")
        self.prof_out(0)
        a("s_endpgm")

    def prof_out(self, woff):
        if self.prof is None: return
        a = self.a
        a.wait_all()
        a(f"s_lshl_b32 s6, s2, 3"); a(f"s_add_u32 s6, s6, {sW}"); a(f"s_add_u32 s6, s6, {woff}"); a("s_lshl_b32 s6, s6, 7"); a(f"s_add_u32 s6, s6, {WS_PROF}")
        a(f"v_cmp_eq_u32 vcc, 0, {vLANE}"); a(f"v_mov_b32 v40, {OOB}"); a("v_mov_b32 v41, 0"); a("v_cndmask_b32 v40, v40, v41, vcc")
        for i in range(len(self.prof)):
            a(f"v_mov_b32 v42, s{84+2*i}"); a(f"v_mov_b32 v43, s{85+2*i}")
            a.vm(f"buffer_store_dwordx2 v[42:43], v40, {srd(S_WS)}, s6 offen offset:{i*8}")
            a("s_nop 1")

    def build(self):
        a = self.a
        self.bars = {}
        self.prologue()
        prot = set(a.protect)
        self.sfx = "_c"
        self.h_setup()
        st = (a.vm_issued, a.lg_issued, a.vm_floor, a.lg_floor)
        saved = (dict(self.xtok), dict(self.wtok)); m0s = (self.m0_owner, self.m0_val)
        a(f"s_cmp_eq_u32 {sPAR}, 0"); a("s_cbranch_scc0 Lhodd")
        self.helper(0)
        a.label("Lhodd")
        a.vm_issued, a.lg_issued, a.vm_floor, a.lg_floor = st
        self.xtok, self.wtok = dict(saved[0]), dict(saved[1]); self.m0_owner, self.m0_val = m0s; self.open_item = {}
        self.helper(1)
        a.label("Lcompute")
        a.vm_issued = a.lg_issued = a.vm_floor = a.lg_floor = 0
        a.protect = prot
        self.compute()
        a.label("Lend")
        a("s_endpgm")
        assert self.bars["c"] == self.bars["h0"] == self.bars["h1"], (self.bars["c"], self.bars["h0"])
        L = self.log
        print("schedule:", {str(k): v for k, v in sorted(L.items(), key=str)}, file=sys.stderr)
        for c in (0, 1):
            assert L[(1, "pub", 0)] < L[(c, "chk", 0)]
            for ph in (1, 2):
                for p in (0, 1): assert L[(p, "pub", ph)] < L[(c, "chk", ph)], ("order", ph, p, c)
            for d in (0, 1):
                assert L[f"cs_pubA_{c}"] < L[f"cs_chkA_{d}"] and L[f"cs_pubB_{c}"] < L[f"cs_chkB_{d}"] and L[f"st_pub_{c}"] < L[f"st_chk_{d}"]
        assert L[(0, "kvcnt")] < L[(1, "kvchk")]
        for e in self.slow: e()
        a.label("Lcode_end")
        a.finalize()
        return a.text()

HEADER = """; Kernarg layout for this problem (80 bytes, ptrs only, base s[0:1]):
; @launch grid=(256,1,1) block=(512,1,1) lds=%d
.amdgcn_target "amdgcn-amd-amdhsa--gfx950"
.text
.globl %s
.p2align 8
.type %s,@function
%s:
"""
FOOTER = """
.section .rodata,"a"
.p2align 6
.amdhsa_kernel %s
  .amdhsa_next_free_vgpr 256
  .amdhsa_next_free_sgpr 102
  .amdhsa_accum_offset 128
  .amdhsa_group_segment_fixed_size 0
  .amdhsa_kernarg_size 80
  .amdhsa_user_sgpr_count 2
  .amdhsa_user_sgpr_kernarg_segment_ptr 1
  .amdhsa_system_sgpr_workgroup_id_x 1
.end_amdhsa_kernel
"""
BLOCK = 512
def generate(prof=None, opts=None):
    g = Gen(prof=prof, opts=opts)
    body = g.build()
    return HEADER % (LDS_BYTES, KNAME, KNAME, KNAME) + body + "\n" + FOOTER % KNAME

if __name__ == "__main__":
    prof = None; opts = {}; out = None
    for x in sys.argv[1:]:
        if x.startswith("--prof="): prof = x[7:].split(",")
        elif x.startswith("--opt="):
            for kv in x[6:].split(","):
                k, v = kv.split("="); opts[k] = int(v)
        else: out = x
    txt = generate(prof, opts)
    path = out or "parallel_sum__linear_attn_block__glu_gated_reglu__prompt.s"
    open(path, "w").write(txt)
    print("wrote", path, len(txt), "bytes")
```

```python
import sys, os
sys.path.insert(0, os.path.dirname(os.path.abspath(__file__)))
from asmlib import Asm

KNAME = "parallel_sum__linear_attn_block__glu_gated_reglu__prompt_kernel"

WS_EPOCH = 0x0
WS_ZF    = 0x1000
WS_HF    = 0x2000
WS_STAT  = 0x10000
WS_ACC   = 0x20000
ACC_CNT_KV = 1408
ACC_KV     = 2048
KVH, KVR = 1088, 64
WS_CSP   = 0x40000
WS_CSPA  = 0xC0000
WS_H     = 0x100000
WS_KVP   = 0xA00000
WS_KVZP  = 0xA80000
WS_KVF   = 0xA90000
WS_PROF  = 0xF00000
OOB      = 0x7FFFFFF0

NW = 5
L_X    = 0x14000
L_CA   = 0x20000
L_KVS  = 0x14000
KVP    = 136
L_CST  = 0x24800
L_STT  = 0x24E00
L_KVZ  = 0x25400
L_KVO  = 0x26400
W2SLOT = [0x14000, 0x0, 0x8000, 0x1C000]
LDS_BYTES = 0x28000

LOOK = 6
NFR  = 8
NF1  = 320
NF   = NF1 + 144

S_X, S_WS, S_OUT, S_U1, S_U2, S_U3, S_WD, S_WO = 8, 12, 16, 20, 24, 28, 32, 36
def srd(b): return f"s[{b}:{b+3}]"
sC1B, sC2B, sP1, sP3, sC3B, sJ = "s40", "s41", "s42", "s43", "s44", "s45"
sW, sR, sCG, sM, sPAR, sWLDS = "s46", "s47", "s48", "s49", "s50", "s51"
sU1b, sU1c64, sU2b, sU3c64 = "s52", "s53", "s54", "s55"
sXB, sW8K = "s56", "s57"
sTAGL, sTAGH = "s60", "s61"
sACC = "s62"
sROT = "s4"
sQA, sQB, sQC = "s5", "s3", "s63"
sT, sC2, sR2, sHALF = "s80", "s81", "s82", "s83"
sHB = "s70"
vLANE, vL16 = "v1", "v2"

cWA = [["v3", "v4"], ["v5", "v6"]]
cSA = ["v7", "v8"]
cXA = ["v9", "v10", "v11", "v12"]
cB2 = ["v9", "v10"]; cB2H = ["v11", "v12"]
cRSTD, cRL, cG16, cCSA = "v13", "v14", "v15", "v48"
RING = 16
BAUG = 52
cOUT = "v49"
TMP = 56
ACC = 64
hSA = "v3"
vU1 = [4, 5, 6, 7]; vU2 = [8, 9, 10, 11]; vU3 = [12, 13, 14, 15]; vX = [16, 17, 18, 19]; vW2 = [20, 21, 22, 23]
hG16, hCSA, hL0, vPOLL, vDUM = "v24", "v25", "v26", "v27", "v28"
TAG = 30
vTAGL, vTAGH = "v30", "v31"
FLD = 32

class Task:
    def __init__(self, g, wake, name):
        self.g = g; self.wake = wake; self.done = False; self.name = name

class Gen:
    def __init__(self, prof=None, opts=None):
        self.a = Asm()
        self.slow = []
        self.prof = prof
        self.tasks = []
        self.log = {}
        self.o = dict(codepf=1, hbudget=3)
        if opts: self.o.update(opts)
        self.nbar = {"c": 0, "h0": 0, "h1": 0}
        self.m0_owner = None; self.m0_val = None; self.open_item = {}

    def stamp(self, name):
        if self.prof is None or name not in self.prof: return
        i = self.prof.index(name)
        assert i < 9
        op = "s_memrealtime" if name.startswith("rt") else "s_memtime"
        self.a(f"{op} s[{84+2*i}:{85+2*i}]")
    def spawn(self, g, wake, name, front=False):
        t = Task(g, wake, name)
        if front: self.tasks.insert(0, t)
        else: self.tasks.append(t)
        return t
    def step(self, t):
        try: r = next(t.g)
        except StopIteration:
            t.done = True; return
        if r is not None: t.wake = r
    def pump(self, f, start, budget):
        a = self.a
        while len(a.lines) - start < budget:
            t = next((t for t in self.tasks if not t.done and t.wake <= f), None)
            if t is None: break
            self.step(t)
        self.tasks = [t for t in self.tasks if not t.done]
    def finish(self, name):
        cap = getattr(self, "int_cap", 0); self.int_cap = 10**9
        for t in list(self.tasks):
            if t.name == name:
                while not t.done: self.step(t)
        self.int_cap = cap
        self.tasks = [t for t in self.tasks if not t.done]
    def active(self, name): return any(t.name == name and not t.done for t in self.tasks)
    def barrier(self, who, name):
        self.bars.setdefault(who, []).append(name)
        self.stamp(f"{who[0]}{name}_in")
        self.a("s_barrier")
        self.stamp(f"{who[0]}{name}_out")

    def poll_check(self, tok, cmp_lines, reissue, name="x"):
        a = self.a
        slow = a.newlabel("Lslow"); back = a.newlabel("Lback")
        self.stamp(name + "_in")
        a.wait(vm=tok)
        a(cmp_lines)
        a("s_cmp_eq_u64 vcc, -1")
        a(f"s_cbranch_scc0 {slow}")
        a.label(back)
        self.stamp(name + "_out")
        def emit():
            loop = a.newlabel("Lspin")
            a.label(slow)
            a("s_mov_b32 s66, 0x4000")
            a.label(loop)
            a("s_sleep 1")
            a(reissue)
            a("s_waitcnt vmcnt(0)")
            a(cmp_lines)
            a("s_cmp_eq_u64 vcc, -1")
            a(f"s_cbranch_scc1 {back}")
            a("s_sub_u32 s66, s66, 1")
            a("s_cmp_lg_u32 s66, 0")
            a(f"s_cbranch_scc1 {loop}")
            a(f"s_branch {back}")
        self.slow.append(emit)
    def tagcmp(self, d):
        return (f"v_cmp_eq_u32 vcc, v{d}, {vTAGL}\n"
                f"v_cmp_eq_u32 s[64:65], v{d+1}, {vTAGH}\n"
                f"s_and_b64 vcc, vcc, s[64:65]")
    def reset_track(self):
        a = self.a
        a.vm_floor = a.vm_issued; a.lg_floor = a.lg_issued

    def prologue(self):
        a = self.a
        a("s_cmp_ge_u32 s2, 256")
        a("s_cbranch_scc1 Lend")
        a(f"s_load_dwordx2 s[{S_X}:{S_X+1}], s[0:1], 0")
        a("s_load_dwordx2 s[64:65], s[0:1], 8")
        a("s_load_dwordx4 s[68:71], s[0:1], 32")
        a(f"s_load_dwordx2 s[{S_WS}:{S_WS+1}], s[0:1], 72")
        a(f"s_load_dwordx2 s[{S_WD}:{S_WD+1}], s[0:1], 48")
        a(f"s_load_dwordx2 s[{S_WO}:{S_WO+1}], s[0:1], 16")
        a(f"s_load_dwordx2 s[{S_OUT}:{S_OUT+1}], s[0:1], 56")
        a.protect = {("s", i) for i in (64, 65, 68, 69, 70, 71)}
        self.stamp("start"); self.stamp("rtstart")
        if self.o.get("dbgtime"):
            a("s_memtime s[84:85]"); a("s_memrealtime s[86:87]"); a("s_load_dwordx2 s[92:93], s[0:1], 64")
        for b, size in ((S_X, 2097152), (S_WS, 0x10000000), (S_OUT, 2097152), (S_WD, 1792*1024), (S_WO, 524288), (S_U2, 512*3584)):
            a(f"s_mov_b32 s{b+2}, {size}"); a(f"s_mov_b32 s{b+3}, 0x00020000")
        a(f"s_mov_b32 s{S_U1+3}, 0x00020000"); a(f"s_mov_b32 s{S_U3+3}, 0x00020000")
        a(f"v_and_b32 {vLANE}, 63, v0")
        a("v_lshrrev_b32 v32, 6, v0")
        a(f"v_lshlrev_b32 {vL16}, 4, {vLANE}")
        a("v_readfirstlane_b32 s72, v32")
        a(f"s_and_b32 {sW}, s72, 3")
        a("s_and_b32 s3, s2, 7")
        a(f"s_lshr_b32 {sJ}, s2, 3")
        a("s_lshr_b32 s7, s3, 2"); a(f"s_lshl_b32 {sR}, s7, 3")
        a(f"s_lshr_b32 s7, {sJ}, 2"); a(f"s_add_u32 {sR}, {sR}, s7")
        a("s_and_b32 s7, s3, 3"); a(f"s_lshl_b32 {sCG}, s7, 2")
        a(f"s_and_b32 s7, {sJ}, 3"); a(f"s_add_u32 {sCG}, {sCG}, s7")
        a(f"s_lshr_b32 {sM}, {sCG}, 1"); a(f"s_and_b32 {sPAR}, {sCG}, 1")
        a(f"s_bfe_u32 {sHALF}, s3, {(1 << 16) | 1}"); a(f"s_lshl_b32 {sT}, {sR}, 1"); a(f"s_add_u32 {sT}, {sT}, {sHALF}")
        a(f"s_and_b32 {sC2}, s3, 1"); a(f"s_lshl_b32 {sC2}, {sC2}, 2"); a(f"s_and_b32 s7, {sJ}, 3"); a(f"s_add_u32 {sC2}, {sC2}, s7")
        a(f"s_mov_b32 {sR2}, {sR}")
        a(f"s_lshl_b32 {sWLDS}, {sW}, 12"); a(f"s_lshl_b32 {sW8K}, {sW}, 13")
        a("s_cmp_lt_u32 s72, 4")
        a("s_cbranch_scc1 Lcompute")

    def h_setup(self):
        a = self.a
        a(f"s_add_u32 s6, {sCG}, {sR}"); a(f"s_and_b32 {sROT}, s6, 3")
        a(f"s_lshl_b32 s6, {sR}, 7"); a(f"s_lshl_b32 s7, {sW}, 5"); a("s_add_u32 s6, s6, s7")
        a(f"s_lshl_b32 {sXB}, s6, 10")
        a(f"s_cmp_eq_u32 {sPAR}, 0")
        a("s_movk_i32 s6, 3072"); a("s_movk_i32 s7, 3584")
        a(f"s_cselect_b32 {sP1}, s6, s7"); a(f"s_cselect_b32 {sP3}, s7, s6")
        a(f"s_mov_b32 s6, {512*3072}"); a(f"s_mov_b32 s7, {512*3584}")
        a(f"s_cselect_b32 s{S_U1+2}, s6, s7"); a(f"s_cselect_b32 s{S_U3+2}, s7, s6")
        a(f"v_lshrrev_b32 v40, 5, {vLANE}"); a(f"v_bfe_u32 v41, {vLANE}, 2, 2"); a(f"v_and_b32 v42, 3, {vLANE}"); a(f"v_bfe_u32 v43, {vLANE}, 4, 1")
        a(f"v_lshrrev_b32 v44, 3, {vLANE}"); a(f"v_and_b32 v45, 7, {vLANE}")
        a(f"v_lshrrev_b32 v47, 4, {vLANE}"); a("v_xor_b32 v47, v45, v47"); a("v_lshlrev_b32 v47, 4, v47")
        a(f"v_lshl_add_u32 v{vX[0]}, v44, 10, v47")
        a(f"v_xor_b32 v47, 64, v{vX[0]}")
        a(f"v_add_u32 v{vX[1]}, {7*1024}, v47"); a(f"v_add_u32 v{vX[2]}, {14*1024}, v{vX[0]}"); a(f"v_add_u32 v{vX[3]}, {21*1024}, v47")
        a("v_lshlrev_b32 v46, 2, v43"); a("v_xor_b32 v46, v45, v46"); a("v_lshlrev_b32 v46, 4, v46")
        a(f"v_mul_lo_u32 v47, v44, {sP1}"); a(f"v_add_u32 v{vU1[0]}, v47, v46")
        a(f"s_lshl_b32 s6, {sP1}, 3"); a("s_sub_u32 s6, s6, 1024")
        for i in range(1, 4): a(f"v_add_u32 v{vU1[i]}, s6, v{vU1[i-1]}")
        a(f"s_lshr_b32 s72, {sW}, 1")
        a("s_lshl_b32 s73, s72, 10"); a("s_add_u32 s73, s73, 1024")
        a(f"s_lshl_b32 s7, {sM}, 7"); a("s_add_u32 s73, s73, s7")
        a(f"s_lshl_b32 s6, {sM}, 8"); a("s_add_u32 s6, s6, 1024")
        a(f"s_cmp_eq_u32 {sPAR}, 0"); a(f"s_cselect_b32 {sC1B}, s73, s6")
        a("s_add_u32 s6, s6, 128")
        a(f"s_cmp_eq_u32 {sPAR}, 0"); a(f"s_cselect_b32 {sC2B}, s7, s6")
        a(f"s_lshr_b32 s6, {sM}, 1"); a("s_lshl_b32 s6, s6, 7"); a("s_add_u32 s6, s6, 3072")
        a(f"s_and_b32 s73, {sM}, 1"); a("s_lshl_b32 s73, s73, 6"); a("s_add_u32 s6, s6, s73")
        a("s_lshl_b32 s73, s72, 6"); a("s_add_u32 s73, s73, s7")
        a(f"s_cmp_eq_u32 {sPAR}, 0"); a(f"s_cselect_b32 {sC3B}, s6, s73")
        a(f"s_and_b32 s72, {sW}, 1")
        a(f"s_lshl_b32 {sU1c64}, {sP1}, 6")
        a(f"s_mul_i32 s6, s72, {sP1}"); a("s_lshl_b32 s7, s6, 5"); a(f"s_add_u32 {sU1b}, {sC1B}, s7")
        a("s_waitcnt lgkmcnt(0)")
        self.stamp("kargs")
        a(f"s_load_dwordx2 s[60:61], s[{S_WS}:{S_WS+1}], 0")
        self.xtok = {}; self.wtok = {}
        self.dma_x(0)
        a(f"s_cmp_lt_u32 {sW}, 2")
        a(f"s_cselect_b32 s{S_U2}, s68, s70"); a(f"s_cselect_b32 s{S_U2+1}, s69, s71")
        a(f"s_cmp_eq_u32 {sPAR}, 0")
        a(f"s_cselect_b32 s{S_U1}, s64, s{S_U2}"); a(f"s_cselect_b32 s{S_U1+1}, s65, s{S_U2+1}")
        a(f"s_cselect_b32 s{S_U3}, s{S_U2}, s64"); a(f"s_cselect_b32 s{S_U3+1}, s{S_U2+1}, s65")
        a.protect = set()
        self.dma_w(0); self.dma_x(1); self.dma_w(1)
        if self.o.get("touch1", 0): self.touch1()
        a("v_lshlrev_b32 v47, 5, v43"); a("v_lshl_add_u32 v47, v42, 3, v47")
        a("v_lshl_add_u32 v48, v40, 3, v41"); a("v_lshlrev_b32 v48, 6, v48"); a(f"v_add_u32 {hSA}, v48, v47")
        a(f"v_lshlrev_b32 {hG16}, 4, v40")
        a("s_movk_i32 s7, 3584"); a("v_mul_lo_u32 v47, v44, s7"); a(f"v_add_u32 v{vU2[0]}, v47, v46")
        for i in range(1, 4): a(f"v_add_u32 v{vU2[i]}, {8*3584-1024}, v{vU2[i-1]}")
        a(f"s_mul_i32 s7, s72, {32*3584}"); a(f"s_add_u32 {sU2b}, {sC2B}, s7")
        a(f"v_lshrrev_b32 v49, 2, {vLANE}"); a(f"v_mul_lo_u32 v47, v49, {sP3}"); a(f"v_lshl_add_u32 v{vU3[0]}, v42, 4, v47")
        a(f"s_lshl_b32 s6, {sP3}, 4"); a("s_sub_u32 s6, s6, 1024")
        for i in range(1, 4): a(f"v_add_u32 v{vU3[i]}, s6, v{vU3[i-1]}")
        a(f"s_lshl_b32 {sU3c64}, {sP3}, 6")
        a(f"v_lshl_add_u32 v{vW2[0]}, v44, 10, v46")
        for k in range(1, 4): a(f"v_add_u32 v{vW2[k]}, {7*1024*k}, v{vW2[0]}")
        a(f"v_mul_lo_u32 v47, v49, {sP1}"); a("v_lshl_add_u32 v34, v42, 4, v47")
        a(f"s_lshl_b32 s6, {sP1}, 4"); a("s_sub_u32 s6, s6, 1024"); a("v_add_u32 v35, s6, v34")
        a("s_movk_i32 s7, 3584"); a("v_mul_lo_u32 v47, v49, s7"); a("v_lshl_add_u32 v36, v42, 4, v47"); a(f"v_add_u32 v37, {16*3584-1024}, v36")
        a(f"s_and_b32 s6, {sR}, 7"); a("s_lshl_b32 s6, s6, 6"); a(f"s_lshr_b32 s7, {sR}, 3"); a("s_lshl_b32 s7, s7, 5"); a("s_add_u32 s6, s6, s7")
        a("s_lshl_b32 s7, s72, 6")
        a(f"s_mul_i32 s73, s6, {sP1}"); a(f"s_add_u32 s73, s73, {sC1B}"); a("s_add_u32 s73, s73, s7")
        a("s_mul_i32 s74, s6, 3584"); a(f"s_add_u32 s74, s74, {sC2B}"); a("s_add_u32 s74, s74, s7")
        a(f"s_mul_i32 s75, s6, {sP3}"); a(f"s_add_u32 s75, s75, {sC3B}")
        a(f"s_lshl_b32 {sACC}, {sCG}, 13"); a(f"s_add_u32 {sACC}, {sACC}, {WS_ACC}")
        a(f"s_lshl_b32 s6, {sR}, 7"); a(f"s_lshl_b32 s7, {sCG}, 3"); a("s_add_u32 s6, s6, s7")
        a(f"s_lshl_b32 s7, {sW}, 1"); a("s_add_u32 s76, s6, s7")
        a(f"v_and_b32 {hCSA}, 31, {vLANE}"); a(f"v_lshlrev_b32 {hCSA}, 2, {hCSA}"); a(f"v_add_u32 {hCSA}, {L_CST}, {hCSA}")
        a(f"v_cmp_eq_u32 vcc, 0, {vLANE}"); a(f"v_mov_b32 {hL0}, {OOB}"); a("v_mov_b32 v47, 0"); a(f"v_cndmask_b32 {hL0}, {hL0}, v47, vcc")
        a(f"s_lshl_b32 s6, {sR}, 1"); a(f"s_lshr_b32 s7, {sW}, 1"); a("s_add_u32 s6, s6, s7"); a("s_mul_i32 s6, s6, 768")
        a(f"s_lshl_b32 s7, {sCG}, 4"); a("s_add_u32 s6, s6, s7"); a("s_lshl_b32 s7, s72, 3"); a("s_add_u32 s6, s6, s7"); a(f"s_add_u32 s77, s6, {WS_HF}")
        for _ in self.t_s2_q(): pass
        a("s_waitcnt lgkmcnt(0)")
        a(f"s_add_u32 {sTAGL}, {sTAGL}, 1"); a(f"s_addc_u32 {sTAGH}, {sTAGH}, 0")
        a(f"v_mov_b32 {vTAGL}, {sTAGL}"); a(f"v_mov_b32 {vTAGH}, {sTAGH}")

    def touch1(self):
        a = self.a
        a(f"s_and_b32 s6, {sR}, 7"); a("s_lshl_b32 s6, s6, 6"); a(f"s_and_b32 s7, {sW}, 1"); a("s_lshl_b32 s7, s7, 5"); a("s_add_u32 s6, s6, s7")
        a(f"v_and_b32 v50, 31, {vLANE}"); a("v_add_u32 v50, s6, v50")
        a(f"v_mul_lo_u32 v51, v50, {sP1}")
        a.vm(f"buffer_load_dword {vDUM}, v51, {srd(S_U1)}, {sC1B} offen")
        a(f"v_and_b32 v52, 31, {vLANE}"); a(f"v_lshrrev_b32 v53, 5, {vLANE}"); a(f"s_lshl_b32 s6, {sW}, 1"); a("s_add_u32 s6, s6, 2"); a("v_add_u32 v53, s6, v53")
        a("v_lshlrev_b32 v52, 10, v52"); a("v_lshl_add_u32 v52, v53, 7, v52")
        a("v_cmp_lt_u32 vcc, 7, v53"); a(f"v_mov_b32 v53, {OOB}"); a("s_nop 0"); a("v_cndmask_b32 v52, v52, v53, vcc")
        a(f"s_lshl_b32 s6, {sR}, 7"); a(f"s_and_b32 s7, {sCG}, 3"); a("s_lshl_b32 s7, s7, 5"); a("s_add_u32 s6, s6, s7"); a("s_lshl_b32 s6, s6, 10")
        a.vm(f"buffer_load_dword {vDUM}, v52, {srd(S_X)}, s6 offen")
        a("s_movk_i32 s7, 3584"); a("v_mul_lo_u32 v51, v50, s7")
        a.vm(f"buffer_load_dword {vDUM}, v51, {srd(S_U2)}, {sC2B} offen")
        a(f"v_mul_lo_u32 v51, v50, {sP3}")
        a.vm(f"buffer_load_dword {vDUM}, v51, {srd(S_U3)}, {sC3B} offen")

    def mkparts(self, head, vs, sr, so, settok, ldsbase):
        a = self.a
        parts = []
        for i in range(4):
            def p(i=i):
                key = (so, ldsbase)
                if i == 0:
                    assert self.open_item.get(so) is None
                    self.open_item[so] = key
                assert self.open_item[so] == key
                if i == 3: self.open_item[so] = None
                if i == 0: head()
                elif self.m0_owner != so or self.m0_val != ldsbase: a(f"s_add_u32 m0, {sWLDS}, {ldsbase}")
                self.m0_owner = so; self.m0_val = ldsbase
                settok(a.vm(f"buffer_load_dwordx4 v{vs[i]}, {srd(sr)}, {so} offen{' offset:%d' % (1024*i) if i else ''} lds"))
            parts.append(p)
        return parts
    def m0_clobber(self): self.m0_owner = None
    def dma_x_parts(self, c):
        a = self.a
        def head():
            a(f"s_add_u32 m0, {sWLDS}, {L_X + (c % 3)*16384}")
            a(f"s_add_u32 s7, {sROT}, {c & 3}"); a("s_and_b32 s7, s7, 3")
            if c & 4: a("s_or_b32 s7, s7, 4")
            a("s_lshl_b32 s7, s7, 7"); a(f"s_add_u32 s58, {sXB}, s7")
        return self.mkparts(head, vX, S_X, "s58", lambda t: self.xtok.__setitem__(c, t), L_X + (c % 3)*16384)
    def dma_w_parts(self, G):
        a = self.a
        slot = G % NW
        if G < 8:    vs, sr, b, c64 = vU1, S_U1, sU1b, sU1c64
        elif G < 16: vs, sr, b, c64 = vU2, S_U2, sU2b, str(64*3584)
        else:        vs, sr, b, c64 = vU3, S_U3, sC3B, sU3c64
        def head():
            a(f"s_add_u32 m0, {sWLDS}, {slot*16384}")
            if G < 16:
                pos = G % 8; a(f"s_add_u32 s7, {sROT}, {pos & 3}")
            else:
                pos = 2*(G-16)
                a(f"s_and_b32 s7, {sW}, 1"); a(f"s_add_u32 s7, s7, {sROT}"); a(f"s_add_u32 s7, s7, {pos & 3}")
            a("s_and_b32 s7, s7, 3")
            if pos & 4: a("s_or_b32 s7, s7, 4")
            a(f"s_mul_i32 s7, s7, {c64}"); a(f"s_add_u32 s59, {b}, s7")
        return self.mkparts(head, vs, sr, "s59", lambda t: self.wtok.__setitem__(G, t), slot*16384)
    def dma_x(self, c):
        for p in self.dma_x_parts(c): p()
    def dma_w(self, G):
        for p in self.dma_w_parts(G): p()
    def slab(self, base_expr, v0, v1, sr, so):
        a = self.a
        a(base_expr); self.m0_clobber(); a("s_nop 0")
        a.vm(f"buffer_load_dwordx4 v{v0}, {srd(sr)}, {so} offen lds")
        return a.vm(f"buffer_load_dwordx4 v{v1}, {srd(sr)}, {so} offen offset:1024 lds")

    def t_early(self):
        a = self.a; o = self.o
        a(f"s_lshl_b32 s6, {sW}, 11")
        self.ctokA = self.slab(f"s_add_u32 m0, s6, {L_CA}", 34, 35, S_U1, "s73"); yield
        if o["codepf"]:
            a("s_getpc_b64 s[64:65]")
            a.label("Lpc0" + self.sfx)
            a(f"s_sub_u32 s64, s64, Lpc0{self.sfx}-{KNAME}"); a("s_subb_u32 s65, s65, 0")
            a(f"v_min_u32 v40, 2, {vLANE}")
            a(f"s_mul_i32 s6, {sJ}, 12"); a(f"s_mul_i32 s7, {sW}, 3"); a("s_add_u32 s6, s6, s7")
            a("v_add_u32 v40, s6, v40"); a("v_lshlrev_b32 v40, 7, v40")
            a(f"s_mov_b32 s66, Lcode_end-{KNAME}-4"); a("v_min_u32 v40, s66, v40")
            a.vm(f"global_load_dword {vDUM}, v40, s[64:65]"); yield

    DPPM = ("quad_perm:[1,0,3,2] row_mask:0xf", "quad_perm:[2,3,0,1] row_mask:0xf", "row_half_mirror row_mask:0xf",
            "row_mirror row_mask:0xf", "row_bcast:15 row_mask:0xa", "row_bcast:31 row_mask:0xc")
    def c_stats(self):
        a = self.a
        D = 64
        for r in range(2):
            for k in range(4):
                a(f"v_lshlrev_b32 v{D+8*r+2*k}, 16, v{16+4*r+k}"); a(f"v_and_b32 v{D+8*r+2*k+1}, 0xffff0000, v{16+4*r+k}")
        for k in range(1, 8):
            for r in range(2):
                d = D + 8*r; t = 80 + r
                a(f"v_add_f32 v{t}, v{d}, v{d+1}" if k == 1 else f"v_add_f32 v{t}, v{t}, v{d+k}")
        for mod in self.DPPM:
            for v in ("v80", "v81"): a(f"v_add_f32_dpp {v}, {v}, {v} {mod} bank_mask:0xf")
        a("v_readlane_b32 s78, v80, 63"); a("v_readlane_b32 s79, v81, 63")
        a("s_mov_b32 s66, 0x3b000000"); a("v_mov_b32 v82, s78"); a("v_mov_b32 v83, s79")
        a("v_mul_f32 v82, s66, v82"); a("v_mul_f32 v83, s66, v83")
        for k in range(8):
            for r in range(2): a(f"v_sub_f32 v{D+8*r+k}, v{D+8*r+k}, v{82+r}")
        for k in range(8):
            for r in range(2):
                d = D + 8*r; t = 80 + r
                a(f"v_mul_f32 v{t}, v{d}, v{d}" if k == 0 else f"v_fmac_f32 v{t}, v{d+k}, v{d+k}")
        for mod in self.DPPM:
            for v in ("v80", "v81"): a(f"v_add_f32_dpp {v}, {v}, {v} {mod} bank_mask:0xf")
        a("v_readlane_b32 s78, v80, 63"); a("v_readlane_b32 s79, v81, 63")
        a("v_mov_b32 v84, s78"); a("v_mov_b32 v85, s79"); a("v_mov_b32 v86, 0x3727c5ac")
        a("v_fma_f32 v84, v84, s66, v86"); a("v_fma_f32 v85, v85, s66, v86")
        a("v_rsq_f32 v84, v84"); a("v_rsq_f32 v85, v85")
        a(f"v_cmp_eq_u32 vcc, 1, {vLANE}"); a("v_mov_b32 v90, s60"); a("v_mov_b32 v91, s61")
        a("v_cndmask_b32 v88, v82, v83, vcc"); a("v_cndmask_b32 v89, v84, v85, vcc")
        a(f"v_cmp_gt_u32 vcc, 2, {vLANE}"); a(f"v_mov_b32 v87, {OOB}")
        a("s_lshl_b32 s6, s75, 4"); a(f"s_add_u32 s6, s6, {WS_STAT}")
        a(f"v_cndmask_b32 v86, v87, {vL16}, vcc")
        a.vm(f"buffer_store_dwordx4 v[88:91], v86, {srd(S_WS)}, s6 offen sc1")

    def t_cs(self, rnd):
        a = self.a
        A = rnd == "A"
        nu = 1 if A else 2
        FR, ONES, D0, AD, RES = 96, 112, 116, 88, 84
        a(f"s_lshl_b32 s6, {sW}, {11 if A else 12}"); a(f"s_add_u32 s6, s6, {L_CA}")
        a(f"v_add_u32 v{AD}, s6, {hSA}"); yield
        for k in range(4): a(f"v_mov_b32 v{ONES+k}, 0x3f803f80")
        yield
        a(f"v_and_b32 v{AD+1}, 31, {vLANE}"); a(f"v_lshlrev_b32 v{AD+1}, {3 if A else 4}, v{AD+1}")
        a(f"v_cmp_gt_u32 vcc, 32, {vLANE}"); a(f"v_mov_b32 v{AD+2}, {OOB}"); a("s_nop 0")
        a(f"v_cndmask_b32 v{AD+1}, v{AD+2}, v{AD+1}, vcc"); yield
        a.wait(vm=self.ctokA if A else self.ctokB)
        for ui in range(nu):
            for s in range(2):
                for q in range(2):
                    r = FR + ui*8 + s*4 + q*2
                    t = a.lg(f"ds_read_b64_tr_b16 v[{r}:{r+1}], v{AD} offset:{ui*2048 + (16*s + 4*q)*64}")
            yield
        if not A: yield self.int_end
        a.wait(lg=t)
        DT = [116, 60]
        DT = [52, 68]
        for ui in range(nu):
            d = DT[ui]
            for s in range(2):
                r = FR + ui*8 + s*4
                a(f"v_mfma_f32_32x32x16_bf16 v[{d}:{d+15}], v[{ONES}:{ONES+3}], v[{r}:{r+3}], {'0' if s == 0 else f'v[{d}:{d+15}]'}")
            yield
        a(f"s_lshl_b32 s6, {sCG}, 4"); a(f"s_add_u32 s6, s6, {sR}"); a("s_lshl_b32 s6, s6, 2"); a(f"s_add_u32 s6, s6, {sW}")
        a(f"s_lshl_b32 s6, s6, {8 if A else 9}"); a(f"s_add_u32 s71, s6, {WS_CSPA if A else WS_CSP}"); yield
        if not A: yield self.int_end
        if A:
            a(f"v_mov_b32 v{RES}, v52"); a(f"v_mov_b32 v{RES+1}, {vTAGL}")
            a.vm(f"buffer_store_dwordx2 v[{RES}:{RES+1}], v{AD+1}, {srd(S_WS)}, s71 offen sc1"); yield
        else:
            a(f"v_mov_b32 v{RES}, v52"); a(f"v_mov_b32 v{RES+1}, v68"); a(f"v_mov_b32 v{RES+2}, {vTAGL}"); a(f"v_mov_b32 v{RES+3}, {vTAGL}")
            a.vm(f"buffer_store_dwordx4 v[{RES}:{RES+3}], v{AD+1}, {srd(S_WS)}, s71 offen sc1"); yield
        self.log["cs_pub" + rnd + self.sfx] = self.f

    def t_csum(self, rnd, chk_f):
        a = self.a
        A = rnd == "A"
        B = 52; W = 2 if A else 4; AD = 92
        SB, ST = "s68", "s69"
        a(f"v_and_b32 v{AD}, 31, {vLANE}"); a(f"v_lshlrev_b32 v{AD}, {3 if A else 4}, v{AD}")
        a(f"v_lshrrev_b32 v{AD+1}, 5, {vLANE}"); a(f"v_lshl_add_u32 v{AD}, v{AD+1}, {10 if A else 11}, v{AD}"); yield
        a(f"s_lshl_b32 s6, {sCG}, {14 if A else 15}"); a(f"s_lshl_b32 s7, {sW}, {8 if A else 9}"); a("s_add_u32 s6, s6, s7")
        a(f"s_add_u32 {SB}, s6, {WS_CSPA if A else WS_CSP}"); yield
        def loads():
            return [f"s_add_u32 {ST}, {SB}, {i*(2048 if A else 4096)}\nbuffer_load_dwordx{W} v[{B+W*i}:{B+W*i+W-1}], v{AD}, {srd(S_WS)}, {ST} offen sc1" for i in range(8)]
        for t in loads():
            yield from self.vmslot()
            l0, l1 = t.split("\n"); a(l0); tok = a.vm(l1); yield
        yield max(chk_f, self.f + 24)
        tg = W - 1
        cmp = f"v_cmp_eq_u32 vcc, v{B+tg}, {vTAGL}\n"
        for i in range(1, 8): cmp += f"v_cmp_eq_u32 s[64:65], v{B+tg+W*i}, {vTAGL}\ns_and_b64 vcc, vcc, s[64:65]\n"
        self.log["cs_chk" + rnd + self.sfx] = self.f
        self.poll_check(tok, cmp.strip(), "\n".join(loads()), "csp" + rnd)
        nv = 1 if A else 2
        for i in range(1, 8):
            for k in range(nv): a(f"v_add_f32 v{B+k}, v{B+k}, v{B+W*i+k}")
            yield
        T = B + 4
        for k in range(nv): a(f"v_mov_b32 v{T+k}, v{B+k}")
        for k in range(nv): a(f"v_permlane32_swap_b32 v{B+k}, v{T+k}")
        for k in range(nv): a(f"v_add_f32 v{B+k}, v{B+k}, v{T+k}")
        yield
        for k in range(nv): a(f"v_cvt_pk_bf16_f32 v{T+k}, v{B+k}, v{B+k}")
        for k in range(nv): a(f"v_lshlrev_b32 v{T+k}, 16, v{T+k}")
        for k in range(nv): a(f"v_sub_f32 v{T+k}, v{B+k}, v{T+k}")
        for k in range(nv): a(f"v_cvt_pk_bf16_f32 v{B+k}, v{B+k}, v{T+k}")
        yield
        a(f"s_lshl_b32 s6, {sW}, 7"); a(f"v_add_u32 v{AD+1}, s6, {hCSA}")
        if A: a.lg(f"ds_write_b32 v{AD+1}, v{B}")
        else:
            a.lg(f"ds_write_b32 v{AD+1}, v{B} offset:512")
            a(f"s_lshr_b32 s6, {sW}, 1"); a("s_lshl_b32 s6, s6, 7"); a(f"v_add_u32 v{AD+1}, s6, {hCSA}")
            a.lg(f"ds_write_b32 v{AD+1}, v{B+1} offset:1024")
        yield

    def t_stt(self, chk_f):
        a = self.a
        a(f"v_and_b32 v44, 31, {vLANE}"); a("v_lshlrev_b32 v45, 4, v44"); yield
        a(f"s_lshl_b32 s6, {sR}, 7"); a(f"s_lshl_b32 s7, {sW}, 5"); a("s_add_u32 s6, s6, s7")
        a("s_lshl_b32 s72, s6, 4"); a(f"s_add_u32 s72, s72, {WS_STAT}")
        txt = f"buffer_load_dwordx4 v[48:51], v45, {srd(S_WS)}, s72 offen sc1"
        tok = a.vm(txt)
        yield chk_f
        self.log["st_chk" + self.sfx] = self.f
        self.poll_check(tok, self.tagcmp(50), txt, "stp")
        a("v_sub_f32 v48, 0, v48")
        a("v_lshlrev_b32 v44, 3, v44"); a(f"s_lshl_b32 s6, {sW}, 8"); a(f"s_add_u32 s6, s6, {L_STT}"); a("v_add_u32 v44, s6, v44")
        a.lg("ds_write_b64 v44, v[48:49]"); yield

    def t_slabB(self):
        a = self.a
        yield from self.vmslot()
        self.slab(f"s_add_u32 m0, {sWLDS}, {L_CA}", 36, 37, S_U2, "s74"); yield
        yield from self.vmslot()
        self.ctokB = self.slab(f"s_add_u32 m0, {sWLDS}, {L_CA + 2048}", vU3[0], vU3[1], S_U3, "s75"); yield

    def publish(self, phase):
        a = self.a
        a.vm(f"buffer_store_dwordx2 v[{TAG}:{TAG+1}], {hL0}, {srd(S_WS)}, s77 offen offset:{phase*256} sc1")
        self.log[(self.par, "pub", phase)] = self.f

    def t_kv_tail(self):
        a = self.a; o = self.o
        a(f"v_lshrrev_b32 v38, 4, {vLANE}"); a("v_lshlrev_b32 v38, 3, v38")
        a(f"v_bfe_u32 v39, {vLANE}, 2, 2"); a("v_add_u32 v38, v38, v39"); yield
        a(f"s_movk_i32 s7, {KVP}"); a("v_mul_lo_u32 v38, v38, s7")
        a(f"v_and_b32 v39, 3, {vLANE}"); a("v_lshl_add_u32 v38, v39, 3, v38"); yield
        a(f"s_lshl_b32 s6, {sW}, 5"); a(f"s_add_u32 s6, s6, {L_KVS}"); a("v_add_u32 v38, s6, v38"); yield
        F = 52
        for ks in range(4):
            for tile in range(2):
                for q in range(2):
                    r = F + ks*8 + tile*4 + q*2
                    t = a.lg(f"ds_read_b64_tr_b16 v[{r}:{r+1}], v38 offset:{tile*128*KVP + (32*ks + 4*q)*KVP}")
                yield
        for k in range(4): a(f"v_mov_b32 v{84+k}, 0x3f803f80")
        yield self.int_end
        a.wait(lg=t)
        self.kv_reads_f = self.f
        for ks in range(4):
            pk = F + ks*8; vv = pk + 4
            a(f"v_mfma_f32_16x16x32_bf16 v[88:91], v[{vv}:{vv+3}], v[{pk}:{pk+3}], {'0' if ks == 0 else 'v[88:91]'}")
            a(f"v_mfma_f32_16x16x32_bf16 v[48:51], v[84:87], v[{pk}:{pk+3}], {'0' if ks == 0 else 'v[48:51]'}")
            yield
        a(f"s_lshl_b32 s6, {sM}, 2"); a(f"s_add_u32 s6, s6, {sW}")
        a("s_lshl_b32 s7, s6, 4"); a(f"s_add_u32 s7, s7, {sR}"); a("s_lshl_b32 s7, s7, 10"); a(f"s_add_u32 s73, s7, {WS_KVP}")
        a("s_lshl_b32 s7, s6, 10"); a(f"s_lshl_b32 s72, {sR}, 6"); a("s_add_u32 s7, s7, s72"); a(f"s_add_u32 s72, s7, {WS_KVZP}")
        a("s_lshl_b32 s7, s6, 7"); a(f"s_lshl_b32 s6, {sR}, 3"); a("s_add_u32 s7, s7, s6"); a(f"s_add_u32 s71, s7, {WS_KVF}")
        a(f"v_cmp_gt_u32 vcc, 16, {vLANE}"); a(f"v_mov_b32 v39, {OOB}"); a(f"v_lshlrev_b32 v38, 2, {vLANE}")
        a("v_cndmask_b32 v38, v39, v38, vcc")
        yield self.f + 2
        a.vm(f"buffer_store_dwordx4 v[88:91], {vL16}, {srd(S_WS)}, s73 offen sc1")
        tok = a.vm(f"buffer_store_dword v48, v38, {srd(S_WS)}, s72 offen sc1"); yield
        yield self.int_end + 16
        a.wait(vm=tok)
        a.vm(f"buffer_store_dwordx2 v[{TAG}:{TAG+1}], {hL0}, {srd(S_WS)}, s71 offen sc1")
        self.log[(0, "kvcnt")] = self.f
        yield

    def t_q_prep(self, chk_f):
        a = self.a
        a(f"s_lshl_b32 s6, {sM}, 2"); a(f"s_add_u32 s6, s6, {sW}")
        a("s_lshl_b32 s7, s6, 7"); a(f"s_add_u32 s71, s7, {WS_KVF}")
        a("s_lshl_b32 s7, s6, 14"); a(f"s_add_u32 s73, s7, {WS_KVP}")
        a("s_lshl_b32 s7, s6, 10"); a(f"s_add_u32 s76, s7, {WS_KVZP}")
        a(f"v_and_b32 v40, 15, {vLANE}"); a("v_lshlrev_b32 v40, 3, v40")
        txt = f"buffer_load_dwordx2 v[42:43], v40, {srd(S_WS)}, s71 offen sc1"
        tok = a.vm(txt)
        yield chk_f
        self.log[(1, "kvchk")] = self.f
        self.poll_check(tok, self.tagcmp(42), txt, "kvp")
        while self.active("csumB"): yield self.f + 1
        B = 52
        ztok = a.vm(f"buffer_load_dwordx4 v[116:119], {vL16}, {srd(S_WS)}, s76 offen sc1"); yield
        toks = []
        for r in range(16):
            yield from self.vmslot()
            if r % 4 == 0 and r: a("s_add_u32 s73, s73, 4096")
            toks.append(a.vm(f"buffer_load_dwordx4 v[{B+4*r}:{B+4*r+3}], {vL16}, {srd(S_WS)}, s73 offen offset:{(r % 4)*1024} sc1")); yield
        yield self.int_end
        a.wait(vm=ztok)
        for mod in ("row_shr:4", "row_shr:8"):
            for k in range(4): a(f"v_add_f32_dpp v{116+k}, v{116+k}, v{116+k} {mod} row_mask:0xf bank_mask:0xf bound_ctrl:0")
            yield
        for k in range(4):
            a(f"v_mov_b32 v{120+k}, v{116+k}")
        for k in range(4): a(f"v_permlane16_swap_b32 v{116+k}, v{120+k}")
        for k in range(4): a(f"v_add_f32 v{116+k}, v{116+k}, v{120+k}")
        yield
        for k in range(4): a(f"v_mov_b32 v{120+k}, v{116+k}")
        for k in range(4): a(f"v_permlane32_swap_b32 v{116+k}, v{120+k}")
        for k in range(4): a(f"v_add_f32 v{116+k}, v{116+k}, v{120+k}")
        yield
        for r in range(1, 16):
            a.wait(vm=toks[r])
            for k in range(0, 4, 2): a(f"v_pk_add_f32 v[{B+k}:{B+k+1}], v[{B+k}:{B+k+1}], v[{B+4*r+k}:{B+4*r+k+1}]")
            yield
        a(f"s_mul_i32 s6, {sW}, 1280"); a(f"s_add_u32 s6, s6, {L_KVO}")
        a(f"v_lshrrev_b32 v40, 4, {vLANE}"); a("v_lshlrev_b32 v40, 8, v40"); a(f"v_and_b32 v41, 15, {vLANE}"); a("v_lshl_add_u32 v40, v41, 2, v40")
        a("v_add_u32 v40, s6, v40")
        for v in range(4): a.lg(f"ds_write_b32 v40, v{B+v} offset:{v*64}")
        a(f"v_and_b32 v41, 3, {vLANE}"); a("v_lshlrev_b32 v41, 4, v41"); a("v_add_u32 v41, s6, v41"); a("v_add_u32 v41, 1024, v41")
        a(f"v_and_b32 v42, 15, {vLANE}"); a("v_cmp_le_u32 vcc, 12, v42"); a(f"v_mov_b32 v43, {L_KVO + 4*1280}")
        a("v_cndmask_b32 v41, v43, v41, vcc")
        t = a.lg("ds_write_b128 v41, v[116:119]"); yield
        yield self.f + 3
        a(f"s_mul_i32 s6, {sW}, 1280"); a(f"s_add_u32 s6, s6, {L_KVO}")
        a(f"v_and_b32 v41, 31, {vLANE}"); a("v_min_u32 v41, 16, v41"); a(f"v_lshl_add_u32 v41, v41, 6, {hG16}"); a("v_add_u32 v41, s6, v41")
        a.wait(lg=t)
        a.lg("ds_read_b128 v[52:55], v41"); t = a.lg("ds_read_b128 v[56:59], v41 offset:32"); yield
        yield self.f + 3
        a.wait(lg=t)
        for k in range(4): a(f"v_cvt_pk_bf16_f32 v{60+k}, v{52+2*k}, v{53+2*k}")
        a(f"s_lshl_b32 s6, {sW}, 10"); a(f"s_add_u32 s6, s6, {L_KVZ}"); a(f"v_add_u32 v41, s6, {vL16}")
        a.lg("ds_write_b128 v41, v[60:63]"); yield

    def qget(self, i, dst):
        reg = (sQA, sQB, sQC)[i // 4]
        self.a(f"s_bfe_u32 {dst}, {reg}, {(8 << 16) | (8*(i % 4))}")
    def t_s2_q(self):
        a = self.a
        a(f"s_lshr_b32 s68, {sJ}, 2"); a(f"s_add_u32 s68, s68, {sC2}"); a("s_and_b32 s68, s68, 7")
        tab = sum(((k % 3) << (2*k)) for k in range(12))
        a(f"s_lshl_b32 s69, s68, 1"); a(f"s_lshr_b32 s69, {tab}, s69"); a("s_and_b32 s69, s69, 3"); yield
        for i in range(9):
            reg = (sQA, sQB, sQC)[i // 4]
            if i < 2:
                a(f"s_add_u32 s6, s68, {i}"); a("s_and_b32 s6, s6, 1"); a("s_lshl_b32 s6, s6, 3")
                a(f"s_lshl_b32 s7, {sW}, 1"); a("s_add_u32 s6, s6, s7"); a("s_add_u32 s6, s6, 8")
            elif i < 6:
                a(f"s_add_u32 s6, s68, {i-2}"); a("s_and_b32 s6, s6, 3"); a("s_lshl_b32 s6, s6, 2"); a(f"s_add_u32 s6, s6, {sW}")
                a("s_lshl_b32 s7, s6, 1"); a("s_sub_u32 s7, s7, 7"); a("s_cmp_lt_u32 s6, 8"); a("s_cselect_b32 s6, s6, s7")
            else:
                a(f"s_add_u32 s6, s69, {i-6}"); a("s_sub_u32 s7, s6, 3"); a("s_cmp_lt_u32 s6, 3"); a("s_cselect_b32 s6, s6, s7")
                a("s_lshl_b32 s6, s6, 2"); a(f"s_add_u32 s6, s6, {sW}"); a("s_add_u32 s6, s6, 24")
            if i % 4 == 0: a(f"s_mov_b32 {reg}, s6")
            else: a(f"s_lshl_b32 s6, s6, {8*(i % 4)}"); a(f"s_or_b32 {reg}, {reg}, s6")
            yield
    def s2_w_dma(self, i):
        a = self.a
        self.qget(i, "s6")
        if i < 6: sr = S_WD
        else:
            sr = S_U1
            a("s_cmp_lt_u32 s6, 28")
            a(f"s_cselect_b32 s{S_U1}, s{S_WD}, s{S_WO}"); a(f"s_cselect_b32 s{S_U1+1}, s{S_WD+1}, s{S_WO+1}")
            a(f"s_cselect_b32 s{S_U1+2}, s{S_WD+2}, s{S_WO+2}")
            a("s_cselect_b32 s7, 0, 28"); a("s_sub_u32 s6, s6, s7")
        a("s_lshl_b32 s6, s6, 16"); a(f"s_lshl_b32 s7, {sC2}, 7"); a("s_add_u32 s74, s6, s7"); yield
        base = W2SLOT[i % 4]
        for g in range(2):
            for k in range(4):
                if i < 3: yield from self.vmslot()
                if k == 0 or self.m0_owner != ("w2", i, g):
                    a(f"s_add_u32 m0, {sW8K}, {base + g*4096}")
                    if k == 0 and g == 1: a("s_add_u32 s74, s74, 32768")
                    self.m0_owner = ("w2", i, g)
                self.w2tok[i] = a.vm(f"buffer_load_dwordx4 v{vW2[k]}, {srd(sr)}, s74 offen{' offset:%d' % (1024*k) if k else ''} lds"); yield
    def t_w2reg(self, i, areg):
        a = self.a
        self.qget(i, "s6")
        if i < 6: sr = S_WD
        else:
            sr = S_U1
            a("s_cmp_lt_u32 s6, 28")
            a(f"s_cselect_b32 s{S_U1}, s{S_WD}, s{S_WO}"); a(f"s_cselect_b32 s{S_U1+1}, s{S_WD+1}, s{S_WO+1}")
            a(f"s_cselect_b32 s{S_U1+2}, s{S_WD+2}, s{S_WO+2}")
            a("s_cselect_b32 s7, 0, 28"); a("s_sub_u32 s6, s6, s7")
        a("s_lshl_b32 s6, s6, 16"); a(f"s_lshl_b32 s7, {sC2}, 7"); a("s_add_u32 s75, s6, s7"); yield
        for g in range(2):
            for k in range(4):
                yield from self.vmslot()
                if k == 0 and g == 1: a("s_add_u32 s75, s75, 32768")
                r = areg + (g*4 + k)*4
                self.w2rtok[i] = a.vm(f"buffer_load_dwordx4 a[{r}:{r+3}], v{vW2[k]}, {srd(sr)}, s75 offen{' offset:%d' % (1024*k) if k else ''}"); yield
    def w2put(self, i, areg):
        a = self.a
        a.wait(vm=self.w2rtok[i])
        a(f"s_add_u32 s6, {sW8K}, {W2SLOT[i % 4]}"); a(f"v_add_u32 v40, s6, {vL16}")
        for k in range(8):
            r = areg + k*4
            self.w2ptok[i] = a.lg(f"ds_write_b128 v40, a[{r}:{r+3}] offset:{k*1024}")

    def flag_issue(self, phase):
        a = self.a
        if phase == 0:
            a(f"v_bfe_u32 {vPOLL}, {vLANE}, 1, 3"); a(f"v_lshlrev_b32 {vPOLL}, 2, {vPOLL}")
            a(f"v_and_b32 v{FLD}, 1, {vLANE}"); a(f"v_add_u32 {vPOLL}, {vPOLL}, v{FLD}"); a(f"v_add_u32 {vPOLL}, 2, {vPOLL}")
            a(f"v_lshlrev_b32 {vPOLL}, 3, {vPOLL}")
        else:
            a(f"v_and_b32 {vPOLL}, 31, {vLANE}"); a(f"v_lshlrev_b32 {vPOLL}, 3, {vPOLL}")
        a(f"s_mul_i32 s72, {sT}, 768"); a(f"s_add_u32 s72, s72, {WS_HF + phase*256}")
        self.fl_txt = f"buffer_load_dwordx2 v[{FLD}:{FLD+1}], {vPOLL}, {srd(S_WS)}, s72 offen sc1"
        self.fltok = a.vm(self.fl_txt)
    def flag_check(self, phase):
        self.log[(self.par, "chk", phase)] = self.f
        self.poll_check(self.fltok, self.tagcmp(FLD), self.fl_txt, f"fl{phase}")
        if not self.o.get("touchh", 0): return
        a = self.a
        n = (8, 16, 12)[phase]
        a(f"s_and_b32 s6, {sJ}, 3"); a(f"s_lshl_b32 s7, {sW}, 2"); a("s_add_u32 s6, s6, s7")
        if phase == 0: a("s_lshl_b32 s7, s6, 1"); a("s_add_u32 s7, s7, 8")
        elif phase == 1:
            a("s_lshl_b32 s7, s6, 1"); a("s_sub_u32 s7, s7, 7"); a("s_cmp_lt_u32 s6, 8"); a("s_cselect_b32 s7, s6, s7")
        else: a("s_add_u32 s7, s6, 24")
        a(f"s_mul_i32 s64, {sR}, 36"); a("s_add_u32 s7, s7, s64"); a("s_lshl_b32 s7, s7, 14")
        a(f"s_lshl_b32 s64, {sHALF}, 13"); a("s_add_u32 s7, s7, s64"); a(f"s_add_u32 s7, s7, {WS_H}")
        a(f"v_lshlrev_b32 v40, 7, {vLANE}"); a(f"v_mov_b32 v41, {OOB}")
        a(f"s_cmp_lt_u32 s6, {n}"); a("s_cselect_b64 vcc, -1, 0"); a("v_cndmask_b32 v40, v41, v40, vcc")
        a.vm(f"buffer_load_dword {vDUM}, v40, {srd(S_WS)}, s7 offen sc1")

    def vmslot(self):
        while self.a.vm_issued - self.int_vm0 >= self.int_cap: yield self.int_end
    def h_interval(self, f0, n, extras, budget=None, cap=None):
        a = self.a
        nfix = sum(len(extras.get(f0 + g, [])) for g in range(n))
        self.int_vm0 = a.vm_issued + nfix*0; self.int_end = f0 + n
        self.int_cap = (cap or self.o.get("vmcap", 8))
        self.int_vm0 = a.vm_issued
        for g in range(n):
            self.f = f0 + g
            start = len(a.lines)
            for fn in extras.get(f0 + g, []): fn()
            self.pump(self.f, start, budget or self.o["hbudget"])

    def helper(self, par):
        a = self.a; o = self.o
        self.par = par; self.sfx = f"_{par}"
        who = f"h{par}"
        self.tasks = []; self.w2tok = {}; self.w2rtok = {}; self.w2ptok = {}
        REGCH = {3: 0, 4: 32, 5: 64, 6: 96} if o.get("w2reg", 1) else {}
        self.kvz_done = False
        ex = {}
        def at(f, fn): ex.setdefault(f, []).append(fn)
        def spread(maker, positions):
            hd = {}
            def get(i):
                if "p" not in hd: hd["p"] = maker()
                hd["p"][i]()
            for i, pos in enumerate(positions): at(pos, (lambda i=i: get(i)))
        spread(lambda: self.dma_x_parts(2), (0, 1, 2, 3)); spread(lambda: self.dma_w_parts(2), (4, 5, 6, 7))
        spread(lambda: self.dma_w_parts(3), (10, 12, 14, 16))
        for G in range(0, 16):
            spread(lambda G=G: self.dma_w_parts(G+4), [16*G + 10 + p for p in ((1, 5, 9, 13) if G == 0 else (0, 2, 4, 6))] if G > 0 else [18, 20, 22, 24])
        for G in range(0, 5):
            spread(lambda G=G: self.dma_x_parts(G+3), [16*G + 10 + p for p in (1, 3, 5, 7)])
        self.spawn(self.t_early(), 0, "early")
        self.spawn(self.t_cs("A"), o.get("cs_f", 26), "csA")
        self.log["st_pub" + self.sfx] = 0
        self.spawn(self.t_csum("A", o.get("csumA_chk", 104)), o.get("csumA_f", 74), "csumA")
        self.spawn(self.t_stt(o.get("st_chk", 104)), o.get("stt_f", 80), "stt")
        self.spawn(self.t_slabB(), o.get("slabB_f", 58), "slabB")
        self.spawn(self.t_cs("B"), o.get("csB_f", 106), "csB")
        self.spawn(self.t_csum("B", o.get("csumB_chk", 214)), o.get("csumB_f", 186), "csumB")
        if o.get("hprio", 0): a(f"s_setprio {o['hprio']}")
        a.wait(vm=self.wtok[0])
        self.barrier(who, "P0")
        self.h_interval(0, 10, ex)
        for G in range(20):
            self.f = 16*G + 9
            if G + 1 < 20: a.wait(vm=self.wtok[G+1])
            if G + 1 < 8: a.wait(vm=self.xtok[G+1])
            if G == 7: self.finish("csumA"); self.finish("stt"); a.wait_all(vm=False)
            if G == 15: self.finish("csumB"); a.wait_all(vm=False)
            if G == 17: self.flag_check(0)
            if G == 19:
                if par == 1: self.finish("qprep"); a.wait_all(vm=False)
            self.barrier(who, f"B{G}")
            self.f = 16*G + 10
            if G == o.get("pub0_G", 9) and par == 1: self.publish(0)
            if G == 8 and par == 0:
                self.finish("csB")
                self.spawn(self.t_kv_tail(), self.f, "kvtail", front=True)
            if G == o.get("pub1_G", 17): self.publish(1)
            if G == 11:
                if par == 0: assert self.kv_reads_f < self.f
                self.spawn(self.s2_w_dma(0), self.f, "w2_0")
            if G == 11 and par == 0: assert self.kv_reads_f < 180, "kv tail fragments overlap csumB registers"
            if G == 16 and par == 1: assert not self.active("csumB")
            if REGCH:
                if G == 7:
                    def r34():
                        yield from self.t_w2reg(3, 0); yield from self.t_w2reg(4, 32)
                    self.spawn(r34(), self.f, "w2r3")
                if G == 15:
                    self.finish("w2r3")
                    def r56():
                        yield from self.t_w2reg(5, 64); yield from self.t_w2reg(6, 96)
                    self.spawn(r56(), self.f, "w2r5")
            if G == 15: self.flag_issue(0)
            if G == 17:
                self.spawn(self.s2_w_dma(1), self.f, "w2_1")
            if G == o.get("qprep_G", 13) and par == 1: self.spawn(self.t_q_prep(self.f + o.get("kvchk_gap", 17)), self.f, "qprep")
            if G == 19: self.spawn(self.s2_w_dma(2), self.f, "w2_2")
            if G < 19:
                cap = 24 if G in (7, 15) else (10 if G >= 16 else (12 if G in (3, 4) else None))
                self.h_interval(16*G + 10, 16, ex, cap=cap, budget=(5 if G in (7, 15) else (4 if G >= 16 else None)))
        self.h_interval(314, 6, ex)
        self.barrier(who, "H0")
        if par == 0: assert not self.active("kvtail"), "kv tail still running at H0"
        if 3 in REGCH:
            for n in ("w2r3", "w2r5"): self.finish(n)
            self.w2put(3, REGCH[3])
        else: self.spawn(self.s2_w_dma(3), self.f, "w2_3")
        self.flag_issue(1)
        base = 336
        for i in range(9):
            self.h_interval(base + 16*i - 16, 16, ex, budget=8)
            self.f = base + 16*i
            if i in REGCH: a.wait(lg=self.w2ptok[i])
            else:
                self.finish(f"w2_{i}")
                a.wait(vm=self.w2tok[i])
            if i + 2 == 2: self.flag_check(1)
            if i == o.get("fl2_i", 5): self.flag_check(2)
            self.barrier(who, f"S{i}")
            self.f = base + 16*i + 1
            if i == o.get("pub2_i", 1): self.publish(2)
            if i == o.get("fl2_i", 5) - 1: self.flag_issue(2)
            if i >= 1 and i + 3 < 9:
                if i + 3 in REGCH: self.w2put(i + 3, REGCH[i + 3])
                else: self.spawn(self.s2_w_dma(i + 3), self.f, f"w2_{i+3}")
        a("s_cmp_eq_u32 s2, 0"); a("s_cselect_b64 vcc, -1, 0"); a(f"s_cmp_eq_u32 {sW}, 0"); a("s_cselect_b64 vcc, vcc, 0")
        a(f"v_mov_b32 v40, {OOB}"); a("s_nop 0"); a(f"v_cndmask_b32 v40, v40, {hL0}, vcc")
        a.vm(f"buffer_store_dwordx2 v[{TAG}:{TAG+1}], v40, {srd(S_WS)}, 0 offen sc1")
        self.prof_out(4)
        a("s_endpgm")

    def c_lane_consts(self):
        a = self.a
        a(f"v_and_b32 v56, 31, {vLANE}"); a(f"v_lshrrev_b32 v57, 5, {vLANE}"); a(f"v_bfe_u32 v58, {vLANE}, 2, 2")
        a(f"v_and_b32 v59, 3, {vLANE}"); a(f"v_bfe_u32 v60, {vLANE}, 4, 1")
        a("v_lshlrev_b32 v61, 5, v60"); a("v_lshl_add_u32 v61, v59, 3, v61")
        a("v_lshrrev_b32 v62, 1, v58"); a("v_lshlrev_b32 v62, 6, v62")
        a("v_lshl_add_u32 v63, v57, 3, v58")
        a("v_lshlrev_b32 v64, 7, v63")
        a("v_xor_b32 v65, v61, v62"); a(f"v_add_u32 {cWA[0][0]}, v64, v65")
        a("v_or_b32 v65, 64, v61"); a("v_xor_b32 v65, v65, v62"); a(f"v_add_u32 {cWA[0][1]}, v64, v65")
        a(f"v_add_u32 {cWA[1][0]}, 0x10000, {cWA[0][0]}"); a(f"v_add_u32 {cWA[1][1]}, 0x10000, {cWA[0][1]}")
        a("v_lshlrev_b32 v64, 6, v63"); a(f"v_add_u32 {cSA[0]}, v64, v61"); a(f"v_add_u32 {cSA[1]}, 0x10000, {cSA[0]}")
        a("v_bfe_u32 v64, v56, 1, 3"); a("v_xor_b32 v64, v64, v57")
        a("v_lshlrev_b32 v65, 7, v56"); a(f"s_add_u32 s7, {sWLDS}, {L_X}"); a("v_add_u32 v65, s7, v65")
        for s in range(4):
            a(f"v_xor_b32 v66, {2*s}, v64"); a(f"v_lshl_add_u32 {cXA[s]}, v66, 4, v65")
        a(f"v_lshlrev_b32 {cG16}, 4, v57")
        a(f"v_lshlrev_b32 {cCSA}, 2, v56"); a(f"v_add_u32 {cCSA}, {L_CST}, {cCSA}")
        a(f"v_mov_b32 v{BAUG+2}, 0"); a(f"v_mov_b32 v{BAUG+3}, 0")
        a("v_lshrrev_b32 v64, 3, v0"); a("v_and_b32 v65, 7, v0")
        a(f"v_lshlrev_b32 {cOUT}, 10, v64"); a(f"v_lshl_add_u32 {cOUT}, v65, 4, {cOUT}")

    def c_setup(self):
        a = self.a
        a("s_waitcnt lgkmcnt(0)")
        a.protect = set()
        a(f"s_lshl_b32 s6, {sR}, 7"); a(f"s_lshl_b32 s7, {sCG}, 3"); a("s_add_u32 s6, s6, s7")
        a(f"s_lshl_b32 s7, {sW}, 1"); a("s_add_u32 s75, s6, s7"); a("s_lshl_b32 s6, s75, 10")
        a.vm(f"buffer_load_dwordx4 v[16:19], {vL16}, {srd(S_X)}, s6 offen")
        a.vm(f"buffer_load_dwordx4 v[20:23], {vL16}, {srd(S_X)}, s6 offen offset:1024")
        a(f"s_load_dwordx2 s[60:61], s[{S_WS}:{S_WS+1}], 0")
        a("s_mov_b32 s71, 0x3fb8aa3b"); a("s_mov_b32 s72, 0x358637bd")
        a(f"s_mul_i32 s76, {sR2}, 36"); a(f"s_lshl_b32 s77, {sHALF}, 13"); a(f"s_add_u32 s77, s77, {WS_H}")
        for _ in self.t_s2_q(): pass
        self.c_lane_consts()
        a("s_waitcnt vmcnt(0) lgkmcnt(0)")
        a("s_add_u32 s60, s60, 1"); a("s_addc_u32 s61, s61, 0")
        self.c_stats()

    def finfo(self, f):
        if f < NF1:
            G, m = divmod(f, 16)
            if G < 16:
                c = G % 8; s = m // 4; tile = m % 4; ks = c*4 + s
            else:
                s = m // 2; tile = m % 2; ks = (G-16)*8 + s
            return dict(phi=f, acc=ACC + 16*tile, b=ks*4, first=(ks == 0))
        i, m = divmod(f - NF1, 16)
        s, r = divmod(m, 4); cb, rf = divmod(r, 2)
        return dict(phi=NF1 + 8*i + 2*s + cb, acc=ACC + (cb*2+rf)*16, b=(i % 3)*32 + rf*16 + s*4, first=(i == 0 and s == 0), chunk=i, m=m)
    def phi_first_use(self, phi): return phi if phi < NF1 else NF1 + 2*(phi - NF1)
    def frag_read(self, phi):
        a = self.a
        r = RING + 4*(phi % NFR)
        if phi < NF1:
            G, m = divmod(phi, 16)
            slot = G % NW; rng = slot // 4; sb = (slot % 4)*16384
            if G < 16:
                s = m // 4; cbk = m % 4; panel, cb = divmod(cbk, 2)
                base = cWA[rng][cb]; imm = [sb + panel*8192 + (16*s + 4*q)*128 for q in range(2)]
            else:
                s = m // 2; b = m % 2
                base = cSA[rng]; imm = [sb + b*8192 + (16*s + 4*q)*64 for q in range(2)]
        else:
            i, r2 = divmod(phi - NF1, 8); s, cb = divmod(r2, 2)
            so = W2SLOT[i % 4]
            base = cB2[cb] if so < 0x10000 else cB2H[cb]
            imm = [(so % 0x10000) + (16*s + 8*q)*128 for q in range(2)]
        a.lg(f"ds_read_b64_tr_b16 v[{r}:{r+1}], {base} offset:{imm[0]}")
        self.ftok[phi] = a.lg(f"ds_read_b64_tr_b16 v[{r+2}:{r+3}], {base} offset:{imm[1]}")
    def x_read(self, c, s):
        r = (c*4 + s)*4
        self.xrtok[c] = self.a.lg(f"ds_read_b128 a[{r}:{r+3}], {cXA[s]} offset:{(c % 3)*16384}")

    def c_run(self, f0, f1, ex, fend):
        a = self.a
        for f in range(f0, f1):
            inf = self.finfo(f)
            self.stamp(f"f{f}")
            ph = inf["phi"]
            nxt = ph + 1
            a.wait(lg=self.ftok[nxt] if (nxt in self.ftok and f % 2 == 0 and f < NF1) else self.ftok[ph])
            if f < 128 and f % 16 == 0: a.wait(lg=self.xrtok[f // 16])
            if f >= NF1 and inf["m"] == 0:
                self.stamp(f"hw{inf['chunk']}_in"); a.wait(vm=self.htok[inf["chunk"]]); self.stamp(f"hw{inf['chunk']}_out")
            r = RING + 4*(ph % NFR)
            acc = f"v[{inf['acc']}:{inf['acc']+15}]"
            a(f"v_mfma_f32_32x32x16_bf16 {acc}, v[{r}:{r+3}], a[{inf['b']}:{inf['b']+3}], {'0' if inf['first'] else acc}")
            for fn in ex.get(f, []): fn()
            fu = f + LOOK
            if fu < fend:
                p = self.finfo(fu)["phi"]
                if self.phi_first_use(p) == fu: self.frag_read(p)
    def c_prime(self, f0):
        for f in range(f0, f0 + LOOK):
            p = self.finfo(f)["phi"]
            if self.phi_first_use(p) == f: self.frag_read(p)

    def aug(self, p, ntile):
        a = self.a
        toks = []
        for t in range(ntile):
            g = RING + 4*t; off = (p*128 + 32*t)*4
            a.lg(f"ds_read_b32 v{g}, {cCSA} offset:{off}")
            toks.append(a.lg(f"ds_read_b32 v{g+1}, {cCSA} offset:{off}"))
            a(f"v_mov_b32 v{g+2}, 0"); a(f"v_mov_b32 v{g+3}, 0")
        for t in range(ntile):
            g = RING + 4*t; A = ACC + 16*t
            a.wait(lg=toks[t])
            a(f"v_mfma_f32_32x32x16_bf16 v[{A}:{A+15}], v[{g}:{g+3}], v[{BAUG}:{BAUG+3}], v[{A}:{A+15}]")
    def hbase_q(self, q):
        a = self.a
        a(f"s_mul_i32 s7, {sR}, 36"); a(f"s_add_u32 s7, s7, {q}")
        a("s_lshl_b32 s7, s7, 2"); a(f"s_add_u32 s7, s7, {sW}")
        a("s_lshl_b32 s7, s7, 12"); a(f"s_add_u32 {sHB}, s7, {WS_H}")
    def ffn_block(self, tg, tu, dst):
        a = self.a
        for k in range(16): a(f"v_max_f32 v{tg+k}, 0, v{tg+k}")
        for k in range(0, 16, 2): a(f"v_pk_mul_f32 v[{tg+k}:{tg+k+1}], v[{tg+k}:{tg+k+1}], v[{tu+k}:{tu+k+1}]")
        for k in range(8): a(f"v_cvt_pk_bf16_f32 v{dst+k}, v{tg+2*k}, v{tg+2*k+1}")
    def epi_ffn(self, p):
        a = self.a
        self.aug(p, 4)
        a(f"s_lshl_b32 s6, {sM}, 1"); a(f"s_add_u32 s6, s6, {8 if p == 0 else 9}")
        if p == 1: a(f"s_cmp_eq_u32 {sPAR}, 0"); a(f"s_cselect_b32 s6, {sM}, s6")
        self.hbase_q("s6")
        for cb in range(2):
            d = 32 + 8*cb
            self.ffn_block(ACC + 16*cb, ACC + 32 + 16*cb, d)
            for h in range(2):
                a.vm(f"buffer_store_dwordx4 v[{d+4*h}:{d+4*h+3}], {vL16}, {srd(S_WS)}, {sHB} offen offset:{(2*cb+h)*1024} sc1")
    def epi_side(self):
        a = self.a
        self.aug(2, 2)
        a(f"s_lshr_b32 s6, {sM}, 1"); a("s_add_u32 s6, s6, 24"); self.hbase_q("s6")
        a(f"s_and_b32 s6, {sM}, 1"); a("s_lshl_b32 s6, s6, 11"); a(f"s_add_u32 {sHB}, {sHB}, s6")
        self.ffn_block(ACC, ACC + 16, 32)
        for h in range(2):
            a.vm(f"buffer_store_dwordx4 v[{32+4*h}:{32+4*h+3}], {vL16}, {srd(S_WS)}, {sHB} offen offset:{h*1024} sc1")
    def phi_tile(self, T):
        a = self.a
        for h in range(2):
            B = T + 8*h
            for k in range(8): a(f"v_mul_f32 v{TMP+k}, {cRL}, v{B+k}")
            for k in range(8): a(f"v_exp_f32 v{TMP+k}, v{TMP+k} clamp")
            for k in range(8): a(f"v_fma_f32 v{B+k}, v{B+k}, {cRSTD}, s72")
            for k in range(8): a(f"v_max_f32 v{B+k}, s72, v{B+k}")
            for k in range(0, 8, 2): a(f"v_pk_add_f32 v[{B+k}:{B+k+1}], v[{B+k}:{B+k+1}], v[{TMP+k}:{TMP+k+1}]")
    def epi_kv(self):
        a = self.a
        self.aug(0, 4)
        a(f"v_and_b32 v32, 31, {vLANE}"); a(f"s_lshl_b32 s6, {sW}, 5"); a("v_add_u32 v32, s6, v32")
        a(f"s_movk_i32 s7, {KVP}"); a("v_mul_lo_u32 v32, v32, s7")
        a(f"v_lshrrev_b32 v33, 1, {cG16}"); a("v_add_u32 v32, v32, v33"); a(f"v_add_u32 v32, {L_KVS}, v32")
        a(f"v_mov_b32 v34, {cRSTD}"); a(f"v_mov_b32 v35, {cRSTD}")
        for t in range(4):
            T = ACC + 16*t
            if t < 2: self.phi_tile(T)
            else:
                for k in range(0, 16, 2): a(f"v_pk_mul_f32 v[{T+k}:{T+k+1}], v[{T+k}:{T+k+1}], v[34:35]")
            for g4 in range(4):
                d = 36 + 2*g4
                a(f"v_cvt_pk_bf16_f32 v{d}, v{T+4*g4}, v{T+4*g4+1}"); a(f"v_cvt_pk_bf16_f32 v{d+1}, v{T+4*g4+2}, v{T+4*g4+3}")
            for g4 in range(4):
                d = 36 + 2*g4
                off = (t // 2)*128*KVP + (32*(t % 2) + 8*g4)*2
                a.lg(f"ds_write_b64 v32, v[{d}:{d+1}] offset:{off}")
    def epi_q(self):
        a = self.a
        self.aug(2, 2)
        a(f"s_add_u32 s6, {sM}, 28"); self.hbase_q("s6")
        toks = []
        a(f"v_add_u32 v44, {L_KVZ}, {vL16}")
        for h in range(4): toks.append(a.lg(f"ds_read_b128 v[{16+4*h}:{16+4*h+3}], v44 offset:{h*1024}"))
        for t in range(2):
            T = ACC + 16*t
            self.phi_tile(T)
            for k in range(8): a(f"v_cvt_pk_bf16_f32 v{32+8*t+k}, v{T+2*k}, v{T+2*k+1}") if t == 0 else a(f"v_cvt_pk_bf16_f32 v{TMP+k}, v{T+2*k}, v{T+2*k+1}")
        PQ = [32, 36, TMP, TMP + 4]
        a(f"v_mul_f32 v45, {cRSTD}, {cRSTD}")
        a.wait(lg=toks[-1])
        for h in range(4):
            d = ACC + 16*h
            a(f"v_mfma_f32_32x32x16_bf16 v[{d}:{d+15}], v[{16+4*h}:{16+4*h+3}], v[{PQ[h]}:{PQ[h]+3}], 0")
        for h in range(4):
            d = ACC + 16*h
            a(f"v_add_f32 v{d+8}, s72, v{d+8}"); a(f"v_mul_f32 v{d+8}, v{d+8}, v45"); a(f"v_rcp_f32 v{d+8}, v{d+8}")
            a(f"v_mov_b32 v{d+9}, v{d+8}")
            for k in range(0, 8, 2): a(f"v_pk_mul_f32 v[{d+k}:{d+k+1}], v[{d+k}:{d+k+1}], v[{d+8}:{d+9}]")
            for k in range(4): a(f"v_cvt_pk_bf16_f32 v{16+4*h+k}, v{d+2*k}, v{d+2*k+1}")
            a.vm(f"buffer_store_dwordx4 v[{16+4*h}:{16+4*h+3}], {vL16}, {srd(S_WS)}, {sHB} offen offset:{h*1024} sc1")
    def branch2(self, even, odd):
        a = self.a
        lo = a.newlabel("Lo"); lj = a.newlabel("Lj")
        a(f"s_cmp_eq_u32 {sPAR}, 0"); a(f"s_cbranch_scc0 {lo}")
        st = (a.vm_issued, a.lg_issued, a.vm_floor, a.lg_floor)
        even(); sa = (a.vm_issued, a.lg_issued)
        a(f"s_branch {lj}"); a.label(lo)
        a.vm_issued, a.lg_issued, a.vm_floor, a.lg_floor = st
        odd(); sb = (a.vm_issued, a.lg_issued)
        a.label(lj)
        a.vm_issued = min(sa[0], sb[0]); a.lg_issued = min(sa[1], sb[1])
        a.vm_floor = min(a.vm_floor, st[2]) if False else st[2]; a.lg_floor = st[3]
    def h_load(self, i):
        a = self.a
        parts = []
        def head():
            self.qget(i, "s6"); a("s_add_u32 s6, s6, s76"); a("s_lshl_b32 s6, s6, 14"); a("s_add_u32 s78, s6, s77"); a("s_add_u32 s79, s78, 4096")
        for rf in range(2):
            for s in range(4):
                def p(rf=rf, s=s):
                    if rf == 0 and s == 0: head()
                    r = (i % 3)*32 + rf*16 + s*4
                    self.htok[i] = a.vm(f"buffer_load_dwordx4 a[{r}:{r+3}], {vL16}, {srd(S_WS)}, {'s78' if rf == 0 else 's79'} offen offset:{s*1024} sc1")
                parts.append(p)
        return parts

    def compute(self):
        a = self.a; o = self.o
        who = "c"
        self.c_setup()
        self.ftok = {}; self.xrtok = {}; self.htok = {}
        ex = {}
        def at(f, fn): ex.setdefault(f, []).append(fn)
        for G in range(20):
            at(16*G + 9, lambda G=G: self.c_bar(G))
            if G < 7:
                for s in range(4): at(16*G + 11 + s, lambda G=G, s=s: self.x_read(G+1, s))
        for i, f0 in ((0, 290), (1, 303)):
            hd = {}
            def get(k, i=i, hd=hd):
                if "p" not in hd: hd["p"] = self.h_load(i)
                hd["p"][k]()
            for k in range(8): at(f0 + k + (k // 4), lambda k=k, get=get: get(k))
        self.barrier(who, "P0")
        self.stamp("go"); self.stamp("rtgo")
        for s in range(4): self.x_read(0, s)
        self.c_prime(0)
        self.c_run(0, 128, ex, 128)
        self.stamp("e1")
        if o.get("touchw2", 1):
            self.c_touch_w2()
            for k in range(4): self.c_touch_step(k)
        a(f"v_and_b32 v44, 31, {vLANE}"); a("v_lshlrev_b32 v44, 3, v44"); a(f"s_lshl_b32 s6, {sW}, 8"); a(f"s_add_u32 s6, s6, {L_STT}"); a("v_add_u32 v44, s6, v44")
        t = a.lg("ds_read_b64 v[46:47], v44")
        a.wait(lg=t)
        a(f"v_mov_b32 {cRSTD}, v47"); a(f"v_mul_f32 {cRL}, s71, v47")
        a(f"v_cvt_pk_bf16_f32 v{BAUG}, v46, v46"); a(f"v_lshlrev_b32 v45, 16, v{BAUG}"); a("v_sub_f32 v45, v46, v45")
        a(f"v_cvt_pk_bf16_f32 v{BAUG+1}, v45, v45")
        a(f"v_cmp_gt_u32 vcc, 32, {vLANE}"); a("v_mov_b32 v45, 0"); a("s_nop 0")
        a(f"v_cndmask_b32 v{BAUG}, v45, v{BAUG}, vcc"); a(f"v_cndmask_b32 v{BAUG+1}, v45, v{BAUG+1}, vcc")
        self.branch2(self.epi_kv, lambda: self.epi_ffn(0))
        a.wait_all(vm=False)
        self.stamp("e1end")
        self.c_prime(128)
        self.c_run(128, 256, ex, 256)
        self.stamp("e2")
        self.epi_ffn(1)
        self.stamp("e2end")
        self.c_prime(256)
        self.c_run(256, 320, ex, 320)
        self.barrier(who, "H0")
        a(f"v_lshrrev_b32 v56, 5, {vLANE}"); a(f"v_bfe_u32 v57, {vLANE}, 2, 2"); a(f"v_and_b32 v58, 3, {vLANE}"); a(f"v_bfe_u32 v59, {vLANE}, 4, 1")
        a("v_lshlrev_b32 v60, 5, v59"); a("v_lshl_add_u32 v60, v58, 3, v60")
        a("v_lshrrev_b32 v58, 1, v57"); a("v_lshlrev_b32 v58, 6, v58")
        a("v_lshl_add_u32 v56, v56, 2, v57"); a("v_lshlrev_b32 v56, 7, v56"); a(f"v_add_u32 v56, {sW8K}, v56")
        a("v_xor_b32 v57, v60, v58"); a(f"v_add_u32 {cB2[0]}, v56, v57")
        a("v_or_b32 v60, 64, v60"); a("v_xor_b32 v57, v60, v58"); a(f"v_add_u32 {cB2[1]}, v56, v57")
        a(f"v_add_u32 {cB2H[0]}, 0x10000, {cB2[0]}"); a(f"v_add_u32 {cB2H[1]}, 0x10000, {cB2[1]}")
        self.stamp("e3")
        self.branch2(self.epi_side, self.epi_q)
        self.stamp("e3end")
        self.e3_mark = a.vm_issued
        ex2 = {}
        def at2(f, fn): ex2.setdefault(f, []).append(fn)
        for i in range(9):
            f0 = NF1 + 16*i
            if i > 0: at2(f0 - LOOK - 1, lambda i=i: self.c_sbar(i))
            late = o.get("fl2_i", 5) == 5
            todo = []
            if i + 2 < 9 and not (late and i + 2 == 6): todo.append(i + 2)
            if late and i == 5: todo.insert(0, 6)
            for n, j in enumerate(todo):
                hd = {}
                def get(k, j=j, hd=hd):
                    if "p" not in hd: hd["p"] = self.h_load(j)
                    hd["p"][k]()
                for k in range(8): at2(f0 + (1 + k if len(todo) == 1 else (k + 8*n) * 15 // 16), lambda k=k, get=get: get(k))
        def resid():
            a(f"s_lshl_b32 s64, {sT}, 16"); a(f"s_lshl_b32 s7, {sC2}, 7"); a("s_add_u32 s64, s64, s7"); a("s_add_u32 s65, s64, 32768")
            a.vm(f"buffer_load_dwordx4 a[96:99], {cOUT}, {srd(S_X)}, s64 offen")
            a.vm(f"buffer_load_dwordx4 a[100:103], {cOUT}, {srd(S_X)}, s65 offen")
            a("v_lshrrev_b32 v56, 3, v0"); a("v_lshlrev_b32 v56, 4, v56")
            a(f"s_lshl_b32 s6, {sT}, 10"); a(f"s_add_u32 s6, s6, {WS_STAT + 4}")
            a.vm(f"buffer_load_dword v50, v56, {srd(S_WS)}, s6 offen sc1")
            self.xrtk = a.vm(f"buffer_load_dword v51, v56, {srd(S_WS)}, s6 offen offset:512 sc1")
        at2(NF1 + 16*7 + 2, resid)
        self.c_sbar(0)
        self.c_prime(NF1)
        self.c_run(NF1, NF, ex2, NF)
        self.final()

    def c_bar(self, G):
        a = self.a; o = self.o
        if G == o.get("pub0_G", 9) or G == o.get("pub1_G", 17): a.wait_all(lg=False)
        if G == 8: a.wait_all(vm=False)
        self.barrier("c", f"B{G}")
    def c_kv_read(self):
        a = self.a
        a(f"s_mul_i32 s6, {sW}, 1280"); a(f"s_add_u32 s6, s6, {L_KVO}"); a(f"v_lshlrev_b32 v{TMP}, 2, {vLANE}"); a(f"v_add_u32 v{TMP}, s6, v{TMP}")
        for v in range(5): self.kvrt = a.lg(f"ds_read_b32 v{TMP+1+v}, v{TMP} offset:{v*256}")
    def c_kv_atomics(self):
        a = self.a
        a(f"v_lshrrev_b32 v{TMP}, 4, {vLANE}"); a(f"v_lshlrev_b32 v{TMP}, 8, v{TMP}")
        a(f"v_and_b32 v{TMP+6}, 15, {vLANE}"); a(f"v_lshl_add_u32 v{TMP}, v{TMP+6}, 2, v{TMP}")
        a(f"v_lshlrev_b32 v{TMP+6}, 2, v{TMP+6}")
        a(f"v_cmp_gt_u32 vcc, 16, {vLANE}"); a(f"v_mov_b32 v{TMP+7}, {OOB}")
        a(f"s_lshl_b32 s64, {sCG}, 13"); a(f"s_mul_i32 s65, {sW}, {KVH}"); a("s_add_u32 s64, s64, s65"); a(f"s_add_u32 s64, s64, {WS_ACC + ACC_KV}")
        a(f"v_cndmask_b32 v{TMP+6}, v{TMP+7}, v{TMP+6}, vcc")
        a(f"s_cmp_eq_u32 {sPAR}, 0"); a("s_cselect_b64 vcc, -1, 0")
        a(f"v_cndmask_b32 v{TMP}, v{TMP+7}, v{TMP}, vcc"); a(f"v_cndmask_b32 v{TMP+6}, v{TMP+7}, v{TMP+6}, vcc")
        a.wait(lg=self.kvrt)
        for v in range(4): a.vm(f"buffer_atomic_add_f32 v{TMP+1+v}, v{TMP}, {srd(S_WS)}, s64 offen offset:{v*64} sc1")
        a.vm(f"buffer_atomic_add_f32 v{TMP+5}, v{TMP+6}, {srd(S_WS)}, s64 offen offset:1024 sc1")

    def c_touch_w2(self):
        a = self.a
        a(f"s_lshr_b32 s6, {sJ}, 2"); a("s_mul_i32 s6, s6, 288"); a(f"s_mul_i32 s7, {sW}, 72"); a("s_add_u32 s6, s6, s7")
        a(f"v_add_u32 v{TMP}, s6, {vLANE}"); a(f"v_lshlrev_b32 v{TMP}, 10, v{TMP}")
        a(f"s_lshl_b32 s6, {sC2}, 7")
        a(f"v_add_u32 v{TMP+1}, {64*1024}, v{TMP}")
        a(f"v_cmp_gt_u32 vcc, 8, {vLANE}"); a(f"v_mov_b32 v{TMP+2}, {OOB}"); a("s_nop 0")
        a(f"v_cndmask_b32 v{TMP+1}, v{TMP+2}, v{TMP+1}, vcc")
        a(f"s_mov_b32 s65, s6")
    def c_touch_step(self, k):
        a = self.a
        r = TMP + (k // 2)
        if k % 2 == 0: a.vm(f"buffer_load_dword v50, v{r}, {srd(S_WD)}, s65 offen")
        else:
            a(f"v_subrev_u32 v{TMP+4}, {1792*1024}, v{r}")
            a.vm(f"buffer_load_dword v50, v{TMP+4}, {srd(S_WO)}, s65 offen")

    def c_sbar(self, i):
        a = self.a; o = self.o
        if i == o.get("pub2_i", 1):
            a(f"s_waitcnt vmcnt({min(63, self.younger_than_e3())})")
        self.barrier("c", f"S{i}")
    def younger_than_e3(self):
        return self.a.vm_issued - self.e3_mark

    def final(self):
        a = self.a
        self.stamp("loopend")
        a(f"v_and_b32 v56, 31, {vLANE}"); a("s_movk_i32 s7, 272"); a("v_mul_lo_u32 v56, v56, s7")
        a(f"v_add_u32 v56, v56, {cG16}"); a(f"s_mul_i32 s6, {sW}, 17408"); a("v_add_u32 v56, s6, v56")
        for cb in range(2):
            for rf in range(2):
                for t in range(4):
                    r = ACC + (cb*2+rf)*16 + 4*t
                    a.lg(f"ds_write_b128 v56, v[{r}:{r+3}] offset:{rf*8704 + cb*128 + t*32}")
        a("v_lshrrev_b32 v57, 3, v0"); a("v_mul_lo_u32 v57, v57, s7")
        a("v_and_b32 v58, 7, v0"); a("v_lshl_add_u32 v57, v58, 5, v57")
        a.wait_all(vm=False)
        a("s_barrier")
        toks = {}
        for it in range(2):
            for p in range(4):
                for hh in range(2):
                    r = 64 + it*32 + p*8 + hh*4
                    toks[it] = a.lg(f"ds_read_b128 v[{r}:{r+3}], v57 offset:{p*17408 + it*8704 + hh*16}")
        a.wait(vm=self.xrtk)
        for k in range(8): a(f"v_accvgpr_read_b32 v{16+k}, a{96+k}")
        for it in range(2):
            a.wait(lg=toks[it])
            b = 64 + it*32; x = 16 + 4*it
            for k in range(0, 8, 2):
                a(f"v_pk_add_f32 v[{b+k}:{b+k+1}], v[{b+k}:{b+k+1}], v[{b+8+k}:{b+8+k+1}]")
                a(f"v_pk_add_f32 v[{b+16+k}:{b+16+k+1}], v[{b+16+k}:{b+16+k+1}], v[{b+24+k}:{b+24+k+1}]")
            a(f"v_mul_f32 v58, v{50+it}, v{50+it}")
            for k in range(0, 8, 2): a(f"v_pk_add_f32 v[{b+k}:{b+k+1}], v[{b+k}:{b+k+1}], v[{b+16+k}:{b+16+k+1}]")
            for k in range(4):
                a(f"v_lshlrev_b32 v59, 16, v{x+k}"); a(f"v_and_b32 v60, 0xffff0000, v{x+k}")
                a(f"v_fma_f32 v{b+2*k}, v{b+2*k}, v58, v59"); a(f"v_fma_f32 v{b+2*k+1}, v{b+2*k+1}, v58, v60")
            for k in range(4): a(f"v_cvt_pk_bf16_f32 v{24+4*it+k}, v{b+2*k}, v{b+2*k+1}")
            a.vm(f"buffer_store_dwordx4 v[{24+4*it}:{24+4*it+3}], {cOUT}, {srd(S_OUT)}, {'s64' if it == 0 else 's65'} offen")
        self.stamp("end"); self.stamp("rtend")
        if self.o.get("dbgtime"):
            a.wait_all()
            a("s_memtime s[88:89]"); a("s_memrealtime s[90:91]"); a("s_waitcnt lgkmcnt(0)")
            a("s_sub_u32 s88, s88, s84"); a("s_sub_u32 s90, s90, s86")
            a("s_mov_b32 s96, s92"); a("s_mov_b32 s97, s93"); a("s_mov_b32 s98, 256"); a("s_mov_b32 s99, 0x00020000")
            a("s_mov_b32 s6, 64")
            a("s_cmp_eq_u32 s2, 0"); a("s_cselect_b32 s6, 0, s6")
            a("s_cmp_eq_u32 s2, 100"); a("s_cselect_b32 s6, 16, s6")
            a("s_cmp_eq_u32 s2, 255"); a("s_cselect_b32 s6, 32, s6")
            a("s_cmp_eq_u32 s6, 64"); a(f"s_cselect_b32 s6, {OOB}, s6")
            a("v_mov_b32 v40, s88"); a("v_mov_b32 v41, s90"); a("v_mov_b32 v42, s86"); a("v_mov_b32 v43, s90")
            a("v_add_u32 v43, s86, v43")
            a(f"v_mov_b32 v44, {OOB}"); a("v_mov_b32 v45, s6"); a("v_cmp_eq_u32 vcc, 0, v0"); a("s_nop 1"); a("v_cndmask_b32 v44, v44, v45, vcc")
            a.vm("buffer_store_dwordx4 v[40:43], v44, s[96:99], 0 offen")
        self.prof_out(0)
        a("s_endpgm")

    def prof_out(self, woff):
        if self.prof is None: return
        a = self.a
        a.wait_all()
        a(f"s_lshl_b32 s6, s2, 3"); a(f"s_add_u32 s6, s6, {sW}"); a(f"s_add_u32 s6, s6, {woff}"); a("s_lshl_b32 s6, s6, 7"); a(f"s_add_u32 s6, s6, {WS_PROF}")
        a(f"v_cmp_eq_u32 vcc, 0, {vLANE}"); a(f"v_mov_b32 v40, {OOB}"); a("v_mov_b32 v41, 0"); a("v_cndmask_b32 v40, v40, v41, vcc")
        for i in range(len(self.prof)):
            a(f"v_mov_b32 v42, s{84+2*i}"); a(f"v_mov_b32 v43, s{85+2*i}")
            a.vm(f"buffer_store_dwordx2 v[42:43], v40, {srd(S_WS)}, s6 offen offset:{i*8}")
            a("s_nop 1")

    def build(self):
        a = self.a
        self.bars = {}
        self.prologue()
        prot = set(a.protect)
        self.sfx = "_c"
        self.h_setup()
        st = (a.vm_issued, a.lg_issued, a.vm_floor, a.lg_floor)
        saved = (dict(self.xtok), dict(self.wtok)); m0s = (self.m0_owner, self.m0_val)
        a(f"s_cmp_eq_u32 {sPAR}, 0"); a("s_cbranch_scc0 Lhodd")
        self.helper(0)
        a.label("Lhodd")
        a.vm_issued, a.lg_issued, a.vm_floor, a.lg_floor = st
        self.xtok, self.wtok = dict(saved[0]), dict(saved[1]); self.m0_owner, self.m0_val = m0s; self.open_item = {}
        self.helper(1)
        a.label("Lcompute")
        a.vm_issued = a.lg_issued = a.vm_floor = a.lg_floor = 0
        a.protect = prot
        self.compute()
        a.label("Lend")
        a("s_endpgm")
        assert self.bars["c"] == self.bars["h0"] == self.bars["h1"], (self.bars["c"], self.bars["h0"])
        L = self.log
        print("schedule:", {str(k): v for k, v in sorted(L.items(), key=str)}, file=sys.stderr)
        for c in (0, 1):
            assert L[(1, "pub", 0)] < L[(c, "chk", 0)]
            for ph in (1, 2):
                for p in (0, 1): assert L[(p, "pub", ph)] < L[(c, "chk", ph)], ("order", ph, p, c)
            for d in (0, 1):
                assert L[f"cs_pubA_{c}"] < L[f"cs_chkA_{d}"] and L[f"cs_pubB_{c}"] < L[f"cs_chkB_{d}"] and L[f"st_pub_{c}"] < L[f"st_chk_{d}"]
        assert L[(0, "kvcnt")] < L[(1, "kvchk")]
        for e in self.slow: e()
        a.label("Lcode_end")
        a.finalize()
        return a.text()

HEADER = """; Kernarg layout for this problem (80 bytes, ptrs only, base s[0:1]):
; @launch grid=(256,1,1) block=(512,1,1) lds=%d
.amdgcn_target "amdgcn-amd-amdhsa--gfx950"
.text
.globl %s
.p2align 8
.type %s,@function
%s:
"""
FOOTER = """
.section .rodata,"a"
.p2align 6
.amdhsa_kernel %s
  .amdhsa_next_free_vgpr 256
  .amdhsa_next_free_sgpr 102
  .amdhsa_accum_offset 128
  .amdhsa_group_segment_fixed_size 0
  .amdhsa_kernarg_size 80
  .amdhsa_user_sgpr_count 2
  .amdhsa_user_sgpr_kernarg_segment_ptr 1
  .amdhsa_system_sgpr_workgroup_id_x 1
.end_amdhsa_kernel
"""
BLOCK = 512
def generate(prof=None, opts=None):
    g = Gen(prof=prof, opts=opts)
    body = g.build()
    return HEADER % (LDS_BYTES, KNAME, KNAME, KNAME) + body + "\n" + FOOTER % KNAME

if __name__ == "__main__":
    prof = None; opts = {}; out = None
    for x in sys.argv[1:]:
        if x.startswith("--prof="): prof = x[7:].split(",")
        elif x.startswith("--opt="):
            for kv in x[6:].split(","):
                k, v = kv.split("="); opts[k] = int(v)
        else: out = x
    txt = generate(prof, opts)
    path = out or "parallel_sum__linear_attn_block__glu_gated_reglu__prompt.s"
    open(path, "w").write(txt)
    print("wrote", path, len(txt), "bytes")
```

```python
import sys, os
sys.path.insert(0, os.path.dirname(os.path.abspath(__file__)))
from asmlib import Asm

KNAME = "parallel_sum__linear_attn_block__glu_gated_reglu__prompt_kernel"

WS_EPOCH = 0x0
WS_ZF    = 0x1000
WS_HF    = 0x2000
WS_STAT  = 0x10000
WS_ACC   = 0x20000
ACC_CNT_KV = 1408
ACC_KV     = 2048
KVH, KVR = 1088, 64
WS_CSP   = 0x40000
WS_CSPA  = 0xC0000
WS_H     = 0x100000
WS_KVP   = 0xA00000
WS_KVZP  = 0xA80000
WS_KVF   = 0xA90000
WS_PROF  = 0xF00000
OOB      = 0x7FFFFFF0

NW = 5
L_X    = 0x14000
L_CA   = 0x20000
L_KVS  = 0x14000
KVP    = 136
L_CST  = 0x24800
L_STT  = 0x24E00
L_KVZ  = 0x25400
L_KVO  = 0x26400
W2SLOT = [0x14000, 0x0, 0x8000, 0x1C000]
LDS_BYTES = 0x28000

LOOK = 6
NFR  = 8
NF1  = 320
NF   = NF1 + 144

S_X, S_WS, S_OUT, S_U1, S_U2, S_U3, S_WD, S_WO = 8, 12, 16, 20, 24, 28, 32, 36
def srd(b): return f"s[{b}:{b+3}]"
sC1B, sC2B, sP1, sP3, sC3B, sJ = "s40", "s41", "s42", "s43", "s44", "s45"
sW, sR, sCG, sM, sPAR, sWLDS = "s46", "s47", "s48", "s49", "s50", "s51"
sU1b, sU1c64, sU2b, sU3c64 = "s52", "s53", "s54", "s55"
sXB, sW8K = "s56", "s57"
sTAGL, sTAGH = "s60", "s61"
sACC = "s62"
sROT = "s4"
sQA, sQB, sQC = "s5", "s3", "s63"
sT, sC2, sR2, sHALF = "s80", "s81", "s82", "s83"
sHB = "s70"
vLANE, vL16 = "v1", "v2"

cWA = [["v3", "v4"], ["v5", "v6"]]
cSA = ["v7", "v8"]
cXA = ["v9", "v10", "v11", "v12"]
cB2 = ["v9", "v10"]; cB2H = ["v11", "v12"]
cRSTD, cRL, cG16, cCSA = "v13", "v14", "v15", "v48"
RING = 16
BAUG = 52
cOUT = "v49"
TMP = 56
ACC = 64
hSA = "v3"
vU1 = [4, 5, 6, 7]; vU2 = [8, 9, 10, 11]; vU3 = [12, 13, 14, 15]; vX = [16, 17, 18, 19]; vW2 = [20, 21, 22, 23]
hG16, hCSA, hL0, vPOLL, vDUM = "v24", "v25", "v26", "v27", "v28"
TAG = 30
vTAGL, vTAGH = "v30", "v31"
FLD = 32

class Task:
    def __init__(self, g, wake, name):
        self.g = g; self.wake = wake; self.done = False; self.name = name

class Gen:
    def __init__(self, prof=None, opts=None):
        self.a = Asm()
        self.slow = []
        self.prof = prof
        self.tasks = []
        self.log = {}
        self.o = dict(codepf=1, hbudget=3)
        if opts: self.o.update(opts)
        self.nbar = {"c": 0, "h0": 0, "h1": 0}
        self.m0_owner = None; self.m0_val = None; self.open_item = {}

    def stamp(self, name):
        if self.prof is None or name not in self.prof: return
        i = self.prof.index(name)
        assert i < 9
        op = "s_memrealtime" if name.startswith("rt") else "s_memtime"
        self.a(f"{op} s[{84+2*i}:{85+2*i}]")
    def spawn(self, g, wake, name, front=False):
        t = Task(g, wake, name)
        if front: self.tasks.insert(0, t)
        else: self.tasks.append(t)
        return t
    def step(self, t):
        try: r = next(t.g)
        except StopIteration:
            t.done = True; return
        if r is not None: t.wake = r
    def pump(self, f, start, budget):
        a = self.a
        while len(a.lines) - start < budget:
            t = next((t for t in self.tasks if not t.done and t.wake <= f), None)
            if t is None: break
            self.step(t)
        self.tasks = [t for t in self.tasks if not t.done]
    def finish(self, name):
        cap = getattr(self, "int_cap", 0); self.int_cap = 10**9
        for t in list(self.tasks):
            if t.name == name:
                while not t.done: self.step(t)
        self.int_cap = cap
        self.tasks = [t for t in self.tasks if not t.done]
    def active(self, name): return any(t.name == name and not t.done for t in self.tasks)
    def barrier(self, who, name):
        self.bars.setdefault(who, []).append(name)
        self.stamp(f"{who[0]}{name}_in")
        self.a("s_barrier")
        self.stamp(f"{who[0]}{name}_out")

    def poll_check(self, tok, cmp_lines, reissue, name="x"):
        a = self.a
        slow = a.newlabel("Lslow"); back = a.newlabel("Lback")
        self.stamp(name + "_in")
        a.wait(vm=tok)
        a(cmp_lines)
        a("s_cmp_eq_u64 vcc, -1")
        a(f"s_cbranch_scc0 {slow}")
        a.label(back)
        self.stamp(name + "_out")
        def emit():
            loop = a.newlabel("Lspin")
            a.label(slow)
            a("s_mov_b32 s66, 0x4000")
            a.label(loop)
            a("s_sleep 1")
            a(reissue)
            a("s_waitcnt vmcnt(0)")
            a(cmp_lines)
            a("s_cmp_eq_u64 vcc, -1")
            a(f"s_cbranch_scc1 {back}")
            a("s_sub_u32 s66, s66, 1")
            a("s_cmp_lg_u32 s66, 0")
            a(f"s_cbranch_scc1 {loop}")
            a(f"s_branch {back}")
        self.slow.append(emit)
    def tagcmp(self, d):
        return (f"v_cmp_eq_u32 vcc, v{d}, {vTAGL}\n"
                f"v_cmp_eq_u32 s[64:65], v{d+1}, {vTAGH}\n"
                f"s_and_b64 vcc, vcc, s[64:65]")
    def reset_track(self):
        a = self.a
        a.vm_floor = a.vm_issued; a.lg_floor = a.lg_issued

    def prologue(self):
        a = self.a
        a("s_cmp_ge_u32 s2, 256")
        a("s_cbranch_scc1 Lend")
        a(f"s_load_dwordx2 s[{S_X}:{S_X+1}], s[0:1], 0")
        a("s_load_dwordx2 s[64:65], s[0:1], 8")
        a("s_load_dwordx4 s[68:71], s[0:1], 32")
        a(f"s_load_dwordx2 s[{S_WS}:{S_WS+1}], s[0:1], 72")
        a(f"s_load_dwordx2 s[{S_WD}:{S_WD+1}], s[0:1], 48")
        a(f"s_load_dwordx2 s[{S_WO}:{S_WO+1}], s[0:1], 16")
        a(f"s_load_dwordx2 s[{S_OUT}:{S_OUT+1}], s[0:1], 56")
        a.protect = {("s", i) for i in (64, 65, 68, 69, 70, 71)}
        self.stamp("start"); self.stamp("rtstart")
        if self.o.get("dbgtime"):
            a("s_memtime s[84:85]"); a("s_memrealtime s[86:87]"); a("s_load_dwordx2 s[92:93], s[0:1], 64")
        for b, size in ((S_X, 2097152), (S_WS, 0x10000000), (S_OUT, 2097152), (S_WD, 1792*1024), (S_WO, 524288), (S_U2, 512*3584)):
            a(f"s_mov_b32 s{b+2}, {size}"); a(f"s_mov_b32 s{b+3}, 0x00020000")
        a(f"s_mov_b32 s{S_U1+3}, 0x00020000"); a(f"s_mov_b32 s{S_U3+3}, 0x00020000")
        a(f"v_and_b32 {vLANE}, 63, v0")
        a("v_lshrrev_b32 v32, 6, v0")
        a(f"v_lshlrev_b32 {vL16}, 4, {vLANE}")
        a("v_readfirstlane_b32 s72, v32")
        a(f"s_and_b32 {sW}, s72, 3")
        a("s_and_b32 s3, s2, 7")
        a(f"s_lshr_b32 {sJ}, s2, 3")
        a("s_lshr_b32 s7, s3, 2"); a(f"s_lshl_b32 {sR}, s7, 3")
        a(f"s_lshr_b32 s7, {sJ}, 2"); a(f"s_add_u32 {sR}, {sR}, s7")
        a("s_and_b32 s7, s3, 3"); a(f"s_lshl_b32 {sCG}, s7, 2")
        a(f"s_and_b32 s7, {sJ}, 3"); a(f"s_add_u32 {sCG}, {sCG}, s7")
        a(f"s_lshr_b32 {sM}, {sCG}, 1"); a(f"s_and_b32 {sPAR}, {sCG}, 1")
        a(f"s_bfe_u32 {sHALF}, s3, {(1 << 16) | 1}"); a(f"s_lshl_b32 {sT}, {sR}, 1"); a(f"s_add_u32 {sT}, {sT}, {sHALF}")
        a(f"s_and_b32 {sC2}, s3, 1"); a(f"s_lshl_b32 {sC2}, {sC2}, 2"); a(f"s_and_b32 s7, {sJ}, 3"); a(f"s_add_u32 {sC2}, {sC2}, s7")
        a(f"s_mov_b32 {sR2}, {sR}")
        a(f"s_lshl_b32 {sWLDS}, {sW}, 12"); a(f"s_lshl_b32 {sW8K}, {sW}, 13")
        a("s_cmp_lt_u32 s72, 4")
        a("s_cbranch_scc1 Lcompute")

    def h_setup(self):
        a = self.a
        self.xtok = {}; self.wtok = {}
        a(f"s_add_u32 s6, {sCG}, {sR}"); a(f"s_and_b32 {sROT}, s6, 3")
        a(f"s_lshl_b32 s6, {sR}, 7"); a(f"s_lshl_b32 s7, {sW}, 5"); a("s_add_u32 s6, s6, s7")
        a(f"s_lshl_b32 {sXB}, s6, 10")
        a(f"v_lshrrev_b32 v44, 3, {vLANE}"); a(f"v_and_b32 v45, 7, {vLANE}")
        a(f"v_lshrrev_b32 v47, 4, {vLANE}"); a("v_xor_b32 v47, v45, v47"); a("v_lshlrev_b32 v47, 4, v47")
        a(f"v_lshl_add_u32 v{vX[0]}, v44, 10, v47")
        a(f"v_xor_b32 v47, 64, v{vX[0]}")
        a(f"v_add_u32 v{vX[1]}, {7*1024}, v47"); a(f"v_add_u32 v{vX[2]}, {14*1024}, v{vX[0]}"); a(f"v_add_u32 v{vX[3]}, {21*1024}, v47")
        a(f"s_cmp_eq_u32 {sPAR}, 0")
        a("s_movk_i32 s6, 3072"); a("s_movk_i32 s7, 3584")
        a(f"s_cselect_b32 {sP1}, s6, s7"); a(f"s_cselect_b32 {sP3}, s7, s6")
        a(f"s_mov_b32 s6, {512*3072}"); a(f"s_mov_b32 s7, {512*3584}")
        a(f"s_cselect_b32 s{S_U1+2}, s6, s7"); a(f"s_cselect_b32 s{S_U3+2}, s7, s6")
        a(f"v_bfe_u32 v43, {vLANE}, 4, 1")
        a("v_lshlrev_b32 v46, 2, v43"); a("v_xor_b32 v46, v45, v46"); a("v_lshlrev_b32 v46, 4, v46")
        a(f"v_mul_lo_u32 v47, v44, {sP1}"); a(f"v_add_u32 v{vU1[0]}, v47, v46")
        a(f"s_lshl_b32 s6, {sP1}, 3"); a("s_sub_u32 s6, s6, 1024")
        for i in range(1, 4): a(f"v_add_u32 v{vU1[i]}, s6, v{vU1[i-1]}")
        a(f"s_lshr_b32 s72, {sW}, 1")
        a("s_lshl_b32 s73, s72, 10"); a("s_add_u32 s73, s73, 1024")
        a(f"s_lshl_b32 s7, {sM}, 7"); a("s_add_u32 s73, s73, s7")
        a(f"s_lshl_b32 s6, {sM}, 8"); a("s_add_u32 s6, s6, 1024")
        a(f"s_cmp_eq_u32 {sPAR}, 0"); a(f"s_cselect_b32 {sC1B}, s73, s6")
        a(f"s_and_b32 s73, {sW}, 1")
        a(f"s_lshl_b32 {sU1c64}, {sP1}, 6")
        a(f"s_mul_i32 s6, s73, {sP1}"); a("s_lshl_b32 s7, s6, 5"); a(f"s_add_u32 {sU1b}, {sC1B}, s7")
        a("s_waitcnt lgkmcnt(0)")
        self.stamp("kargs")
        self.dma_x(0)
        a(f"s_cmp_lt_u32 {sW}, 2")
        a(f"s_cselect_b32 s{S_U2}, s68, s70"); a(f"s_cselect_b32 s{S_U2+1}, s69, s71")
        a(f"s_cmp_eq_u32 {sPAR}, 0")
        a(f"s_cselect_b32 s{S_U1}, s64, s{S_U2}"); a(f"s_cselect_b32 s{S_U1+1}, s65, s{S_U2+1}")
        a(f"s_cselect_b32 s{S_U3}, s{S_U2}, s64"); a(f"s_cselect_b32 s{S_U3+1}, s{S_U2+1}, s65")
        a.protect = set()
        self.dma_w(0); self.dma_x(1); self.dma_w(1)
        a(f"s_load_dwordx2 s[60:61], s[{S_WS}:{S_WS+1}], 0")
        a(f"v_lshrrev_b32 v40, 5, {vLANE}"); a(f"v_bfe_u32 v41, {vLANE}, 2, 2"); a(f"v_and_b32 v42, 3, {vLANE}")
        a(f"s_lshl_b32 s7, {sM}, 7"); a(f"s_lshl_b32 s6, {sM}, 8"); a("s_add_u32 s6, s6, 1152")
        a(f"s_cmp_eq_u32 {sPAR}, 0"); a(f"s_cselect_b32 {sC2B}, s7, s6")
        a(f"s_lshr_b32 s6, {sM}, 1"); a("s_lshl_b32 s6, s6, 7"); a("s_add_u32 s6, s6, 3072")
        a(f"s_and_b32 s73, {sM}, 1"); a("s_lshl_b32 s73, s73, 6"); a("s_add_u32 s6, s6, s73")
        a("s_lshl_b32 s73, s72, 6"); a("s_add_u32 s73, s73, s7")
        a(f"s_cmp_eq_u32 {sPAR}, 0"); a(f"s_cselect_b32 {sC3B}, s6, s73")
        a(f"s_and_b32 s72, {sW}, 1")
        if self.o.get("touch1", 0): self.touch1()
        a("v_lshlrev_b32 v47, 5, v43"); a("v_lshl_add_u32 v47, v42, 3, v47")
        a("v_lshl_add_u32 v48, v40, 3, v41"); a("v_lshlrev_b32 v48, 6, v48"); a(f"v_add_u32 {hSA}, v48, v47")
        a(f"v_lshlrev_b32 {hG16}, 4, v40")
        a("s_movk_i32 s7, 3584"); a("v_mul_lo_u32 v47, v44, s7"); a(f"v_add_u32 v{vU2[0]}, v47, v46")
        for i in range(1, 4): a(f"v_add_u32 v{vU2[i]}, {8*3584-1024}, v{vU2[i-1]}")
        a(f"s_mul_i32 s7, s72, {32*3584}"); a(f"s_add_u32 {sU2b}, {sC2B}, s7")
        a(f"v_lshrrev_b32 v49, 2, {vLANE}"); a(f"v_mul_lo_u32 v47, v49, {sP3}"); a(f"v_lshl_add_u32 v{vU3[0]}, v42, 4, v47")
        a(f"s_lshl_b32 s6, {sP3}, 4"); a("s_sub_u32 s6, s6, 1024")
        for i in range(1, 4): a(f"v_add_u32 v{vU3[i]}, s6, v{vU3[i-1]}")
        a(f"s_lshl_b32 {sU3c64}, {sP3}, 6")
        a(f"v_lshl_add_u32 v{vW2[0]}, v44, 10, v46")
        for k in range(1, 4): a(f"v_add_u32 v{vW2[k]}, {7*1024*k}, v{vW2[0]}")
        a(f"v_mul_lo_u32 v47, v49, {sP1}"); a("v_lshl_add_u32 v34, v42, 4, v47")
        a(f"s_lshl_b32 s6, {sP1}, 4"); a("s_sub_u32 s6, s6, 1024"); a("v_add_u32 v35, s6, v34")
        a("s_movk_i32 s7, 3584"); a("v_mul_lo_u32 v47, v49, s7"); a("v_lshl_add_u32 v36, v42, 4, v47"); a(f"v_add_u32 v37, {16*3584-1024}, v36")
        a(f"s_and_b32 s6, {sR}, 7"); a("s_lshl_b32 s6, s6, 6"); a(f"s_lshr_b32 s7, {sR}, 3"); a("s_lshl_b32 s7, s7, 5"); a("s_add_u32 s6, s6, s7")
        a("s_lshl_b32 s7, s72, 6")
        a(f"s_mul_i32 s73, s6, {sP1}"); a(f"s_add_u32 s73, s73, {sC1B}"); a("s_add_u32 s73, s73, s7")
        a("s_mul_i32 s74, s6, 3584"); a(f"s_add_u32 s74, s74, {sC2B}"); a("s_add_u32 s74, s74, s7")
        a(f"s_mul_i32 s75, s6, {sP3}"); a(f"s_add_u32 s75, s75, {sC3B}")
        a(f"s_lshl_b32 {sACC}, {sCG}, 13"); a(f"s_add_u32 {sACC}, {sACC}, {WS_ACC}")
        a(f"s_lshl_b32 s6, {sR}, 7"); a(f"s_lshl_b32 s7, {sCG}, 3"); a("s_add_u32 s6, s6, s7")
        a(f"s_lshl_b32 s7, {sW}, 1"); a("s_add_u32 s76, s6, s7")
        a(f"v_and_b32 {hCSA}, 31, {vLANE}"); a(f"v_lshlrev_b32 {hCSA}, 2, {hCSA}"); a(f"v_add_u32 {hCSA}, {L_CST}, {hCSA}")
        a(f"v_cmp_eq_u32 vcc, 0, {vLANE}"); a(f"v_mov_b32 {hL0}, {OOB}"); a("v_mov_b32 v47, 0"); a(f"v_cndmask_b32 {hL0}, {hL0}, v47, vcc")
        a(f"s_lshl_b32 s6, {sR}, 1"); a(f"s_lshr_b32 s7, {sW}, 1"); a("s_add_u32 s6, s6, s7"); a("s_mul_i32 s6, s6, 768")
        a(f"s_lshl_b32 s7, {sCG}, 4"); a("s_add_u32 s6, s6, s7"); a("s_lshl_b32 s7, s72, 3"); a("s_add_u32 s6, s6, s7"); a(f"s_add_u32 s77, s6, {WS_HF}")
        for _ in self.t_s2_q(): pass
        a("s_waitcnt lgkmcnt(0)")
        a(f"s_add_u32 {sTAGL}, {sTAGL}, 1"); a(f"s_addc_u32 {sTAGH}, {sTAGH}, 0")
        a(f"v_mov_b32 {vTAGL}, {sTAGL}"); a(f"v_mov_b32 {vTAGH}, {sTAGH}")

    def touch1(self):
        a = self.a
        a(f"s_and_b32 s6, {sR}, 7"); a("s_lshl_b32 s6, s6, 6"); a(f"s_and_b32 s7, {sW}, 1"); a("s_lshl_b32 s7, s7, 5"); a("s_add_u32 s6, s6, s7")
        a(f"v_and_b32 v50, 31, {vLANE}"); a("v_add_u32 v50, s6, v50")
        a(f"v_mul_lo_u32 v51, v50, {sP1}")
        a.vm(f"buffer_load_dword {vDUM}, v51, {srd(S_U1)}, {sC1B} offen")
        a(f"v_and_b32 v52, 31, {vLANE}"); a(f"v_lshrrev_b32 v53, 5, {vLANE}"); a(f"s_lshl_b32 s6, {sW}, 1"); a("s_add_u32 s6, s6, 2"); a("v_add_u32 v53, s6, v53")
        a("v_lshlrev_b32 v52, 10, v52"); a("v_lshl_add_u32 v52, v53, 7, v52")
        a("v_cmp_lt_u32 vcc, 7, v53"); a(f"v_mov_b32 v53, {OOB}"); a("s_nop 0"); a("v_cndmask_b32 v52, v52, v53, vcc")
        a(f"s_lshl_b32 s6, {sR}, 7"); a(f"s_and_b32 s7, {sCG}, 3"); a("s_lshl_b32 s7, s7, 5"); a("s_add_u32 s6, s6, s7"); a("s_lshl_b32 s6, s6, 10")
        a.vm(f"buffer_load_dword {vDUM}, v52, {srd(S_X)}, s6 offen")
        a("s_movk_i32 s7, 3584"); a("v_mul_lo_u32 v51, v50, s7")
        a.vm(f"buffer_load_dword {vDUM}, v51, {srd(S_U2)}, {sC2B} offen")
        a(f"v_mul_lo_u32 v51, v50, {sP3}")
        a.vm(f"buffer_load_dword {vDUM}, v51, {srd(S_U3)}, {sC3B} offen")

    def mkparts(self, head, vs, sr, so, settok, ldsbase):
        a = self.a
        parts = []
        for i in range(4):
            def p(i=i):
                key = (so, ldsbase)
                if i == 0:
                    assert self.open_item.get(so) is None
                    self.open_item[so] = key
                assert self.open_item[so] == key
                if i == 3: self.open_item[so] = None
                if i == 0: head()
                elif self.m0_owner != so or self.m0_val != ldsbase: a(f"s_add_u32 m0, {sWLDS}, {ldsbase}")
                self.m0_owner = so; self.m0_val = ldsbase
                settok(a.vm(f"buffer_load_dwordx4 v{vs[i]}, {srd(sr)}, {so} offen{' offset:%d' % (1024*i) if i else ''} lds"))
            parts.append(p)
        return parts
    def m0_clobber(self): self.m0_owner = None
    def dma_x_parts(self, c):
        a = self.a
        def head():
            a(f"s_add_u32 m0, {sWLDS}, {L_X + (c % 3)*16384}")
            a(f"s_add_u32 s7, {sROT}, {c & 3}"); a("s_and_b32 s7, s7, 3")
            if c & 4: a("s_or_b32 s7, s7, 4")
            a("s_lshl_b32 s7, s7, 7"); a(f"s_add_u32 s58, {sXB}, s7")
        return self.mkparts(head, vX, S_X, "s58", lambda t: self.xtok.__setitem__(c, t), L_X + (c % 3)*16384)
    def dma_w_parts(self, G):
        a = self.a
        slot = G % NW
        if G < 8:    vs, sr, b, c64 = vU1, S_U1, sU1b, sU1c64
        elif G < 16: vs, sr, b, c64 = vU2, S_U2, sU2b, str(64*3584)
        else:        vs, sr, b, c64 = vU3, S_U3, sC3B, sU3c64
        def head():
            a(f"s_add_u32 m0, {sWLDS}, {slot*16384}")
            if G < 16:
                pos = G % 8; a(f"s_add_u32 s7, {sROT}, {pos & 3}")
            else:
                pos = 2*(G-16)
                a(f"s_and_b32 s7, {sW}, 1"); a(f"s_add_u32 s7, s7, {sROT}"); a(f"s_add_u32 s7, s7, {pos & 3}")
            a("s_and_b32 s7, s7, 3")
            if pos & 4: a("s_or_b32 s7, s7, 4")
            a(f"s_mul_i32 s7, s7, {c64}"); a(f"s_add_u32 s59, {b}, s7")
        return self.mkparts(head, vs, sr, "s59", lambda t: self.wtok.__setitem__(G, t), slot*16384)
    def dma_x(self, c):
        for p in self.dma_x_parts(c): p()
    def dma_w(self, G):
        for p in self.dma_w_parts(G): p()
    def slab(self, base_expr, v0, v1, sr, so):
        a = self.a
        a(base_expr); self.m0_clobber(); a("s_nop 0")
        a.vm(f"buffer_load_dwordx4 v{v0}, {srd(sr)}, {so} offen lds")
        return a.vm(f"buffer_load_dwordx4 v{v1}, {srd(sr)}, {so} offen offset:1024 lds")

    def t_early(self):
        a = self.a; o = self.o
        a(f"s_lshl_b32 s6, {sW}, 11")
        self.ctokA = self.slab(f"s_add_u32 m0, s6, {L_CA}", 34, 35, S_U1, "s73"); yield
        if o["codepf"]:
            a("s_getpc_b64 s[64:65]")
            a.label("Lpc0" + self.sfx)
            a(f"s_sub_u32 s64, s64, Lpc0{self.sfx}-{KNAME}"); a("s_subb_u32 s65, s65, 0")
            a(f"v_min_u32 v40, 2, {vLANE}")
            a(f"s_mul_i32 s6, {sJ}, 12"); a(f"s_mul_i32 s7, {sW}, 3"); a("s_add_u32 s6, s6, s7")
            a("v_add_u32 v40, s6, v40"); a("v_lshlrev_b32 v40, 7, v40")
            a(f"s_mov_b32 s66, Lcode_end-{KNAME}-4"); a("v_min_u32 v40, s66, v40")
            a.vm(f"global_load_dword {vDUM}, v40, s[64:65]"); yield

    DPPM = ("quad_perm:[1,0,3,2] row_mask:0xf", "quad_perm:[2,3,0,1] row_mask:0xf", "row_half_mirror row_mask:0xf",
            "row_mirror row_mask:0xf", "row_bcast:15 row_mask:0xa", "row_bcast:31 row_mask:0xc")
    def c_stats(self):
        a = self.a
        D = 64
        for r in range(2):
            for k in range(4):
                a(f"v_lshlrev_b32 v{D+8*r+2*k}, 16, v{16+4*r+k}"); a(f"v_and_b32 v{D+8*r+2*k+1}, 0xffff0000, v{16+4*r+k}")
        for k in range(1, 8):
            for r in range(2):
                d = D + 8*r; t = 80 + r
                a(f"v_add_f32 v{t}, v{d}, v{d+1}" if k == 1 else f"v_add_f32 v{t}, v{t}, v{d+k}")
        for mod in self.DPPM:
            for v in ("v80", "v81"): a(f"v_add_f32_dpp {v}, {v}, {v} {mod} bank_mask:0xf")
        a("v_readlane_b32 s78, v80, 63"); a("v_readlane_b32 s79, v81, 63")
        a("s_mov_b32 s66, 0x3b000000"); a("v_mov_b32 v82, s78"); a("v_mov_b32 v83, s79")
        a("v_mul_f32 v82, s66, v82"); a("v_mul_f32 v83, s66, v83")
        for k in range(8):
            for r in range(2): a(f"v_sub_f32 v{D+8*r+k}, v{D+8*r+k}, v{82+r}")
        for k in range(8):
            for r in range(2):
                d = D + 8*r; t = 80 + r
                a(f"v_mul_f32 v{t}, v{d}, v{d}" if k == 0 else f"v_fmac_f32 v{t}, v{d+k}, v{d+k}")
        for mod in self.DPPM:
            for v in ("v80", "v81"): a(f"v_add_f32_dpp {v}, {v}, {v} {mod} bank_mask:0xf")
        a("v_readlane_b32 s78, v80, 63"); a("v_readlane_b32 s79, v81, 63")
        a("v_mov_b32 v84, s78"); a("v_mov_b32 v85, s79"); a("v_mov_b32 v86, 0x3727c5ac")
        a("v_fma_f32 v84, v84, s66, v86"); a("v_fma_f32 v85, v85, s66, v86")
        a("v_rsq_f32 v84, v84"); a("v_rsq_f32 v85, v85")
        a(f"v_cmp_eq_u32 vcc, 1, {vLANE}"); a("v_mov_b32 v90, s60"); a("v_mov_b32 v91, s61")
        a("v_cndmask_b32 v88, v82, v83, vcc"); a("v_cndmask_b32 v89, v84, v85, vcc")
        a(f"v_cmp_gt_u32 vcc, 2, {vLANE}"); a(f"v_mov_b32 v87, {OOB}")
        a("s_lshl_b32 s6, s75, 4"); a(f"s_add_u32 s6, s6, {WS_STAT}")
        a(f"v_cndmask_b32 v86, v87, {vL16}, vcc")
        a.vm(f"buffer_store_dwordx4 v[88:91], v86, {srd(S_WS)}, s6 offen sc1")

    def t_cs(self, rnd):
        a = self.a
        A = rnd == "A"
        nu = 1 if A else 2
        FR, ONES, D0, AD, RES = 96, 112, 116, 88, 84
        a(f"s_lshl_b32 s6, {sW}, {11 if A else 12}"); a(f"s_add_u32 s6, s6, {L_CA}")
        a(f"v_add_u32 v{AD}, s6, {hSA}"); yield
        for k in range(4): a(f"v_mov_b32 v{ONES+k}, 0x3f803f80")
        yield
        a(f"v_and_b32 v{AD+1}, 31, {vLANE}"); a(f"v_lshlrev_b32 v{AD+1}, {3 if A else 4}, v{AD+1}")
        a(f"v_cmp_gt_u32 vcc, 32, {vLANE}"); a(f"v_mov_b32 v{AD+2}, {OOB}"); a("s_nop 0")
        a(f"v_cndmask_b32 v{AD+1}, v{AD+2}, v{AD+1}, vcc"); yield
        a.wait(vm=self.ctokA if A else self.ctokB)
        for ui in range(nu):
            for s in range(2):
                for q in range(2):
                    r = FR + ui*8 + s*4 + q*2
                    t = a.lg(f"ds_read_b64_tr_b16 v[{r}:{r+1}], v{AD} offset:{ui*2048 + (16*s + 4*q)*64}")
            yield
        if not A: yield self.int_end
        a.wait(lg=t)
        DT = [116, 60]
        DT = [52, 68]
        for ui in range(nu):
            d = DT[ui]
            for s in range(2):
                r = FR + ui*8 + s*4
                a(f"v_mfma_f32_32x32x16_bf16 v[{d}:{d+15}], v[{ONES}:{ONES+3}], v[{r}:{r+3}], {'0' if s == 0 else f'v[{d}:{d+15}]'}")
            yield
        a(f"s_lshl_b32 s6, {sCG}, 4"); a(f"s_add_u32 s6, s6, {sR}"); a("s_lshl_b32 s6, s6, 2"); a(f"s_add_u32 s6, s6, {sW}")
        a(f"s_lshl_b32 s6, s6, {8 if A else 9}"); a(f"s_add_u32 s71, s6, {WS_CSPA if A else WS_CSP}"); yield
        if not A: yield self.int_end
        if A:
            a(f"v_mov_b32 v{RES}, v52"); a(f"v_mov_b32 v{RES+1}, {vTAGL}")
            a.vm(f"buffer_store_dwordx2 v[{RES}:{RES+1}], v{AD+1}, {srd(S_WS)}, s71 offen sc1"); yield
        else:
            a(f"v_mov_b32 v{RES}, v52"); a(f"v_mov_b32 v{RES+1}, v68"); a(f"v_mov_b32 v{RES+2}, {vTAGL}"); a(f"v_mov_b32 v{RES+3}, {vTAGL}")
            a.vm(f"buffer_store_dwordx4 v[{RES}:{RES+3}], v{AD+1}, {srd(S_WS)}, s71 offen sc1"); yield
        self.log["cs_pub" + rnd + self.sfx] = self.f

    def t_csum(self, rnd, chk_f):
        a = self.a
        A = rnd == "A"
        B = 52; W = 2 if A else 4; AD = 92
        SB, ST = "s68", "s69"
        a(f"v_and_b32 v{AD}, 31, {vLANE}"); a(f"v_lshlrev_b32 v{AD}, {3 if A else 4}, v{AD}")
        a(f"v_lshrrev_b32 v{AD+1}, 5, {vLANE}"); a(f"v_lshl_add_u32 v{AD}, v{AD+1}, {10 if A else 11}, v{AD}"); yield
        a(f"s_lshl_b32 s6, {sCG}, {14 if A else 15}"); a(f"s_lshl_b32 s7, {sW}, {8 if A else 9}"); a("s_add_u32 s6, s6, s7")
        a(f"s_add_u32 {SB}, s6, {WS_CSPA if A else WS_CSP}"); yield
        def loads():
            return [f"s_add_u32 {ST}, {SB}, {i*(2048 if A else 4096)}\nbuffer_load_dwordx{W} v[{B+W*i}:{B+W*i+W-1}], v{AD}, {srd(S_WS)}, {ST} offen sc1" for i in range(8)]
        for t in loads():
            yield from self.vmslot()
            l0, l1 = t.split("\n"); a(l0); tok = a.vm(l1); yield
        yield max(chk_f, self.f + 24)
        tg = W - 1
        cmp = f"v_cmp_eq_u32 vcc, v{B+tg}, {vTAGL}\n"
        for i in range(1, 8): cmp += f"v_cmp_eq_u32 s[64:65], v{B+tg+W*i}, {vTAGL}\ns_and_b64 vcc, vcc, s[64:65]\n"
        self.log["cs_chk" + rnd + self.sfx] = self.f
        self.poll_check(tok, cmp.strip(), "\n".join(loads()), "csp" + rnd)
        nv = 1 if A else 2
        for i in range(1, 8):
            for k in range(nv): a(f"v_add_f32 v{B+k}, v{B+k}, v{B+W*i+k}")
            yield
        T = B + 4
        for k in range(nv): a(f"v_mov_b32 v{T+k}, v{B+k}")
        for k in range(nv): a(f"v_permlane32_swap_b32 v{B+k}, v{T+k}")
        for k in range(nv): a(f"v_add_f32 v{B+k}, v{B+k}, v{T+k}")
        yield
        for k in range(nv): a(f"v_cvt_pk_bf16_f32 v{T+k}, v{B+k}, v{B+k}")
        for k in range(nv): a(f"v_lshlrev_b32 v{T+k}, 16, v{T+k}")
        for k in range(nv): a(f"v_sub_f32 v{T+k}, v{B+k}, v{T+k}")
        for k in range(nv): a(f"v_cvt_pk_bf16_f32 v{B+k}, v{B+k}, v{T+k}")
        yield
        a(f"s_lshl_b32 s6, {sW}, 7"); a(f"v_add_u32 v{AD+1}, s6, {hCSA}")
        if A: a.lg(f"ds_write_b32 v{AD+1}, v{B}")
        else:
            a.lg(f"ds_write_b32 v{AD+1}, v{B} offset:512")
            a(f"s_lshr_b32 s6, {sW}, 1"); a("s_lshl_b32 s6, s6, 7"); a(f"v_add_u32 v{AD+1}, s6, {hCSA}")
            a.lg(f"ds_write_b32 v{AD+1}, v{B+1} offset:1024")
        yield

    def t_stt(self, chk_f):
        a = self.a
        a(f"v_and_b32 v44, 31, {vLANE}"); a("v_lshlrev_b32 v45, 4, v44"); yield
        a(f"s_lshl_b32 s6, {sR}, 7"); a(f"s_lshl_b32 s7, {sW}, 5"); a("s_add_u32 s6, s6, s7")
        a("s_lshl_b32 s72, s6, 4"); a(f"s_add_u32 s72, s72, {WS_STAT}")
        txt = f"buffer_load_dwordx4 v[48:51], v45, {srd(S_WS)}, s72 offen sc1"
        tok = a.vm(txt)
        yield chk_f
        self.log["st_chk" + self.sfx] = self.f
        self.poll_check(tok, self.tagcmp(50), txt, "stp")
        a("v_sub_f32 v48, 0, v48")
        a("v_lshlrev_b32 v44, 3, v44"); a(f"s_lshl_b32 s6, {sW}, 8"); a(f"s_add_u32 s6, s6, {L_STT}"); a("v_add_u32 v44, s6, v44")
        a.lg("ds_write_b64 v44, v[48:49]"); yield

    def t_slabB(self):
        a = self.a
        yield from self.vmslot()
        self.slab(f"s_add_u32 m0, {sWLDS}, {L_CA}", 36, 37, S_U2, "s74"); yield
        yield from self.vmslot()
        self.ctokB = self.slab(f"s_add_u32 m0, {sWLDS}, {L_CA + 2048}", vU3[0], vU3[1], S_U3, "s75"); yield

    def publish(self, phase):
        a = self.a
        a.vm(f"buffer_store_dwordx2 v[{TAG}:{TAG+1}], {hL0}, {srd(S_WS)}, s77 offen offset:{phase*256} sc1")
        self.log[(self.par, "pub", phase)] = self.f

    def t_kv_tail(self):
        a = self.a; o = self.o
        a(f"v_lshrrev_b32 v38, 4, {vLANE}"); a("v_lshlrev_b32 v38, 3, v38")
        a(f"v_bfe_u32 v39, {vLANE}, 2, 2"); a("v_add_u32 v38, v38, v39"); yield
        a(f"s_movk_i32 s7, {KVP}"); a("v_mul_lo_u32 v38, v38, s7")
        a(f"v_and_b32 v39, 3, {vLANE}"); a("v_lshl_add_u32 v38, v39, 3, v38"); yield
        a(f"s_lshl_b32 s6, {sW}, 5"); a(f"s_add_u32 s6, s6, {L_KVS}"); a("v_add_u32 v38, s6, v38"); yield
        F = 52
        for ks in range(4):
            for tile in range(2):
                for q in range(2):
                    r = F + ks*8 + tile*4 + q*2
                    t = a.lg(f"ds_read_b64_tr_b16 v[{r}:{r+1}], v38 offset:{tile*128*KVP + (32*ks + 4*q)*KVP}")
                yield
        for k in range(4): a(f"v_mov_b32 v{84+k}, 0x3f803f80")
        yield self.int_end
        a.wait(lg=t)
        self.kv_reads_f = self.f
        for ks in range(4):
            pk = F + ks*8; vv = pk + 4
            a(f"v_mfma_f32_16x16x32_bf16 v[88:91], v[{vv}:{vv+3}], v[{pk}:{pk+3}], {'0' if ks == 0 else 'v[88:91]'}")
            a(f"v_mfma_f32_16x16x32_bf16 v[48:51], v[84:87], v[{pk}:{pk+3}], {'0' if ks == 0 else 'v[48:51]'}")
            yield
        a(f"s_lshl_b32 s6, {sM}, 2"); a(f"s_add_u32 s6, s6, {sW}")
        a("s_lshl_b32 s7, s6, 4"); a(f"s_add_u32 s7, s7, {sR}"); a("s_lshl_b32 s7, s7, 10"); a(f"s_add_u32 s73, s7, {WS_KVP}")
        a("s_lshl_b32 s7, s6, 10"); a(f"s_lshl_b32 s72, {sR}, 6"); a("s_add_u32 s7, s7, s72"); a(f"s_add_u32 s72, s7, {WS_KVZP}")
        a("s_lshl_b32 s7, s6, 7"); a(f"s_lshl_b32 s6, {sR}, 3"); a("s_add_u32 s7, s7, s6"); a(f"s_add_u32 s71, s7, {WS_KVF}")
        a(f"v_cmp_gt_u32 vcc, 16, {vLANE}"); a(f"v_mov_b32 v39, {OOB}"); a(f"v_lshlrev_b32 v38, 2, {vLANE}")
        a("v_cndmask_b32 v38, v39, v38, vcc")
        yield self.f + 2
        a.vm(f"buffer_store_dwordx4 v[88:91], {vL16}, {srd(S_WS)}, s73 offen sc1")
        tok = a.vm(f"buffer_store_dword v48, v38, {srd(S_WS)}, s72 offen sc1"); yield
        yield self.int_end + 16
        a.wait(vm=tok)
        a.vm(f"buffer_store_dwordx2 v[{TAG}:{TAG+1}], {hL0}, {srd(S_WS)}, s71 offen sc1")
        self.log[(0, "kvcnt")] = self.f
        yield

    def t_q_prep(self, chk_f):
        a = self.a
        a(f"s_lshl_b32 s6, {sM}, 2"); a(f"s_add_u32 s6, s6, {sW}")
        a("s_lshl_b32 s7, s6, 7"); a(f"s_add_u32 s71, s7, {WS_KVF}")
        a("s_lshl_b32 s7, s6, 14"); a(f"s_add_u32 s73, s7, {WS_KVP}")
        a("s_lshl_b32 s7, s6, 10"); a(f"s_add_u32 s76, s7, {WS_KVZP}")
        a(f"v_and_b32 v40, 15, {vLANE}"); a("v_lshlrev_b32 v40, 3, v40")
        txt = f"buffer_load_dwordx2 v[42:43], v40, {srd(S_WS)}, s71 offen sc1"
        tok = a.vm(txt)
        yield chk_f
        self.log[(1, "kvchk")] = self.f
        self.poll_check(tok, self.tagcmp(42), txt, "kvp")
        while self.active("csumB"): yield self.f + 1
        B = 52
        ztok = a.vm(f"buffer_load_dwordx4 v[116:119], {vL16}, {srd(S_WS)}, s76 offen sc1"); yield
        toks = []
        for r in range(16):
            yield from self.vmslot()
            if r % 4 == 0 and r: a("s_add_u32 s73, s73, 4096")
            toks.append(a.vm(f"buffer_load_dwordx4 v[{B+4*r}:{B+4*r+3}], {vL16}, {srd(S_WS)}, s73 offen offset:{(r % 4)*1024} sc1")); yield
        yield self.int_end
        a.wait(vm=ztok)
        for mod in ("row_shr:4", "row_shr:8"):
            for k in range(4): a(f"v_add_f32_dpp v{116+k}, v{116+k}, v{116+k} {mod} row_mask:0xf bank_mask:0xf bound_ctrl:0")
            yield
        for k in range(4):
            a(f"v_mov_b32 v{120+k}, v{116+k}")
        for k in range(4): a(f"v_permlane16_swap_b32 v{116+k}, v{120+k}")
        for k in range(4): a(f"v_add_f32 v{116+k}, v{116+k}, v{120+k}")
        yield
        for k in range(4): a(f"v_mov_b32 v{120+k}, v{116+k}")
        for k in range(4): a(f"v_permlane32_swap_b32 v{116+k}, v{120+k}")
        for k in range(4): a(f"v_add_f32 v{116+k}, v{116+k}, v{120+k}")
        yield
        for r in range(1, 16):
            a.wait(vm=toks[r])
            for k in range(0, 4, 2): a(f"v_pk_add_f32 v[{B+k}:{B+k+1}], v[{B+k}:{B+k+1}], v[{B+4*r+k}:{B+4*r+k+1}]")
            yield
        a(f"s_mul_i32 s6, {sW}, 1280"); a(f"s_add_u32 s6, s6, {L_KVO}")
        a(f"v_lshrrev_b32 v40, 4, {vLANE}"); a("v_lshlrev_b32 v40, 8, v40"); a(f"v_and_b32 v41, 15, {vLANE}"); a("v_lshl_add_u32 v40, v41, 2, v40")
        a("v_add_u32 v40, s6, v40")
        for v in range(4): a.lg(f"ds_write_b32 v40, v{B+v} offset:{v*64}")
        a(f"v_and_b32 v41, 3, {vLANE}"); a("v_lshlrev_b32 v41, 4, v41"); a("v_add_u32 v41, s6, v41"); a("v_add_u32 v41, 1024, v41")
        a(f"v_and_b32 v42, 15, {vLANE}"); a("v_cmp_le_u32 vcc, 12, v42"); a(f"v_mov_b32 v43, {L_KVO + 4*1280}")
        a("v_cndmask_b32 v41, v43, v41, vcc")
        t = a.lg("ds_write_b128 v41, v[116:119]"); yield
        yield self.f + 3
        a(f"s_mul_i32 s6, {sW}, 1280"); a(f"s_add_u32 s6, s6, {L_KVO}")
        a(f"v_and_b32 v41, 31, {vLANE}"); a("v_min_u32 v41, 16, v41"); a(f"v_lshl_add_u32 v41, v41, 6, {hG16}"); a("v_add_u32 v41, s6, v41")
        a.wait(lg=t)
        a.lg("ds_read_b128 v[52:55], v41"); t = a.lg("ds_read_b128 v[56:59], v41 offset:32"); yield
        yield self.f + 3
        a.wait(lg=t)
        for k in range(4): a(f"v_cvt_pk_bf16_f32 v{60+k}, v{52+2*k}, v{53+2*k}")
        a(f"s_lshl_b32 s6, {sW}, 10"); a(f"s_add_u32 s6, s6, {L_KVZ}"); a(f"v_add_u32 v41, s6, {vL16}")
        a.lg("ds_write_b128 v41, v[60:63]"); yield

    def qget(self, i, dst):
        reg = (sQA, sQB, sQC)[i // 4]
        self.a(f"s_bfe_u32 {dst}, {reg}, {(8 << 16) | (8*(i % 4))}")
    def t_s2_q(self):
        a = self.a
        a(f"s_lshr_b32 s68, {sJ}, 2"); a(f"s_add_u32 s68, s68, {sC2}"); a("s_and_b32 s68, s68, 7")
        tab = sum(((k % 3) << (2*k)) for k in range(12))
        a(f"s_lshl_b32 s69, s68, 1"); a(f"s_lshr_b32 s69, {tab}, s69"); a("s_and_b32 s69, s69, 3"); yield
        for i in range(9):
            reg = (sQA, sQB, sQC)[i // 4]
            if i < 2:
                a(f"s_add_u32 s6, s68, {i}"); a("s_and_b32 s6, s6, 1"); a("s_lshl_b32 s6, s6, 3")
                a(f"s_lshl_b32 s7, {sW}, 1"); a("s_add_u32 s6, s6, s7"); a("s_add_u32 s6, s6, 8")
            elif i < 6:
                a(f"s_add_u32 s6, s68, {i-2}"); a("s_and_b32 s6, s6, 3"); a("s_lshl_b32 s6, s6, 2"); a(f"s_add_u32 s6, s6, {sW}")
                a("s_lshl_b32 s7, s6, 1"); a("s_sub_u32 s7, s7, 7"); a("s_cmp_lt_u32 s6, 8"); a("s_cselect_b32 s6, s6, s7")
            else:
                a(f"s_add_u32 s6, s69, {i-6}"); a("s_sub_u32 s7, s6, 3"); a("s_cmp_lt_u32 s6, 3"); a("s_cselect_b32 s6, s6, s7")
                a("s_lshl_b32 s6, s6, 2"); a(f"s_add_u32 s6, s6, {sW}"); a("s_add_u32 s6, s6, 24")
            if i % 4 == 0: a(f"s_mov_b32 {reg}, s6")
            else: a(f"s_lshl_b32 s6, s6, {8*(i % 4)}"); a(f"s_or_b32 {reg}, {reg}, s6")
            yield
    def s2_w_dma(self, i):
        a = self.a
        self.qget(i, "s6")
        if i < 6: sr = S_WD
        else:
            sr = S_U1
            a("s_cmp_lt_u32 s6, 28")
            a(f"s_cselect_b32 s{S_U1}, s{S_WD}, s{S_WO}"); a(f"s_cselect_b32 s{S_U1+1}, s{S_WD+1}, s{S_WO+1}")
            a(f"s_cselect_b32 s{S_U1+2}, s{S_WD+2}, s{S_WO+2}")
            a("s_cselect_b32 s7, 0, 28"); a("s_sub_u32 s6, s6, s7")
        a("s_lshl_b32 s6, s6, 16"); a(f"s_lshl_b32 s7, {sC2}, 7"); a("s_add_u32 s74, s6, s7"); yield
        base = W2SLOT[i % 4]
        for g in range(2):
            for k in range(4):
                if i < 3: yield from self.vmslot()
                if k == 0 or self.m0_owner != ("w2", i, g):
                    a(f"s_add_u32 m0, {sW8K}, {base + g*4096}")
                    if k == 0 and g == 1: a("s_add_u32 s74, s74, 32768")
                    self.m0_owner = ("w2", i, g)
                self.w2tok[i] = a.vm(f"buffer_load_dwordx4 v{vW2[k]}, {srd(sr)}, s74 offen{' offset:%d' % (1024*k) if k else ''} lds"); yield
    def t_w2reg(self, i, areg):
        a = self.a
        self.qget(i, "s6")
        if i < 6: sr = S_WD
        else:
            sr = S_U1
            a("s_cmp_lt_u32 s6, 28")
            a(f"s_cselect_b32 s{S_U1}, s{S_WD}, s{S_WO}"); a(f"s_cselect_b32 s{S_U1+1}, s{S_WD+1}, s{S_WO+1}")
            a(f"s_cselect_b32 s{S_U1+2}, s{S_WD+2}, s{S_WO+2}")
            a("s_cselect_b32 s7, 0, 28"); a("s_sub_u32 s6, s6, s7")
        a("s_lshl_b32 s6, s6, 16"); a(f"s_lshl_b32 s7, {sC2}, 7"); a("s_add_u32 s75, s6, s7"); yield
        for g in range(2):
            for k in range(4):
                yield from self.vmslot()
                if k == 0 and g == 1: a("s_add_u32 s75, s75, 32768")
                r = areg + (g*4 + k)*4
                self.w2rtok[i] = a.vm(f"buffer_load_dwordx4 a[{r}:{r+3}], v{vW2[k]}, {srd(sr)}, s75 offen{' offset:%d' % (1024*k) if k else ''}"); yield
    def w2put(self, i, areg):
        a = self.a
        a.wait(vm=self.w2rtok[i])
        a(f"s_add_u32 s6, {sW8K}, {W2SLOT[i % 4]}"); a(f"v_add_u32 v40, s6, {vL16}")
        for k in range(8):
            r = areg + k*4
            self.w2ptok[i] = a.lg(f"ds_write_b128 v40, a[{r}:{r+3}] offset:{k*1024}")

    def flag_issue(self, phase):
        a = self.a
        if phase == 0:
            a(f"v_bfe_u32 {vPOLL}, {vLANE}, 1, 3"); a(f"v_lshlrev_b32 {vPOLL}, 2, {vPOLL}")
            a(f"v_and_b32 v{FLD}, 1, {vLANE}"); a(f"v_add_u32 {vPOLL}, {vPOLL}, v{FLD}"); a(f"v_add_u32 {vPOLL}, 2, {vPOLL}")
            a(f"v_lshlrev_b32 {vPOLL}, 3, {vPOLL}")
        else:
            a(f"v_and_b32 {vPOLL}, 31, {vLANE}"); a(f"v_lshlrev_b32 {vPOLL}, 3, {vPOLL}")
        a(f"s_mul_i32 s72, {sT}, 768"); a(f"s_add_u32 s72, s72, {WS_HF + phase*256}")
        self.fl_txt = f"buffer_load_dwordx2 v[{FLD}:{FLD+1}], {vPOLL}, {srd(S_WS)}, s72 offen sc1"
        self.fltok = a.vm(self.fl_txt)
    def flag_check(self, phase):
        self.log[(self.par, "chk", phase)] = self.f
        self.poll_check(self.fltok, self.tagcmp(FLD), self.fl_txt, f"fl{phase}")
        if not self.o.get("touchh", 0): return
        a = self.a
        n = (8, 16, 12)[phase]
        a(f"s_and_b32 s6, {sJ}, 3"); a(f"s_lshl_b32 s7, {sW}, 2"); a("s_add_u32 s6, s6, s7")
        if phase == 0: a("s_lshl_b32 s7, s6, 1"); a("s_add_u32 s7, s7, 8")
        elif phase == 1:
            a("s_lshl_b32 s7, s6, 1"); a("s_sub_u32 s7, s7, 7"); a("s_cmp_lt_u32 s6, 8"); a("s_cselect_b32 s7, s6, s7")
        else: a("s_add_u32 s7, s6, 24")
        a(f"s_mul_i32 s64, {sR}, 36"); a("s_add_u32 s7, s7, s64"); a("s_lshl_b32 s7, s7, 14")
        a(f"s_lshl_b32 s64, {sHALF}, 13"); a("s_add_u32 s7, s7, s64"); a(f"s_add_u32 s7, s7, {WS_H}")
        a(f"v_lshlrev_b32 v40, 7, {vLANE}"); a(f"v_mov_b32 v41, {OOB}")
        a(f"s_cmp_lt_u32 s6, {n}"); a("s_cselect_b64 vcc, -1, 0"); a("v_cndmask_b32 v40, v41, v40, vcc")
        a.vm(f"buffer_load_dword {vDUM}, v40, {srd(S_WS)}, s7 offen sc1")

    def vmslot(self):
        while self.a.vm_issued - self.int_vm0 >= self.int_cap: yield self.int_end
    def h_interval(self, f0, n, extras, budget=None, cap=None):
        a = self.a
        nfix = sum(len(extras.get(f0 + g, [])) for g in range(n))
        self.int_vm0 = a.vm_issued + nfix*0; self.int_end = f0 + n
        self.int_cap = (cap or self.o.get("vmcap", 8))
        self.int_vm0 = a.vm_issued
        for g in range(n):
            self.f = f0 + g
            start = len(a.lines)
            for fn in extras.get(f0 + g, []): fn()
            self.pump(self.f, start, budget or self.o["hbudget"])

    def helper(self, par):
        a = self.a; o = self.o
        self.par = par; self.sfx = f"_{par}"
        who = f"h{par}"
        self.tasks = []; self.w2tok = {}; self.w2rtok = {}; self.w2ptok = {}
        REGCH = {3: 0, 4: 32, 5: 64, 6: 96} if o.get("w2reg", 1) else {}
        self.kvz_done = False
        ex = {}
        def at(f, fn): ex.setdefault(f, []).append(fn)
        def spread(maker, positions):
            hd = {}
            def get(i):
                if "p" not in hd: hd["p"] = maker()
                hd["p"][i]()
            for i, pos in enumerate(positions): at(pos, (lambda i=i: get(i)))
        spread(lambda: self.dma_x_parts(2), (0, 1, 2, 3)); spread(lambda: self.dma_w_parts(2), (4, 5, 6, 7))
        spread(lambda: self.dma_w_parts(3), (10, 12, 14, 16))
        for G in range(0, 16):
            spread(lambda G=G: self.dma_w_parts(G+4), [16*G + 10 + p for p in ((1, 5, 9, 13) if G == 0 else (0, 2, 4, 6))] if G > 0 else [18, 20, 22, 24])
        for G in range(0, 5):
            spread(lambda G=G: self.dma_x_parts(G+3), [16*G + 10 + p for p in (1, 3, 5, 7)])
        self.spawn(self.t_early(), 0, "early")
        self.spawn(self.t_cs("A"), o.get("cs_f", 26), "csA")
        self.log["st_pub" + self.sfx] = 0
        self.spawn(self.t_csum("A", o.get("csumA_chk", 104)), o.get("csumA_f", 74), "csumA")
        self.spawn(self.t_stt(o.get("st_chk", 104)), o.get("stt_f", 80), "stt")
        self.spawn(self.t_slabB(), o.get("slabB_f", 58), "slabB")
        self.spawn(self.t_cs("B"), o.get("csB_f", 106), "csB")
        self.spawn(self.t_csum("B", o.get("csumB_chk", 214)), o.get("csumB_f", 186), "csumB")
        if o.get("hprio", 0): a(f"s_setprio {o['hprio']}")
        a.wait(vm=self.wtok[0])
        self.barrier(who, "P0")
        self.h_interval(0, 10, ex)
        for G in range(20):
            self.f = 16*G + 9
            if G + 1 < 20: a.wait(vm=self.wtok[G+1])
            if G + 1 < 8: a.wait(vm=self.xtok[G+1])
            if G == 7: self.finish("csumA"); self.finish("stt"); a.wait_all(vm=False)
            if G == 15: self.finish("csumB"); a.wait_all(vm=False)
            if G == 17: self.flag_check(0)
            if G == 19:
                if par == 1: self.finish("qprep"); a.wait_all(vm=False)
            self.barrier(who, f"B{G}")
            self.f = 16*G + 10
            if G == o.get("pub0_G", 9) and par == 1: self.publish(0)
            if G == 8 and par == 0:
                self.finish("csB")
                self.spawn(self.t_kv_tail(), self.f, "kvtail", front=True)
            if G == o.get("pub1_G", 17): self.publish(1)
            if G == 11:
                if par == 0: assert self.kv_reads_f < self.f
                self.spawn(self.s2_w_dma(0), self.f, "w2_0")
            if G == 11 and par == 0: assert self.kv_reads_f < 180, "kv tail fragments overlap csumB registers"
            if G == 16 and par == 1: assert not self.active("csumB")
            if REGCH:
                if G == 7:
                    def r34():
                        yield from self.t_w2reg(3, 0); yield from self.t_w2reg(4, 32)
                    self.spawn(r34(), self.f, "w2r3")
                if G == 15:
                    self.finish("w2r3")
                    def r56():
                        yield from self.t_w2reg(5, 64); yield from self.t_w2reg(6, 96)
                    self.spawn(r56(), self.f, "w2r5")
            if G == 15: self.flag_issue(0)
            if G == 17:
                self.spawn(self.s2_w_dma(1), self.f, "w2_1")
            if G == o.get("qprep_G", 13) and par == 1: self.spawn(self.t_q_prep(self.f + o.get("kvchk_gap", 17)), self.f, "qprep")
            if G == 19: self.spawn(self.s2_w_dma(2), self.f, "w2_2")
            if G < 19:
                cap = 24 if G in (7, 15) else (10 if G >= 16 else (12 if G in (3, 4) else None))
                self.h_interval(16*G + 10, 16, ex, cap=cap, budget=(5 if G in (7, 15) else (4 if G >= 16 else None)))
        self.h_interval(314, 6, ex)
        self.barrier(who, "H0")
        if par == 0: assert not self.active("kvtail"), "kv tail still running at H0"
        if 3 in REGCH:
            for n in ("w2r3", "w2r5"): self.finish(n)
            self.w2put(3, REGCH[3])
        else: self.spawn(self.s2_w_dma(3), self.f, "w2_3")
        self.flag_issue(1)
        base = 336
        for i in range(9):
            self.h_interval(base + 16*i - 16, 16, ex, budget=8)
            self.f = base + 16*i
            if i in REGCH: a.wait(lg=self.w2ptok[i])
            else:
                self.finish(f"w2_{i}")
                a.wait(vm=self.w2tok[i])
            if i + 2 == 2: self.flag_check(1)
            if i == o.get("fl2_i", 5): self.flag_check(2)
            self.barrier(who, f"S{i}")
            self.f = base + 16*i + 1
            if i == o.get("pub2_i", 1): self.publish(2)
            if i == o.get("fl2_i", 5) - 1: self.flag_issue(2)
            if i >= 1 and i + 3 < 9:
                if i + 3 in REGCH: self.w2put(i + 3, REGCH[i + 3])
                else: self.spawn(self.s2_w_dma(i + 3), self.f, f"w2_{i+3}")
        a("s_cmp_eq_u32 s2, 0"); a("s_cselect_b64 vcc, -1, 0"); a(f"s_cmp_eq_u32 {sW}, 0"); a("s_cselect_b64 vcc, vcc, 0")
        a(f"v_mov_b32 v40, {OOB}"); a("s_nop 0"); a(f"v_cndmask_b32 v40, v40, {hL0}, vcc")
        a.vm(f"buffer_store_dwordx2 v[{TAG}:{TAG+1}], v40, {srd(S_WS)}, 0 offen sc1")
        self.prof_out(4)
        a("s_endpgm")

    def c_lane_consts(self):
        a = self.a
        a(f"v_and_b32 v56, 31, {vLANE}"); a(f"v_lshrrev_b32 v57, 5, {vLANE}"); a(f"v_bfe_u32 v58, {vLANE}, 2, 2")
        a(f"v_and_b32 v59, 3, {vLANE}"); a(f"v_bfe_u32 v60, {vLANE}, 4, 1")
        a("v_lshlrev_b32 v61, 5, v60"); a("v_lshl_add_u32 v61, v59, 3, v61")
        a("v_lshrrev_b32 v62, 1, v58"); a("v_lshlrev_b32 v62, 6, v62")
        a("v_lshl_add_u32 v63, v57, 3, v58")
        a("v_lshlrev_b32 v64, 7, v63")
        a("v_xor_b32 v65, v61, v62"); a(f"v_add_u32 {cWA[0][0]}, v64, v65")
        a("v_or_b32 v65, 64, v61"); a("v_xor_b32 v65, v65, v62"); a(f"v_add_u32 {cWA[0][1]}, v64, v65")
        a(f"v_add_u32 {cWA[1][0]}, 0x10000, {cWA[0][0]}"); a(f"v_add_u32 {cWA[1][1]}, 0x10000, {cWA[0][1]}")
        a("v_lshlrev_b32 v64, 6, v63"); a(f"v_add_u32 {cSA[0]}, v64, v61"); a(f"v_add_u32 {cSA[1]}, 0x10000, {cSA[0]}")
        a("v_bfe_u32 v64, v56, 1, 3"); a("v_xor_b32 v64, v64, v57")
        a("v_lshlrev_b32 v65, 7, v56"); a(f"s_add_u32 s7, {sWLDS}, {L_X}"); a("v_add_u32 v65, s7, v65")
        for s in range(4):
            a(f"v_xor_b32 v66, {2*s}, v64"); a(f"v_lshl_add_u32 {cXA[s]}, v66, 4, v65")
        a(f"v_lshlrev_b32 {cG16}, 4, v57")
        a(f"v_lshlrev_b32 {cCSA}, 2, v56"); a(f"v_add_u32 {cCSA}, {L_CST}, {cCSA}")
        a(f"v_mov_b32 v{BAUG+2}, 0"); a(f"v_mov_b32 v{BAUG+3}, 0")
        a("v_lshrrev_b32 v64, 3, v0"); a("v_and_b32 v65, 7, v0")
        a(f"v_lshlrev_b32 {cOUT}, 10, v64"); a(f"v_lshl_add_u32 {cOUT}, v65, 4, {cOUT}")

    def c_setup(self):
        a = self.a
        a("s_waitcnt lgkmcnt(0)")
        a.protect = set()
        a("s_mov_b32 s71, 0x3fb8aa3b"); a("s_mov_b32 s72, 0x358637bd")
        a(f"s_mul_i32 s76, {sR2}, 36"); a(f"s_lshl_b32 s77, {sHALF}, 13"); a(f"s_add_u32 s77, s77, {WS_H}")
        for _ in self.t_s2_q(): pass
        self.c_lane_consts()
        a(f"s_lshl_b32 s6, {sR}, 7"); a(f"s_lshl_b32 s7, {sCG}, 3"); a("s_add_u32 s6, s6, s7")
        a(f"s_lshl_b32 s7, {sW}, 1"); a("s_add_u32 s75, s6, s7"); a("s_lshl_b32 s6, s75, 10")
        a.vm(f"buffer_load_dwordx4 v[16:19], {vL16}, {srd(S_X)}, s6 offen")
        a.vm(f"buffer_load_dwordx4 v[20:23], {vL16}, {srd(S_X)}, s6 offen offset:1024")
        a(f"s_load_dwordx2 s[60:61], s[{S_WS}:{S_WS+1}], 0")
        a("s_waitcnt vmcnt(0) lgkmcnt(0)")
        a("s_add_u32 s60, s60, 1"); a("s_addc_u32 s61, s61, 0")
        self.c_stats()

    def finfo(self, f):
        if f < NF1:
            G, m = divmod(f, 16)
            if G < 16:
                c = G % 8; s = m // 4; tile = m % 4; ks = c*4 + s
            else:
                s = m // 2; tile = m % 2; ks = (G-16)*8 + s
            return dict(phi=f, acc=ACC + 16*tile, b=ks*4, first=(ks == 0))
        i, m = divmod(f - NF1, 16)
        s, r = divmod(m, 4); cb, rf = divmod(r, 2)
        return dict(phi=NF1 + 8*i + 2*s + cb, acc=ACC + (cb*2+rf)*16, b=(i % 3)*32 + rf*16 + s*4, first=(i == 0 and s == 0), chunk=i, m=m)
    def phi_first_use(self, phi): return phi if phi < NF1 else NF1 + 2*(phi - NF1)
    def frag_read(self, phi):
        a = self.a
        r = RING + 4*(phi % NFR)
        if phi < NF1:
            G, m = divmod(phi, 16)
            slot = G % NW; rng = slot // 4; sb = (slot % 4)*16384
            if G < 16:
                s = m // 4; cbk = m % 4; panel, cb = divmod(cbk, 2)
                base = cWA[rng][cb]; imm = [sb + panel*8192 + (16*s + 4*q)*128 for q in range(2)]
            else:
                s = m // 2; b = m % 2
                base = cSA[rng]; imm = [sb + b*8192 + (16*s + 4*q)*64 for q in range(2)]
        else:
            i, r2 = divmod(phi - NF1, 8); s, cb = divmod(r2, 2)
            so = W2SLOT[i % 4]
            base = cB2[cb] if so < 0x10000 else cB2H[cb]
            imm = [(so % 0x10000) + (16*s + 8*q)*128 for q in range(2)]
        a.lg(f"ds_read_b64_tr_b16 v[{r}:{r+1}], {base} offset:{imm[0]}")
        self.ftok[phi] = a.lg(f"ds_read_b64_tr_b16 v[{r+2}:{r+3}], {base} offset:{imm[1]}")
    def x_read(self, c, s):
        r = (c*4 + s)*4
        self.xrtok[c] = self.a.lg(f"ds_read_b128 a[{r}:{r+3}], {cXA[s]} offset:{(c % 3)*16384}")

    def c_run(self, f0, f1, ex, fend):
        a = self.a
        for f in range(f0, f1):
            inf = self.finfo(f)
            self.stamp(f"f{f}")
            ph = inf["phi"]
            nxt = ph + 1
            a.wait(lg=self.ftok[nxt] if (nxt in self.ftok and f % 2 == 0 and f < NF1) else self.ftok[ph])
            if f < 128 and f % 16 == 0: a.wait(lg=self.xrtok[f // 16])
            if f >= NF1 and inf["m"] == 0:
                self.stamp(f"hw{inf['chunk']}_in"); a.wait(vm=self.htok[inf["chunk"]]); self.stamp(f"hw{inf['chunk']}_out")
            r = RING + 4*(ph % NFR)
            acc = f"v[{inf['acc']}:{inf['acc']+15}]"
            a(f"v_mfma_f32_32x32x16_bf16 {acc}, v[{r}:{r+3}], a[{inf['b']}:{inf['b']+3}], {'0' if inf['first'] else acc}")
            for fn in ex.get(f, []): fn()
            fu = f + LOOK
            if fu < fend:
                p = self.finfo(fu)["phi"]
                if self.phi_first_use(p) == fu: self.frag_read(p)
    def c_prime(self, f0):
        for f in range(f0, f0 + LOOK):
            p = self.finfo(f)["phi"]
            if self.phi_first_use(p) == f: self.frag_read(p)

    def aug(self, p, ntile):
        a = self.a
        toks = []
        for t in range(ntile):
            g = RING + 4*t; off = (p*128 + 32*t)*4
            a.lg(f"ds_read_b32 v{g}, {cCSA} offset:{off}")
            toks.append(a.lg(f"ds_read_b32 v{g+1}, {cCSA} offset:{off}"))
            a(f"v_mov_b32 v{g+2}, 0"); a(f"v_mov_b32 v{g+3}, 0")
        for t in range(ntile):
            g = RING + 4*t; A = ACC + 16*t
            a.wait(lg=toks[t])
            a(f"v_mfma_f32_32x32x16_bf16 v[{A}:{A+15}], v[{g}:{g+3}], v[{BAUG}:{BAUG+3}], v[{A}:{A+15}]")
    def hbase_q(self, q):
        a = self.a
        a(f"s_mul_i32 s7, {sR}, 36"); a(f"s_add_u32 s7, s7, {q}")
        a("s_lshl_b32 s7, s7, 2"); a(f"s_add_u32 s7, s7, {sW}")
        a("s_lshl_b32 s7, s7, 12"); a(f"s_add_u32 {sHB}, s7, {WS_H}")
    def ffn_block(self, tg, tu, dst):
        a = self.a
        for k in range(16): a(f"v_max_f32 v{tg+k}, 0, v{tg+k}")
        for k in range(0, 16, 2): a(f"v_pk_mul_f32 v[{tg+k}:{tg+k+1}], v[{tg+k}:{tg+k+1}], v[{tu+k}:{tu+k+1}]")
        for k in range(8): a(f"v_cvt_pk_bf16_f32 v{dst+k}, v{tg+2*k}, v{tg+2*k+1}")
    def epi_ffn(self, p):
        a = self.a
        self.aug(p, 4)
        a(f"s_lshl_b32 s6, {sM}, 1"); a(f"s_add_u32 s6, s6, {8 if p == 0 else 9}")
        if p == 1: a(f"s_cmp_eq_u32 {sPAR}, 0"); a(f"s_cselect_b32 s6, {sM}, s6")
        self.hbase_q("s6")
        for cb in range(2):
            d = 32 + 8*cb
            self.ffn_block(ACC + 16*cb, ACC + 32 + 16*cb, d)
            for h in range(2):
                a.vm(f"buffer_store_dwordx4 v[{d+4*h}:{d+4*h+3}], {vL16}, {srd(S_WS)}, {sHB} offen offset:{(2*cb+h)*1024} sc1")
    def epi_side(self):
        a = self.a
        self.aug(2, 2)
        a(f"s_lshr_b32 s6, {sM}, 1"); a("s_add_u32 s6, s6, 24"); self.hbase_q("s6")
        a(f"s_and_b32 s6, {sM}, 1"); a("s_lshl_b32 s6, s6, 11"); a(f"s_add_u32 {sHB}, {sHB}, s6")
        self.ffn_block(ACC, ACC + 16, 32)
        for h in range(2):
            a.vm(f"buffer_store_dwordx4 v[{32+4*h}:{32+4*h+3}], {vL16}, {srd(S_WS)}, {sHB} offen offset:{h*1024} sc1")
    def phi_tile(self, T):
        a = self.a
        for h in range(2):
            B = T + 8*h
            for k in range(8): a(f"v_mul_f32 v{TMP+k}, {cRL}, v{B+k}")
            for k in range(8): a(f"v_exp_f32 v{TMP+k}, v{TMP+k} clamp")
            for k in range(8): a(f"v_fma_f32 v{B+k}, v{B+k}, {cRSTD}, s72")
            for k in range(8): a(f"v_max_f32 v{B+k}, s72, v{B+k}")
            for k in range(0, 8, 2): a(f"v_pk_add_f32 v[{B+k}:{B+k+1}], v[{B+k}:{B+k+1}], v[{TMP+k}:{TMP+k+1}]")
    def epi_kv(self):
        a = self.a
        self.aug(0, 4)
        a(f"v_and_b32 v32, 31, {vLANE}"); a(f"s_lshl_b32 s6, {sW}, 5"); a("v_add_u32 v32, s6, v32")
        a(f"s_movk_i32 s7, {KVP}"); a("v_mul_lo_u32 v32, v32, s7")
        a(f"v_lshrrev_b32 v33, 1, {cG16}"); a("v_add_u32 v32, v32, v33"); a(f"v_add_u32 v32, {L_KVS}, v32")
        a(f"v_mov_b32 v34, {cRSTD}"); a(f"v_mov_b32 v35, {cRSTD}")
        for t in range(4):
            T = ACC + 16*t
            if t < 2: self.phi_tile(T)
            else:
                for k in range(0, 16, 2): a(f"v_pk_mul_f32 v[{T+k}:{T+k+1}], v[{T+k}:{T+k+1}], v[34:35]")
            for g4 in range(4):
                d = 36 + 2*g4
                a(f"v_cvt_pk_bf16_f32 v{d}, v{T+4*g4}, v{T+4*g4+1}"); a(f"v_cvt_pk_bf16_f32 v{d+1}, v{T+4*g4+2}, v{T+4*g4+3}")
            for g4 in range(4):
                d = 36 + 2*g4
                off = (t // 2)*128*KVP + (32*(t % 2) + 8*g4)*2
                a.lg(f"ds_write_b64 v32, v[{d}:{d+1}] offset:{off}")
    def epi_q(self):
        a = self.a
        self.aug(2, 2)
        a(f"s_add_u32 s6, {sM}, 28"); self.hbase_q("s6")
        toks = []
        a(f"v_add_u32 v44, {L_KVZ}, {vL16}")
        for h in range(4): toks.append(a.lg(f"ds_read_b128 v[{16+4*h}:{16+4*h+3}], v44 offset:{h*1024}"))
        for t in range(2):
            T = ACC + 16*t
            self.phi_tile(T)
            for k in range(8): a(f"v_cvt_pk_bf16_f32 v{32+8*t+k}, v{T+2*k}, v{T+2*k+1}") if t == 0 else a(f"v_cvt_pk_bf16_f32 v{TMP+k}, v{T+2*k}, v{T+2*k+1}")
        PQ = [32, 36, TMP, TMP + 4]
        a(f"v_mul_f32 v45, {cRSTD}, {cRSTD}")
        a.wait(lg=toks[-1])
        for h in range(4):
            d = ACC + 16*h
            a(f"v_mfma_f32_32x32x16_bf16 v[{d}:{d+15}], v[{16+4*h}:{16+4*h+3}], v[{PQ[h]}:{PQ[h]+3}], 0")
        for h in range(4):
            d = ACC + 16*h
            a(f"v_add_f32 v{d+8}, s72, v{d+8}"); a(f"v_mul_f32 v{d+8}, v{d+8}, v45"); a(f"v_rcp_f32 v{d+8}, v{d+8}")
            a(f"v_mov_b32 v{d+9}, v{d+8}")
            for k in range(0, 8, 2): a(f"v_pk_mul_f32 v[{d+k}:{d+k+1}], v[{d+k}:{d+k+1}], v[{d+8}:{d+9}]")
            for k in range(4): a(f"v_cvt_pk_bf16_f32 v{16+4*h+k}, v{d+2*k}, v{d+2*k+1}")
            a.vm(f"buffer_store_dwordx4 v[{16+4*h}:{16+4*h+3}], {vL16}, {srd(S_WS)}, {sHB} offen offset:{h*1024} sc1")
    def branch2(self, even, odd):
        a = self.a
        lo = a.newlabel("Lo"); lj = a.newlabel("Lj")
        a(f"s_cmp_eq_u32 {sPAR}, 0"); a(f"s_cbranch_scc0 {lo}")
        st = (a.vm_issued, a.lg_issued, a.vm_floor, a.lg_floor)
        even(); sa = (a.vm_issued, a.lg_issued)
        a(f"s_branch {lj}"); a.label(lo)
        a.vm_issued, a.lg_issued, a.vm_floor, a.lg_floor = st
        odd(); sb = (a.vm_issued, a.lg_issued)
        a.label(lj)
        a.vm_issued = min(sa[0], sb[0]); a.lg_issued = min(sa[1], sb[1])
        a.vm_floor = min(a.vm_floor, st[2]) if False else st[2]; a.lg_floor = st[3]
    def h_load(self, i):
        a = self.a
        parts = []
        def head():
            self.qget(i, "s6"); a("s_add_u32 s6, s6, s76"); a("s_lshl_b32 s6, s6, 14"); a("s_add_u32 s78, s6, s77"); a("s_add_u32 s79, s78, 4096")
        for rf in range(2):
            for s in range(4):
                def p(rf=rf, s=s):
                    if rf == 0 and s == 0: head()
                    r = (i % 3)*32 + rf*16 + s*4
                    self.htok[i] = a.vm(f"buffer_load_dwordx4 a[{r}:{r+3}], {vL16}, {srd(S_WS)}, {'s78' if rf == 0 else 's79'} offen offset:{s*1024} sc1")
                parts.append(p)
        return parts

    def compute(self):
        a = self.a; o = self.o
        who = "c"
        self.c_setup()
        self.ftok = {}; self.xrtok = {}; self.htok = {}
        ex = {}
        def at(f, fn): ex.setdefault(f, []).append(fn)
        for G in range(20):
            at(16*G + 9, lambda G=G: self.c_bar(G))
            if G < 7:
                for s in range(4): at(16*G + 11 + s, lambda G=G, s=s: self.x_read(G+1, s))
        for i, f0 in ((0, 290), (1, 303)):
            hd = {}
            def get(k, i=i, hd=hd):
                if "p" not in hd: hd["p"] = self.h_load(i)
                hd["p"][k]()
            for k in range(8): at(f0 + k + (k // 4), lambda k=k, get=get: get(k))
        self.barrier(who, "P0")
        self.stamp("go"); self.stamp("rtgo")
        for s in range(4): self.x_read(0, s)
        self.c_prime(0)
        self.c_run(0, 128, ex, 128)
        self.stamp("e1")
        if o.get("touchw2", 1):
            self.c_touch_w2()
            for k in range(4): self.c_touch_step(k)
        a(f"v_and_b32 v44, 31, {vLANE}"); a("v_lshlrev_b32 v44, 3, v44"); a(f"s_lshl_b32 s6, {sW}, 8"); a(f"s_add_u32 s6, s6, {L_STT}"); a("v_add_u32 v44, s6, v44")
        t = a.lg("ds_read_b64 v[46:47], v44")
        a.wait(lg=t)
        a(f"v_mov_b32 {cRSTD}, v47"); a(f"v_mul_f32 {cRL}, s71, v47")
        a(f"v_cvt_pk_bf16_f32 v{BAUG}, v46, v46"); a(f"v_lshlrev_b32 v45, 16, v{BAUG}"); a("v_sub_f32 v45, v46, v45")
        a(f"v_cvt_pk_bf16_f32 v{BAUG+1}, v45, v45")
        a(f"v_cmp_gt_u32 vcc, 32, {vLANE}"); a("v_mov_b32 v45, 0"); a("s_nop 0")
        a(f"v_cndmask_b32 v{BAUG}, v45, v{BAUG}, vcc"); a(f"v_cndmask_b32 v{BAUG+1}, v45, v{BAUG+1}, vcc")
        self.branch2(self.epi_kv, lambda: self.epi_ffn(0))
        a.wait_all(vm=False)
        self.stamp("e1end")
        self.c_prime(128)
        self.c_run(128, 256, ex, 256)
        self.stamp("e2")
        self.epi_ffn(1)
        self.stamp("e2end")
        self.c_prime(256)
        self.c_run(256, 320, ex, 320)
        self.barrier(who, "H0")
        a(f"v_lshrrev_b32 v56, 5, {vLANE}"); a(f"v_bfe_u32 v57, {vLANE}, 2, 2"); a(f"v_and_b32 v58, 3, {vLANE}"); a(f"v_bfe_u32 v59, {vLANE}, 4, 1")
        a("v_lshlrev_b32 v60, 5, v59"); a("v_lshl_add_u32 v60, v58, 3, v60")
        a("v_lshrrev_b32 v58, 1, v57"); a("v_lshlrev_b32 v58, 6, v58")
        a("v_lshl_add_u32 v56, v56, 2, v57"); a("v_lshlrev_b32 v56, 7, v56"); a(f"v_add_u32 v56, {sW8K}, v56")
        a("v_xor_b32 v57, v60, v58"); a(f"v_add_u32 {cB2[0]}, v56, v57")
        a("v_or_b32 v60, 64, v60"); a("v_xor_b32 v57, v60, v58"); a(f"v_add_u32 {cB2[1]}, v56, v57")
        a(f"v_add_u32 {cB2H[0]}, 0x10000, {cB2[0]}"); a(f"v_add_u32 {cB2H[1]}, 0x10000, {cB2[1]}")
        self.stamp("e3")
        self.branch2(self.epi_side, self.epi_q)
        self.stamp("e3end")
        self.e3_mark = a.vm_issued
        ex2 = {}
        def at2(f, fn): ex2.setdefault(f, []).append(fn)
        for i in range(9):
            f0 = NF1 + 16*i
            if i > 0: at2(f0 - LOOK - 1, lambda i=i: self.c_sbar(i))
            late = o.get("fl2_i", 5) == 5
            todo = []
            if i + 2 < 9 and not (late and i + 2 == 6): todo.append(i + 2)
            if late and i == 5: todo.insert(0, 6)
            for n, j in enumerate(todo):
                hd = {}
                def get(k, j=j, hd=hd):
                    if "p" not in hd: hd["p"] = self.h_load(j)
                    hd["p"][k]()
                for k in range(8): at2(f0 + (1 + k if len(todo) == 1 else (k + 8*n) * 15 // 16), lambda k=k, get=get: get(k))
        def resid():
            a(f"s_lshl_b32 s64, {sT}, 16"); a(f"s_lshl_b32 s7, {sC2}, 7"); a("s_add_u32 s64, s64, s7"); a("s_add_u32 s65, s64, 32768")
            a.vm(f"buffer_load_dwordx4 a[96:99], {cOUT}, {srd(S_X)}, s64 offen")
            a.vm(f"buffer_load_dwordx4 a[100:103], {cOUT}, {srd(S_X)}, s65 offen")
            a("v_lshrrev_b32 v56, 3, v0"); a("v_lshlrev_b32 v56, 4, v56")
            a(f"s_lshl_b32 s6, {sT}, 10"); a(f"s_add_u32 s6, s6, {WS_STAT + 4}")
            a.vm(f"buffer_load_dword v50, v56, {srd(S_WS)}, s6 offen sc1")
            self.xrtk = a.vm(f"buffer_load_dword v51, v56, {srd(S_WS)}, s6 offen offset:512 sc1")
        at2(NF1 + 16*7 + 2, resid)
        self.c_sbar(0)
        self.c_prime(NF1)
        self.c_run(NF1, NF, ex2, NF)
        self.final()

    def c_bar(self, G):
        a = self.a; o = self.o
        if G == o.get("pub0_G", 9) or G == o.get("pub1_G", 17): a.wait_all(lg=False)
        if G == 8: a.wait_all(vm=False)
        self.barrier("c", f"B{G}")
    def c_kv_read(self):
        a = self.a
        a(f"s_mul_i32 s6, {sW}, 1280"); a(f"s_add_u32 s6, s6, {L_KVO}"); a(f"v_lshlrev_b32 v{TMP}, 2, {vLANE}"); a(f"v_add_u32 v{TMP}, s6, v{TMP}")
        for v in range(5): self.kvrt = a.lg(f"ds_read_b32 v{TMP+1+v}, v{TMP} offset:{v*256}")
    def c_kv_atomics(self):
        a = self.a
        a(f"v_lshrrev_b32 v{TMP}, 4, {vLANE}"); a(f"v_lshlrev_b32 v{TMP}, 8, v{TMP}")
        a(f"v_and_b32 v{TMP+6}, 15, {vLANE}"); a(f"v_lshl_add_u32 v{TMP}, v{TMP+6}, 2, v{TMP}")
        a(f"v_lshlrev_b32 v{TMP+6}, 2, v{TMP+6}")
        a(f"v_cmp_gt_u32 vcc, 16, {vLANE}"); a(f"v_mov_b32 v{TMP+7}, {OOB}")
        a(f"s_lshl_b32 s64, {sCG}, 13"); a(f"s_mul_i32 s65, {sW}, {KVH}"); a("s_add_u32 s64, s64, s65"); a(f"s_add_u32 s64, s64, {WS_ACC + ACC_KV}")
        a(f"v_cndmask_b32 v{TMP+6}, v{TMP+7}, v{TMP+6}, vcc")
        a(f"s_cmp_eq_u32 {sPAR}, 0"); a("s_cselect_b64 vcc, -1, 0")
        a(f"v_cndmask_b32 v{TMP}, v{TMP+7}, v{TMP}, vcc"); a(f"v_cndmask_b32 v{TMP+6}, v{TMP+7}, v{TMP+6}, vcc")
        a.wait(lg=self.kvrt)
        for v in range(4): a.vm(f"buffer_atomic_add_f32 v{TMP+1+v}, v{TMP}, {srd(S_WS)}, s64 offen offset:{v*64} sc1")
        a.vm(f"buffer_atomic_add_f32 v{TMP+5}, v{TMP+6}, {srd(S_WS)}, s64 offen offset:1024 sc1")

    def c_touch_w2(self):
        a = self.a
        a(f"s_lshr_b32 s6, {sJ}, 2"); a("s_mul_i32 s6, s6, 288"); a(f"s_mul_i32 s7, {sW}, 72"); a("s_add_u32 s6, s6, s7")
        a(f"v_add_u32 v{TMP}, s6, {vLANE}"); a(f"v_lshlrev_b32 v{TMP}, 10, v{TMP}")
        a(f"s_lshl_b32 s6, {sC2}, 7")
        a(f"v_add_u32 v{TMP+1}, {64*1024}, v{TMP}")
        a(f"v_cmp_gt_u32 vcc, 8, {vLANE}"); a(f"v_mov_b32 v{TMP+2}, {OOB}"); a("s_nop 0")
        a(f"v_cndmask_b32 v{TMP+1}, v{TMP+2}, v{TMP+1}, vcc")
        a(f"s_mov_b32 s65, s6")
    def c_touch_step(self, k):
        a = self.a
        r = TMP + (k // 2)
        if k % 2 == 0: a.vm(f"buffer_load_dword v50, v{r}, {srd(S_WD)}, s65 offen")
        else:
            a(f"v_subrev_u32 v{TMP+4}, {1792*1024}, v{r}")
            a.vm(f"buffer_load_dword v50, v{TMP+4}, {srd(S_WO)}, s65 offen")

    def c_sbar(self, i):
        a = self.a; o = self.o
        if i == o.get("pub2_i", 1):
            a(f"s_waitcnt vmcnt({min(63, self.younger_than_e3())})")
        self.barrier("c", f"S{i}")
    def younger_than_e3(self):
        return self.a.vm_issued - self.e3_mark

    def final(self):
        a = self.a
        self.stamp("loopend")
        a(f"v_and_b32 v56, 31, {vLANE}"); a("s_movk_i32 s7, 272"); a("v_mul_lo_u32 v56, v56, s7")
        a(f"v_add_u32 v56, v56, {cG16}"); a(f"s_mul_i32 s6, {sW}, 17408"); a("v_add_u32 v56, s6, v56")
        for cb in range(2):
            for rf in range(2):
                for t in range(4):
                    r = ACC + (cb*2+rf)*16 + 4*t
                    a.lg(f"ds_write_b128 v56, v[{r}:{r+3}] offset:{rf*8704 + cb*128 + t*32}")
        a("v_lshrrev_b32 v57, 3, v0"); a("v_mul_lo_u32 v57, v57, s7")
        a("v_and_b32 v58, 7, v0"); a("v_lshl_add_u32 v57, v58, 5, v57")
        a.wait_all(vm=False)
        a("s_barrier")
        toks = {}
        for it in range(2):
            for p in range(4):
                for hh in range(2):
                    r = 64 + it*32 + p*8 + hh*4
                    toks[it] = a.lg(f"ds_read_b128 v[{r}:{r+3}], v57 offset:{p*17408 + it*8704 + hh*16}")
        a.wait(vm=self.xrtk)
        for k in range(8): a(f"v_accvgpr_read_b32 v{16+k}, a{96+k}")
        for it in range(2):
            a.wait(lg=toks[it])
            b = 64 + it*32; x = 16 + 4*it
            for k in range(0, 8, 2):
                a(f"v_pk_add_f32 v[{b+k}:{b+k+1}], v[{b+k}:{b+k+1}], v[{b+8+k}:{b+8+k+1}]")
                a(f"v_pk_add_f32 v[{b+16+k}:{b+16+k+1}], v[{b+16+k}:{b+16+k+1}], v[{b+24+k}:{b+24+k+1}]")
            a(f"v_mul_f32 v58, v{50+it}, v{50+it}")
            for k in range(0, 8, 2): a(f"v_pk_add_f32 v[{b+k}:{b+k+1}], v[{b+k}:{b+k+1}], v[{b+16+k}:{b+16+k+1}]")
            for k in range(4):
                a(f"v_lshlrev_b32 v59, 16, v{x+k}"); a(f"v_and_b32 v60, 0xffff0000, v{x+k}")
                a(f"v_fma_f32 v{b+2*k}, v{b+2*k}, v58, v59"); a(f"v_fma_f32 v{b+2*k+1}, v{b+2*k+1}, v58, v60")
            for k in range(4): a(f"v_cvt_pk_bf16_f32 v{24+4*it+k}, v{b+2*k}, v{b+2*k+1}")
            a.vm(f"buffer_store_dwordx4 v[{24+4*it}:{24+4*it+3}], {cOUT}, {srd(S_OUT)}, {'s64' if it == 0 else 's65'} offen")
        self.stamp("end"); self.stamp("rtend")
        if self.o.get("dbgtime"):
            a.wait_all()
            a("s_memtime s[88:89]"); a("s_memrealtime s[90:91]"); a("s_waitcnt lgkmcnt(0)")
            a("s_sub_u32 s88, s88, s84"); a("s_sub_u32 s90, s90, s86")
            a("s_mov_b32 s96, s92"); a("s_mov_b32 s97, s93"); a("s_mov_b32 s98, 256"); a("s_mov_b32 s99, 0x00020000")
            a("s_mov_b32 s6, 64")
            a("s_cmp_eq_u32 s2, 0"); a("s_cselect_b32 s6, 0, s6")
            a("s_cmp_eq_u32 s2, 100"); a("s_cselect_b32 s6, 16, s6")
            a("s_cmp_eq_u32 s2, 255"); a("s_cselect_b32 s6, 32, s6")
            a("s_cmp_eq_u32 s6, 64"); a(f"s_cselect_b32 s6, {OOB}, s6")
            a("v_mov_b32 v40, s88"); a("v_mov_b32 v41, s90"); a("v_mov_b32 v42, s86"); a("v_mov_b32 v43, s90")
            a("v_add_u32 v43, s86, v43")
            a(f"v_mov_b32 v44, {OOB}"); a("v_mov_b32 v45, s6"); a("v_cmp_eq_u32 vcc, 0, v0"); a("s_nop 1"); a("v_cndmask_b32 v44, v44, v45, vcc")
            a.vm("buffer_store_dwordx4 v[40:43], v44, s[96:99], 0 offen")
        self.prof_out(0)
        a("s_endpgm")

    def prof_out(self, woff):
        if self.prof is None: return
        a = self.a
        a.wait_all()
        a(f"s_lshl_b32 s6, s2, 3"); a(f"s_add_u32 s6, s6, {sW}"); a(f"s_add_u32 s6, s6, {woff}"); a("s_lshl_b32 s6, s6, 7"); a(f"s_add_u32 s6, s6, {WS_PROF}")
        a(f"v_cmp_eq_u32 vcc, 0, {vLANE}"); a(f"v_mov_b32 v40, {OOB}"); a("v_mov_b32 v41, 0"); a("v_cndmask_b32 v40, v40, v41, vcc")
        for i in range(len(self.prof)):
            a(f"v_mov_b32 v42, s{84+2*i}"); a(f"v_mov_b32 v43, s{85+2*i}")
            a.vm(f"buffer_store_dwordx2 v[42:43], v40, {srd(S_WS)}, s6 offen offset:{i*8}")
            a("s_nop 1")

    def build(self):
        a = self.a
        self.bars = {}
        self.prologue()
        prot = set(a.protect)
        self.sfx = "_c"
        self.h_setup()
        st = (a.vm_issued, a.lg_issued, a.vm_floor, a.lg_floor)
        saved = (dict(self.xtok), dict(self.wtok)); m0s = (self.m0_owner, self.m0_val)
        a(f"s_cmp_eq_u32 {sPAR}, 0"); a("s_cbranch_scc0 Lhodd")
        self.helper(0)
        a.label("Lhodd")
        a.vm_issued, a.lg_issued, a.vm_floor, a.lg_floor = st
        self.xtok, self.wtok = dict(saved[0]), dict(saved[1]); self.m0_owner, self.m0_val = m0s; self.open_item = {}
        self.helper(1)
        a.label("Lcompute")
        a.vm_issued = a.lg_issued = a.vm_floor = a.lg_floor = 0
        a.protect = prot
        self.compute()
        a.label("Lend")
        a("s_endpgm")
        assert self.bars["c"] == self.bars["h0"] == self.bars["h1"], (self.bars["c"], self.bars["h0"])
        L = self.log
        print("schedule:", {str(k): v for k, v in sorted(L.items(), key=str)}, file=sys.stderr)
        for c in (0, 1):
            assert L[(1, "pub", 0)] < L[(c, "chk", 0)]
            for ph in (1, 2):
                for p in (0, 1): assert L[(p, "pub", ph)] < L[(c, "chk", ph)], ("order", ph, p, c)
            for d in (0, 1):
                assert L[f"cs_pubA_{c}"] < L[f"cs_chkA_{d}"] and L[f"cs_pubB_{c}"] < L[f"cs_chkB_{d}"] and L[f"st_pub_{c}"] < L[f"st_chk_{d}"]
        assert L[(0, "kvcnt")] < L[(1, "kvchk")]
        for e in self.slow: e()
        a.label("Lcode_end")
        a.finalize()
        return a.text()

HEADER = """; Kernarg layout for this problem (80 bytes, ptrs only, base s[0:1]):
; @launch grid=(256,1,1) block=(512,1,1) lds=%d
.amdgcn_target "amdgcn-amd-amdhsa--gfx950"
.text
.globl %s
.p2align 8
.type %s,@function
%s:
"""
FOOTER = """
.section .rodata,"a"
.p2align 6
.amdhsa_kernel %s
  .amdhsa_next_free_vgpr 256
  .amdhsa_next_free_sgpr 102
  .amdhsa_accum_offset 128
  .amdhsa_group_segment_fixed_size 0
  .amdhsa_kernarg_size 80
  .amdhsa_user_sgpr_count 2
  .amdhsa_user_sgpr_kernarg_segment_ptr 1
  .amdhsa_system_sgpr_workgroup_id_x 1
.end_amdhsa_kernel
"""
BLOCK = 512
def generate(prof=None, opts=None):
    g = Gen(prof=prof, opts=opts)
    body = g.build()
    return HEADER % (LDS_BYTES, KNAME, KNAME, KNAME) + body + "\n" + FOOTER % KNAME

if __name__ == "__main__":
    prof = None; opts = {}; out = None
    for x in sys.argv[1:]:
        if x.startswith("--prof="): prof = x[7:].split(",")
        elif x.startswith("--opt="):
            for kv in x[6:].split(","):
                k, v = kv.split("="); opts[k] = int(v)
        else: out = x
    txt = generate(prof, opts)
    path = out or "parallel_sum__linear_attn_block__glu_gated_reglu__prompt.s"
    open(path, "w").write(txt)
    print("wrote", path, len(txt), "bytes")
```

```python
import sys, os
sys.path.insert(0, os.path.dirname(os.path.abspath(__file__)))
from asmlib import Asm

KNAME = "parallel_sum__linear_attn_block__glu_gated_reglu__prompt_kernel"

WS_EPOCH = 0x0
WS_ZF    = 0x1000
WS_HF    = 0x2000
WS_STAT  = 0x10000
WS_ACC   = 0x20000
ACC_CNT_KV = 1408
ACC_KV     = 2048
KVH, KVR = 1088, 64
WS_CSP   = 0x40000
WS_CSPA  = 0xC0000
WS_H     = 0x100000
WS_KVP   = 0xA00000
WS_KVZP  = 0xA80000
WS_KVF   = 0xA90000
WS_PROF  = 0xF00000
OOB      = 0x7FFFFFF0

NW = 5
L_X    = 0x14000
L_CA   = 0x20000
L_KVS  = 0x14000
KVP    = 136
L_CST  = 0x24800
L_STT  = 0x24E00
L_KVZ  = 0x25400
L_KVO  = 0x26400
W2SLOT = [0x14000, 0x0, 0x8000, 0x1C000]
LDS_BYTES = 0x28000

LOOK = 6
NFR  = 8
NF1  = 320
NF   = NF1 + 144

S_X, S_WS, S_OUT, S_U1, S_U2, S_U3, S_WD, S_WO = 8, 12, 16, 20, 24, 28, 32, 36
def srd(b): return f"s[{b}:{b+3}]"
sC1B, sC2B, sP1, sP3, sC3B, sJ = "s40", "s41", "s42", "s43", "s44", "s45"
sW, sR, sCG, sM, sPAR, sWLDS = "s46", "s47", "s48", "s49", "s50", "s51"
sU1b, sU1c64, sU2b, sU3c64 = "s52", "s53", "s54", "s55"
sXB, sW8K = "s56", "s57"
sTAGL, sTAGH = "s60", "s61"
sACC = "s62"
sROT = "s4"
sQA, sQB, sQC = "s5", "s3", "s63"
sT, sC2, sR2, sHALF = "s80", "s81", "s82", "s83"
sHB = "s70"
vLANE, vL16 = "v1", "v2"

cWA = [["v3", "v4"], ["v5", "v6"]]
cSA = ["v7", "v8"]
cXA = ["v9", "v10", "v11", "v12"]
cB2 = ["v9", "v10"]; cB2H = ["v11", "v12"]
cRSTD, cRL, cG16, cCSA = "v13", "v14", "v15", "v48"
RING = 16
BAUG = 52
cOUT = "v49"
TMP = 56
ACC = 64
hSA = "v3"
vU1 = [4, 5, 6, 7]; vU2 = [8, 9, 10, 11]; vU3 = [12, 13, 14, 15]; vX = [16, 17, 18, 19]; vW2 = [20, 21, 22, 23]
hG16, hCSA, hL0, vPOLL, vDUM = "v24", "v25", "v26", "v27", "v28"
TAG = 30
vTAGL, vTAGH = "v30", "v31"
FLD = 32

class Task:
    def __init__(self, g, wake, name):
        self.g = g; self.wake = wake; self.done = False; self.name = name

class Gen:
    def __init__(self, prof=None, opts=None):
        self.a = Asm()
        self.slow = []
        self.prof = prof
        self.tasks = []
        self.log = {}
        self.o = dict(codepf=1, hbudget=3)
        if opts: self.o.update(opts)
        self.nbar = {"c": 0, "h0": 0, "h1": 0}
        self.m0_owner = None; self.m0_val = None; self.open_item = {}

    def stamp(self, name):
        if self.prof is None or name not in self.prof: return
        i = self.prof.index(name)
        assert i < 9
        op = "s_memrealtime" if name.startswith("rt") else "s_memtime"
        self.a(f"{op} s[{84+2*i}:{85+2*i}]")
    def spawn(self, g, wake, name, front=False):
        t = Task(g, wake, name)
        if front: self.tasks.insert(0, t)
        else: self.tasks.append(t)
        return t
    def step(self, t):
        try: r = next(t.g)
        except StopIteration:
            t.done = True; return
        if r is not None: t.wake = r
    def pump(self, f, start, budget):
        a = self.a
        while len(a.lines) - start < budget:
            t = next((t for t in self.tasks if not t.done and t.wake <= f), None)
            if t is None: break
            self.step(t)
        self.tasks = [t for t in self.tasks if not t.done]
    def finish(self, name):
        cap = getattr(self, "int_cap", 0); self.int_cap = 10**9
        for t in list(self.tasks):
            if t.name == name:
                while not t.done: self.step(t)
        self.int_cap = cap
        self.tasks = [t for t in self.tasks if not t.done]
    def active(self, name): return any(t.name == name and not t.done for t in self.tasks)
    def barrier(self, who, name):
        self.bars.setdefault(who, []).append(name)
        self.stamp(f"{who[0]}{name}_in")
        self.a("s_barrier")
        self.stamp(f"{who[0]}{name}_out")

    def poll_check(self, tok, cmp_lines, reissue, name="x"):
        a = self.a
        slow = a.newlabel("Lslow"); back = a.newlabel("Lback")
        self.stamp(name + "_in")
        a.wait(vm=tok)
        a(cmp_lines)
        a("s_cmp_eq_u64 vcc, -1")
        a(f"s_cbranch_scc0 {slow}")
        a.label(back)
        self.stamp(name + "_out")
        def emit():
            loop = a.newlabel("Lspin")
            a.label(slow)
            a("s_mov_b32 s66, 0x4000")
            a.label(loop)
            a("s_sleep 1")
            a(reissue)
            a("s_waitcnt vmcnt(0)")
            a(cmp_lines)
            a("s_cmp_eq_u64 vcc, -1")
            a(f"s_cbranch_scc1 {back}")
            a("s_sub_u32 s66, s66, 1")
            a("s_cmp_lg_u32 s66, 0")
            a(f"s_cbranch_scc1 {loop}")
            a(f"s_branch {back}")
        self.slow.append(emit)
    def tagcmp(self, d):
        return (f"v_cmp_eq_u32 vcc, v{d}, {vTAGL}\n"
                f"v_cmp_eq_u32 s[64:65], v{d+1}, {vTAGH}\n"
                f"s_and_b64 vcc, vcc, s[64:65]")
    def reset_track(self):
        a = self.a
        a.vm_floor = a.vm_issued; a.lg_floor = a.lg_issued

    def prologue(self):
        a = self.a
        a("s_cmp_ge_u32 s2, 256")
        a("s_cbranch_scc1 Lend")
        a(f"s_load_dwordx2 s[{S_X}:{S_X+1}], s[0:1], 0")
        a("s_load_dwordx2 s[64:65], s[0:1], 8")
        a("s_load_dwordx4 s[68:71], s[0:1], 32")
        a(f"s_load_dwordx2 s[{S_WS}:{S_WS+1}], s[0:1], 72")
        a(f"s_load_dwordx2 s[{S_WD}:{S_WD+1}], s[0:1], 48")
        a(f"s_load_dwordx2 s[{S_WO}:{S_WO+1}], s[0:1], 16")
        a(f"s_load_dwordx2 s[{S_OUT}:{S_OUT+1}], s[0:1], 56")
        a.protect = {("s", i) for i in (64, 65, 68, 69, 70, 71)}
        self.stamp("start"); self.stamp("rtstart")
        if self.o.get("dbgtime"):
            a("s_memtime s[84:85]"); a("s_memrealtime s[86:87]"); a("s_load_dwordx2 s[92:93], s[0:1], 64")
        for b, size in ((S_X, 2097152), (S_WS, 0x10000000), (S_OUT, 2097152), (S_WD, 1792*1024), (S_WO, 524288), (S_U2, 512*3584)):
            a(f"s_mov_b32 s{b+2}, {size}"); a(f"s_mov_b32 s{b+3}, 0x00020000")
        a(f"s_mov_b32 s{S_U1+3}, 0x00020000"); a(f"s_mov_b32 s{S_U3+3}, 0x00020000")
        a(f"v_and_b32 {vLANE}, 63, v0")
        a("v_lshrrev_b32 v32, 6, v0")
        a(f"v_lshlrev_b32 {vL16}, 4, {vLANE}")
        a("v_readfirstlane_b32 s72, v32")
        a(f"s_and_b32 {sW}, s72, 3")
        a("s_and_b32 s3, s2, 7")
        a(f"s_lshr_b32 {sJ}, s2, 3")
        a("s_lshr_b32 s7, s3, 2"); a(f"s_lshl_b32 {sR}, s7, 3")
        a(f"s_lshr_b32 s7, {sJ}, 2"); a(f"s_add_u32 {sR}, {sR}, s7")
        a("s_and_b32 s7, s3, 3"); a(f"s_lshl_b32 {sCG}, s7, 2")
        a(f"s_and_b32 s7, {sJ}, 3"); a(f"s_add_u32 {sCG}, {sCG}, s7")
        a(f"s_lshr_b32 {sM}, {sCG}, 1"); a(f"s_and_b32 {sPAR}, {sCG}, 1")
        a(f"s_bfe_u32 {sHALF}, s3, {(1 << 16) | 1}"); a(f"s_lshl_b32 {sT}, {sR}, 1"); a(f"s_add_u32 {sT}, {sT}, {sHALF}")
        a(f"s_and_b32 {sC2}, s3, 1"); a(f"s_lshl_b32 {sC2}, {sC2}, 2"); a(f"s_and_b32 s7, {sJ}, 3"); a(f"s_add_u32 {sC2}, {sC2}, s7")
        a(f"s_mov_b32 {sR2}, {sR}")
        a(f"s_lshl_b32 {sWLDS}, {sW}, 12"); a(f"s_lshl_b32 {sW8K}, {sW}, 13")
        a("s_cmp_lt_u32 s72, 4")
        a("s_cbranch_scc1 Lcompute")

    def h_setup(self):
        a = self.a
        self.xtok = {}; self.wtok = {}
        a(f"s_add_u32 s6, {sCG}, {sR}"); a(f"s_and_b32 {sROT}, s6, 3")
        a(f"s_lshl_b32 s6, {sR}, 7"); a(f"s_lshl_b32 s7, {sW}, 5"); a("s_add_u32 s6, s6, s7")
        a(f"s_lshl_b32 {sXB}, s6, 10")
        a(f"v_lshrrev_b32 v44, 3, {vLANE}"); a(f"v_and_b32 v45, 7, {vLANE}")
        a(f"v_lshrrev_b32 v47, 4, {vLANE}"); a("v_xor_b32 v47, v45, v47"); a("v_lshlrev_b32 v47, 4, v47")
        a(f"v_lshl_add_u32 v{vX[0]}, v44, 10, v47")
        a(f"v_xor_b32 v47, 64, v{vX[0]}")
        a(f"v_add_u32 v{vX[1]}, {7*1024}, v47"); a(f"v_add_u32 v{vX[2]}, {14*1024}, v{vX[0]}"); a(f"v_add_u32 v{vX[3]}, {21*1024}, v47")
        a(f"s_cmp_eq_u32 {sPAR}, 0")
        a("s_movk_i32 s6, 3072"); a("s_movk_i32 s7, 3584")
        a(f"s_cselect_b32 {sP1}, s6, s7"); a(f"s_cselect_b32 {sP3}, s7, s6")
        a(f"s_mov_b32 s6, {512*3072}"); a(f"s_mov_b32 s7, {512*3584}")
        a(f"s_cselect_b32 s{S_U1+2}, s6, s7"); a(f"s_cselect_b32 s{S_U3+2}, s7, s6")
        a(f"v_bfe_u32 v43, {vLANE}, 4, 1")
        a("v_lshlrev_b32 v46, 2, v43"); a("v_xor_b32 v46, v45, v46"); a("v_lshlrev_b32 v46, 4, v46")
        a(f"v_mul_lo_u32 v47, v44, {sP1}"); a(f"v_add_u32 v{vU1[0]}, v47, v46")
        a(f"s_lshl_b32 s6, {sP1}, 3"); a("s_sub_u32 s6, s6, 1024")
        for i in range(1, 4): a(f"v_add_u32 v{vU1[i]}, s6, v{vU1[i-1]}")
        a(f"s_lshr_b32 s72, {sW}, 1")
        a("s_lshl_b32 s73, s72, 10"); a("s_add_u32 s73, s73, 1024")
        a(f"s_lshl_b32 s7, {sM}, 7"); a("s_add_u32 s73, s73, s7")
        a(f"s_lshl_b32 s6, {sM}, 8"); a("s_add_u32 s6, s6, 1024")
        a(f"s_cmp_eq_u32 {sPAR}, 0"); a(f"s_cselect_b32 {sC1B}, s73, s6")
        a(f"s_and_b32 s73, {sW}, 1")
        a(f"s_lshl_b32 {sU1c64}, {sP1}, 6")
        a(f"s_mul_i32 s6, s73, {sP1}"); a("s_lshl_b32 s7, s6, 5"); a(f"s_add_u32 {sU1b}, {sC1B}, s7")
        a("s_waitcnt lgkmcnt(0)")
        self.stamp("kargs")
        self.dma_x(0)
        a(f"s_cmp_lt_u32 {sW}, 2")
        a(f"s_cselect_b32 s{S_U2}, s68, s70"); a(f"s_cselect_b32 s{S_U2+1}, s69, s71")
        a(f"s_cmp_eq_u32 {sPAR}, 0")
        a(f"s_cselect_b32 s{S_U1}, s64, s{S_U2}"); a(f"s_cselect_b32 s{S_U1+1}, s65, s{S_U2+1}")
        a(f"s_cselect_b32 s{S_U3}, s{S_U2}, s64"); a(f"s_cselect_b32 s{S_U3+1}, s{S_U2+1}, s65")
        a.protect = set()
        self.dma_w(0); self.dma_x(1); self.dma_w(1)
        a(f"s_load_dwordx2 s[60:61], s[{S_WS}:{S_WS+1}], 0")
        a(f"v_lshrrev_b32 v40, 5, {vLANE}"); a(f"v_bfe_u32 v41, {vLANE}, 2, 2"); a(f"v_and_b32 v42, 3, {vLANE}")
        a(f"s_lshl_b32 s7, {sM}, 7"); a(f"s_lshl_b32 s6, {sM}, 8"); a("s_add_u32 s6, s6, 1152")
        a(f"s_cmp_eq_u32 {sPAR}, 0"); a(f"s_cselect_b32 {sC2B}, s7, s6")
        a(f"s_lshr_b32 s6, {sM}, 1"); a("s_lshl_b32 s6, s6, 7"); a("s_add_u32 s6, s6, 3072")
        a(f"s_and_b32 s73, {sM}, 1"); a("s_lshl_b32 s73, s73, 6"); a("s_add_u32 s6, s6, s73")
        a("s_lshl_b32 s73, s72, 6"); a("s_add_u32 s73, s73, s7")
        a(f"s_cmp_eq_u32 {sPAR}, 0"); a(f"s_cselect_b32 {sC3B}, s6, s73")
        a(f"s_and_b32 s72, {sW}, 1")
        if self.o.get("touch1", 0): self.touch1()
        a("v_lshlrev_b32 v47, 5, v43"); a("v_lshl_add_u32 v47, v42, 3, v47")
        a("v_lshl_add_u32 v48, v40, 3, v41"); a("v_lshlrev_b32 v48, 6, v48"); a(f"v_add_u32 {hSA}, v48, v47")
        a(f"v_lshlrev_b32 {hG16}, 4, v40")
        a("s_movk_i32 s7, 3584"); a("v_mul_lo_u32 v47, v44, s7"); a(f"v_add_u32 v{vU2[0]}, v47, v46")
        for i in range(1, 4): a(f"v_add_u32 v{vU2[i]}, {8*3584-1024}, v{vU2[i-1]}")
        a(f"s_mul_i32 s7, s72, {32*3584}"); a(f"s_add_u32 {sU2b}, {sC2B}, s7")
        a(f"v_lshrrev_b32 v49, 2, {vLANE}"); a(f"v_mul_lo_u32 v47, v49, {sP3}"); a(f"v_lshl_add_u32 v{vU3[0]}, v42, 4, v47")
        a(f"s_lshl_b32 s6, {sP3}, 4"); a("s_sub_u32 s6, s6, 1024")
        for i in range(1, 4): a(f"v_add_u32 v{vU3[i]}, s6, v{vU3[i-1]}")
        a(f"s_lshl_b32 {sU3c64}, {sP3}, 6")
        a(f"v_lshl_add_u32 v{vW2[0]}, v44, 10, v46")
        for k in range(1, 4): a(f"v_add_u32 v{vW2[k]}, {7*1024*k}, v{vW2[0]}")
        a(f"v_mul_lo_u32 v47, v49, {sP1}"); a("v_lshl_add_u32 v34, v42, 4, v47")
        a(f"s_lshl_b32 s6, {sP1}, 4"); a("s_sub_u32 s6, s6, 1024"); a("v_add_u32 v35, s6, v34")
        a("s_movk_i32 s7, 3584"); a("v_mul_lo_u32 v47, v49, s7"); a("v_lshl_add_u32 v36, v42, 4, v47"); a(f"v_add_u32 v37, {16*3584-1024}, v36")
        a(f"s_and_b32 s6, {sR}, 7"); a("s_lshl_b32 s6, s6, 6"); a(f"s_lshr_b32 s7, {sR}, 3"); a("s_lshl_b32 s7, s7, 5"); a("s_add_u32 s6, s6, s7")
        a("s_lshl_b32 s7, s72, 6")
        a(f"s_mul_i32 s73, s6, {sP1}"); a(f"s_add_u32 s73, s73, {sC1B}"); a("s_add_u32 s73, s73, s7")
        a("s_mul_i32 s74, s6, 3584"); a(f"s_add_u32 s74, s74, {sC2B}"); a("s_add_u32 s74, s74, s7")
        a(f"s_mul_i32 s75, s6, {sP3}"); a(f"s_add_u32 s75, s75, {sC3B}")
        a(f"s_lshl_b32 {sACC}, {sCG}, 13"); a(f"s_add_u32 {sACC}, {sACC}, {WS_ACC}")
        a(f"s_lshl_b32 s6, {sR}, 7"); a(f"s_lshl_b32 s7, {sCG}, 3"); a("s_add_u32 s6, s6, s7")
        a(f"s_lshl_b32 s7, {sW}, 1"); a("s_add_u32 s76, s6, s7")
        a(f"v_and_b32 {hCSA}, 31, {vLANE}"); a(f"v_lshlrev_b32 {hCSA}, 2, {hCSA}"); a(f"v_add_u32 {hCSA}, {L_CST}, {hCSA}")
        a(f"v_cmp_eq_u32 vcc, 0, {vLANE}"); a(f"v_mov_b32 {hL0}, {OOB}"); a("v_mov_b32 v47, 0"); a(f"v_cndmask_b32 {hL0}, {hL0}, v47, vcc")
        a(f"s_lshl_b32 s6, {sR}, 1"); a(f"s_lshr_b32 s7, {sW}, 1"); a("s_add_u32 s6, s6, s7"); a("s_mul_i32 s6, s6, 768")
        a(f"s_lshl_b32 s7, {sCG}, 4"); a("s_add_u32 s6, s6, s7"); a("s_lshl_b32 s7, s72, 3"); a("s_add_u32 s6, s6, s7"); a(f"s_add_u32 s77, s6, {WS_HF}")
        for _ in self.t_s2_q(): pass
        a("s_waitcnt lgkmcnt(0)")
        a(f"s_add_u32 {sTAGL}, {sTAGL}, 1"); a(f"s_addc_u32 {sTAGH}, {sTAGH}, 0")
        a(f"v_mov_b32 {vTAGL}, {sTAGL}"); a(f"v_mov_b32 {vTAGH}, {sTAGH}")

    def touch1(self):
        a = self.a
        a(f"s_and_b32 s6, {sR}, 7"); a("s_lshl_b32 s6, s6, 6"); a(f"s_and_b32 s7, {sW}, 1"); a("s_lshl_b32 s7, s7, 5"); a("s_add_u32 s6, s6, s7")
        a(f"v_and_b32 v50, 31, {vLANE}"); a("v_add_u32 v50, s6, v50")
        a(f"v_mul_lo_u32 v51, v50, {sP1}")
        a.vm(f"buffer_load_dword {vDUM}, v51, {srd(S_U1)}, {sC1B} offen")
        a(f"v_and_b32 v52, 31, {vLANE}"); a(f"v_lshrrev_b32 v53, 5, {vLANE}"); a(f"s_lshl_b32 s6, {sW}, 1"); a("s_add_u32 s6, s6, 2"); a("v_add_u32 v53, s6, v53")
        a("v_lshlrev_b32 v52, 10, v52"); a("v_lshl_add_u32 v52, v53, 7, v52")
        a("v_cmp_lt_u32 vcc, 7, v53"); a(f"v_mov_b32 v53, {OOB}"); a("s_nop 0"); a("v_cndmask_b32 v52, v52, v53, vcc")
        a(f"s_lshl_b32 s6, {sR}, 7"); a(f"s_and_b32 s7, {sCG}, 3"); a("s_lshl_b32 s7, s7, 5"); a("s_add_u32 s6, s6, s7"); a("s_lshl_b32 s6, s6, 10")
        a.vm(f"buffer_load_dword {vDUM}, v52, {srd(S_X)}, s6 offen")
        a("s_movk_i32 s7, 3584"); a("v_mul_lo_u32 v51, v50, s7")
        a.vm(f"buffer_load_dword {vDUM}, v51, {srd(S_U2)}, {sC2B} offen")
        a(f"v_mul_lo_u32 v51, v50, {sP3}")
        a.vm(f"buffer_load_dword {vDUM}, v51, {srd(S_U3)}, {sC3B} offen")

    def mkparts(self, head, vs, sr, so, settok, ldsbase):
        a = self.a
        parts = []
        for i in range(4):
            def p(i=i):
                key = (so, ldsbase)
                if i == 0:
                    assert self.open_item.get(so) is None
                    self.open_item[so] = key
                assert self.open_item[so] == key
                if i == 3: self.open_item[so] = None
                if i == 0: head()
                elif self.m0_owner != so or self.m0_val != ldsbase: a(f"s_add_u32 m0, {sWLDS}, {ldsbase}")
                self.m0_owner = so; self.m0_val = ldsbase
                settok(a.vm(f"buffer_load_dwordx4 v{vs[i]}, {srd(sr)}, {so} offen{' offset:%d' % (1024*i) if i else ''} lds"))
            parts.append(p)
        return parts
    def m0_clobber(self): self.m0_owner = None
    def dma_x_parts(self, c):
        a = self.a
        def head():
            a(f"s_add_u32 m0, {sWLDS}, {L_X + (c % 3)*16384}")
            a(f"s_add_u32 s7, {sROT}, {c & 3}"); a("s_and_b32 s7, s7, 3")
            if c & 4: a("s_or_b32 s7, s7, 4")
            a("s_lshl_b32 s7, s7, 7"); a(f"s_add_u32 s58, {sXB}, s7")
        return self.mkparts(head, vX, S_X, "s58", lambda t: self.xtok.__setitem__(c, t), L_X + (c % 3)*16384)
    def dma_w_parts(self, G):
        a = self.a
        slot = G % NW
        if G < 8:    vs, sr, b, c64 = vU1, S_U1, sU1b, sU1c64
        elif G < 16: vs, sr, b, c64 = vU2, S_U2, sU2b, str(64*3584)
        else:        vs, sr, b, c64 = vU3, S_U3, sC3B, sU3c64
        def head():
            a(f"s_add_u32 m0, {sWLDS}, {slot*16384}")
            if G < 16:
                pos = G % 8; a(f"s_add_u32 s7, {sROT}, {pos & 3}")
            else:
                pos = 2*(G-16)
                a(f"s_and_b32 s7, {sW}, 1"); a(f"s_add_u32 s7, s7, {sROT}"); a(f"s_add_u32 s7, s7, {pos & 3}")
            a("s_and_b32 s7, s7, 3")
            if pos & 4: a("s_or_b32 s7, s7, 4")
            a(f"s_mul_i32 s7, s7, {c64}"); a(f"s_add_u32 s59, {b}, s7")
        return self.mkparts(head, vs, sr, "s59", lambda t: self.wtok.__setitem__(G, t), slot*16384)
    def dma_x(self, c):
        for p in self.dma_x_parts(c): p()
    def dma_w(self, G):
        for p in self.dma_w_parts(G): p()
    def slab(self, base_expr, v0, v1, sr, so):
        a = self.a
        a(base_expr); self.m0_clobber(); a("s_nop 0")
        a.vm(f"buffer_load_dwordx4 v{v0}, {srd(sr)}, {so} offen lds")
        return a.vm(f"buffer_load_dwordx4 v{v1}, {srd(sr)}, {so} offen offset:1024 lds")

    def t_early(self):
        a = self.a; o = self.o
        a(f"s_lshl_b32 s6, {sW}, 11")
        self.ctokA = self.slab(f"s_add_u32 m0, s6, {L_CA}", 34, 35, S_U1, "s73"); yield
        if o["codepf"]:
            a("s_getpc_b64 s[64:65]")
            a.label("Lpc0" + self.sfx)
            a(f"s_sub_u32 s64, s64, Lpc0{self.sfx}-{KNAME}"); a("s_subb_u32 s65, s65, 0")
            a(f"v_min_u32 v40, 2, {vLANE}")
            a(f"s_mul_i32 s6, {sJ}, 12"); a(f"s_mul_i32 s7, {sW}, 3"); a("s_add_u32 s6, s6, s7")
            a("v_add_u32 v40, s6, v40"); a("v_lshlrev_b32 v40, 7, v40")
            a(f"s_mov_b32 s66, Lcode_end-{KNAME}-4"); a("v_min_u32 v40, s66, v40")
            a.vm(f"global_load_dword {vDUM}, v40, s[64:65]"); yield

    DPPM = ("quad_perm:[1,0,3,2] row_mask:0xf", "quad_perm:[2,3,0,1] row_mask:0xf", "row_half_mirror row_mask:0xf",
            "row_mirror row_mask:0xf", "row_bcast:15 row_mask:0xa", "row_bcast:31 row_mask:0xc")
    def c_stats(self):
        a = self.a
        D = 64
        for r in range(2):
            for k in range(4):
                a(f"v_lshlrev_b32 v{D+8*r+2*k}, 16, v{16+4*r+k}"); a(f"v_and_b32 v{D+8*r+2*k+1}, 0xffff0000, v{16+4*r+k}")
        for k in range(1, 8):
            for r in range(2):
                d = D + 8*r; t = 80 + r
                a(f"v_add_f32 v{t}, v{d}, v{d+1}" if k == 1 else f"v_add_f32 v{t}, v{t}, v{d+k}")
        for mod in self.DPPM:
            for v in ("v80", "v81"): a(f"v_add_f32_dpp {v}, {v}, {v} {mod} bank_mask:0xf")
        a("v_readlane_b32 s78, v80, 63"); a("v_readlane_b32 s79, v81, 63")
        a("s_mov_b32 s66, 0x3b000000"); a("v_mov_b32 v82, s78"); a("v_mov_b32 v83, s79")
        a("v_mul_f32 v82, s66, v82"); a("v_mul_f32 v83, s66, v83")
        for k in range(8):
            for r in range(2): a(f"v_sub_f32 v{D+8*r+k}, v{D+8*r+k}, v{82+r}")
        for k in range(8):
            for r in range(2):
                d = D + 8*r; t = 80 + r
                a(f"v_mul_f32 v{t}, v{d}, v{d}" if k == 0 else f"v_fmac_f32 v{t}, v{d+k}, v{d+k}")
        for mod in self.DPPM:
            for v in ("v80", "v81"): a(f"v_add_f32_dpp {v}, {v}, {v} {mod} bank_mask:0xf")
        a("v_readlane_b32 s78, v80, 63"); a("v_readlane_b32 s79, v81, 63")
        a("v_mov_b32 v84, s78"); a("v_mov_b32 v85, s79"); a("v_mov_b32 v86, 0x3727c5ac")
        a("v_fma_f32 v84, v84, s66, v86"); a("v_fma_f32 v85, v85, s66, v86")
        a("v_rsq_f32 v84, v84"); a("v_rsq_f32 v85, v85")
        a(f"v_cmp_eq_u32 vcc, 1, {vLANE}"); a("v_mov_b32 v90, s60"); a("v_mov_b32 v91, s61")
        a("v_cndmask_b32 v88, v82, v83, vcc"); a("v_cndmask_b32 v89, v84, v85, vcc")
        a(f"v_cmp_gt_u32 vcc, 2, {vLANE}"); a(f"v_mov_b32 v87, {OOB}")
        a("s_lshl_b32 s6, s75, 4"); a(f"s_add_u32 s6, s6, {WS_STAT}")
        a(f"v_cndmask_b32 v86, v87, {vL16}, vcc")
        a.vm(f"buffer_store_dwordx4 v[88:91], v86, {srd(S_WS)}, s6 offen sc1")

    def t_cs(self, rnd):
        a = self.a
        A = rnd == "A"
        nu = 1 if A else 2
        FR, ONES, D0, AD, RES = 96, 112, 116, 88, 84
        a(f"s_lshl_b32 s6, {sW}, {11 if A else 12}"); a(f"s_add_u32 s6, s6, {L_CA}")
        a(f"v_add_u32 v{AD}, s6, {hSA}"); yield
        for k in range(4): a(f"v_mov_b32 v{ONES+k}, 0x3f803f80")
        yield
        a(f"v_and_b32 v{AD+1}, 31, {vLANE}"); a(f"v_lshlrev_b32 v{AD+1}, {3 if A else 4}, v{AD+1}")
        a(f"v_cmp_gt_u32 vcc, 32, {vLANE}"); a(f"v_mov_b32 v{AD+2}, {OOB}"); a("s_nop 0")
        a(f"v_cndmask_b32 v{AD+1}, v{AD+2}, v{AD+1}, vcc"); yield
        a.wait(vm=self.ctokA if A else self.ctokB)
        for ui in range(nu):
            for s in range(2):
                for q in range(2):
                    r = FR + ui*8 + s*4 + q*2
                    t = a.lg(f"ds_read_b64_tr_b16 v[{r}:{r+1}], v{AD} offset:{ui*2048 + (16*s + 4*q)*64}")
            yield
        if not A: yield self.int_end
        a.wait(lg=t)
        DT = [116, 60]
        DT = [52, 68]
        for ui in range(nu):
            d = DT[ui]
            for s in range(2):
                r = FR + ui*8 + s*4
                a(f"v_mfma_f32_32x32x16_bf16 v[{d}:{d+15}], v[{ONES}:{ONES+3}], v[{r}:{r+3}], {'0' if s == 0 else f'v[{d}:{d+15}]'}")
            yield
        a(f"s_lshl_b32 s6, {sCG}, 4"); a(f"s_add_u32 s6, s6, {sR}"); a("s_lshl_b32 s6, s6, 2"); a(f"s_add_u32 s6, s6, {sW}")
        a(f"s_lshl_b32 s6, s6, {8 if A else 9}"); a(f"s_add_u32 s71, s6, {WS_CSPA if A else WS_CSP}"); yield
        if not A: yield self.int_end
        if A:
            a(f"v_mov_b32 v{RES}, v52"); a(f"v_mov_b32 v{RES+1}, {vTAGL}")
            a.vm(f"buffer_store_dwordx2 v[{RES}:{RES+1}], v{AD+1}, {srd(S_WS)}, s71 offen sc1"); yield
        else:
            a(f"v_mov_b32 v{RES}, v52"); a(f"v_mov_b32 v{RES+1}, v68"); a(f"v_mov_b32 v{RES+2}, {vTAGL}"); a(f"v_mov_b32 v{RES+3}, {vTAGL}")
            a.vm(f"buffer_store_dwordx4 v[{RES}:{RES+3}], v{AD+1}, {srd(S_WS)}, s71 offen sc1"); yield
        self.log["cs_pub" + rnd + self.sfx] = self.f

    def t_csum(self, rnd, chk_f):
        a = self.a
        A = rnd == "A"
        B = 52; W = 2 if A else 4; AD = 92
        SB, ST = "s68", "s69"
        a(f"v_and_b32 v{AD}, 31, {vLANE}"); a(f"v_lshlrev_b32 v{AD}, {3 if A else 4}, v{AD}")
        a(f"v_lshrrev_b32 v{AD+1}, 5, {vLANE}"); a(f"v_lshl_add_u32 v{AD}, v{AD+1}, {10 if A else 11}, v{AD}"); yield
        a(f"s_lshl_b32 s6, {sCG}, {14 if A else 15}"); a(f"s_lshl_b32 s7, {sW}, {8 if A else 9}"); a("s_add_u32 s6, s6, s7")
        a(f"s_add_u32 {SB}, s6, {WS_CSPA if A else WS_CSP}"); yield
        def loads():
            return [f"s_add_u32 {ST}, {SB}, {i*(2048 if A else 4096)}\nbuffer_load_dwordx{W} v[{B+W*i}:{B+W*i+W-1}], v{AD}, {srd(S_WS)}, {ST} offen sc1" for i in range(8)]
        for t in loads():
            yield from self.vmslot()
            l0, l1 = t.split("\n"); a(l0); tok = a.vm(l1); yield
        yield max(chk_f, self.f + 24)
        tg = W - 1
        cmp = f"v_cmp_eq_u32 vcc, v{B+tg}, {vTAGL}\n"
        for i in range(1, 8): cmp += f"v_cmp_eq_u32 s[64:65], v{B+tg+W*i}, {vTAGL}\ns_and_b64 vcc, vcc, s[64:65]\n"
        self.log["cs_chk" + rnd + self.sfx] = self.f
        self.poll_check(tok, cmp.strip(), "\n".join(loads()), "csp" + rnd)
        nv = 1 if A else 2
        for i in range(1, 8):
            for k in range(nv): a(f"v_add_f32 v{B+k}, v{B+k}, v{B+W*i+k}")
            yield
        T = B + 4
        for k in range(nv): a(f"v_mov_b32 v{T+k}, v{B+k}")
        for k in range(nv): a(f"v_permlane32_swap_b32 v{B+k}, v{T+k}")
        for k in range(nv): a(f"v_add_f32 v{B+k}, v{B+k}, v{T+k}")
        yield
        for k in range(nv): a(f"v_cvt_pk_bf16_f32 v{T+k}, v{B+k}, v{B+k}")
        for k in range(nv): a(f"v_lshlrev_b32 v{T+k}, 16, v{T+k}")
        for k in range(nv): a(f"v_sub_f32 v{T+k}, v{B+k}, v{T+k}")
        for k in range(nv): a(f"v_cvt_pk_bf16_f32 v{B+k}, v{B+k}, v{T+k}")
        yield
        a(f"s_lshl_b32 s6, {sW}, 7"); a(f"v_add_u32 v{AD+1}, s6, {hCSA}")
        if A: a.lg(f"ds_write_b32 v{AD+1}, v{B}")
        else:
            a.lg(f"ds_write_b32 v{AD+1}, v{B} offset:512")
            a(f"s_lshr_b32 s6, {sW}, 1"); a("s_lshl_b32 s6, s6, 7"); a(f"v_add_u32 v{AD+1}, s6, {hCSA}")
            a.lg(f"ds_write_b32 v{AD+1}, v{B+1} offset:1024")
        yield

    def t_stt(self, chk_f):
        a = self.a
        a(f"v_and_b32 v44, 31, {vLANE}"); a("v_lshlrev_b32 v45, 4, v44"); yield
        a(f"s_lshl_b32 s6, {sR}, 7"); a(f"s_lshl_b32 s7, {sW}, 5"); a("s_add_u32 s6, s6, s7")
        a("s_lshl_b32 s72, s6, 4"); a(f"s_add_u32 s72, s72, {WS_STAT}")
        txt = f"buffer_load_dwordx4 v[48:51], v45, {srd(S_WS)}, s72 offen sc1"
        tok = a.vm(txt)
        yield chk_f
        self.log["st_chk" + self.sfx] = self.f
        self.poll_check(tok, self.tagcmp(50), txt, "stp")
        a("v_sub_f32 v48, 0, v48")
        a("v_lshlrev_b32 v44, 3, v44"); a(f"s_lshl_b32 s6, {sW}, 8"); a(f"s_add_u32 s6, s6, {L_STT}"); a("v_add_u32 v44, s6, v44")
        a.lg("ds_write_b64 v44, v[48:49]"); yield

    def t_slabB(self):
        a = self.a
        yield from self.vmslot()
        self.slab(f"s_add_u32 m0, {sWLDS}, {L_CA}", 36, 37, S_U2, "s74"); yield
        yield from self.vmslot()
        self.ctokB = self.slab(f"s_add_u32 m0, {sWLDS}, {L_CA + 2048}", vU3[0], vU3[1], S_U3, "s75"); yield

    def publish(self, phase):
        a = self.a
        a.vm(f"buffer_store_dwordx2 v[{TAG}:{TAG+1}], {hL0}, {srd(S_WS)}, s77 offen offset:{phase*256} sc1")
        self.log[(self.par, "pub", phase)] = self.f

    def t_kv_tail(self):
        a = self.a; o = self.o
        a(f"v_lshrrev_b32 v38, 4, {vLANE}"); a("v_lshlrev_b32 v38, 3, v38")
        a(f"v_bfe_u32 v39, {vLANE}, 2, 2"); a("v_add_u32 v38, v38, v39"); yield
        a(f"s_movk_i32 s7, {KVP}"); a("v_mul_lo_u32 v38, v38, s7")
        a(f"v_and_b32 v39, 3, {vLANE}"); a("v_lshl_add_u32 v38, v39, 3, v38"); yield
        a(f"s_lshl_b32 s6, {sW}, 5"); a(f"s_add_u32 s6, s6, {L_KVS}"); a("v_add_u32 v38, s6, v38"); yield
        F = 52
        for ks in range(4):
            for tile in range(2):
                for q in range(2):
                    r = F + ks*8 + tile*4 + q*2
                    t = a.lg(f"ds_read_b64_tr_b16 v[{r}:{r+1}], v38 offset:{tile*128*KVP + (32*ks + 4*q)*KVP}")
                yield
        for k in range(4): a(f"v_mov_b32 v{84+k}, 0x3f803f80")
        yield self.int_end
        a.wait(lg=t)
        self.kv_reads_f = self.f
        for ks in range(4):
            pk = F + ks*8; vv = pk + 4
            a(f"v_mfma_f32_16x16x32_bf16 v[88:91], v[{vv}:{vv+3}], v[{pk}:{pk+3}], {'0' if ks == 0 else 'v[88:91]'}")
            a(f"v_mfma_f32_16x16x32_bf16 v[48:51], v[84:87], v[{pk}:{pk+3}], {'0' if ks == 0 else 'v[48:51]'}")
            yield
        a(f"s_lshl_b32 s6, {sM}, 2"); a(f"s_add_u32 s6, s6, {sW}")
        a("s_lshl_b32 s7, s6, 4"); a(f"s_add_u32 s7, s7, {sR}"); a("s_lshl_b32 s7, s7, 10"); a(f"s_add_u32 s73, s7, {WS_KVP}")
        a("s_lshl_b32 s7, s6, 10"); a(f"s_lshl_b32 s72, {sR}, 6"); a("s_add_u32 s7, s7, s72"); a(f"s_add_u32 s72, s7, {WS_KVZP}")
        a("s_lshl_b32 s7, s6, 7"); a(f"s_lshl_b32 s6, {sR}, 3"); a("s_add_u32 s7, s7, s6"); a(f"s_add_u32 s71, s7, {WS_KVF}")
        a(f"v_cmp_gt_u32 vcc, 16, {vLANE}"); a(f"v_mov_b32 v39, {OOB}"); a(f"v_lshlrev_b32 v38, 2, {vLANE}")
        a("v_cndmask_b32 v38, v39, v38, vcc")
        yield self.f + 2
        a.vm(f"buffer_store_dwordx4 v[88:91], {vL16}, {srd(S_WS)}, s73 offen sc1")
        tok = a.vm(f"buffer_store_dword v48, v38, {srd(S_WS)}, s72 offen sc1"); yield
        yield self.int_end + 16
        a.wait(vm=tok)
        a.vm(f"buffer_store_dwordx2 v[{TAG}:{TAG+1}], {hL0}, {srd(S_WS)}, s71 offen sc1")
        self.log[(0, "kvcnt")] = self.f
        yield

    def t_q_prep(self, chk_f):
        a = self.a
        a(f"s_lshl_b32 s6, {sM}, 2"); a(f"s_add_u32 s6, s6, {sW}")
        a("s_lshl_b32 s7, s6, 7"); a(f"s_add_u32 s71, s7, {WS_KVF}")
        a("s_lshl_b32 s7, s6, 14"); a(f"s_add_u32 s73, s7, {WS_KVP}")
        a("s_lshl_b32 s7, s6, 10"); a(f"s_add_u32 s76, s7, {WS_KVZP}")
        a(f"v_and_b32 v40, 15, {vLANE}"); a("v_lshlrev_b32 v40, 3, v40")
        txt = f"buffer_load_dwordx2 v[42:43], v40, {srd(S_WS)}, s71 offen sc1"
        tok = a.vm(txt)
        yield chk_f
        self.log[(1, "kvchk")] = self.f
        self.poll_check(tok, self.tagcmp(42), txt, "kvp")
        while self.active("csumB"): yield self.f + 1
        B = 52
        ztok = a.vm(f"buffer_load_dwordx4 v[116:119], {vL16}, {srd(S_WS)}, s76 offen sc1"); yield
        toks = []
        for r in range(16):
            yield from self.vmslot()
            if r % 4 == 0 and r: a("s_add_u32 s73, s73, 4096")
            toks.append(a.vm(f"buffer_load_dwordx4 v[{B+4*r}:{B+4*r+3}], {vL16}, {srd(S_WS)}, s73 offen offset:{(r % 4)*1024} sc1")); yield
        yield self.int_end
        a.wait(vm=ztok)
        for mod in ("row_shr:4", "row_shr:8"):
            for k in range(4): a(f"v_add_f32_dpp v{116+k}, v{116+k}, v{116+k} {mod} row_mask:0xf bank_mask:0xf bound_ctrl:0")
            yield
        for k in range(4):
            a(f"v_mov_b32 v{120+k}, v{116+k}")
        for k in range(4): a(f"v_permlane16_swap_b32 v{116+k}, v{120+k}")
        for k in range(4): a(f"v_add_f32 v{116+k}, v{116+k}, v{120+k}")
        yield
        for k in range(4): a(f"v_mov_b32 v{120+k}, v{116+k}")
        for k in range(4): a(f"v_permlane32_swap_b32 v{116+k}, v{120+k}")
        for k in range(4): a(f"v_add_f32 v{116+k}, v{116+k}, v{120+k}")
        yield
        for r in range(1, 16):
            a.wait(vm=toks[r])
            for k in range(0, 4, 2): a(f"v_pk_add_f32 v[{B+k}:{B+k+1}], v[{B+k}:{B+k+1}], v[{B+4*r+k}:{B+4*r+k+1}]")
            yield
        a(f"s_mul_i32 s6, {sW}, 1280"); a(f"s_add_u32 s6, s6, {L_KVO}")
        a(f"v_lshrrev_b32 v40, 4, {vLANE}"); a("v_lshlrev_b32 v40, 8, v40"); a(f"v_and_b32 v41, 15, {vLANE}"); a("v_lshl_add_u32 v40, v41, 2, v40")
        a("v_add_u32 v40, s6, v40")
        for v in range(4): a.lg(f"ds_write_b32 v40, v{B+v} offset:{v*64}")
        a(f"v_and_b32 v41, 3, {vLANE}"); a("v_lshlrev_b32 v41, 4, v41"); a("v_add_u32 v41, s6, v41"); a("v_add_u32 v41, 1024, v41")
        a(f"v_and_b32 v42, 15, {vLANE}"); a("v_cmp_le_u32 vcc, 12, v42"); a(f"v_mov_b32 v43, {L_KVO + 4*1280}")
        a("v_cndmask_b32 v41, v43, v41, vcc")
        t = a.lg("ds_write_b128 v41, v[116:119]"); yield
        yield self.f + 3
        a(f"s_mul_i32 s6, {sW}, 1280"); a(f"s_add_u32 s6, s6, {L_KVO}")
        a(f"v_and_b32 v41, 31, {vLANE}"); a("v_min_u32 v41, 16, v41"); a(f"v_lshl_add_u32 v41, v41, 6, {hG16}"); a("v_add_u32 v41, s6, v41")
        a.wait(lg=t)
        a.lg("ds_read_b128 v[52:55], v41"); t = a.lg("ds_read_b128 v[56:59], v41 offset:32"); yield
        yield self.f + 3
        a.wait(lg=t)
        for k in range(4): a(f"v_cvt_pk_bf16_f32 v{60+k}, v{52+2*k}, v{53+2*k}")
        a(f"s_lshl_b32 s6, {sW}, 10"); a(f"s_add_u32 s6, s6, {L_KVZ}"); a(f"v_add_u32 v41, s6, {vL16}")
        a.lg("ds_write_b128 v41, v[60:63]"); yield

    def qget(self, i, dst):
        reg = (sQA, sQB, sQC)[i // 4]
        self.a(f"s_bfe_u32 {dst}, {reg}, {(8 << 16) | (8*(i % 4))}")
    def t_s2_q(self):
        a = self.a
        a(f"s_lshr_b32 s68, {sJ}, 2"); a(f"s_add_u32 s68, s68, {sC2}"); a("s_and_b32 s68, s68, 7")
        tab = sum(((k % 3) << (2*k)) for k in range(12))
        a(f"s_lshl_b32 s69, s68, 1"); a(f"s_lshr_b32 s69, {tab}, s69"); a("s_and_b32 s69, s69, 3"); yield
        for i in range(9):
            reg = (sQA, sQB, sQC)[i // 4]
            if i < 2:
                a(f"s_add_u32 s6, s68, {i}"); a("s_and_b32 s6, s6, 1"); a("s_lshl_b32 s6, s6, 3")
                a(f"s_lshl_b32 s7, {sW}, 1"); a("s_add_u32 s6, s6, s7"); a("s_add_u32 s6, s6, 8")
            elif i < 6:
                a(f"s_add_u32 s6, s68, {i-2}"); a("s_and_b32 s6, s6, 3"); a("s_lshl_b32 s6, s6, 2"); a(f"s_add_u32 s6, s6, {sW}")
                a("s_lshl_b32 s7, s6, 1"); a("s_sub_u32 s7, s7, 7"); a("s_cmp_lt_u32 s6, 8"); a("s_cselect_b32 s6, s6, s7")
            else:
                a(f"s_add_u32 s6, s69, {i-6}"); a("s_sub_u32 s7, s6, 3"); a("s_cmp_lt_u32 s6, 3"); a("s_cselect_b32 s6, s6, s7")
                a("s_lshl_b32 s6, s6, 2"); a(f"s_add_u32 s6, s6, {sW}"); a("s_add_u32 s6, s6, 24")
            if i % 4 == 0: a(f"s_mov_b32 {reg}, s6")
            else: a(f"s_lshl_b32 s6, s6, {8*(i % 4)}"); a(f"s_or_b32 {reg}, {reg}, s6")
            yield
    def s2_w_dma(self, i):
        a = self.a
        self.qget(i, "s6")
        if i < 6: sr = S_WD
        else:
            sr = S_U1
            a("s_cmp_lt_u32 s6, 28")
            a(f"s_cselect_b32 s{S_U1}, s{S_WD}, s{S_WO}"); a(f"s_cselect_b32 s{S_U1+1}, s{S_WD+1}, s{S_WO+1}")
            a(f"s_cselect_b32 s{S_U1+2}, s{S_WD+2}, s{S_WO+2}")
            a("s_cselect_b32 s7, 0, 28"); a("s_sub_u32 s6, s6, s7")
        a("s_lshl_b32 s6, s6, 16"); a(f"s_lshl_b32 s7, {sC2}, 7"); a("s_add_u32 s74, s6, s7"); yield
        base = W2SLOT[i % 4]
        for g in range(2):
            for k in range(4):
                if i < 3: yield from self.vmslot()
                if k == 0 or self.m0_owner != ("w2", i, g):
                    a(f"s_add_u32 m0, {sW8K}, {base + g*4096}")
                    if k == 0 and g == 1: a("s_add_u32 s74, s74, 32768")
                    self.m0_owner = ("w2", i, g)
                self.w2tok[i] = a.vm(f"buffer_load_dwordx4 v{vW2[k]}, {srd(sr)}, s74 offen{' offset:%d' % (1024*k) if k else ''} lds"); yield
    def t_w2reg(self, i, areg):
        a = self.a
        self.qget(i, "s6")
        if i < 6: sr = S_WD
        else:
            sr = S_U1
            a("s_cmp_lt_u32 s6, 28")
            a(f"s_cselect_b32 s{S_U1}, s{S_WD}, s{S_WO}"); a(f"s_cselect_b32 s{S_U1+1}, s{S_WD+1}, s{S_WO+1}")
            a(f"s_cselect_b32 s{S_U1+2}, s{S_WD+2}, s{S_WO+2}")
            a("s_cselect_b32 s7, 0, 28"); a("s_sub_u32 s6, s6, s7")
        a("s_lshl_b32 s6, s6, 16"); a(f"s_lshl_b32 s7, {sC2}, 7"); a("s_add_u32 s75, s6, s7"); yield
        for g in range(2):
            for k in range(4):
                yield from self.vmslot()
                if k == 0 and g == 1: a("s_add_u32 s75, s75, 32768")
                r = areg + (g*4 + k)*4
                self.w2rtok[i] = a.vm(f"buffer_load_dwordx4 a[{r}:{r+3}], v{vW2[k]}, {srd(sr)}, s75 offen{' offset:%d' % (1024*k) if k else ''}"); yield
    def w2put(self, i, areg):
        a = self.a
        a.wait(vm=self.w2rtok[i])
        a(f"s_add_u32 s6, {sW8K}, {W2SLOT[i % 4]}"); a(f"v_add_u32 v40, s6, {vL16}")
        for k in range(8):
            r = areg + k*4
            self.w2ptok[i] = a.lg(f"ds_write_b128 v40, a[{r}:{r+3}] offset:{k*1024}")

    def flag_issue(self, phase):
        a = self.a
        if phase == 0:
            a(f"v_bfe_u32 {vPOLL}, {vLANE}, 1, 3"); a(f"v_lshlrev_b32 {vPOLL}, 2, {vPOLL}")
            a(f"v_and_b32 v{FLD}, 1, {vLANE}"); a(f"v_add_u32 {vPOLL}, {vPOLL}, v{FLD}"); a(f"v_add_u32 {vPOLL}, 2, {vPOLL}")
            a(f"v_lshlrev_b32 {vPOLL}, 3, {vPOLL}")
        else:
            a(f"v_and_b32 {vPOLL}, 31, {vLANE}"); a(f"v_lshlrev_b32 {vPOLL}, 3, {vPOLL}")
        a(f"s_mul_i32 s72, {sT}, 768"); a(f"s_add_u32 s72, s72, {WS_HF + phase*256}")
        self.fl_txt = f"buffer_load_dwordx2 v[{FLD}:{FLD+1}], {vPOLL}, {srd(S_WS)}, s72 offen sc1"
        self.fltok = a.vm(self.fl_txt)
    def flag_check(self, phase):
        self.log[(self.par, "chk", phase)] = self.f
        self.poll_check(self.fltok, self.tagcmp(FLD), self.fl_txt, f"fl{phase}")
        if not self.o.get("touchh", 0): return
        a = self.a
        n = (8, 16, 12)[phase]
        a(f"s_and_b32 s6, {sJ}, 3"); a(f"s_lshl_b32 s7, {sW}, 2"); a("s_add_u32 s6, s6, s7")
        if phase == 0: a("s_lshl_b32 s7, s6, 1"); a("s_add_u32 s7, s7, 8")
        elif phase == 1:
            a("s_lshl_b32 s7, s6, 1"); a("s_sub_u32 s7, s7, 7"); a("s_cmp_lt_u32 s6, 8"); a("s_cselect_b32 s7, s6, s7")
        else: a("s_add_u32 s7, s6, 24")
        a(f"s_mul_i32 s64, {sR}, 36"); a("s_add_u32 s7, s7, s64"); a("s_lshl_b32 s7, s7, 14")
        a(f"s_lshl_b32 s64, {sHALF}, 13"); a("s_add_u32 s7, s7, s64"); a(f"s_add_u32 s7, s7, {WS_H}")
        a(f"v_lshlrev_b32 v40, 7, {vLANE}"); a(f"v_mov_b32 v41, {OOB}")
        a(f"s_cmp_lt_u32 s6, {n}"); a("s_cselect_b64 vcc, -1, 0"); a("v_cndmask_b32 v40, v41, v40, vcc")
        a.vm(f"buffer_load_dword {vDUM}, v40, {srd(S_WS)}, s7 offen sc1")

    def vmslot(self):
        while self.a.vm_issued - self.int_vm0 >= self.int_cap: yield self.int_end
    def h_interval(self, f0, n, extras, budget=None, cap=None):
        a = self.a
        nfix = sum(len(extras.get(f0 + g, [])) for g in range(n))
        self.int_vm0 = a.vm_issued + nfix*0; self.int_end = f0 + n
        self.int_cap = (cap or self.o.get("vmcap", 8))
        self.int_vm0 = a.vm_issued
        for g in range(n):
            self.f = f0 + g
            start = len(a.lines)
            for fn in extras.get(f0 + g, []): fn()
            self.pump(self.f, start, budget or self.o["hbudget"])

    def helper(self, par):
        a = self.a; o = self.o
        self.par = par; self.sfx = f"_{par}"
        who = f"h{par}"
        self.tasks = []; self.w2tok = {}; self.w2rtok = {}; self.w2ptok = {}
        REGCH = {3: 0, 4: 32, 5: 64, 6: 96} if o.get("w2reg", 1) else {}
        self.kvz_done = False
        ex = {}
        def at(f, fn): ex.setdefault(f, []).append(fn)
        def spread(maker, positions):
            hd = {}
            def get(i):
                if "p" not in hd: hd["p"] = maker()
                hd["p"][i]()
            for i, pos in enumerate(positions): at(pos, (lambda i=i: get(i)))
        spread(lambda: self.dma_x_parts(2), (0, 1, 2, 3)); spread(lambda: self.dma_w_parts(2), (4, 5, 6, 7))
        spread(lambda: self.dma_w_parts(3), (10, 12, 14, 16))
        for G in range(0, 16):
            spread(lambda G=G: self.dma_w_parts(G+4), [16*G + 10 + p for p in ((1, 5, 9, 13) if G == 0 else (0, 2, 4, 6))] if G > 0 else [18, 20, 22, 24])
        for G in range(0, 5):
            spread(lambda G=G: self.dma_x_parts(G+3), [16*G + 10 + p for p in (1, 3, 5, 7)])
        self.spawn(self.t_early(), 0, "early")
        self.spawn(self.t_cs("A"), o.get("cs_f", 26), "csA")
        self.log["st_pub" + self.sfx] = 0
        self.spawn(self.t_csum("A", o.get("csumA_chk", 104)), o.get("csumA_f", 74), "csumA")
        self.spawn(self.t_stt(o.get("st_chk", 104)), o.get("stt_f", 80), "stt")
        self.spawn(self.t_slabB(), o.get("slabB_f", 58), "slabB")
        self.spawn(self.t_cs("B"), o.get("csB_f", 106), "csB")
        self.spawn(self.t_csum("B", o.get("csumB_chk", 214)), o.get("csumB_f", 186), "csumB")
        if o.get("hprio", 0): a(f"s_setprio {o['hprio']}")
        a.wait(vm=self.wtok[0])
        self.barrier(who, "P0")
        self.h_interval(0, 10, ex)
        for G in range(20):
            self.f = 16*G + 9
            if G + 1 < 20: a.wait(vm=self.wtok[G+1])
            if G + 1 < 8: a.wait(vm=self.xtok[G+1])
            if G == 7: self.finish("csumA"); self.finish("stt"); a.wait_all(vm=False)
            if G == 15: self.finish("csumB"); a.wait_all(vm=False)
            if G == 17: self.flag_check(0)
            if G == 19:
                if par == 1: self.finish("qprep"); a.wait_all(vm=False)
            self.barrier(who, f"B{G}")
            self.f = 16*G + 10
            if G == o.get("pub0_G", 9) and par == 1: self.publish(0)
            if G == 8 and par == 0:
                self.finish("csB")
                self.spawn(self.t_kv_tail(), self.f, "kvtail", front=True)
            if G == o.get("pub1_G", 17): self.publish(1)
            if G == 11:
                if par == 0: assert self.kv_reads_f < self.f
                self.spawn(self.s2_w_dma(0), self.f, "w2_0")
            if G == 11 and par == 0: assert self.kv_reads_f < 180, "kv tail fragments overlap csumB registers"
            if G == 16 and par == 1: assert not self.active("csumB")
            if REGCH:
                if G == 7:
                    def r34():
                        for i_ in ((3, 4, 5, 6) if o.get("w2all", 1) else (3, 4)): yield from self.t_w2reg(i_, REGCH[i_])
                    self.spawn(r34(), self.f, "w2r3")
                if G == 15 and not o.get("w2all", 1):
                    self.finish("w2r3")
                    def r56():
                        yield from self.t_w2reg(5, 64); yield from self.t_w2reg(6, 96)
                    self.spawn(r56(), self.f, "w2r5")
            if G == 15: self.flag_issue(0)
            if G == 17:
                self.spawn(self.s2_w_dma(1), self.f, "w2_1")
            if G == o.get("qprep_G", 13) and par == 1: self.spawn(self.t_q_prep(self.f + o.get("kvchk_gap", 17)), self.f, "qprep")
            if G == 19: self.spawn(self.s2_w_dma(2), self.f, "w2_2")
            if G < 19:
                cap = (40 if (G == 7 and o.get("w2all", 1)) else 24) if G in (7, 15) else (10 if G >= 16 else (12 if G in (3, 4) else None))
                self.h_interval(16*G + 10, 16, ex, cap=cap, budget=(6 if G in (7, 15) else (4 if G >= 16 else None)))
        self.h_interval(314, 6, ex)
        self.barrier(who, "H0")
        if par == 0: assert not self.active("kvtail"), "kv tail still running at H0"
        if 3 in REGCH:
            for n in ("w2r3", "w2r5"): self.finish(n)
            self.w2put(3, REGCH[3])
        else: self.spawn(self.s2_w_dma(3), self.f, "w2_3")
        self.flag_issue(1)
        base = 336
        for i in range(9):
            self.h_interval(base + 16*i - 16, 16, ex, budget=8)
            self.f = base + 16*i
            if i in REGCH: a.wait(lg=self.w2ptok[i])
            else:
                self.finish(f"w2_{i}")
                a.wait(vm=self.w2tok[i])
            if i + 2 == 2: self.flag_check(1)
            if i == o.get("fl2_i", 5): self.flag_check(2)
            self.barrier(who, f"S{i}")
            self.f = base + 16*i + 1
            if i == o.get("pub2_i", 1): self.publish(2)
            if i == o.get("fl2_i", 5) - 1: self.flag_issue(2)
            if i >= 1 and i + 3 < 9:
                if i + 3 in REGCH: self.w2put(i + 3, REGCH[i + 3])
                else: self.spawn(self.s2_w_dma(i + 3), self.f, f"w2_{i+3}")
        a("s_cmp_eq_u32 s2, 0"); a("s_cselect_b64 vcc, -1, 0"); a(f"s_cmp_eq_u32 {sW}, 0"); a("s_cselect_b64 vcc, vcc, 0")
        a(f"v_mov_b32 v40, {OOB}"); a("s_nop 0"); a(f"v_cndmask_b32 v40, v40, {hL0}, vcc")
        a.vm(f"buffer_store_dwordx2 v[{TAG}:{TAG+1}], v40, {srd(S_WS)}, 0 offen sc1")
        self.prof_out(4)
        a("s_endpgm")

    def c_lane_consts(self):
        a = self.a
        a(f"v_and_b32 v56, 31, {vLANE}"); a(f"v_lshrrev_b32 v57, 5, {vLANE}"); a(f"v_bfe_u32 v58, {vLANE}, 2, 2")
        a(f"v_and_b32 v59, 3, {vLANE}"); a(f"v_bfe_u32 v60, {vLANE}, 4, 1")
        a("v_lshlrev_b32 v61, 5, v60"); a("v_lshl_add_u32 v61, v59, 3, v61")
        a("v_lshrrev_b32 v62, 1, v58"); a("v_lshlrev_b32 v62, 6, v62")
        a("v_lshl_add_u32 v63, v57, 3, v58")
        a("v_lshlrev_b32 v64, 7, v63")
        a("v_xor_b32 v65, v61, v62"); a(f"v_add_u32 {cWA[0][0]}, v64, v65")
        a("v_or_b32 v65, 64, v61"); a("v_xor_b32 v65, v65, v62"); a(f"v_add_u32 {cWA[0][1]}, v64, v65")
        a(f"v_add_u32 {cWA[1][0]}, 0x10000, {cWA[0][0]}"); a(f"v_add_u32 {cWA[1][1]}, 0x10000, {cWA[0][1]}")
        a("v_lshlrev_b32 v64, 6, v63"); a(f"v_add_u32 {cSA[0]}, v64, v61"); a(f"v_add_u32 {cSA[1]}, 0x10000, {cSA[0]}")
        a("v_bfe_u32 v64, v56, 1, 3"); a("v_xor_b32 v64, v64, v57")
        a("v_lshlrev_b32 v65, 7, v56"); a(f"s_add_u32 s7, {sWLDS}, {L_X}"); a("v_add_u32 v65, s7, v65")
        for s in range(4):
            a(f"v_xor_b32 v66, {2*s}, v64"); a(f"v_lshl_add_u32 {cXA[s]}, v66, 4, v65")
        a(f"v_lshlrev_b32 {cG16}, 4, v57")
        a(f"v_lshlrev_b32 {cCSA}, 2, v56"); a(f"v_add_u32 {cCSA}, {L_CST}, {cCSA}")
        a(f"v_mov_b32 v{BAUG+2}, 0"); a(f"v_mov_b32 v{BAUG+3}, 0")
        a("v_lshrrev_b32 v64, 3, v0"); a("v_and_b32 v65, 7, v0")
        a(f"v_lshlrev_b32 {cOUT}, 10, v64"); a(f"v_lshl_add_u32 {cOUT}, v65, 4, {cOUT}")

    def c_setup(self):
        a = self.a
        a("s_waitcnt lgkmcnt(0)")
        a.protect = set()
        a("s_mov_b32 s71, 0x3fb8aa3b"); a("s_mov_b32 s72, 0x358637bd")
        a(f"s_mul_i32 s76, {sR2}, 36"); a(f"s_lshl_b32 s77, {sHALF}, 13"); a(f"s_add_u32 s77, s77, {WS_H}")
        for _ in self.t_s2_q(): pass
        self.c_lane_consts()
        a(f"s_lshl_b32 s6, {sR}, 7"); a(f"s_lshl_b32 s7, {sCG}, 3"); a("s_add_u32 s6, s6, s7")
        a(f"s_lshl_b32 s7, {sW}, 1"); a("s_add_u32 s75, s6, s7"); a("s_lshl_b32 s6, s75, 10")
        a.vm(f"buffer_load_dwordx4 v[16:19], {vL16}, {srd(S_X)}, s6 offen")
        a.vm(f"buffer_load_dwordx4 v[20:23], {vL16}, {srd(S_X)}, s6 offen offset:1024")
        a(f"s_load_dwordx2 s[60:61], s[{S_WS}:{S_WS+1}], 0")
        a("s_waitcnt vmcnt(0) lgkmcnt(0)")
        a("s_add_u32 s60, s60, 1"); a("s_addc_u32 s61, s61, 0")
        self.c_stats()

    def finfo(self, f):
        if f < NF1:
            G, m = divmod(f, 16)
            if G < 16:
                c = G % 8; s = m // 4; tile = m % 4; ks = c*4 + s
            else:
                s = m // 2; tile = m % 2; ks = (G-16)*8 + s
            return dict(phi=f, acc=ACC + 16*tile, b=ks*4, first=(ks == 0))
        i, m = divmod(f - NF1, 16)
        s, r = divmod(m, 4); cb, rf = divmod(r, 2)
        return dict(phi=NF1 + 8*i + 2*s + cb, acc=ACC + (cb*2+rf)*16, b=(i % 3)*32 + rf*16 + s*4, first=(i == 0 and s == 0), chunk=i, m=m)
    def phi_first_use(self, phi): return phi if phi < NF1 else NF1 + 2*(phi - NF1)
    def frag_read(self, phi):
        a = self.a
        r = RING + 4*(phi % NFR)
        if phi < NF1:
            G, m = divmod(phi, 16)
            slot = G % NW; rng = slot // 4; sb = (slot % 4)*16384
            if G < 16:
                s = m // 4; cbk = m % 4; panel, cb = divmod(cbk, 2)
                base = cWA[rng][cb]; imm = [sb + panel*8192 + (16*s + 4*q)*128 for q in range(2)]
            else:
                s = m // 2; b = m % 2
                base = cSA[rng]; imm = [sb + b*8192 + (16*s + 4*q)*64 for q in range(2)]
        else:
            i, r2 = divmod(phi - NF1, 8); s, cb = divmod(r2, 2)
            so = W2SLOT[i % 4]
            base = cB2[cb] if so < 0x10000 else cB2H[cb]
            imm = [(so % 0x10000) + (16*s + 8*q)*128 for q in range(2)]
        a.lg(f"ds_read_b64_tr_b16 v[{r}:{r+1}], {base} offset:{imm[0]}")
        self.ftok[phi] = a.lg(f"ds_read_b64_tr_b16 v[{r+2}:{r+3}], {base} offset:{imm[1]}")
    def x_read(self, c, s):
        r = (c*4 + s)*4
        self.xrtok[c] = self.a.lg(f"ds_read_b128 a[{r}:{r+3}], {cXA[s]} offset:{(c % 3)*16384}")

    def c_run(self, f0, f1, ex, fend):
        a = self.a
        for f in range(f0, f1):
            inf = self.finfo(f)
            self.stamp(f"f{f}")
            ph = inf["phi"]
            nxt = ph + 1
            a.wait(lg=self.ftok[nxt] if (nxt in self.ftok and f % 2 == 0 and f < NF1) else self.ftok[ph])
            if f < 128 and f % 16 == 0: a.wait(lg=self.xrtok[f // 16])
            if f >= NF1 and inf["m"] == 0:
                self.stamp(f"hw{inf['chunk']}_in"); a.wait(vm=self.htok[inf["chunk"]]); self.stamp(f"hw{inf['chunk']}_out")
            r = RING + 4*(ph % NFR)
            acc = f"v[{inf['acc']}:{inf['acc']+15}]"
            a(f"v_mfma_f32_32x32x16_bf16 {acc}, v[{r}:{r+3}], a[{inf['b']}:{inf['b']+3}], {'0' if inf['first'] else acc}")
            for fn in ex.get(f, []): fn()
            fu = f + LOOK
            if fu < fend:
                p = self.finfo(fu)["phi"]
                if self.phi_first_use(p) == fu: self.frag_read(p)
    def c_prime(self, f0):
        for f in range(f0, f0 + LOOK):
            p = self.finfo(f)["phi"]
            if self.phi_first_use(p) == f: self.frag_read(p)

    def aug(self, p, ntile):
        a = self.a
        toks = []
        for t in range(ntile):
            g = RING + 4*t; off = (p*128 + 32*t)*4
            a.lg(f"ds_read_b32 v{g}, {cCSA} offset:{off}")
            toks.append(a.lg(f"ds_read_b32 v{g+1}, {cCSA} offset:{off}"))
            a(f"v_mov_b32 v{g+2}, 0"); a(f"v_mov_b32 v{g+3}, 0")
        for t in range(ntile):
            g = RING + 4*t; A = ACC + 16*t
            a.wait(lg=toks[t])
            a(f"v_mfma_f32_32x32x16_bf16 v[{A}:{A+15}], v[{g}:{g+3}], v[{BAUG}:{BAUG+3}], v[{A}:{A+15}]")
    def hbase_q(self, q):
        a = self.a
        a(f"s_mul_i32 s7, {sR}, 36"); a(f"s_add_u32 s7, s7, {q}")
        a("s_lshl_b32 s7, s7, 2"); a(f"s_add_u32 s7, s7, {sW}")
        a("s_lshl_b32 s7, s7, 12"); a(f"s_add_u32 {sHB}, s7, {WS_H}")
    def ffn_block(self, tg, tu, dst):
        a = self.a
        for k in range(16): a(f"v_max_f32 v{tg+k}, 0, v{tg+k}")
        for k in range(0, 16, 2): a(f"v_pk_mul_f32 v[{tg+k}:{tg+k+1}], v[{tg+k}:{tg+k+1}], v[{tu+k}:{tu+k+1}]")
        for k in range(8): a(f"v_cvt_pk_bf16_f32 v{dst+k}, v{tg+2*k}, v{tg+2*k+1}")
    def epi_ffn(self, p):
        a = self.a
        self.aug(p, 4)
        a(f"s_lshl_b32 s6, {sM}, 1"); a(f"s_add_u32 s6, s6, {8 if p == 0 else 9}")
        if p == 1: a(f"s_cmp_eq_u32 {sPAR}, 0"); a(f"s_cselect_b32 s6, {sM}, s6")
        self.hbase_q("s6")
        for cb in range(2):
            d = 32 + 8*cb
            self.ffn_block(ACC + 16*cb, ACC + 32 + 16*cb, d)
            for h in range(2):
                a.vm(f"buffer_store_dwordx4 v[{d+4*h}:{d+4*h+3}], {vL16}, {srd(S_WS)}, {sHB} offen offset:{(2*cb+h)*1024} sc1")
    def epi_side(self):
        a = self.a
        self.aug(2, 2)
        a(f"s_lshr_b32 s6, {sM}, 1"); a("s_add_u32 s6, s6, 24"); self.hbase_q("s6")
        a(f"s_and_b32 s6, {sM}, 1"); a("s_lshl_b32 s6, s6, 11"); a(f"s_add_u32 {sHB}, {sHB}, s6")
        self.ffn_block(ACC, ACC + 16, 32)
        for h in range(2):
            a.vm(f"buffer_store_dwordx4 v[{32+4*h}:{32+4*h+3}], {vL16}, {srd(S_WS)}, {sHB} offen offset:{h*1024} sc1")
    def phi_tile(self, T):
        a = self.a
        for h in range(2):
            B = T + 8*h
            for k in range(8): a(f"v_mul_f32 v{TMP+k}, {cRL}, v{B+k}")
            for k in range(8): a(f"v_exp_f32 v{TMP+k}, v{TMP+k} clamp")
            for k in range(8): a(f"v_fma_f32 v{B+k}, v{B+k}, {cRSTD}, s72")
            for k in range(8): a(f"v_max_f32 v{B+k}, s72, v{B+k}")
            for k in range(0, 8, 2): a(f"v_pk_add_f32 v[{B+k}:{B+k+1}], v[{B+k}:{B+k+1}], v[{TMP+k}:{TMP+k+1}]")
    def epi_kv(self):
        a = self.a
        self.aug(0, 4)
        a(f"v_and_b32 v32, 31, {vLANE}"); a(f"s_lshl_b32 s6, {sW}, 5"); a("v_add_u32 v32, s6, v32")
        a(f"s_movk_i32 s7, {KVP}"); a("v_mul_lo_u32 v32, v32, s7")
        a(f"v_lshrrev_b32 v33, 1, {cG16}"); a("v_add_u32 v32, v32, v33"); a(f"v_add_u32 v32, {L_KVS}, v32")
        a(f"v_mov_b32 v34, {cRSTD}"); a(f"v_mov_b32 v35, {cRSTD}")
        for t in range(4):
            T = ACC + 16*t
            if t < 2: self.phi_tile(T)
            else:
                for k in range(0, 16, 2): a(f"v_pk_mul_f32 v[{T+k}:{T+k+1}], v[{T+k}:{T+k+1}], v[34:35]")
            for g4 in range(4):
                d = 36 + 2*g4
                a(f"v_cvt_pk_bf16_f32 v{d}, v{T+4*g4}, v{T+4*g4+1}"); a(f"v_cvt_pk_bf16_f32 v{d+1}, v{T+4*g4+2}, v{T+4*g4+3}")
            for g4 in range(4):
                d = 36 + 2*g4
                off = (t // 2)*128*KVP + (32*(t % 2) + 8*g4)*2
                a.lg(f"ds_write_b64 v32, v[{d}:{d+1}] offset:{off}")
    def epi_q(self):
        a = self.a
        self.aug(2, 2)
        a(f"s_add_u32 s6, {sM}, 28"); self.hbase_q("s6")
        toks = []
        a(f"v_add_u32 v44, {L_KVZ}, {vL16}")
        for h in range(4): toks.append(a.lg(f"ds_read_b128 v[{16+4*h}:{16+4*h+3}], v44 offset:{h*1024}"))
        for t in range(2):
            T = ACC + 16*t
            self.phi_tile(T)
            for k in range(8): a(f"v_cvt_pk_bf16_f32 v{32+8*t+k}, v{T+2*k}, v{T+2*k+1}") if t == 0 else a(f"v_cvt_pk_bf16_f32 v{TMP+k}, v{T+2*k}, v{T+2*k+1}")
        PQ = [32, 36, TMP, TMP + 4]
        a(f"v_mul_f32 v45, {cRSTD}, {cRSTD}")
        a.wait(lg=toks[-1])
        for h in range(4):
            d = ACC + 16*h
            a(f"v_mfma_f32_32x32x16_bf16 v[{d}:{d+15}], v[{16+4*h}:{16+4*h+3}], v[{PQ[h]}:{PQ[h]+3}], 0")
        for h in range(4):
            d = ACC + 16*h
            a(f"v_add_f32 v{d+8}, s72, v{d+8}"); a(f"v_mul_f32 v{d+8}, v{d+8}, v45"); a(f"v_rcp_f32 v{d+8}, v{d+8}")
            a(f"v_mov_b32 v{d+9}, v{d+8}")
            for k in range(0, 8, 2): a(f"v_pk_mul_f32 v[{d+k}:{d+k+1}], v[{d+k}:{d+k+1}], v[{d+8}:{d+9}]")
            for k in range(4): a(f"v_cvt_pk_bf16_f32 v{16+4*h+k}, v{d+2*k}, v{d+2*k+1}")
            a.vm(f"buffer_store_dwordx4 v[{16+4*h}:{16+4*h+3}], {vL16}, {srd(S_WS)}, {sHB} offen offset:{h*1024} sc1")
    def branch2(self, even, odd):
        a = self.a
        lo = a.newlabel("Lo"); lj = a.newlabel("Lj")
        a(f"s_cmp_eq_u32 {sPAR}, 0"); a(f"s_cbranch_scc0 {lo}")
        st = (a.vm_issued, a.lg_issued, a.vm_floor, a.lg_floor)
        even(); sa = (a.vm_issued, a.lg_issued)
        a(f"s_branch {lj}"); a.label(lo)
        a.vm_issued, a.lg_issued, a.vm_floor, a.lg_floor = st
        odd(); sb = (a.vm_issued, a.lg_issued)
        a.label(lj)
        a.vm_issued = min(sa[0], sb[0]); a.lg_issued = min(sa[1], sb[1])
        a.vm_floor = min(a.vm_floor, st[2]) if False else st[2]; a.lg_floor = st[3]
    def h_load(self, i):
        a = self.a
        parts = []
        def head():
            self.qget(i, "s6"); a("s_add_u32 s6, s6, s76"); a("s_lshl_b32 s6, s6, 14"); a("s_add_u32 s78, s6, s77"); a("s_add_u32 s79, s78, 4096")
        for rf in range(2):
            for s in range(4):
                def p(rf=rf, s=s):
                    if rf == 0 and s == 0: head()
                    r = (i % 3)*32 + rf*16 + s*4
                    self.htok[i] = a.vm(f"buffer_load_dwordx4 a[{r}:{r+3}], {vL16}, {srd(S_WS)}, {'s78' if rf == 0 else 's79'} offen offset:{s*1024} sc1")
                parts.append(p)
        return parts

    def compute(self):
        a = self.a; o = self.o
        who = "c"
        self.c_setup()
        self.ftok = {}; self.xrtok = {}; self.htok = {}
        ex = {}
        def at(f, fn): ex.setdefault(f, []).append(fn)
        for G in range(20):
            at(16*G + 9, lambda G=G: self.c_bar(G))
            if G < 7:
                for s in range(4): at(16*G + 11 + s, lambda G=G, s=s: self.x_read(G+1, s))
        for i, f0 in ((0, 290), (1, 303)):
            hd = {}
            def get(k, i=i, hd=hd):
                if "p" not in hd: hd["p"] = self.h_load(i)
                hd["p"][k]()
            for k in range(8): at(f0 + k + (k // 4), lambda k=k, get=get: get(k))
        self.barrier(who, "P0")
        self.stamp("go"); self.stamp("rtgo")
        for s in range(4): self.x_read(0, s)
        self.c_prime(0)
        self.c_run(0, 128, ex, 128)
        self.stamp("e1")
        if o.get("touchw2", 1):
            self.c_touch_w2()
            for k in range(4): self.c_touch_step(k)
        a(f"v_and_b32 v44, 31, {vLANE}"); a("v_lshlrev_b32 v44, 3, v44"); a(f"s_lshl_b32 s6, {sW}, 8"); a(f"s_add_u32 s6, s6, {L_STT}"); a("v_add_u32 v44, s6, v44")
        t = a.lg("ds_read_b64 v[46:47], v44")
        a.wait(lg=t)
        a(f"v_mov_b32 {cRSTD}, v47"); a(f"v_mul_f32 {cRL}, s71, v47")
        a(f"v_cvt_pk_bf16_f32 v{BAUG}, v46, v46"); a(f"v_lshlrev_b32 v45, 16, v{BAUG}"); a("v_sub_f32 v45, v46, v45")
        a(f"v_cvt_pk_bf16_f32 v{BAUG+1}, v45, v45")
        a(f"v_cmp_gt_u32 vcc, 32, {vLANE}"); a("v_mov_b32 v45, 0"); a("s_nop 0")
        a(f"v_cndmask_b32 v{BAUG}, v45, v{BAUG}, vcc"); a(f"v_cndmask_b32 v{BAUG+1}, v45, v{BAUG+1}, vcc")
        self.branch2(self.epi_kv, lambda: self.epi_ffn(0))
        a.wait_all(vm=False)
        self.stamp("e1end")
        self.c_prime(128)
        self.c_run(128, 256, ex, 256)
        self.stamp("e2")
        self.epi_ffn(1)
        self.stamp("e2end")
        self.c_prime(256)
        self.c_run(256, 320, ex, 320)
        self.barrier(who, "H0")
        a(f"v_lshrrev_b32 v56, 5, {vLANE}"); a(f"v_bfe_u32 v57, {vLANE}, 2, 2"); a(f"v_and_b32 v58, 3, {vLANE}"); a(f"v_bfe_u32 v59, {vLANE}, 4, 1")
        a("v_lshlrev_b32 v60, 5, v59"); a("v_lshl_add_u32 v60, v58, 3, v60")
        a("v_lshrrev_b32 v58, 1, v57"); a("v_lshlrev_b32 v58, 6, v58")
        a("v_lshl_add_u32 v56, v56, 2, v57"); a("v_lshlrev_b32 v56, 7, v56"); a(f"v_add_u32 v56, {sW8K}, v56")
        a("v_xor_b32 v57, v60, v58"); a(f"v_add_u32 {cB2[0]}, v56, v57")
        a("v_or_b32 v60, 64, v60"); a("v_xor_b32 v57, v60, v58"); a(f"v_add_u32 {cB2[1]}, v56, v57")
        a(f"v_add_u32 {cB2H[0]}, 0x10000, {cB2[0]}"); a(f"v_add_u32 {cB2H[1]}, 0x10000, {cB2[1]}")
        self.stamp("e3")
        self.branch2(self.epi_side, self.epi_q)
        self.stamp("e3end")
        self.e3_mark = a.vm_issued
        ex2 = {}
        def at2(f, fn): ex2.setdefault(f, []).append(fn)
        for i in range(9):
            f0 = NF1 + 16*i
            if i > 0: at2(f0 - LOOK - 1, lambda i=i: self.c_sbar(i))
            late = o.get("fl2_i", 5) == 5
            todo = []
            if i + 2 < 9 and not (late and i + 2 == 6): todo.append(i + 2)
            if late and i == 5: todo.insert(0, 6)
            for n, j in enumerate(todo):
                hd = {}
                def get(k, j=j, hd=hd):
                    if "p" not in hd: hd["p"] = self.h_load(j)
                    hd["p"][k]()
                for k in range(8): at2(f0 + (1 + k if len(todo) == 1 else (k + 8*n) * 15 // 16), lambda k=k, get=get: get(k))
        def resid():
            a(f"s_lshl_b32 s64, {sT}, 16"); a(f"s_lshl_b32 s7, {sC2}, 7"); a("s_add_u32 s64, s64, s7"); a("s_add_u32 s65, s64, 32768")
            a.vm(f"buffer_load_dwordx4 a[96:99], {cOUT}, {srd(S_X)}, s64 offen")
            a.vm(f"buffer_load_dwordx4 a[100:103], {cOUT}, {srd(S_X)}, s65 offen")
            a("v_lshrrev_b32 v56, 3, v0"); a("v_lshlrev_b32 v56, 4, v56")
            a(f"s_lshl_b32 s6, {sT}, 10"); a(f"s_add_u32 s6, s6, {WS_STAT + 4}")
            a.vm(f"buffer_load_dword v50, v56, {srd(S_WS)}, s6 offen sc1")
            self.xrtk = a.vm(f"buffer_load_dword v51, v56, {srd(S_WS)}, s6 offen offset:512 sc1")
        at2(NF1 + 16*7 + 2, resid)
        self.c_sbar(0)
        self.c_prime(NF1)
        self.c_run(NF1, NF, ex2, NF)
        self.final()

    def c_bar(self, G):
        a = self.a; o = self.o
        if G == o.get("pub0_G", 9) or G == o.get("pub1_G", 17): a.wait_all(lg=False)
        if G == 8: a.wait_all(vm=False)
        self.barrier("c", f"B{G}")
    def c_kv_read(self):
        a = self.a
        a(f"s_mul_i32 s6, {sW}, 1280"); a(f"s_add_u32 s6, s6, {L_KVO}"); a(f"v_lshlrev_b32 v{TMP}, 2, {vLANE}"); a(f"v_add_u32 v{TMP}, s6, v{TMP}")
        for v in range(5): self.kvrt = a.lg(f"ds_read_b32 v{TMP+1+v}, v{TMP} offset:{v*256}")
    def c_kv_atomics(self):
        a = self.a
        a(f"v_lshrrev_b32 v{TMP}, 4, {vLANE}"); a(f"v_lshlrev_b32 v{TMP}, 8, v{TMP}")
        a(f"v_and_b32 v{TMP+6}, 15, {vLANE}"); a(f"v_lshl_add_u32 v{TMP}, v{TMP+6}, 2, v{TMP}")
        a(f"v_lshlrev_b32 v{TMP+6}, 2, v{TMP+6}")
        a(f"v_cmp_gt_u32 vcc, 16, {vLANE}"); a(f"v_mov_b32 v{TMP+7}, {OOB}")
        a(f"s_lshl_b32 s64, {sCG}, 13"); a(f"s_mul_i32 s65, {sW}, {KVH}"); a("s_add_u32 s64, s64, s65"); a(f"s_add_u32 s64, s64, {WS_ACC + ACC_KV}")
        a(f"v_cndmask_b32 v{TMP+6}, v{TMP+7}, v{TMP+6}, vcc")
        a(f"s_cmp_eq_u32 {sPAR}, 0"); a("s_cselect_b64 vcc, -1, 0")
        a(f"v_cndmask_b32 v{TMP}, v{TMP+7}, v{TMP}, vcc"); a(f"v_cndmask_b32 v{TMP+6}, v{TMP+7}, v{TMP+6}, vcc")
        a.wait(lg=self.kvrt)
        for v in range(4): a.vm(f"buffer_atomic_add_f32 v{TMP+1+v}, v{TMP}, {srd(S_WS)}, s64 offen offset:{v*64} sc1")
        a.vm(f"buffer_atomic_add_f32 v{TMP+5}, v{TMP+6}, {srd(S_WS)}, s64 offen offset:1024 sc1")

    def c_touch_w2(self):
        a = self.a
        a(f"s_lshr_b32 s6, {sJ}, 2"); a("s_mul_i32 s6, s6, 288"); a(f"s_mul_i32 s7, {sW}, 72"); a("s_add_u32 s6, s6, s7")
        a(f"v_add_u32 v{TMP}, s6, {vLANE}"); a(f"v_lshlrev_b32 v{TMP}, 10, v{TMP}")
        a(f"s_lshl_b32 s6, {sC2}, 7")
        a(f"v_add_u32 v{TMP+1}, {64*1024}, v{TMP}")
        a(f"v_cmp_gt_u32 vcc, 8, {vLANE}"); a(f"v_mov_b32 v{TMP+2}, {OOB}"); a("s_nop 0")
        a(f"v_cndmask_b32 v{TMP+1}, v{TMP+2}, v{TMP+1}, vcc")
        a(f"s_mov_b32 s65, s6")
    def c_touch_step(self, k):
        a = self.a
        r = TMP + (k // 2)
        if k % 2 == 0: a.vm(f"buffer_load_dword v50, v{r}, {srd(S_WD)}, s65 offen")
        else:
            a(f"v_subrev_u32 v{TMP+4}, {1792*1024}, v{r}")
            a.vm(f"buffer_load_dword v50, v{TMP+4}, {srd(S_WO)}, s65 offen")

    def c_sbar(self, i):
        a = self.a; o = self.o
        if i == o.get("pub2_i", 1):
            a(f"s_waitcnt vmcnt({min(63, self.younger_than_e3())})")
        self.barrier("c", f"S{i}")
    def younger_than_e3(self):
        return self.a.vm_issued - self.e3_mark

    def final(self):
        a = self.a
        self.stamp("loopend")
        a(f"v_and_b32 v56, 31, {vLANE}"); a("s_movk_i32 s7, 272"); a("v_mul_lo_u32 v56, v56, s7")
        a(f"v_add_u32 v56, v56, {cG16}"); a(f"s_mul_i32 s6, {sW}, 17408"); a("v_add_u32 v56, s6, v56")
        for cb in range(2):
            for rf in range(2):
                for t in range(4):
                    r = ACC + (cb*2+rf)*16 + 4*t
                    a.lg(f"ds_write_b128 v56, v[{r}:{r+3}] offset:{rf*8704 + cb*128 + t*32}")
        a("v_lshrrev_b32 v57, 3, v0"); a("v_mul_lo_u32 v57, v57, s7")
        a("v_and_b32 v58, 7, v0"); a("v_lshl_add_u32 v57, v58, 5, v57")
        a.wait_all(vm=False)
        a("s_barrier")
        toks = {}
        for it in range(2):
            for p in range(4):
                for hh in range(2):
                    r = 64 + it*32 + p*8 + hh*4
                    toks[it] = a.lg(f"ds_read_b128 v[{r}:{r+3}], v57 offset:{p*17408 + it*8704 + hh*16}")
        a.wait(vm=self.xrtk)
        for k in range(8): a(f"v_accvgpr_read_b32 v{16+k}, a{96+k}")
        for it in range(2):
            a.wait(lg=toks[it])
            b = 64 + it*32; x = 16 + 4*it
            for k in range(0, 8, 2):
                a(f"v_pk_add_f32 v[{b+k}:{b+k+1}], v[{b+k}:{b+k+1}], v[{b+8+k}:{b+8+k+1}]")
                a(f"v_pk_add_f32 v[{b+16+k}:{b+16+k+1}], v[{b+16+k}:{b+16+k+1}], v[{b+24+k}:{b+24+k+1}]")
            a(f"v_mul_f32 v58, v{50+it}, v{50+it}")
            for k in range(0, 8, 2): a(f"v_pk_add_f32 v[{b+k}:{b+k+1}], v[{b+k}:{b+k+1}], v[{b+16+k}:{b+16+k+1}]")
            for k in range(4):
                a(f"v_lshlrev_b32 v59, 16, v{x+k}"); a(f"v_and_b32 v60, 0xffff0000, v{x+k}")
                a(f"v_fma_f32 v{b+2*k}, v{b+2*k}, v58, v59"); a(f"v_fma_f32 v{b+2*k+1}, v{b+2*k+1}, v58, v60")
            for k in range(4): a(f"v_cvt_pk_bf16_f32 v{24+4*it+k}, v{b+2*k}, v{b+2*k+1}")
            a.vm(f"buffer_store_dwordx4 v[{24+4*it}:{24+4*it+3}], {cOUT}, {srd(S_OUT)}, {'s64' if it == 0 else 's65'} offen")
        self.stamp("end"); self.stamp("rtend")
        if self.o.get("dbgtime"):
            a.wait_all()
            a("s_memtime s[88:89]"); a("s_memrealtime s[90:91]"); a("s_waitcnt lgkmcnt(0)")
            a("s_sub_u32 s88, s88, s84"); a("s_sub_u32 s90, s90, s86")
            a("s_mov_b32 s96, s92"); a("s_mov_b32 s97, s93"); a("s_mov_b32 s98, 256"); a("s_mov_b32 s99, 0x00020000")
            a("s_mov_b32 s6, 64")
            a("s_cmp_eq_u32 s2, 0"); a("s_cselect_b32 s6, 0, s6")
            a("s_cmp_eq_u32 s2, 100"); a("s_cselect_b32 s6, 16, s6")
            a("s_cmp_eq_u32 s2, 255"); a("s_cselect_b32 s6, 32, s6")
            a("s_cmp_eq_u32 s6, 64"); a(f"s_cselect_b32 s6, {OOB}, s6")
            a("v_mov_b32 v40, s88"); a("v_mov_b32 v41, s90"); a("v_mov_b32 v42, s86"); a("v_mov_b32 v43, s90")
            a("v_add_u32 v43, s86, v43")
            a(f"v_mov_b32 v44, {OOB}"); a("v_mov_b32 v45, s6"); a("v_cmp_eq_u32 vcc, 0, v0"); a("s_nop 1"); a("v_cndmask_b32 v44, v44, v45, vcc")
            a.vm("buffer_store_dwordx4 v[40:43], v44, s[96:99], 0 offen")
        self.prof_out(0)
        a("s_endpgm")

    def prof_out(self, woff):
        if self.prof is None: return
        a = self.a
        a.wait_all()
        a(f"s_lshl_b32 s6, s2, 3"); a(f"s_add_u32 s6, s6, {sW}"); a(f"s_add_u32 s6, s6, {woff}"); a("s_lshl_b32 s6, s6, 7"); a(f"s_add_u32 s6, s6, {WS_PROF}")
        a(f"v_cmp_eq_u32 vcc, 0, {vLANE}"); a(f"v_mov_b32 v40, {OOB}"); a("v_mov_b32 v41, 0"); a("v_cndmask_b32 v40, v40, v41, vcc")
        for i in range(len(self.prof)):
            a(f"v_mov_b32 v42, s{84+2*i}"); a(f"v_mov_b32 v43, s{85+2*i}")
            a.vm(f"buffer_store_dwordx2 v[42:43], v40, {srd(S_WS)}, s6 offen offset:{i*8}")
            a("s_nop 1")

    def build(self):
        a = self.a
        self.bars = {}
        self.prologue()
        prot = set(a.protect)
        self.sfx = "_c"
        self.h_setup()
        st = (a.vm_issued, a.lg_issued, a.vm_floor, a.lg_floor)
        saved = (dict(self.xtok), dict(self.wtok)); m0s = (self.m0_owner, self.m0_val)
        a(f"s_cmp_eq_u32 {sPAR}, 0"); a("s_cbranch_scc0 Lhodd")
        self.helper(0)
        a.label("Lhodd")
        a.vm_issued, a.lg_issued, a.vm_floor, a.lg_floor = st
        self.xtok, self.wtok = dict(saved[0]), dict(saved[1]); self.m0_owner, self.m0_val = m0s; self.open_item = {}
        self.helper(1)
        a.label("Lcompute")
        a.vm_issued = a.lg_issued = a.vm_floor = a.lg_floor = 0
        a.protect = prot
        self.compute()
        a.label("Lend")
        a("s_endpgm")
        assert self.bars["c"] == self.bars["h0"] == self.bars["h1"], (self.bars["c"], self.bars["h0"])
        L = self.log
        print("schedule:", {str(k): v for k, v in sorted(L.items(), key=str)}, file=sys.stderr)
        for c in (0, 1):
            assert L[(1, "pub", 0)] < L[(c, "chk", 0)]
            for ph in (1, 2):
                for p in (0, 1): assert L[(p, "pub", ph)] < L[(c, "chk", ph)], ("order", ph, p, c)
            for d in (0, 1):
                assert L[f"cs_pubA_{c}"] < L[f"cs_chkA_{d}"] and L[f"cs_pubB_{c}"] < L[f"cs_chkB_{d}"] and L[f"st_pub_{c}"] < L[f"st_chk_{d}"]
        assert L[(0, "kvcnt")] < L[(1, "kvchk")]
        for e in self.slow: e()
        a.label("Lcode_end")
        a.finalize()
        return a.text()

HEADER = """; Kernarg layout for this problem (80 bytes, ptrs only, base s[0:1]):
; @launch grid=(256,1,1) block=(512,1,1) lds=%d
.amdgcn_target "amdgcn-amd-amdhsa--gfx950"
.text
.globl %s
.p2align 8
.type %s,@function
%s:
"""
FOOTER = """
.section .rodata,"a"
.p2align 6
.amdhsa_kernel %s
  .amdhsa_next_free_vgpr 256
  .amdhsa_next_free_sgpr 102
  .amdhsa_accum_offset 128
  .amdhsa_group_segment_fixed_size 0
  .amdhsa_kernarg_size 80
  .amdhsa_user_sgpr_count 2
  .amdhsa_user_sgpr_kernarg_segment_ptr 1
  .amdhsa_system_sgpr_workgroup_id_x 1
.end_amdhsa_kernel
"""
BLOCK = 512
def generate(prof=None, opts=None):
    g = Gen(prof=prof, opts=opts)
    body = g.build()
    return HEADER % (LDS_BYTES, KNAME, KNAME, KNAME) + body + "\n" + FOOTER % KNAME

if __name__ == "__main__":
    prof = None; opts = {}; out = None
    for x in sys.argv[1:]:
        if x.startswith("--prof="): prof = x[7:].split(",")
        elif x.startswith("--opt="):
            for kv in x[6:].split(","):
                k, v = kv.split("="); opts[k] = int(v)
        else: out = x
    txt = generate(prof, opts)
    path = out or "parallel_sum__linear_attn_block__glu_gated_reglu__prompt.s"
    open(path, "w").write(txt)
    print("wrote", path, len(txt), "bytes")
```

```python
import sys, os
sys.path.insert(0, os.path.dirname(os.path.abspath(__file__)))
from asmlib import Asm

KNAME = "parallel_sum__linear_attn_block__glu_gated_reglu__prompt_kernel"

WS_EPOCH = 0x0
WS_ZF    = 0x1000
WS_HF    = 0x2000
WS_STAT  = 0x10000
WS_ACC   = 0x20000
ACC_CNT_KV = 1408
ACC_KV     = 2048
KVH, KVR = 1088, 64
WS_CSP   = 0x40000
WS_CSPA  = 0xC0000
WS_H     = 0x100000
WS_KVP   = 0xA00000
WS_KVZP  = 0xA80000
WS_KVF   = 0xA90000
WS_PROF  = 0xF00000
OOB      = 0x7FFFFFF0

NW = 5
L_X    = 0x14000
L_CA   = 0x20000
L_KVS  = 0x14000
KVP    = 136
L_CST  = 0x24800
L_STT  = 0x24E00
L_KVZ  = 0x25400
L_KVO  = 0x26400
W2SLOT = [0x14000, 0x0, 0x8000, 0x1C000]
LDS_BYTES = 0x28000

LOOK = 6
NFR  = 8
NF1  = 320
NF   = NF1 + 144

S_X, S_WS, S_OUT, S_U1, S_U2, S_U3, S_WD, S_WO = 8, 12, 16, 20, 24, 28, 32, 36
def srd(b): return f"s[{b}:{b+3}]"
sC1B, sC2B, sP1, sP3, sC3B, sJ = "s40", "s41", "s42", "s43", "s44", "s45"
sW, sR, sCG, sM, sPAR, sWLDS = "s46", "s47", "s48", "s49", "s50", "s51"
sU1b, sU1c64, sU2b, sU3c64 = "s52", "s53", "s54", "s55"
sXB, sW8K = "s56", "s57"
sTAGL, sTAGH = "s60", "s61"
sACC = "s62"
sROT = "s4"
sQA, sQB, sQC = "s5", "s3", "s63"
sT, sC2, sR2, sHALF = "s80", "s81", "s82", "s83"
sHB = "s70"
vLANE, vL16 = "v1", "v2"

cWA = [["v3", "v4"], ["v5", "v6"]]
cSA = ["v7", "v8"]
cXA = ["v9", "v10", "v11", "v12"]
cB2 = ["v9", "v10"]; cB2H = ["v11", "v12"]
cRSTD, cRL, cG16, cCSA = "v13", "v14", "v15", "v48"
RING = 16
BAUG = 52
cOUT = "v49"
TMP = 56
ACC = 64
hSA = "v3"
vU1 = [4, 5, 6, 7]; vU2 = [8, 9, 10, 11]; vU3 = [12, 13, 14, 15]; vX = [16, 17, 18, 19]; vW2 = [20, 21, 22, 23]
hG16, hCSA, hL0, vPOLL, vDUM = "v24", "v25", "v26", "v27", "v28"
TAG = 30
vTAGL, vTAGH = "v30", "v31"
FLD = 32

class Task:
    def __init__(self, g, wake, name):
        self.g = g; self.wake = wake; self.done = False; self.name = name

class Gen:
    def __init__(self, prof=None, opts=None):
        self.a = Asm()
        self.slow = []
        self.prof = prof
        self.tasks = []
        self.log = {}
        self.o = dict(codepf=1, hbudget=3)
        if opts: self.o.update(opts)
        self.nbar = {"c": 0, "h0": 0, "h1": 0}
        self.m0_owner = None; self.m0_val = None; self.open_item = {}

    def stamp(self, name):
        if self.prof is None or name not in self.prof: return
        i = self.prof.index(name)
        assert i < 9
        op = "s_memrealtime" if name.startswith("rt") else "s_memtime"
        self.a(f"{op} s[{84+2*i}:{85+2*i}]")
    def spawn(self, g, wake, name, front=False):
        t = Task(g, wake, name)
        if front: self.tasks.insert(0, t)
        else: self.tasks.append(t)
        return t
    def step(self, t):
        try: r = next(t.g)
        except StopIteration:
            t.done = True; return
        if r is not None: t.wake = r
    def pump(self, f, start, budget):
        a = self.a
        while len(a.lines) - start < budget:
            t = next((t for t in self.tasks if not t.done and t.wake <= f), None)
            if t is None: break
            self.step(t)
        self.tasks = [t for t in self.tasks if not t.done]
    def finish(self, name):
        cap = getattr(self, "int_cap", 0); self.int_cap = 10**9
        for t in list(self.tasks):
            if t.name == name:
                while not t.done: self.step(t)
        self.int_cap = cap
        self.tasks = [t for t in self.tasks if not t.done]
    def active(self, name): return any(t.name == name and not t.done for t in self.tasks)
    def barrier(self, who, name):
        self.bars.setdefault(who, []).append(name)
        self.stamp(f"{who[0]}{name}_in")
        self.a("s_barrier")
        self.stamp(f"{who[0]}{name}_out")

    def poll_check(self, tok, cmp_lines, reissue, name="x"):
        a = self.a
        slow = a.newlabel("Lslow"); back = a.newlabel("Lback")
        self.stamp(name + "_in")
        a.wait(vm=tok)
        a(cmp_lines)
        a("s_cmp_eq_u64 vcc, -1")
        a(f"s_cbranch_scc0 {slow}")
        a.label(back)
        self.stamp(name + "_out")
        def emit():
            loop = a.newlabel("Lspin")
            a.label(slow)
            a("s_mov_b32 s66, 0x4000")
            a.label(loop)
            a("s_sleep 1")
            a(reissue)
            a("s_waitcnt vmcnt(0)")
            a(cmp_lines)
            a("s_cmp_eq_u64 vcc, -1")
            a(f"s_cbranch_scc1 {back}")
            a("s_sub_u32 s66, s66, 1")
            a("s_cmp_lg_u32 s66, 0")
            a(f"s_cbranch_scc1 {loop}")
            a(f"s_branch {back}")
        self.slow.append(emit)
    def tagcmp(self, d):
        return (f"v_cmp_eq_u32 vcc, v{d}, {vTAGL}\n"
                f"v_cmp_eq_u32 s[64:65], v{d+1}, {vTAGH}\n"
                f"s_and_b64 vcc, vcc, s[64:65]")
    def reset_track(self):
        a = self.a
        a.vm_floor = a.vm_issued; a.lg_floor = a.lg_issued

    def prologue(self):
        a = self.a
        a("s_cmp_ge_u32 s2, 256")
        a("s_cbranch_scc1 Lend")
        a(f"s_load_dwordx2 s[{S_X}:{S_X+1}], s[0:1], 0")
        a("s_load_dwordx2 s[64:65], s[0:1], 8")
        a("s_load_dwordx4 s[68:71], s[0:1], 32")
        a(f"s_load_dwordx2 s[{S_WS}:{S_WS+1}], s[0:1], 72")
        a(f"s_load_dwordx2 s[{S_WD}:{S_WD+1}], s[0:1], 48")
        a(f"s_load_dwordx2 s[{S_WO}:{S_WO+1}], s[0:1], 16")
        a(f"s_load_dwordx2 s[{S_OUT}:{S_OUT+1}], s[0:1], 56")
        a.protect = {("s", i) for i in (64, 65, 68, 69, 70, 71)}
        self.stamp("start"); self.stamp("rtstart")
        if self.o.get("dbgtime"):
            a("s_memtime s[84:85]"); a("s_memrealtime s[86:87]"); a("s_load_dwordx2 s[92:93], s[0:1], 64")
        for b, size in ((S_X, 2097152), (S_WS, 0x10000000), (S_OUT, 2097152), (S_WD, 1792*1024), (S_WO, 524288), (S_U2, 512*3584)):
            a(f"s_mov_b32 s{b+2}, {size}"); a(f"s_mov_b32 s{b+3}, 0x00020000")
        a(f"s_mov_b32 s{S_U1+3}, 0x00020000"); a(f"s_mov_b32 s{S_U3+3}, 0x00020000")
        a(f"v_and_b32 {vLANE}, 63, v0")
        a("v_lshrrev_b32 v32, 6, v0")
        a(f"v_lshlrev_b32 {vL16}, 4, {vLANE}")
        a("v_readfirstlane_b32 s72, v32")
        a(f"s_and_b32 {sW}, s72, 3")
        a("s_and_b32 s3, s2, 7")
        a(f"s_lshr_b32 {sJ}, s2, 3")
        if self.o.get("map42", 0):
            a("s_lshr_b32 s7, s3, 1"); a(f"s_lshl_b32 {sR}, s7, 2")
            a(f"s_lshr_b32 s7, {sJ}, 3"); a(f"s_add_u32 {sR}, {sR}, s7")
            a(f"s_and_b32 {sHALF}, s3, 1"); a(f"s_lshl_b32 {sCG}, {sHALF}, 3")
            a(f"s_and_b32 {sC2}, {sJ}, 7"); a(f"s_add_u32 {sCG}, {sCG}, {sC2}")
            a(f"s_lshr_b32 {sM}, {sCG}, 1"); a(f"s_and_b32 {sPAR}, {sCG}, 1")
            a(f"s_lshl_b32 {sT}, {sR}, 1"); a(f"s_add_u32 {sT}, {sT}, {sHALF}")
            a(f"s_mov_b32 {sR2}, {sR}")
        else:
            a("s_lshr_b32 s7, s3, 2"); a(f"s_lshl_b32 {sR}, s7, 3")
            a(f"s_lshr_b32 s7, {sJ}, 2"); a(f"s_add_u32 {sR}, {sR}, s7")
            a("s_and_b32 s7, s3, 3"); a(f"s_lshl_b32 {sCG}, s7, 2")
            a(f"s_and_b32 s7, {sJ}, 3"); a(f"s_add_u32 {sCG}, {sCG}, s7")
            a(f"s_lshr_b32 {sM}, {sCG}, 1"); a(f"s_and_b32 {sPAR}, {sCG}, 1")
            a(f"s_bfe_u32 {sHALF}, s3, {(1 << 16) | 1}"); a(f"s_lshl_b32 {sT}, {sR}, 1"); a(f"s_add_u32 {sT}, {sT}, {sHALF}")
            a(f"s_and_b32 {sC2}, s3, 1"); a(f"s_lshl_b32 {sC2}, {sC2}, 2"); a(f"s_and_b32 s7, {sJ}, 3"); a(f"s_add_u32 {sC2}, {sC2}, s7")
            a(f"s_mov_b32 {sR2}, {sR}")
        a(f"s_lshl_b32 {sWLDS}, {sW}, 12"); a(f"s_lshl_b32 {sW8K}, {sW}, 13")
        a("s_cmp_lt_u32 s72, 4")
        a("s_cbranch_scc1 Lcompute")

    def h_setup(self):
        a = self.a
        self.xtok = {}; self.wtok = {}
        a(f"s_add_u32 s6, {sCG}, {sR}"); a(f"s_and_b32 {sROT}, s6, 3")
        a(f"s_lshl_b32 s6, {sR}, 7"); a(f"s_lshl_b32 s7, {sW}, 5"); a("s_add_u32 s6, s6, s7")
        a(f"s_lshl_b32 {sXB}, s6, 10")
        a(f"v_lshrrev_b32 v44, 3, {vLANE}"); a(f"v_and_b32 v45, 7, {vLANE}")
        a(f"v_lshrrev_b32 v47, 4, {vLANE}"); a("v_xor_b32 v47, v45, v47"); a("v_lshlrev_b32 v47, 4, v47")
        a(f"v_lshl_add_u32 v{vX[0]}, v44, 10, v47")
        a(f"v_xor_b32 v47, 64, v{vX[0]}")
        a(f"v_add_u32 v{vX[1]}, {7*1024}, v47"); a(f"v_add_u32 v{vX[2]}, {14*1024}, v{vX[0]}"); a(f"v_add_u32 v{vX[3]}, {21*1024}, v47")
        a(f"s_cmp_eq_u32 {sPAR}, 0")
        a("s_movk_i32 s6, 3072"); a("s_movk_i32 s7, 3584")
        a(f"s_cselect_b32 {sP1}, s6, s7"); a(f"s_cselect_b32 {sP3}, s7, s6")
        a(f"s_mov_b32 s6, {512*3072}"); a(f"s_mov_b32 s7, {512*3584}")
        a(f"s_cselect_b32 s{S_U1+2}, s6, s7"); a(f"s_cselect_b32 s{S_U3+2}, s7, s6")
        a(f"v_bfe_u32 v43, {vLANE}, 4, 1")
        a("v_lshlrev_b32 v46, 2, v43"); a("v_xor_b32 v46, v45, v46"); a("v_lshlrev_b32 v46, 4, v46")
        a(f"v_mul_lo_u32 v47, v44, {sP1}"); a(f"v_add_u32 v{vU1[0]}, v47, v46")
        a(f"s_lshl_b32 s6, {sP1}, 3"); a("s_sub_u32 s6, s6, 1024")
        for i in range(1, 4): a(f"v_add_u32 v{vU1[i]}, s6, v{vU1[i-1]}")
        a(f"s_lshr_b32 s72, {sW}, 1")
        a("s_lshl_b32 s73, s72, 10"); a("s_add_u32 s73, s73, 1024")
        a(f"s_lshl_b32 s7, {sM}, 7"); a("s_add_u32 s73, s73, s7")
        a(f"s_lshl_b32 s6, {sM}, 8"); a("s_add_u32 s6, s6, 1024")
        a(f"s_cmp_eq_u32 {sPAR}, 0"); a(f"s_cselect_b32 {sC1B}, s73, s6")
        a(f"s_and_b32 s73, {sW}, 1")
        a(f"s_lshl_b32 {sU1c64}, {sP1}, 6")
        a(f"s_mul_i32 s6, s73, {sP1}"); a("s_lshl_b32 s7, s6, 5"); a(f"s_add_u32 {sU1b}, {sC1B}, s7")
        a("s_waitcnt lgkmcnt(0)")
        self.stamp("kargs")
        self.dma_x(0)
        a(f"s_cmp_lt_u32 {sW}, 2")
        a(f"s_cselect_b32 s{S_U2}, s68, s70"); a(f"s_cselect_b32 s{S_U2+1}, s69, s71")
        a(f"s_cmp_eq_u32 {sPAR}, 0")
        a(f"s_cselect_b32 s{S_U1}, s64, s{S_U2}"); a(f"s_cselect_b32 s{S_U1+1}, s65, s{S_U2+1}")
        a(f"s_cselect_b32 s{S_U3}, s{S_U2}, s64"); a(f"s_cselect_b32 s{S_U3+1}, s{S_U2+1}, s65")
        a.protect = set()
        self.dma_w(0); self.dma_x(1); self.dma_w(1)
        a(f"s_load_dwordx2 s[60:61], s[{S_WS}:{S_WS+1}], 0")
        a(f"v_lshrrev_b32 v40, 5, {vLANE}"); a(f"v_bfe_u32 v41, {vLANE}, 2, 2"); a(f"v_and_b32 v42, 3, {vLANE}")
        a(f"s_lshl_b32 s7, {sM}, 7"); a(f"s_lshl_b32 s6, {sM}, 8"); a("s_add_u32 s6, s6, 1152")
        a(f"s_cmp_eq_u32 {sPAR}, 0"); a(f"s_cselect_b32 {sC2B}, s7, s6")
        a(f"s_lshr_b32 s6, {sM}, 1"); a("s_lshl_b32 s6, s6, 7"); a("s_add_u32 s6, s6, 3072")
        a(f"s_and_b32 s73, {sM}, 1"); a("s_lshl_b32 s73, s73, 6"); a("s_add_u32 s6, s6, s73")
        a("s_lshl_b32 s73, s72, 6"); a("s_add_u32 s73, s73, s7")
        a(f"s_cmp_eq_u32 {sPAR}, 0"); a(f"s_cselect_b32 {sC3B}, s6, s73")
        a(f"s_and_b32 s72, {sW}, 1")
        if self.o.get("touch1", 0): self.touch1()
        a("v_lshlrev_b32 v47, 5, v43"); a("v_lshl_add_u32 v47, v42, 3, v47")
        a("v_lshl_add_u32 v48, v40, 3, v41"); a("v_lshlrev_b32 v48, 6, v48"); a(f"v_add_u32 {hSA}, v48, v47")
        a(f"v_lshlrev_b32 {hG16}, 4, v40")
        a("s_movk_i32 s7, 3584"); a("v_mul_lo_u32 v47, v44, s7"); a(f"v_add_u32 v{vU2[0]}, v47, v46")
        for i in range(1, 4): a(f"v_add_u32 v{vU2[i]}, {8*3584-1024}, v{vU2[i-1]}")
        a(f"s_mul_i32 s7, s72, {32*3584}"); a(f"s_add_u32 {sU2b}, {sC2B}, s7")
        a(f"v_lshrrev_b32 v49, 2, {vLANE}"); a(f"v_mul_lo_u32 v47, v49, {sP3}"); a(f"v_lshl_add_u32 v{vU3[0]}, v42, 4, v47")
        a(f"s_lshl_b32 s6, {sP3}, 4"); a("s_sub_u32 s6, s6, 1024")
        for i in range(1, 4): a(f"v_add_u32 v{vU3[i]}, s6, v{vU3[i-1]}")
        a(f"s_lshl_b32 {sU3c64}, {sP3}, 6")
        a(f"v_lshl_add_u32 v{vW2[0]}, v44, 10, v46")
        for k in range(1, 4): a(f"v_add_u32 v{vW2[k]}, {7*1024*k}, v{vW2[0]}")
        a(f"v_mul_lo_u32 v47, v49, {sP1}"); a("v_lshl_add_u32 v34, v42, 4, v47")
        a(f"s_lshl_b32 s6, {sP1}, 4"); a("s_sub_u32 s6, s6, 1024"); a("v_add_u32 v35, s6, v34")
        a("s_movk_i32 s7, 3584"); a("v_mul_lo_u32 v47, v49, s7"); a("v_lshl_add_u32 v36, v42, 4, v47"); a(f"v_add_u32 v37, {16*3584-1024}, v36")
        a(f"s_and_b32 s6, {sR}, 7"); a("s_lshl_b32 s6, s6, 6"); a(f"s_lshr_b32 s7, {sR}, 3"); a("s_lshl_b32 s7, s7, 5"); a("s_add_u32 s6, s6, s7")
        a("s_lshl_b32 s7, s72, 6")
        a(f"s_mul_i32 s73, s6, {sP1}"); a(f"s_add_u32 s73, s73, {sC1B}"); a("s_add_u32 s73, s73, s7")
        a("s_mul_i32 s74, s6, 3584"); a(f"s_add_u32 s74, s74, {sC2B}"); a("s_add_u32 s74, s74, s7")
        a(f"s_mul_i32 s75, s6, {sP3}"); a(f"s_add_u32 s75, s75, {sC3B}")
        a(f"s_lshl_b32 {sACC}, {sCG}, 13"); a(f"s_add_u32 {sACC}, {sACC}, {WS_ACC}")
        a(f"s_lshl_b32 s6, {sR}, 7"); a(f"s_lshl_b32 s7, {sCG}, 3"); a("s_add_u32 s6, s6, s7")
        a(f"s_lshl_b32 s7, {sW}, 1"); a("s_add_u32 s76, s6, s7")
        a(f"v_and_b32 {hCSA}, 31, {vLANE}"); a(f"v_lshlrev_b32 {hCSA}, 2, {hCSA}"); a(f"v_add_u32 {hCSA}, {L_CST}, {hCSA}")
        a(f"v_cmp_eq_u32 vcc, 0, {vLANE}"); a(f"v_mov_b32 {hL0}, {OOB}"); a("v_mov_b32 v47, 0"); a(f"v_cndmask_b32 {hL0}, {hL0}, v47, vcc")
        a(f"s_lshl_b32 s6, {sR}, 1"); a(f"s_lshr_b32 s7, {sW}, 1"); a("s_add_u32 s6, s6, s7"); a("s_mul_i32 s6, s6, 768")
        a(f"s_lshl_b32 s7, {sCG}, 4"); a("s_add_u32 s6, s6, s7"); a("s_lshl_b32 s7, s72, 3"); a("s_add_u32 s6, s6, s7"); a(f"s_add_u32 s77, s6, {WS_HF}")
        for _ in self.t_s2_q(): pass
        a("s_waitcnt lgkmcnt(0)")
        a(f"s_add_u32 {sTAGL}, {sTAGL}, 1"); a(f"s_addc_u32 {sTAGH}, {sTAGH}, 0")
        a(f"v_mov_b32 {vTAGL}, {sTAGL}"); a(f"v_mov_b32 {vTAGH}, {sTAGH}")

    def touch1(self):
        a = self.a
        a(f"s_and_b32 s6, {sR}, 7"); a("s_lshl_b32 s6, s6, 6"); a(f"s_and_b32 s7, {sW}, 1"); a("s_lshl_b32 s7, s7, 5"); a("s_add_u32 s6, s6, s7")
        a(f"v_and_b32 v50, 31, {vLANE}"); a("v_add_u32 v50, s6, v50")
        a(f"v_mul_lo_u32 v51, v50, {sP1}")
        a.vm(f"buffer_load_dword {vDUM}, v51, {srd(S_U1)}, {sC1B} offen")
        a(f"v_and_b32 v52, 31, {vLANE}"); a(f"v_lshrrev_b32 v53, 5, {vLANE}"); a(f"s_lshl_b32 s6, {sW}, 1"); a("s_add_u32 s6, s6, 2"); a("v_add_u32 v53, s6, v53")
        a("v_lshlrev_b32 v52, 10, v52"); a("v_lshl_add_u32 v52, v53, 7, v52")
        a("v_cmp_lt_u32 vcc, 7, v53"); a(f"v_mov_b32 v53, {OOB}"); a("s_nop 0"); a("v_cndmask_b32 v52, v52, v53, vcc")
        a(f"s_lshl_b32 s6, {sR}, 7"); a(f"s_and_b32 s7, {sCG}, 3"); a("s_lshl_b32 s7, s7, 5"); a("s_add_u32 s6, s6, s7"); a("s_lshl_b32 s6, s6, 10")
        a.vm(f"buffer_load_dword {vDUM}, v52, {srd(S_X)}, s6 offen")
        a("s_movk_i32 s7, 3584"); a("v_mul_lo_u32 v51, v50, s7")
        a.vm(f"buffer_load_dword {vDUM}, v51, {srd(S_U2)}, {sC2B} offen")
        a(f"v_mul_lo_u32 v51, v50, {sP3}")
        a.vm(f"buffer_load_dword {vDUM}, v51, {srd(S_U3)}, {sC3B} offen")

    def mkparts(self, head, vs, sr, so, settok, ldsbase):
        a = self.a
        parts = []
        for i in range(4):
            def p(i=i):
                key = (so, ldsbase)
                if i == 0:
                    assert self.open_item.get(so) is None
                    self.open_item[so] = key
                assert self.open_item[so] == key
                if i == 3: self.open_item[so] = None
                if i == 0: head()
                elif self.m0_owner != so or self.m0_val != ldsbase: a(f"s_add_u32 m0, {sWLDS}, {ldsbase}")
                self.m0_owner = so; self.m0_val = ldsbase
                settok(a.vm(f"buffer_load_dwordx4 v{vs[i]}, {srd(sr)}, {so} offen{' offset:%d' % (1024*i) if i else ''} lds"))
            parts.append(p)
        return parts
    def m0_clobber(self): self.m0_owner = None
    def dma_x_parts(self, c):
        a = self.a
        def head():
            a(f"s_add_u32 m0, {sWLDS}, {L_X + (c % 3)*16384}")
            a(f"s_add_u32 s7, {sROT}, {c & 3}"); a("s_and_b32 s7, s7, 3")
            if c & 4: a("s_or_b32 s7, s7, 4")
            a("s_lshl_b32 s7, s7, 7"); a(f"s_add_u32 s58, {sXB}, s7")
        return self.mkparts(head, vX, S_X, "s58", lambda t: self.xtok.__setitem__(c, t), L_X + (c % 3)*16384)
    def dma_w_parts(self, G):
        a = self.a
        slot = G % NW
        if G < 8:    vs, sr, b, c64 = vU1, S_U1, sU1b, sU1c64
        elif G < 16: vs, sr, b, c64 = vU2, S_U2, sU2b, str(64*3584)
        else:        vs, sr, b, c64 = vU3, S_U3, sC3B, sU3c64
        def head():
            a(f"s_add_u32 m0, {sWLDS}, {slot*16384}")
            if G < 16:
                pos = G % 8; a(f"s_add_u32 s7, {sROT}, {pos & 3}")
            else:
                pos = 2*(G-16)
                a(f"s_and_b32 s7, {sW}, 1"); a(f"s_add_u32 s7, s7, {sROT}"); a(f"s_add_u32 s7, s7, {pos & 3}")
            a("s_and_b32 s7, s7, 3")
            if pos & 4: a("s_or_b32 s7, s7, 4")
            a(f"s_mul_i32 s7, s7, {c64}"); a(f"s_add_u32 s59, {b}, s7")
        return self.mkparts(head, vs, sr, "s59", lambda t: self.wtok.__setitem__(G, t), slot*16384)
    def dma_x(self, c):
        for p in self.dma_x_parts(c): p()
    def dma_w(self, G):
        for p in self.dma_w_parts(G): p()
    def slab(self, base_expr, v0, v1, sr, so):
        a = self.a
        a(base_expr); self.m0_clobber(); a("s_nop 0")
        a.vm(f"buffer_load_dwordx4 v{v0}, {srd(sr)}, {so} offen lds")
        return a.vm(f"buffer_load_dwordx4 v{v1}, {srd(sr)}, {so} offen offset:1024 lds")

    def t_early(self):
        a = self.a; o = self.o
        a(f"s_lshl_b32 s6, {sW}, 11")
        self.ctokA = self.slab(f"s_add_u32 m0, s6, {L_CA}", 34, 35, S_U1, "s73"); yield
        if o["codepf"]:
            a("s_getpc_b64 s[64:65]")
            a.label("Lpc0" + self.sfx)
            a(f"s_sub_u32 s64, s64, Lpc0{self.sfx}-{KNAME}"); a("s_subb_u32 s65, s65, 0")
            a(f"v_min_u32 v40, 2, {vLANE}")
            a(f"s_mul_i32 s6, {sJ}, 12"); a(f"s_mul_i32 s7, {sW}, 3"); a("s_add_u32 s6, s6, s7")
            a("v_add_u32 v40, s6, v40"); a("v_lshlrev_b32 v40, 7, v40")
            a(f"s_mov_b32 s66, Lcode_end-{KNAME}-4"); a("v_min_u32 v40, s66, v40")
            a.vm(f"global_load_dword {vDUM}, v40, s[64:65]"); yield

    DPPM = ("quad_perm:[1,0,3,2] row_mask:0xf", "quad_perm:[2,3,0,1] row_mask:0xf", "row_half_mirror row_mask:0xf",
            "row_mirror row_mask:0xf", "row_bcast:15 row_mask:0xa", "row_bcast:31 row_mask:0xc")
    def c_stats(self):
        a = self.a
        D = 64
        for r in range(2):
            for k in range(4):
                a(f"v_lshlrev_b32 v{D+8*r+2*k}, 16, v{16+4*r+k}"); a(f"v_and_b32 v{D+8*r+2*k+1}, 0xffff0000, v{16+4*r+k}")
        for k in range(1, 8):
            for r in range(2):
                d = D + 8*r; t = 80 + r
                a(f"v_add_f32 v{t}, v{d}, v{d+1}" if k == 1 else f"v_add_f32 v{t}, v{t}, v{d+k}")
        for mod in self.DPPM:
            for v in ("v80", "v81"): a(f"v_add_f32_dpp {v}, {v}, {v} {mod} bank_mask:0xf")
        a("v_readlane_b32 s78, v80, 63"); a("v_readlane_b32 s79, v81, 63")
        a("s_mov_b32 s66, 0x3b000000"); a("v_mov_b32 v82, s78"); a("v_mov_b32 v83, s79")
        a("v_mul_f32 v82, s66, v82"); a("v_mul_f32 v83, s66, v83")
        for k in range(8):
            for r in range(2): a(f"v_sub_f32 v{D+8*r+k}, v{D+8*r+k}, v{82+r}")
        for k in range(8):
            for r in range(2):
                d = D + 8*r; t = 80 + r
                a(f"v_mul_f32 v{t}, v{d}, v{d}" if k == 0 else f"v_fmac_f32 v{t}, v{d+k}, v{d+k}")
        for mod in self.DPPM:
            for v in ("v80", "v81"): a(f"v_add_f32_dpp {v}, {v}, {v} {mod} bank_mask:0xf")
        a("v_readlane_b32 s78, v80, 63"); a("v_readlane_b32 s79, v81, 63")
        a("v_mov_b32 v84, s78"); a("v_mov_b32 v85, s79"); a("v_mov_b32 v86, 0x3727c5ac")
        a("v_fma_f32 v84, v84, s66, v86"); a("v_fma_f32 v85, v85, s66, v86")
        a("v_rsq_f32 v84, v84"); a("v_rsq_f32 v85, v85")
        a(f"v_cmp_eq_u32 vcc, 1, {vLANE}"); a("v_mov_b32 v90, s60"); a("v_mov_b32 v91, s61")
        a("v_cndmask_b32 v88, v82, v83, vcc"); a("v_cndmask_b32 v89, v84, v85, vcc")
        a(f"v_cmp_gt_u32 vcc, 2, {vLANE}"); a(f"v_mov_b32 v87, {OOB}")
        a("s_lshl_b32 s6, s75, 4"); a(f"s_add_u32 s6, s6, {WS_STAT}")
        a(f"v_cndmask_b32 v86, v87, {vL16}, vcc")
        a.vm(f"buffer_store_dwordx4 v[88:91], v86, {srd(S_WS)}, s6 offen sc1")

    def t_cs(self, rnd):
        a = self.a
        A = rnd == "A"
        nu = 1 if A else 2
        FR, ONES, D0, AD, RES = 96, 112, 116, 88, 84
        a(f"s_lshl_b32 s6, {sW}, {11 if A else 12}"); a(f"s_add_u32 s6, s6, {L_CA}")
        a(f"v_add_u32 v{AD}, s6, {hSA}"); yield
        for k in range(4): a(f"v_mov_b32 v{ONES+k}, 0x3f803f80")
        yield
        a(f"v_and_b32 v{AD+1}, 31, {vLANE}"); a(f"v_lshlrev_b32 v{AD+1}, {3 if A else 4}, v{AD+1}")
        a(f"v_cmp_gt_u32 vcc, 32, {vLANE}"); a(f"v_mov_b32 v{AD+2}, {OOB}"); a("s_nop 0")
        a(f"v_cndmask_b32 v{AD+1}, v{AD+2}, v{AD+1}, vcc"); yield
        a.wait(vm=self.ctokA if A else self.ctokB)
        for ui in range(nu):
            for s in range(2):
                for q in range(2):
                    r = FR + ui*8 + s*4 + q*2
                    t = a.lg(f"ds_read_b64_tr_b16 v[{r}:{r+1}], v{AD} offset:{ui*2048 + (16*s + 4*q)*64}")
            yield
        if not A: yield self.int_end
        a.wait(lg=t)
        DT = [116, 60]
        DT = [52, 68]
        for ui in range(nu):
            d = DT[ui]
            for s in range(2):
                r = FR + ui*8 + s*4
                a(f"v_mfma_f32_32x32x16_bf16 v[{d}:{d+15}], v[{ONES}:{ONES+3}], v[{r}:{r+3}], {'0' if s == 0 else f'v[{d}:{d+15}]'}")
            yield
        a(f"s_lshl_b32 s6, {sCG}, 4"); a(f"s_add_u32 s6, s6, {sR}"); a("s_lshl_b32 s6, s6, 2"); a(f"s_add_u32 s6, s6, {sW}")
        a(f"s_lshl_b32 s6, s6, {8 if A else 9}"); a(f"s_add_u32 s71, s6, {WS_CSPA if A else WS_CSP}"); yield
        if not A: yield self.int_end
        if A:
            a(f"v_mov_b32 v{RES}, v52"); a(f"v_mov_b32 v{RES+1}, {vTAGL}")
            a.vm(f"buffer_store_dwordx2 v[{RES}:{RES+1}], v{AD+1}, {srd(S_WS)}, s71 offen sc1"); yield
        else:
            a(f"v_mov_b32 v{RES}, v52"); a(f"v_mov_b32 v{RES+1}, v68"); a(f"v_mov_b32 v{RES+2}, {vTAGL}"); a(f"v_mov_b32 v{RES+3}, {vTAGL}")
            a.vm(f"buffer_store_dwordx4 v[{RES}:{RES+3}], v{AD+1}, {srd(S_WS)}, s71 offen sc1"); yield
        self.log["cs_pub" + rnd + self.sfx] = self.f

    def t_csum(self, rnd, chk_f):
        a = self.a
        A = rnd == "A"
        B = 52; W = 2 if A else 4; AD = 92
        SB, ST = "s68", "s69"
        a(f"v_and_b32 v{AD}, 31, {vLANE}"); a(f"v_lshlrev_b32 v{AD}, {3 if A else 4}, v{AD}")
        a(f"v_lshrrev_b32 v{AD+1}, 5, {vLANE}"); a(f"v_lshl_add_u32 v{AD}, v{AD+1}, {10 if A else 11}, v{AD}"); yield
        a(f"s_lshl_b32 s6, {sCG}, {14 if A else 15}"); a(f"s_lshl_b32 s7, {sW}, {8 if A else 9}"); a("s_add_u32 s6, s6, s7")
        a(f"s_add_u32 {SB}, s6, {WS_CSPA if A else WS_CSP}"); yield
        def loads():
            return [f"s_add_u32 {ST}, {SB}, {i*(2048 if A else 4096)}\nbuffer_load_dwordx{W} v[{B+W*i}:{B+W*i+W-1}], v{AD}, {srd(S_WS)}, {ST} offen sc1" for i in range(8)]
        for t in loads():
            yield from self.vmslot()
            l0, l1 = t.split("\n"); a(l0); tok = a.vm(l1); yield
        yield max(chk_f, self.f + 24)
        tg = W - 1
        cmp = f"v_cmp_eq_u32 vcc, v{B+tg}, {vTAGL}\n"
        for i in range(1, 8): cmp += f"v_cmp_eq_u32 s[64:65], v{B+tg+W*i}, {vTAGL}\ns_and_b64 vcc, vcc, s[64:65]\n"
        self.log["cs_chk" + rnd + self.sfx] = self.f
        self.poll_check(tok, cmp.strip(), "\n".join(loads()), "csp" + rnd)
        nv = 1 if A else 2
        for i in range(1, 8):
            for k in range(nv): a(f"v_add_f32 v{B+k}, v{B+k}, v{B+W*i+k}")
            yield
        T = B + 4
        for k in range(nv): a(f"v_mov_b32 v{T+k}, v{B+k}")
        for k in range(nv): a(f"v_permlane32_swap_b32 v{B+k}, v{T+k}")
        for k in range(nv): a(f"v_add_f32 v{B+k}, v{B+k}, v{T+k}")
        yield
        for k in range(nv): a(f"v_cvt_pk_bf16_f32 v{T+k}, v{B+k}, v{B+k}")
        for k in range(nv): a(f"v_lshlrev_b32 v{T+k}, 16, v{T+k}")
        for k in range(nv): a(f"v_sub_f32 v{T+k}, v{B+k}, v{T+k}")
        for k in range(nv): a(f"v_cvt_pk_bf16_f32 v{B+k}, v{B+k}, v{T+k}")
        yield
        a(f"s_lshl_b32 s6, {sW}, 7"); a(f"v_add_u32 v{AD+1}, s6, {hCSA}")
        if A: a.lg(f"ds_write_b32 v{AD+1}, v{B}")
        else:
            a.lg(f"ds_write_b32 v{AD+1}, v{B} offset:512")
            a(f"s_lshr_b32 s6, {sW}, 1"); a("s_lshl_b32 s6, s6, 7"); a(f"v_add_u32 v{AD+1}, s6, {hCSA}")
            a.lg(f"ds_write_b32 v{AD+1}, v{B+1} offset:1024")
        yield

    def t_stt(self, chk_f):
        a = self.a
        a(f"v_and_b32 v44, 31, {vLANE}"); a("v_lshlrev_b32 v45, 4, v44"); yield
        a(f"s_lshl_b32 s6, {sR}, 7"); a(f"s_lshl_b32 s7, {sW}, 5"); a("s_add_u32 s6, s6, s7")
        a("s_lshl_b32 s72, s6, 4"); a(f"s_add_u32 s72, s72, {WS_STAT}")
        txt = f"buffer_load_dwordx4 v[48:51], v45, {srd(S_WS)}, s72 offen sc1"
        tok = a.vm(txt)
        yield chk_f
        self.log["st_chk" + self.sfx] = self.f
        self.poll_check(tok, self.tagcmp(50), txt, "stp")
        a("v_sub_f32 v48, 0, v48")
        a("v_lshlrev_b32 v44, 3, v44"); a(f"s_lshl_b32 s6, {sW}, 8"); a(f"s_add_u32 s6, s6, {L_STT}"); a("v_add_u32 v44, s6, v44")
        a.lg("ds_write_b64 v44, v[48:49]"); yield

    def t_slabB(self):
        a = self.a
        yield from self.vmslot()
        self.slab(f"s_add_u32 m0, {sWLDS}, {L_CA}", 36, 37, S_U2, "s74"); yield
        yield from self.vmslot()
        self.ctokB = self.slab(f"s_add_u32 m0, {sWLDS}, {L_CA + 2048}", vU3[0], vU3[1], S_U3, "s75"); yield

    def publish(self, phase):
        a = self.a
        a.vm(f"buffer_store_dwordx2 v[{TAG}:{TAG+1}], {hL0}, {srd(S_WS)}, s77 offen offset:{phase*256} sc1")
        self.log[(self.par, "pub", phase)] = self.f

    def t_kv_tail(self):
        a = self.a; o = self.o
        a(f"v_lshrrev_b32 v38, 4, {vLANE}"); a("v_lshlrev_b32 v38, 3, v38")
        a(f"v_bfe_u32 v39, {vLANE}, 2, 2"); a("v_add_u32 v38, v38, v39"); yield
        a(f"s_movk_i32 s7, {KVP}"); a("v_mul_lo_u32 v38, v38, s7")
        a(f"v_and_b32 v39, 3, {vLANE}"); a("v_lshl_add_u32 v38, v39, 3, v38"); yield
        a(f"s_lshl_b32 s6, {sW}, 5"); a(f"s_add_u32 s6, s6, {L_KVS}"); a("v_add_u32 v38, s6, v38"); yield
        F = 52
        for ks in range(4):
            for tile in range(2):
                for q in range(2):
                    r = F + ks*8 + tile*4 + q*2
                    t = a.lg(f"ds_read_b64_tr_b16 v[{r}:{r+1}], v38 offset:{tile*128*KVP + (32*ks + 4*q)*KVP}")
                yield
        for k in range(4): a(f"v_mov_b32 v{84+k}, 0x3f803f80")
        yield self.int_end
        a.wait(lg=t)
        self.kv_reads_f = self.f
        for ks in range(4):
            pk = F + ks*8; vv = pk + 4
            a(f"v_mfma_f32_16x16x32_bf16 v[88:91], v[{vv}:{vv+3}], v[{pk}:{pk+3}], {'0' if ks == 0 else 'v[88:91]'}")
            a(f"v_mfma_f32_16x16x32_bf16 v[48:51], v[84:87], v[{pk}:{pk+3}], {'0' if ks == 0 else 'v[48:51]'}")
            yield
        a(f"s_lshl_b32 s6, {sM}, 2"); a(f"s_add_u32 s6, s6, {sW}")
        a("s_lshl_b32 s7, s6, 4"); a(f"s_add_u32 s7, s7, {sR}"); a("s_lshl_b32 s7, s7, 10"); a(f"s_add_u32 s73, s7, {WS_KVP}")
        a("s_lshl_b32 s7, s6, 10"); a(f"s_lshl_b32 s72, {sR}, 6"); a("s_add_u32 s7, s7, s72"); a(f"s_add_u32 s72, s7, {WS_KVZP}")
        a("s_lshl_b32 s7, s6, 7"); a(f"s_lshl_b32 s6, {sR}, 3"); a("s_add_u32 s7, s7, s6"); a(f"s_add_u32 s71, s7, {WS_KVF}")
        a(f"v_cmp_gt_u32 vcc, 16, {vLANE}"); a(f"v_mov_b32 v39, {OOB}"); a(f"v_lshlrev_b32 v38, 2, {vLANE}")
        a("v_cndmask_b32 v38, v39, v38, vcc")
        yield self.f + 2
        a.vm(f"buffer_store_dwordx4 v[88:91], {vL16}, {srd(S_WS)}, s73 offen sc1")
        tok = a.vm(f"buffer_store_dword v48, v38, {srd(S_WS)}, s72 offen sc1"); yield
        yield self.int_end + 16
        a.wait(vm=tok)
        a.vm(f"buffer_store_dwordx2 v[{TAG}:{TAG+1}], {hL0}, {srd(S_WS)}, s71 offen sc1")
        self.log[(0, "kvcnt")] = self.f
        yield

    def t_q_prep(self, chk_f):
        a = self.a
        a(f"s_lshl_b32 s6, {sM}, 2"); a(f"s_add_u32 s6, s6, {sW}")
        a("s_lshl_b32 s7, s6, 7"); a(f"s_add_u32 s71, s7, {WS_KVF}")
        a("s_lshl_b32 s7, s6, 14"); a(f"s_add_u32 s73, s7, {WS_KVP}")
        a("s_lshl_b32 s7, s6, 10"); a(f"s_add_u32 s76, s7, {WS_KVZP}")
        a(f"v_and_b32 v40, 15, {vLANE}"); a("v_lshlrev_b32 v40, 3, v40")
        txt = f"buffer_load_dwordx2 v[42:43], v40, {srd(S_WS)}, s71 offen sc1"
        tok = a.vm(txt)
        yield chk_f
        self.log[(1, "kvchk")] = self.f
        self.poll_check(tok, self.tagcmp(42), txt, "kvp")
        while self.active("csumB"): yield self.f + 1
        B = 52
        ztok = a.vm(f"buffer_load_dwordx4 v[116:119], {vL16}, {srd(S_WS)}, s76 offen sc1"); yield
        toks = []
        for r in range(16):
            yield from self.vmslot()
            if r % 4 == 0 and r: a("s_add_u32 s73, s73, 4096")
            toks.append(a.vm(f"buffer_load_dwordx4 v[{B+4*r}:{B+4*r+3}], {vL16}, {srd(S_WS)}, s73 offen offset:{(r % 4)*1024} sc1")); yield
        yield self.int_end
        a.wait(vm=ztok)
        for mod in ("row_shr:4", "row_shr:8"):
            for k in range(4): a(f"v_add_f32_dpp v{116+k}, v{116+k}, v{116+k} {mod} row_mask:0xf bank_mask:0xf bound_ctrl:0")
            yield
        for k in range(4):
            a(f"v_mov_b32 v{120+k}, v{116+k}")
        for k in range(4): a(f"v_permlane16_swap_b32 v{116+k}, v{120+k}")
        for k in range(4): a(f"v_add_f32 v{116+k}, v{116+k}, v{120+k}")
        yield
        for k in range(4): a(f"v_mov_b32 v{120+k}, v{116+k}")
        for k in range(4): a(f"v_permlane32_swap_b32 v{116+k}, v{120+k}")
        for k in range(4): a(f"v_add_f32 v{116+k}, v{116+k}, v{120+k}")
        yield
        for r in range(1, 16):
            a.wait(vm=toks[r])
            for k in range(0, 4, 2): a(f"v_pk_add_f32 v[{B+k}:{B+k+1}], v[{B+k}:{B+k+1}], v[{B+4*r+k}:{B+4*r+k+1}]")
            yield
        a(f"s_mul_i32 s6, {sW}, 1280"); a(f"s_add_u32 s6, s6, {L_KVO}")
        a(f"v_lshrrev_b32 v40, 4, {vLANE}"); a("v_lshlrev_b32 v40, 8, v40"); a(f"v_and_b32 v41, 15, {vLANE}"); a("v_lshl_add_u32 v40, v41, 2, v40")
        a("v_add_u32 v40, s6, v40")
        for v in range(4): a.lg(f"ds_write_b32 v40, v{B+v} offset:{v*64}")
        a(f"v_and_b32 v41, 3, {vLANE}"); a("v_lshlrev_b32 v41, 4, v41"); a("v_add_u32 v41, s6, v41"); a("v_add_u32 v41, 1024, v41")
        a(f"v_and_b32 v42, 15, {vLANE}"); a("v_cmp_le_u32 vcc, 12, v42"); a(f"v_mov_b32 v43, {L_KVO + 4*1280}")
        a("v_cndmask_b32 v41, v43, v41, vcc")
        t = a.lg("ds_write_b128 v41, v[116:119]"); yield
        yield self.f + 3
        a(f"s_mul_i32 s6, {sW}, 1280"); a(f"s_add_u32 s6, s6, {L_KVO}")
        a(f"v_and_b32 v41, 31, {vLANE}"); a("v_min_u32 v41, 16, v41"); a(f"v_lshl_add_u32 v41, v41, 6, {hG16}"); a("v_add_u32 v41, s6, v41")
        a.wait(lg=t)
        a.lg("ds_read_b128 v[52:55], v41"); t = a.lg("ds_read_b128 v[56:59], v41 offset:32"); yield
        yield self.f + 3
        a.wait(lg=t)
        for k in range(4): a(f"v_cvt_pk_bf16_f32 v{60+k}, v{52+2*k}, v{53+2*k}")
        a(f"s_lshl_b32 s6, {sW}, 10"); a(f"s_add_u32 s6, s6, {L_KVZ}"); a(f"v_add_u32 v41, s6, {vL16}")
        a.lg("ds_write_b128 v41, v[60:63]"); yield

    def qget(self, i, dst):
        reg = (sQA, sQB, sQC)[i // 4]
        self.a(f"s_bfe_u32 {dst}, {reg}, {(8 << 16) | (8*(i % 4))}")
    def t_s2_q(self):
        a = self.a
        a(f"s_lshr_b32 s68, {sJ}, {3 if self.o.get('map42', 0) else 2}"); a(f"s_add_u32 s68, s68, {sC2}"); a("s_and_b32 s68, s68, 7")
        tab = sum(((k % 3) << (2*k)) for k in range(12))
        a(f"s_lshl_b32 s69, s68, 1"); a(f"s_lshr_b32 s69, {tab}, s69"); a("s_and_b32 s69, s69, 3"); yield
        for i in range(9):
            reg = (sQA, sQB, sQC)[i // 4]
            if i < 2:
                a(f"s_add_u32 s6, s68, {i}"); a("s_and_b32 s6, s6, 1"); a("s_lshl_b32 s6, s6, 3")
                a(f"s_lshl_b32 s7, {sW}, 1"); a("s_add_u32 s6, s6, s7"); a("s_add_u32 s6, s6, 8")
            elif i < 6:
                a(f"s_add_u32 s6, s68, {i-2}"); a("s_and_b32 s6, s6, 3"); a("s_lshl_b32 s6, s6, 2"); a(f"s_add_u32 s6, s6, {sW}")
                a("s_lshl_b32 s7, s6, 1"); a("s_sub_u32 s7, s7, 7"); a("s_cmp_lt_u32 s6, 8"); a("s_cselect_b32 s6, s6, s7")
            else:
                a(f"s_add_u32 s6, s69, {i-6}"); a("s_sub_u32 s7, s6, 3"); a("s_cmp_lt_u32 s6, 3"); a("s_cselect_b32 s6, s6, s7")
                a("s_lshl_b32 s6, s6, 2"); a(f"s_add_u32 s6, s6, {sW}"); a("s_add_u32 s6, s6, 24")
            if i % 4 == 0: a(f"s_mov_b32 {reg}, s6")
            else: a(f"s_lshl_b32 s6, s6, {8*(i % 4)}"); a(f"s_or_b32 {reg}, {reg}, s6")
            yield
    def s2_w_dma(self, i):
        a = self.a
        self.qget(i, "s6")
        if i < 6: sr = S_WD
        else:
            sr = S_U1
            a("s_cmp_lt_u32 s6, 28")
            a(f"s_cselect_b32 s{S_U1}, s{S_WD}, s{S_WO}"); a(f"s_cselect_b32 s{S_U1+1}, s{S_WD+1}, s{S_WO+1}")
            a(f"s_cselect_b32 s{S_U1+2}, s{S_WD+2}, s{S_WO+2}")
            a("s_cselect_b32 s7, 0, 28"); a("s_sub_u32 s6, s6, s7")
        a("s_lshl_b32 s6, s6, 16"); a(f"s_lshl_b32 s7, {sC2}, 7"); a("s_add_u32 s74, s6, s7"); yield
        base = W2SLOT[i % 4]
        for g in range(2):
            for k in range(4):
                if i < 3: yield from self.vmslot()
                if k == 0 or self.m0_owner != ("w2", i, g):
                    a(f"s_add_u32 m0, {sW8K}, {base + g*4096}")
                    if k == 0 and g == 1: a("s_add_u32 s74, s74, 32768")
                    self.m0_owner = ("w2", i, g)
                self.w2tok[i] = a.vm(f"buffer_load_dwordx4 v{vW2[k]}, {srd(sr)}, s74 offen{' offset:%d' % (1024*k) if k else ''} lds"); yield
    def t_w2reg(self, i, areg):
        a = self.a
        self.qget(i, "s6")
        if i < 6: sr = S_WD
        else:
            sr = S_U1
            a("s_cmp_lt_u32 s6, 28")
            a(f"s_cselect_b32 s{S_U1}, s{S_WD}, s{S_WO}"); a(f"s_cselect_b32 s{S_U1+1}, s{S_WD+1}, s{S_WO+1}")
            a(f"s_cselect_b32 s{S_U1+2}, s{S_WD+2}, s{S_WO+2}")
            a("s_cselect_b32 s7, 0, 28"); a("s_sub_u32 s6, s6, s7")
        a("s_lshl_b32 s6, s6, 16"); a(f"s_lshl_b32 s7, {sC2}, 7"); a("s_add_u32 s75, s6, s7"); yield
        for g in range(2):
            for k in range(4):
                yield from self.vmslot()
                if k == 0 and g == 1: a("s_add_u32 s75, s75, 32768")
                r = areg + (g*4 + k)*4
                self.w2rtok[i] = a.vm(f"buffer_load_dwordx4 a[{r}:{r+3}], v{vW2[k]}, {srd(sr)}, s75 offen{' offset:%d' % (1024*k) if k else ''}"); yield
    def w2put(self, i, areg):
        a = self.a
        a.wait(vm=self.w2rtok[i])
        a(f"s_add_u32 s6, {sW8K}, {W2SLOT[i % 4]}"); a(f"v_add_u32 v40, s6, {vL16}")
        for k in range(8):
            r = areg + k*4
            self.w2ptok[i] = a.lg(f"ds_write_b128 v40, a[{r}:{r+3}] offset:{k*1024}")

    def flag_issue(self, phase):
        a = self.a
        if phase == 0:
            a(f"v_bfe_u32 {vPOLL}, {vLANE}, 1, 3"); a(f"v_lshlrev_b32 {vPOLL}, 2, {vPOLL}")
            a(f"v_and_b32 v{FLD}, 1, {vLANE}"); a(f"v_add_u32 {vPOLL}, {vPOLL}, v{FLD}"); a(f"v_add_u32 {vPOLL}, 2, {vPOLL}")
            a(f"v_lshlrev_b32 {vPOLL}, 3, {vPOLL}")
        else:
            a(f"v_and_b32 {vPOLL}, 31, {vLANE}"); a(f"v_lshlrev_b32 {vPOLL}, 3, {vPOLL}")
        a(f"s_mul_i32 s72, {sT}, 768"); a(f"s_add_u32 s72, s72, {WS_HF + phase*256}")
        self.fl_txt = f"buffer_load_dwordx2 v[{FLD}:{FLD+1}], {vPOLL}, {srd(S_WS)}, s72 offen sc1"
        self.fltok = a.vm(self.fl_txt)
    def flag_check(self, phase):
        self.log[(self.par, "chk", phase)] = self.f
        self.poll_check(self.fltok, self.tagcmp(FLD), self.fl_txt, f"fl{phase}")
        if not self.o.get("touchh", 0): return
        a = self.a
        n = (8, 16, 12)[phase]
        a(f"s_and_b32 s6, {sJ}, 3"); a(f"s_lshl_b32 s7, {sW}, 2"); a("s_add_u32 s6, s6, s7")
        if phase == 0: a("s_lshl_b32 s7, s6, 1"); a("s_add_u32 s7, s7, 8")
        elif phase == 1:
            a("s_lshl_b32 s7, s6, 1"); a("s_sub_u32 s7, s7, 7"); a("s_cmp_lt_u32 s6, 8"); a("s_cselect_b32 s7, s6, s7")
        else: a("s_add_u32 s7, s6, 24")
        a(f"s_mul_i32 s64, {sR}, 36"); a("s_add_u32 s7, s7, s64"); a("s_lshl_b32 s7, s7, 14")
        a(f"s_lshl_b32 s64, {sHALF}, 13"); a("s_add_u32 s7, s7, s64"); a(f"s_add_u32 s7, s7, {WS_H}")
        a(f"v_lshlrev_b32 v40, 7, {vLANE}"); a(f"v_mov_b32 v41, {OOB}")
        a(f"s_cmp_lt_u32 s6, {n}"); a("s_cselect_b64 vcc, -1, 0"); a("v_cndmask_b32 v40, v41, v40, vcc")
        a.vm(f"buffer_load_dword {vDUM}, v40, {srd(S_WS)}, s7 offen sc1")

    def vmslot(self):
        while self.a.vm_issued - self.int_vm0 >= self.int_cap: yield self.int_end
    def h_interval(self, f0, n, extras, budget=None, cap=None):
        a = self.a
        nfix = sum(len(extras.get(f0 + g, [])) for g in range(n))
        self.int_vm0 = a.vm_issued + nfix*0; self.int_end = f0 + n
        self.int_cap = (cap or self.o.get("vmcap", 8))
        self.int_vm0 = a.vm_issued
        for g in range(n):
            self.f = f0 + g
            start = len(a.lines)
            for fn in extras.get(f0 + g, []): fn()
            self.pump(self.f, start, budget or self.o["hbudget"])

    def helper(self, par):
        a = self.a; o = self.o
        self.par = par; self.sfx = f"_{par}"
        who = f"h{par}"
        self.tasks = []; self.w2tok = {}; self.w2rtok = {}; self.w2ptok = {}
        REGCH = {3: 0, 4: 32, 5: 64, 6: 96} if o.get("w2reg", 1) else {}
        self.kvz_done = False
        ex = {}
        def at(f, fn): ex.setdefault(f, []).append(fn)
        def spread(maker, positions):
            hd = {}
            def get(i):
                if "p" not in hd: hd["p"] = maker()
                hd["p"][i]()
            for i, pos in enumerate(positions): at(pos, (lambda i=i: get(i)))
        spread(lambda: self.dma_x_parts(2), (0, 1, 2, 3)); spread(lambda: self.dma_w_parts(2), (4, 5, 6, 7))
        spread(lambda: self.dma_w_parts(3), (10, 12, 14, 16))
        for G in range(0, 16):
            spread(lambda G=G: self.dma_w_parts(G+4), [16*G + 10 + p for p in ((1, 5, 9, 13) if G == 0 else (0, 2, 4, 6))] if G > 0 else [18, 20, 22, 24])
        for G in range(0, 5):
            spread(lambda G=G: self.dma_x_parts(G+3), [16*G + 10 + p for p in (1, 3, 5, 7)])
        self.spawn(self.t_early(), 0, "early")
        self.spawn(self.t_cs("A"), o.get("cs_f", 26), "csA")
        self.log["st_pub" + self.sfx] = 0
        self.spawn(self.t_csum("A", o.get("csumA_chk", 104)), o.get("csumA_f", 74), "csumA")
        self.spawn(self.t_stt(o.get("st_chk", 104)), o.get("stt_f", 80), "stt")
        self.spawn(self.t_slabB(), o.get("slabB_f", 58), "slabB")
        self.spawn(self.t_cs("B"), o.get("csB_f", 106), "csB")
        self.spawn(self.t_csum("B", o.get("csumB_chk", 214)), o.get("csumB_f", 186), "csumB")
        if o.get("hprio", 0): a(f"s_setprio {o['hprio']}")
        a.wait(vm=self.wtok[0])
        self.barrier(who, "P0")
        self.h_interval(0, 10, ex)
        for G in range(20):
            self.f = 16*G + 9
            if G + 1 < 20: a.wait(vm=self.wtok[G+1])
            if G + 1 < 8: a.wait(vm=self.xtok[G+1])
            if G == 7: self.finish("csumA"); self.finish("stt"); a.wait_all(vm=False)
            if G == 15: self.finish("csumB"); a.wait_all(vm=False)
            if G == 17: self.flag_check(0)
            if G == 19:
                if par == 1: self.finish("qprep"); a.wait_all(vm=False)
            self.barrier(who, f"B{G}")
            self.f = 16*G + 10
            if G == o.get("pub0_G", 9) and par == 1: self.publish(0)
            if G == 8 and par == 0:
                self.finish("csB")
                self.spawn(self.t_kv_tail(), self.f, "kvtail", front=True)
            if G == o.get("pub1_G", 17): self.publish(1)
            if G == 11:
                if par == 0: assert self.kv_reads_f < self.f
                self.spawn(self.s2_w_dma(0), self.f, "w2_0")
            if G == 11 and par == 0: assert self.kv_reads_f < 180, "kv tail fragments overlap csumB registers"
            if G == 16 and par == 1: assert not self.active("csumB")
            if REGCH:
                if G == 7:
                    def r34():
                        for i_ in ((3, 4, 5, 6) if o.get("w2all", 1) else (3, 4)): yield from self.t_w2reg(i_, REGCH[i_])
                    self.spawn(r34(), self.f, "w2r3")
                if G == 15 and not o.get("w2all", 1):
                    self.finish("w2r3")
                    def r56():
                        yield from self.t_w2reg(5, 64); yield from self.t_w2reg(6, 96)
                    self.spawn(r56(), self.f, "w2r5")
            if G == 15: self.flag_issue(0)
            if G == 17:
                self.spawn(self.s2_w_dma(1), self.f, "w2_1")
            if G == o.get("qprep_G", 13) and par == 1: self.spawn(self.t_q_prep(self.f + o.get("kvchk_gap", 17)), self.f, "qprep")
            if G == 19: self.spawn(self.s2_w_dma(2), self.f, "w2_2")
            if G < 19:
                cap = (40 if (G == 7 and o.get("w2all", 1)) else 24) if G in (7, 15) else (10 if G >= 16 else (12 if G in (3, 4) else None))
                self.h_interval(16*G + 10, 16, ex, cap=cap, budget=(6 if G in (7, 15) else (4 if G >= 16 else None)))
        self.h_interval(314, 6, ex)
        self.barrier(who, "H0")
        if par == 0: assert not self.active("kvtail"), "kv tail still running at H0"
        if 3 in REGCH:
            for n in ("w2r3", "w2r5"): self.finish(n)
            self.w2put(3, REGCH[3])
        else: self.spawn(self.s2_w_dma(3), self.f, "w2_3")
        self.flag_issue(1)
        base = 336
        for i in range(9):
            self.h_interval(base + 16*i - 16, 16, ex, budget=8)
            self.f = base + 16*i
            if i in REGCH: a.wait(lg=self.w2ptok[i])
            else:
                self.finish(f"w2_{i}")
                a.wait(vm=self.w2tok[i])
            if i + 2 == 2: self.flag_check(1)
            if i == o.get("fl2_i", 5): self.flag_check(2)
            self.barrier(who, f"S{i}")
            self.f = base + 16*i + 1
            if i == o.get("pub2_i", 1): self.publish(2)
            if i == o.get("fl2_i", 5) - 1: self.flag_issue(2)
            if i >= 1 and i + 3 < 9:
                if i + 3 in REGCH: self.w2put(i + 3, REGCH[i + 3])
                else: self.spawn(self.s2_w_dma(i + 3), self.f, f"w2_{i+3}")
        a("s_cmp_eq_u32 s2, 0"); a("s_cselect_b64 vcc, -1, 0"); a(f"s_cmp_eq_u32 {sW}, 0"); a("s_cselect_b64 vcc, vcc, 0")
        a(f"v_mov_b32 v40, {OOB}"); a("s_nop 0"); a(f"v_cndmask_b32 v40, v40, {hL0}, vcc")
        a.vm(f"buffer_store_dwordx2 v[{TAG}:{TAG+1}], v40, {srd(S_WS)}, 0 offen sc1")
        self.prof_out(4)
        a("s_endpgm")

    def c_lane_consts(self):
        a = self.a
        a(f"v_and_b32 v56, 31, {vLANE}"); a(f"v_lshrrev_b32 v57, 5, {vLANE}"); a(f"v_bfe_u32 v58, {vLANE}, 2, 2")
        a(f"v_and_b32 v59, 3, {vLANE}"); a(f"v_bfe_u32 v60, {vLANE}, 4, 1")
        a("v_lshlrev_b32 v61, 5, v60"); a("v_lshl_add_u32 v61, v59, 3, v61")
        a("v_lshrrev_b32 v62, 1, v58"); a("v_lshlrev_b32 v62, 6, v62")
        a("v_lshl_add_u32 v63, v57, 3, v58")
        a("v_lshlrev_b32 v64, 7, v63")
        a("v_xor_b32 v65, v61, v62"); a(f"v_add_u32 {cWA[0][0]}, v64, v65")
        a("v_or_b32 v65, 64, v61"); a("v_xor_b32 v65, v65, v62"); a(f"v_add_u32 {cWA[0][1]}, v64, v65")
        a(f"v_add_u32 {cWA[1][0]}, 0x10000, {cWA[0][0]}"); a(f"v_add_u32 {cWA[1][1]}, 0x10000, {cWA[0][1]}")
        a("v_lshlrev_b32 v64, 6, v63"); a(f"v_add_u32 {cSA[0]}, v64, v61"); a(f"v_add_u32 {cSA[1]}, 0x10000, {cSA[0]}")
        a("v_bfe_u32 v64, v56, 1, 3"); a("v_xor_b32 v64, v64, v57")
        a("v_lshlrev_b32 v65, 7, v56"); a(f"s_add_u32 s7, {sWLDS}, {L_X}"); a("v_add_u32 v65, s7, v65")
        for s in range(4):
            a(f"v_xor_b32 v66, {2*s}, v64"); a(f"v_lshl_add_u32 {cXA[s]}, v66, 4, v65")
        a(f"v_lshlrev_b32 {cG16}, 4, v57")
        a(f"v_lshlrev_b32 {cCSA}, 2, v56"); a(f"v_add_u32 {cCSA}, {L_CST}, {cCSA}")
        a(f"v_mov_b32 v{BAUG+2}, 0"); a(f"v_mov_b32 v{BAUG+3}, 0")
        a("v_lshrrev_b32 v64, 3, v0"); a("v_and_b32 v65, 7, v0")
        a(f"v_lshlrev_b32 {cOUT}, 10, v64"); a(f"v_lshl_add_u32 {cOUT}, v65, 4, {cOUT}")

    def c_setup(self):
        a = self.a
        a("s_waitcnt lgkmcnt(0)")
        a.protect = set()
        a("s_mov_b32 s71, 0x3fb8aa3b"); a("s_mov_b32 s72, 0x358637bd")
        a(f"s_mul_i32 s76, {sR2}, 36"); a(f"s_lshl_b32 s77, {sHALF}, 13"); a(f"s_add_u32 s77, s77, {WS_H}")
        for _ in self.t_s2_q(): pass
        self.c_lane_consts()
        a(f"s_lshl_b32 s6, {sR}, 7"); a(f"s_lshl_b32 s7, {sCG}, 3"); a("s_add_u32 s6, s6, s7")
        a(f"s_lshl_b32 s7, {sW}, 1"); a("s_add_u32 s75, s6, s7"); a("s_lshl_b32 s6, s75, 10")
        a.vm(f"buffer_load_dwordx4 v[16:19], {vL16}, {srd(S_X)}, s6 offen")
        a.vm(f"buffer_load_dwordx4 v[20:23], {vL16}, {srd(S_X)}, s6 offen offset:1024")
        a(f"s_load_dwordx2 s[60:61], s[{S_WS}:{S_WS+1}], 0")
        a("s_waitcnt vmcnt(0) lgkmcnt(0)")
        a("s_add_u32 s60, s60, 1"); a("s_addc_u32 s61, s61, 0")
        self.c_stats()

    def finfo(self, f):
        if f < NF1:
            G, m = divmod(f, 16)
            if G < 16:
                c = G % 8; s = m // 4; tile = m % 4; ks = c*4 + s
            else:
                s = m // 2; tile = m % 2; ks = (G-16)*8 + s
            return dict(phi=f, acc=ACC + 16*tile, b=ks*4, first=(ks == 0))
        i, m = divmod(f - NF1, 16)
        s, r = divmod(m, 4); cb, rf = divmod(r, 2)
        return dict(phi=NF1 + 8*i + 2*s + cb, acc=ACC + (cb*2+rf)*16, b=(i % 3)*32 + rf*16 + s*4, first=(i == 0 and s == 0), chunk=i, m=m)
    def phi_first_use(self, phi): return phi if phi < NF1 else NF1 + 2*(phi - NF1)
    def frag_read(self, phi):
        a = self.a
        r = RING + 4*(phi % NFR)
        if phi < NF1:
            G, m = divmod(phi, 16)
            slot = G % NW; rng = slot // 4; sb = (slot % 4)*16384
            if G < 16:
                s = m // 4; cbk = m % 4; panel, cb = divmod(cbk, 2)
                base = cWA[rng][cb]; imm = [sb + panel*8192 + (16*s + 4*q)*128 for q in range(2)]
            else:
                s = m // 2; b = m % 2
                base = cSA[rng]; imm = [sb + b*8192 + (16*s + 4*q)*64 for q in range(2)]
        else:
            i, r2 = divmod(phi - NF1, 8); s, cb = divmod(r2, 2)
            so = W2SLOT[i % 4]
            base = cB2[cb] if so < 0x10000 else cB2H[cb]
            imm = [(so % 0x10000) + (16*s + 8*q)*128 for q in range(2)]
        a.lg(f"ds_read_b64_tr_b16 v[{r}:{r+1}], {base} offset:{imm[0]}")
        self.ftok[phi] = a.lg(f"ds_read_b64_tr_b16 v[{r+2}:{r+3}], {base} offset:{imm[1]}")
    def x_read(self, c, s):
        r = (c*4 + s)*4
        self.xrtok[c] = self.a.lg(f"ds_read_b128 a[{r}:{r+3}], {cXA[s]} offset:{(c % 3)*16384}")

    def c_run(self, f0, f1, ex, fend):
        a = self.a
        for f in range(f0, f1):
            inf = self.finfo(f)
            self.stamp(f"f{f}")
            ph = inf["phi"]
            nxt = ph + 1
            a.wait(lg=self.ftok[nxt] if (nxt in self.ftok and f % 2 == 0 and f < NF1) else self.ftok[ph])
            if f < 128 and f % 16 == 0: a.wait(lg=self.xrtok[f // 16])
            if f >= NF1 and inf["m"] == 0:
                self.stamp(f"hw{inf['chunk']}_in"); a.wait(vm=self.htok[inf["chunk"]]); self.stamp(f"hw{inf['chunk']}_out")
            r = RING + 4*(ph % NFR)
            acc = f"v[{inf['acc']}:{inf['acc']+15}]"
            a(f"v_mfma_f32_32x32x16_bf16 {acc}, v[{r}:{r+3}], a[{inf['b']}:{inf['b']+3}], {'0' if inf['first'] else acc}")
            for fn in ex.get(f, []): fn()
            fu = f + LOOK
            if fu < fend:
                p = self.finfo(fu)["phi"]
                if self.phi_first_use(p) == fu: self.frag_read(p)
    def c_prime(self, f0):
        for f in range(f0, f0 + LOOK):
            p = self.finfo(f)["phi"]
            if self.phi_first_use(p) == f: self.frag_read(p)

    def aug(self, p, ntile):
        a = self.a
        toks = []
        for t in range(ntile):
            g = RING + 4*t; off = (p*128 + 32*t)*4
            a.lg(f"ds_read_b32 v{g}, {cCSA} offset:{off}")
            toks.append(a.lg(f"ds_read_b32 v{g+1}, {cCSA} offset:{off}"))
            a(f"v_mov_b32 v{g+2}, 0"); a(f"v_mov_b32 v{g+3}, 0")
        for t in range(ntile):
            g = RING + 4*t; A = ACC + 16*t
            a.wait(lg=toks[t])
            a(f"v_mfma_f32_32x32x16_bf16 v[{A}:{A+15}], v[{g}:{g+3}], v[{BAUG}:{BAUG+3}], v[{A}:{A+15}]")
    def hbase_q(self, q):
        a = self.a
        a(f"s_mul_i32 s7, {sR}, 36"); a(f"s_add_u32 s7, s7, {q}")
        a("s_lshl_b32 s7, s7, 2"); a(f"s_add_u32 s7, s7, {sW}")
        a("s_lshl_b32 s7, s7, 12"); a(f"s_add_u32 {sHB}, s7, {WS_H}")
    def ffn_block(self, tg, tu, dst):
        a = self.a
        for k in range(16): a(f"v_max_f32 v{tg+k}, 0, v{tg+k}")
        for k in range(0, 16, 2): a(f"v_pk_mul_f32 v[{tg+k}:{tg+k+1}], v[{tg+k}:{tg+k+1}], v[{tu+k}:{tu+k+1}]")
        for k in range(8): a(f"v_cvt_pk_bf16_f32 v{dst+k}, v{tg+2*k}, v{tg+2*k+1}")
    def epi_ffn(self, p):
        a = self.a
        self.aug(p, 4)
        a(f"s_lshl_b32 s6, {sM}, 1"); a(f"s_add_u32 s6, s6, {8 if p == 0 else 9}")
        if p == 1: a(f"s_cmp_eq_u32 {sPAR}, 0"); a(f"s_cselect_b32 s6, {sM}, s6")
        self.hbase_q("s6")
        for cb in range(2):
            d = 32 + 8*cb
            self.ffn_block(ACC + 16*cb, ACC + 32 + 16*cb, d)
            for h in range(2):
                a.vm(f"buffer_store_dwordx4 v[{d+4*h}:{d+4*h+3}], {vL16}, {srd(S_WS)}, {sHB} offen offset:{(2*cb+h)*1024} sc1")
    def epi_side(self):
        a = self.a
        self.aug(2, 2)
        a(f"s_lshr_b32 s6, {sM}, 1"); a("s_add_u32 s6, s6, 24"); self.hbase_q("s6")
        a(f"s_and_b32 s6, {sM}, 1"); a("s_lshl_b32 s6, s6, 11"); a(f"s_add_u32 {sHB}, {sHB}, s6")
        self.ffn_block(ACC, ACC + 16, 32)
        for h in range(2):
            a.vm(f"buffer_store_dwordx4 v[{32+4*h}:{32+4*h+3}], {vL16}, {srd(S_WS)}, {sHB} offen offset:{h*1024} sc1")
    def phi_tile(self, T):
        a = self.a
        for h in range(2):
            B = T + 8*h
            for k in range(8): a(f"v_mul_f32 v{TMP+k}, {cRL}, v{B+k}")
            for k in range(8): a(f"v_exp_f32 v{TMP+k}, v{TMP+k} clamp")
            for k in range(8): a(f"v_fma_f32 v{B+k}, v{B+k}, {cRSTD}, s72")
            for k in range(8): a(f"v_max_f32 v{B+k}, s72, v{B+k}")
            for k in range(0, 8, 2): a(f"v_pk_add_f32 v[{B+k}:{B+k+1}], v[{B+k}:{B+k+1}], v[{TMP+k}:{TMP+k+1}]")
    def epi_kv(self):
        a = self.a
        self.aug(0, 4)
        a(f"v_and_b32 v32, 31, {vLANE}"); a(f"s_lshl_b32 s6, {sW}, 5"); a("v_add_u32 v32, s6, v32")
        a(f"s_movk_i32 s7, {KVP}"); a("v_mul_lo_u32 v32, v32, s7")
        a(f"v_lshrrev_b32 v33, 1, {cG16}"); a("v_add_u32 v32, v32, v33"); a(f"v_add_u32 v32, {L_KVS}, v32")
        a(f"v_mov_b32 v34, {cRSTD}"); a(f"v_mov_b32 v35, {cRSTD}")
        for t in range(4):
            T = ACC + 16*t
            if t < 2: self.phi_tile(T)
            else:
                for k in range(0, 16, 2): a(f"v_pk_mul_f32 v[{T+k}:{T+k+1}], v[{T+k}:{T+k+1}], v[34:35]")
            for g4 in range(4):
                d = 36 + 2*g4
                a(f"v_cvt_pk_bf16_f32 v{d}, v{T+4*g4}, v{T+4*g4+1}"); a(f"v_cvt_pk_bf16_f32 v{d+1}, v{T+4*g4+2}, v{T+4*g4+3}")
            for g4 in range(4):
                d = 36 + 2*g4
                off = (t // 2)*128*KVP + (32*(t % 2) + 8*g4)*2
                a.lg(f"ds_write_b64 v32, v[{d}:{d+1}] offset:{off}")
    def epi_q(self):
        a = self.a
        self.aug(2, 2)
        a(f"s_add_u32 s6, {sM}, 28"); self.hbase_q("s6")
        toks = []
        a(f"v_add_u32 v44, {L_KVZ}, {vL16}")
        for h in range(4): toks.append(a.lg(f"ds_read_b128 v[{16+4*h}:{16+4*h+3}], v44 offset:{h*1024}"))
        for t in range(2):
            T = ACC + 16*t
            self.phi_tile(T)
            for k in range(8): a(f"v_cvt_pk_bf16_f32 v{32+8*t+k}, v{T+2*k}, v{T+2*k+1}") if t == 0 else a(f"v_cvt_pk_bf16_f32 v{TMP+k}, v{T+2*k}, v{T+2*k+1}")
        PQ = [32, 36, TMP, TMP + 4]
        a(f"v_mul_f32 v45, {cRSTD}, {cRSTD}")
        a.wait(lg=toks[-1])
        for h in range(4):
            d = ACC + 16*h
            a(f"v_mfma_f32_32x32x16_bf16 v[{d}:{d+15}], v[{16+4*h}:{16+4*h+3}], v[{PQ[h]}:{PQ[h]+3}], 0")
        for h in range(4):
            d = ACC + 16*h
            a(f"v_add_f32 v{d+8}, s72, v{d+8}"); a(f"v_mul_f32 v{d+8}, v{d+8}, v45"); a(f"v_rcp_f32 v{d+8}, v{d+8}")
            a(f"v_mov_b32 v{d+9}, v{d+8}")
            for k in range(0, 8, 2): a(f"v_pk_mul_f32 v[{d+k}:{d+k+1}], v[{d+k}:{d+k+1}], v[{d+8}:{d+9}]")
            for k in range(4): a(f"v_cvt_pk_bf16_f32 v{16+4*h+k}, v{d+2*k}, v{d+2*k+1}")
            a.vm(f"buffer_store_dwordx4 v[{16+4*h}:{16+4*h+3}], {vL16}, {srd(S_WS)}, {sHB} offen offset:{h*1024} sc1")
    def branch2(self, even, odd):
        a = self.a
        lo = a.newlabel("Lo"); lj = a.newlabel("Lj")
        a(f"s_cmp_eq_u32 {sPAR}, 0"); a(f"s_cbranch_scc0 {lo}")
        st = (a.vm_issued, a.lg_issued, a.vm_floor, a.lg_floor)
        even(); sa = (a.vm_issued, a.lg_issued)
        a(f"s_branch {lj}"); a.label(lo)
        a.vm_issued, a.lg_issued, a.vm_floor, a.lg_floor = st
        odd(); sb = (a.vm_issued, a.lg_issued)
        a.label(lj)
        a.vm_issued = min(sa[0], sb[0]); a.lg_issued = min(sa[1], sb[1])
        a.vm_floor = min(a.vm_floor, st[2]) if False else st[2]; a.lg_floor = st[3]
    def h_load(self, i):
        a = self.a
        parts = []
        def head():
            self.qget(i, "s6"); a("s_add_u32 s6, s6, s76"); a("s_lshl_b32 s6, s6, 14"); a("s_add_u32 s78, s6, s77"); a("s_add_u32 s79, s78, 4096")
        for rf in range(2):
            for s in range(4):
                def p(rf=rf, s=s):
                    if rf == 0 and s == 0: head()
                    r = (i % 3)*32 + rf*16 + s*4
                    self.htok[i] = a.vm(f"buffer_load_dwordx4 a[{r}:{r+3}], {vL16}, {srd(S_WS)}, {'s78' if rf == 0 else 's79'} offen offset:{s*1024} sc1")
                parts.append(p)
        return parts

    def compute(self):
        a = self.a; o = self.o
        who = "c"
        self.c_setup()
        self.ftok = {}; self.xrtok = {}; self.htok = {}
        ex = {}
        def at(f, fn): ex.setdefault(f, []).append(fn)
        for G in range(20):
            at(16*G + 9, lambda G=G: self.c_bar(G))
            if G < 7:
                for s in range(4): at(16*G + 11 + s, lambda G=G, s=s: self.x_read(G+1, s))
        for i, f0 in ((0, 290), (1, 303)):
            hd = {}
            def get(k, i=i, hd=hd):
                if "p" not in hd: hd["p"] = self.h_load(i)
                hd["p"][k]()
            for k in range(8): at(f0 + k + (k // 4), lambda k=k, get=get: get(k))
        self.barrier(who, "P0")
        self.stamp("go"); self.stamp("rtgo")
        for s in range(4): self.x_read(0, s)
        self.c_prime(0)
        self.c_run(0, 128, ex, 128)
        self.stamp("e1")
        if o.get("touchw2", 1):
            self.c_touch_w2()
        a(f"v_and_b32 v44, 31, {vLANE}"); a("v_lshlrev_b32 v44, 3, v44"); a(f"s_lshl_b32 s6, {sW}, 8"); a(f"s_add_u32 s6, s6, {L_STT}"); a("v_add_u32 v44, s6, v44")
        t = a.lg("ds_read_b64 v[46:47], v44")
        a.wait(lg=t)
        a(f"v_mov_b32 {cRSTD}, v47"); a(f"v_mul_f32 {cRL}, s71, v47")
        a(f"v_cvt_pk_bf16_f32 v{BAUG}, v46, v46"); a(f"v_lshlrev_b32 v45, 16, v{BAUG}"); a("v_sub_f32 v45, v46, v45")
        a(f"v_cvt_pk_bf16_f32 v{BAUG+1}, v45, v45")
        a(f"v_cmp_gt_u32 vcc, 32, {vLANE}"); a("v_mov_b32 v45, 0"); a("s_nop 0")
        a(f"v_cndmask_b32 v{BAUG}, v45, v{BAUG}, vcc"); a(f"v_cndmask_b32 v{BAUG+1}, v45, v{BAUG+1}, vcc")
        self.branch2(self.epi_kv, lambda: self.epi_ffn(0))
        a.wait_all(vm=False)
        self.stamp("e1end")
        self.c_prime(128)
        self.c_run(128, 256, ex, 256)
        self.stamp("e2")
        self.epi_ffn(1)
        self.stamp("e2end")
        self.c_prime(256)
        self.c_run(256, 320, ex, 320)
        self.barrier(who, "H0")
        a(f"v_lshrrev_b32 v56, 5, {vLANE}"); a(f"v_bfe_u32 v57, {vLANE}, 2, 2"); a(f"v_and_b32 v58, 3, {vLANE}"); a(f"v_bfe_u32 v59, {vLANE}, 4, 1")
        a("v_lshlrev_b32 v60, 5, v59"); a("v_lshl_add_u32 v60, v58, 3, v60")
        a("v_lshrrev_b32 v58, 1, v57"); a("v_lshlrev_b32 v58, 6, v58")
        a("v_lshl_add_u32 v56, v56, 2, v57"); a("v_lshlrev_b32 v56, 7, v56"); a(f"v_add_u32 v56, {sW8K}, v56")
        a("v_xor_b32 v57, v60, v58"); a(f"v_add_u32 {cB2[0]}, v56, v57")
        a("v_or_b32 v60, 64, v60"); a("v_xor_b32 v57, v60, v58"); a(f"v_add_u32 {cB2[1]}, v56, v57")
        a(f"v_add_u32 {cB2H[0]}, 0x10000, {cB2[0]}"); a(f"v_add_u32 {cB2H[1]}, 0x10000, {cB2[1]}")
        self.stamp("e3")
        self.branch2(self.epi_side, self.epi_q)
        self.stamp("e3end")
        self.e3_mark = a.vm_issued
        ex2 = {}
        def at2(f, fn): ex2.setdefault(f, []).append(fn)
        for i in range(9):
            f0 = NF1 + 16*i
            if i > 0: at2(f0 - LOOK - 1, lambda i=i: self.c_sbar(i))
            late = o.get("fl2_i", 5) == 5
            todo = []
            if i + 2 < 9 and not (late and i + 2 == 6): todo.append(i + 2)
            if late and i == 5: todo.insert(0, 6)
            for n, j in enumerate(todo):
                hd = {}
                def get(k, j=j, hd=hd):
                    if "p" not in hd: hd["p"] = self.h_load(j)
                    hd["p"][k]()
                for k in range(8): at2(f0 + (1 + k if len(todo) == 1 else (k + 8*n) * 15 // 16), lambda k=k, get=get: get(k))
        def resid():
            a(f"s_lshl_b32 s64, {sT}, 16"); a(f"s_lshl_b32 s7, {sC2}, 7"); a("s_add_u32 s64, s64, s7"); a("s_add_u32 s65, s64, 32768")
            a.vm(f"buffer_load_dwordx4 a[96:99], {cOUT}, {srd(S_X)}, s64 offen")
            a.vm(f"buffer_load_dwordx4 a[100:103], {cOUT}, {srd(S_X)}, s65 offen")
            a("v_lshrrev_b32 v56, 3, v0"); a("v_lshlrev_b32 v56, 4, v56")
            a(f"s_lshl_b32 s6, {sT}, 10"); a(f"s_add_u32 s6, s6, {WS_STAT + 4}")
            a.vm(f"buffer_load_dword v50, v56, {srd(S_WS)}, s6 offen sc1")
            self.xrtk = a.vm(f"buffer_load_dword v51, v56, {srd(S_WS)}, s6 offen offset:512 sc1")
        at2(NF1 + 16*7 + 2, resid)
        self.c_sbar(0)
        self.c_prime(NF1)
        self.c_run(NF1, NF, ex2, NF)
        self.final()

    def c_bar(self, G):
        a = self.a; o = self.o
        if G == o.get("pub0_G", 9) or G == o.get("pub1_G", 17): a.wait_all(lg=False)
        if G == 8: a.wait_all(vm=False)
        self.barrier("c", f"B{G}")
    def c_kv_read(self):
        a = self.a
        a(f"s_mul_i32 s6, {sW}, 1280"); a(f"s_add_u32 s6, s6, {L_KVO}"); a(f"v_lshlrev_b32 v{TMP}, 2, {vLANE}"); a(f"v_add_u32 v{TMP}, s6, v{TMP}")
        for v in range(5): self.kvrt = a.lg(f"ds_read_b32 v{TMP+1+v}, v{TMP} offset:{v*256}")
    def c_kv_atomics(self):
        a = self.a
        a(f"v_lshrrev_b32 v{TMP}, 4, {vLANE}"); a(f"v_lshlrev_b32 v{TMP}, 8, v{TMP}")
        a(f"v_and_b32 v{TMP+6}, 15, {vLANE}"); a(f"v_lshl_add_u32 v{TMP}, v{TMP+6}, 2, v{TMP}")
        a(f"v_lshlrev_b32 v{TMP+6}, 2, v{TMP+6}")
        a(f"v_cmp_gt_u32 vcc, 16, {vLANE}"); a(f"v_mov_b32 v{TMP+7}, {OOB}")
        a(f"s_lshl_b32 s64, {sCG}, 13"); a(f"s_mul_i32 s65, {sW}, {KVH}"); a("s_add_u32 s64, s64, s65"); a(f"s_add_u32 s64, s64, {WS_ACC + ACC_KV}")
        a(f"v_cndmask_b32 v{TMP+6}, v{TMP+7}, v{TMP+6}, vcc")
        a(f"s_cmp_eq_u32 {sPAR}, 0"); a("s_cselect_b64 vcc, -1, 0")
        a(f"v_cndmask_b32 v{TMP}, v{TMP+7}, v{TMP}, vcc"); a(f"v_cndmask_b32 v{TMP+6}, v{TMP+7}, v{TMP+6}, vcc")
        a.wait(lg=self.kvrt)
        for v in range(4): a.vm(f"buffer_atomic_add_f32 v{TMP+1+v}, v{TMP}, {srd(S_WS)}, s64 offen offset:{v*64} sc1")
        a.vm(f"buffer_atomic_add_f32 v{TMP+5}, v{TMP+6}, {srd(S_WS)}, s64 offen offset:1024 sc1")

    def c_touch_w2(self):
        a = self.a
        m42 = self.o.get("map42", 0)
        per, sh = (576, 3) if m42 else (288, 2)
        pw = per // 4
        self.touch_n = (pw + 63) // 64
        a(f"s_lshr_b32 s6, {sJ}, {sh}"); a(f"s_mul_i32 s6, s6, {per}"); a(f"s_mul_i32 s7, {sW}, {pw}"); a("s_add_u32 s6, s6, s7")
        a(f"v_add_u32 v{TMP}, s6, {vLANE}"); a(f"v_lshlrev_b32 v{TMP}, 10, v{TMP}")
        a(f"s_lshl_b32 s65, {sC2}, 7")
        a(f"v_mov_b32 v{TMP+2}, {OOB}")
        for k in range(self.touch_n):
            n = min(64, pw - 64*k)
            a(f"v_add_u32 v{TMP+1}, {64*1024*k}, v{TMP}")
            if n < 64:
                a(f"v_cmp_gt_u32 vcc, {n}, {vLANE}"); a("s_nop 1"); a(f"v_cndmask_b32 v{TMP+1}, v{TMP+2}, v{TMP+1}, vcc")
            a.vm(f"buffer_load_dword v50, v{TMP+1}, {srd(S_WD)}, s65 offen")
            a(f"v_subrev_u32 v{TMP+4}, {1792*1024}, v{TMP+1}")
            a.vm(f"buffer_load_dword v50, v{TMP+4}, {srd(S_WO)}, s65 offen")

    def c_sbar(self, i):
        a = self.a; o = self.o
        if i == o.get("pub2_i", 1):
            a(f"s_waitcnt vmcnt({min(63, self.younger_than_e3())})")
        self.barrier("c", f"S{i}")
    def younger_than_e3(self):
        return self.a.vm_issued - self.e3_mark

    def final(self):
        a = self.a
        self.stamp("loopend")
        a(f"v_and_b32 v56, 31, {vLANE}"); a("s_movk_i32 s7, 272"); a("v_mul_lo_u32 v56, v56, s7")
        a(f"v_add_u32 v56, v56, {cG16}"); a(f"s_mul_i32 s6, {sW}, 17408"); a("v_add_u32 v56, s6, v56")
        for cb in range(2):
            for rf in range(2):
                for t in range(4):
                    r = ACC + (cb*2+rf)*16 + 4*t
                    a.lg(f"ds_write_b128 v56, v[{r}:{r+3}] offset:{rf*8704 + cb*128 + t*32}")
        a("v_lshrrev_b32 v57, 3, v0"); a("v_mul_lo_u32 v57, v57, s7")
        a("v_and_b32 v58, 7, v0"); a("v_lshl_add_u32 v57, v58, 5, v57")
        a.wait_all(vm=False)
        a("s_barrier")
        toks = {}
        for it in range(2):
            for p in range(4):
                for hh in range(2):
                    r = 64 + it*32 + p*8 + hh*4
                    toks[it] = a.lg(f"ds_read_b128 v[{r}:{r+3}], v57 offset:{p*17408 + it*8704 + hh*16}")
        a.wait(vm=self.xrtk)
        for k in range(8): a(f"v_accvgpr_read_b32 v{16+k}, a{96+k}")
        for it in range(2):
            a.wait(lg=toks[it])
            b = 64 + it*32; x = 16 + 4*it
            for k in range(0, 8, 2):
                a(f"v_pk_add_f32 v[{b+k}:{b+k+1}], v[{b+k}:{b+k+1}], v[{b+8+k}:{b+8+k+1}]")
                a(f"v_pk_add_f32 v[{b+16+k}:{b+16+k+1}], v[{b+16+k}:{b+16+k+1}], v[{b+24+k}:{b+24+k+1}]")
            a(f"v_mul_f32 v58, v{50+it}, v{50+it}")
            for k in range(0, 8, 2): a(f"v_pk_add_f32 v[{b+k}:{b+k+1}], v[{b+k}:{b+k+1}], v[{b+16+k}:{b+16+k+1}]")
            for k in range(4):
                a(f"v_lshlrev_b32 v59, 16, v{x+k}"); a(f"v_and_b32 v60, 0xffff0000, v{x+k}")
                a(f"v_fma_f32 v{b+2*k}, v{b+2*k}, v58, v59"); a(f"v_fma_f32 v{b+2*k+1}, v{b+2*k+1}, v58, v60")
            for k in range(4): a(f"v_cvt_pk_bf16_f32 v{24+4*it+k}, v{b+2*k}, v{b+2*k+1}")
            a.vm(f"buffer_store_dwordx4 v[{24+4*it}:{24+4*it+3}], {cOUT}, {srd(S_OUT)}, {'s64' if it == 0 else 's65'} offen")
        self.stamp("end"); self.stamp("rtend")
        if self.o.get("dbgtime"):
            a.wait_all()
            a("s_memtime s[88:89]"); a("s_memrealtime s[90:91]"); a("s_waitcnt lgkmcnt(0)")
            a("s_sub_u32 s88, s88, s84"); a("s_sub_u32 s90, s90, s86")
            a("s_mov_b32 s96, s92"); a("s_mov_b32 s97, s93"); a("s_mov_b32 s98, 256"); a("s_mov_b32 s99, 0x00020000")
            a("s_mov_b32 s6, 64")
            a("s_cmp_eq_u32 s2, 0"); a("s_cselect_b32 s6, 0, s6")
            a("s_cmp_eq_u32 s2, 100"); a("s_cselect_b32 s6, 16, s6")
            a("s_cmp_eq_u32 s2, 255"); a("s_cselect_b32 s6, 32, s6")
            a("s_cmp_eq_u32 s6, 64"); a(f"s_cselect_b32 s6, {OOB}, s6")
            a("v_mov_b32 v40, s88"); a("v_mov_b32 v41, s90"); a("v_mov_b32 v42, s86"); a("v_mov_b32 v43, s90")
            a("v_add_u32 v43, s86, v43")
            a(f"v_mov_b32 v44, {OOB}"); a("v_mov_b32 v45, s6"); a("v_cmp_eq_u32 vcc, 0, v0"); a("s_nop 1"); a("v_cndmask_b32 v44, v44, v45, vcc")
            a.vm("buffer_store_dwordx4 v[40:43], v44, s[96:99], 0 offen")
        self.prof_out(0)
        a("s_endpgm")

    def prof_out(self, woff):
        if self.prof is None: return
        a = self.a
        a.wait_all()
        a(f"s_lshl_b32 s6, s2, 3"); a(f"s_add_u32 s6, s6, {sW}"); a(f"s_add_u32 s6, s6, {woff}"); a("s_lshl_b32 s6, s6, 7"); a(f"s_add_u32 s6, s6, {WS_PROF}")
        a(f"v_cmp_eq_u32 vcc, 0, {vLANE}"); a(f"v_mov_b32 v40, {OOB}"); a("v_mov_b32 v41, 0"); a("v_cndmask_b32 v40, v40, v41, vcc")
        for i in range(len(self.prof)):
            a(f"v_mov_b32 v42, s{84+2*i}"); a(f"v_mov_b32 v43, s{85+2*i}")
            a.vm(f"buffer_store_dwordx2 v[42:43], v40, {srd(S_WS)}, s6 offen offset:{i*8}")
            a("s_nop 1")

    def build(self):
        a = self.a
        self.bars = {}
        self.prologue()
        prot = set(a.protect)
        self.sfx = "_c"
        self.h_setup()
        st = (a.vm_issued, a.lg_issued, a.vm_floor, a.lg_floor)
        saved = (dict(self.xtok), dict(self.wtok)); m0s = (self.m0_owner, self.m0_val)
        a(f"s_cmp_eq_u32 {sPAR}, 0"); a("s_cbranch_scc0 Lhodd")
        self.helper(0)
        a.label("Lhodd")
        a.vm_issued, a.lg_issued, a.vm_floor, a.lg_floor = st
        self.xtok, self.wtok = dict(saved[0]), dict(saved[1]); self.m0_owner, self.m0_val = m0s; self.open_item = {}
        self.helper(1)
        a.label("Lcompute")
        a.vm_issued = a.lg_issued = a.vm_floor = a.lg_floor = 0
        a.protect = prot
        self.compute()
        a.label("Lend")
        a("s_endpgm")
        assert self.bars["c"] == self.bars["h0"] == self.bars["h1"], (self.bars["c"], self.bars["h0"])
        L = self.log
        print("schedule:", {str(k): v for k, v in sorted(L.items(), key=str)}, file=sys.stderr)
        for c in (0, 1):
            assert L[(1, "pub", 0)] < L[(c, "chk", 0)]
            for ph in (1, 2):
                for p in (0, 1): assert L[(p, "pub", ph)] < L[(c, "chk", ph)], ("order", ph, p, c)
            for d in (0, 1):
                assert L[f"cs_pubA_{c}"] < L[f"cs_chkA_{d}"] and L[f"cs_pubB_{c}"] < L[f"cs_chkB_{d}"] and L[f"st_pub_{c}"] < L[f"st_chk_{d}"]
        assert L[(0, "kvcnt")] < L[(1, "kvchk")]
        for e in self.slow: e()
        a.label("Lcode_end")
        a.finalize()
        return a.text()

HEADER = """; Kernarg layout for this problem (80 bytes, ptrs only, base s[0:1]):
; @launch grid=(256,1,1) block=(512,1,1) lds=%d
.amdgcn_target "amdgcn-amd-amdhsa--gfx950"
.text
.globl %s
.p2align 8
.type %s,@function
%s:
"""
FOOTER = """
.section .rodata,"a"
.p2align 6
.amdhsa_kernel %s
  .amdhsa_next_free_vgpr 256
  .amdhsa_next_free_sgpr 102
  .amdhsa_accum_offset 128
  .amdhsa_group_segment_fixed_size 0
  .amdhsa_kernarg_size 80
  .amdhsa_user_sgpr_count 2
  .amdhsa_user_sgpr_kernarg_segment_ptr 1
  .amdhsa_system_sgpr_workgroup_id_x 1
.end_amdhsa_kernel
"""
BLOCK = 512
def generate(prof=None, opts=None):
    g = Gen(prof=prof, opts=opts)
    body = g.build()
    return HEADER % (LDS_BYTES, KNAME, KNAME, KNAME) + body + "\n" + FOOTER % KNAME

if __name__ == "__main__":
    prof = None; opts = {}; out = None
    for x in sys.argv[1:]:
        if x.startswith("--prof="): prof = x[7:].split(",")
        elif x.startswith("--opt="):
            for kv in x[6:].split(","):
                k, v = kv.split("="); opts[k] = int(v)
        else: out = x
    txt = generate(prof, opts)
    path = out or "parallel_sum__linear_attn_block__glu_gated_reglu__prompt.s"
    open(path, "w").write(txt)
    print("wrote", path, len(txt), "bytes")
```

```python
import sys, os
sys.path.insert(0, os.path.dirname(os.path.abspath(__file__)))
from asmlib import Asm

KNAME = "parallel_sum__linear_attn_block__glu_gated_reglu__prompt_kernel"

WS_EPOCH = 0x0
WS_ZF    = 0x1000
WS_HF    = 0x2000
WS_STAT  = 0x10000
WS_ACC   = 0x20000
ACC_CNT_KV = 1408
ACC_KV     = 2048
KVH, KVR = 1088, 64
WS_CSP   = 0x40000
WS_CSPA  = 0xC0000
WS_H     = 0x100000
WS_KVP   = 0xA00000
WS_KVZP  = 0xA80000
WS_KVF   = 0xA90000
WS_PROF  = 0xF00000
OOB      = 0x7FFFFFF0

NW = 5
L_X    = 0x14000
L_CA   = 0x20000
L_KVS  = 0x14000
KVP    = 136
L_CST  = 0x24800
L_STT  = 0x24E00
L_KVZ  = 0x25400
L_KVO  = 0x26400
W2SLOT = [0x14000, 0x0, 0x8000, 0x1C000]
LDS_BYTES = 0x28000

LOOK = 6
NFR  = 8
NF1  = 320
NF   = NF1 + 144

S_X, S_WS, S_OUT, S_U1, S_U2, S_U3, S_WD, S_WO = 8, 12, 16, 20, 24, 28, 32, 36
def srd(b): return f"s[{b}:{b+3}]"
sC1B, sC2B, sP1, sP3, sC3B, sJ = "s40", "s41", "s42", "s43", "s44", "s45"
sW, sR, sCG, sM, sPAR, sWLDS = "s46", "s47", "s48", "s49", "s50", "s51"
sU1b, sU1c64, sU2b, sU3c64 = "s52", "s53", "s54", "s55"
sXB, sW8K = "s56", "s57"
sTAGL, sTAGH = "s60", "s61"
sACC = "s62"
sROT = "s4"
sQA, sQB, sQC = "s5", "s3", "s63"
sT, sC2, sR2, sHALF = "s80", "s81", "s82", "s83"
sHB = "s70"
KK = ["s96", "s97", "s98", "s99"]
KS = ["s0", "s1"]
sXB2, sU1b2, sU2b2, sU3b2 = "s100", "s101", "s78", "s79"
vLANE, vL16 = "v1", "v2"

cWA = [["v3", "v4"], ["v5", "v6"]]
cSA = ["v7", "v8"]
cXA = ["v9", "v10", "v11", "v12"]
cB2 = ["v9", "v10"]; cB2H = ["v11", "v12"]
cRSTD, cRL, cG16, cCSA = "v13", "v14", "v15", "v48"
RING = 16
BAUG = 52
cOUT = "v49"
TMP = 56
ACC = 64
hSA = "v3"
vU1 = [4, 5, 6, 7]; vU2 = [8, 9, 10, 11]; vU3 = [12, 13, 14, 15]; vX = [16, 17, 18, 19]; vW2 = [20, 21, 22, 23]
hG16, hCSA, hL0, vPOLL, vDUM = "v24", "v25", "v26", "v27", "v28"
TAG = 30
vTAGL, vTAGH = "v30", "v31"
FLD = 32

class Task:
    def __init__(self, g, wake, name):
        self.g = g; self.wake = wake; self.done = False; self.name = name

class Gen:
    def __init__(self, prof=None, opts=None):
        self.a = Asm()
        self.slow = []
        self.prof = prof
        self.tasks = []
        self.log = {}
        self.o = dict(codepf=1, hbudget=3)
        if opts: self.o.update(opts)
        self.nbar = {"c": 0, "h0": 0, "h1": 0}
        self.m0_owner = None; self.m0_val = None; self.open_item = {}

    def stamp(self, name):
        if self.prof is None or name not in self.prof: return
        i = self.prof.index(name)
        assert i < 6
        op = "s_memrealtime" if name.startswith("rt") else "s_memtime"
        self.a(f"{op} s[{84+2*i}:{85+2*i}]")
    def spawn(self, g, wake, name, front=False):
        t = Task(g, wake, name)
        if front: self.tasks.insert(0, t)
        else: self.tasks.append(t)
        return t
    def step(self, t):
        try: r = next(t.g)
        except StopIteration:
            t.done = True; return
        if r is not None: t.wake = r
    def pump(self, f, start, budget):
        a = self.a
        while len(a.lines) - start < budget:
            t = next((t for t in self.tasks if not t.done and t.wake <= f), None)
            if t is None: break
            self.step(t)
        self.tasks = [t for t in self.tasks if not t.done]
    def finish(self, name):
        cap = getattr(self, "int_cap", 0); self.int_cap = 10**9
        for t in list(self.tasks):
            if t.name == name:
                while not t.done: self.step(t)
        self.int_cap = cap
        self.tasks = [t for t in self.tasks if not t.done]
    def active(self, name): return any(t.name == name and not t.done for t in self.tasks)
    def barrier(self, who, name):
        self.bars.setdefault(who, []).append(name)
        self.stamp(f"{who[0]}{name}_in")
        self.a("s_barrier")
        self.stamp(f"{who[0]}{name}_out")

    def poll_check(self, tok, cmp_lines, reissue, name="x"):
        a = self.a
        slow = a.newlabel("Lslow"); back = a.newlabel("Lback")
        self.stamp(name + "_in")
        a.wait(vm=tok)
        a(cmp_lines)
        a("s_cmp_eq_u64 vcc, -1")
        a(f"s_cbranch_scc0 {slow}")
        a.label(back)
        self.stamp(name + "_out")
        def emit():
            loop = a.newlabel("Lspin")
            a.label(slow)
            a("s_mov_b32 s66, 0x4000")
            a.label(loop)
            a("s_sleep 1")
            a(reissue)
            a("s_waitcnt vmcnt(0)")
            a(cmp_lines)
            a("s_cmp_eq_u64 vcc, -1")
            a(f"s_cbranch_scc1 {back}")
            a("s_sub_u32 s66, s66, 1")
            a("s_cmp_lg_u32 s66, 0")
            a(f"s_cbranch_scc1 {loop}")
            a(f"s_branch {back}")
        self.slow.append(emit)
    def tagcmp(self, d):
        return (f"v_cmp_eq_u32 vcc, v{d}, {vTAGL}\n"
                f"v_cmp_eq_u32 s[64:65], v{d+1}, {vTAGH}\n"
                f"s_and_b64 vcc, vcc, s[64:65]")
    def reset_track(self):
        a = self.a
        a.vm_floor = a.vm_issued; a.lg_floor = a.lg_issued

    def prologue(self):
        a = self.a
        a("s_cmp_ge_u32 s2, 256")
        a("s_cbranch_scc1 Lend")
        a(f"s_load_dwordx2 s[{S_X}:{S_X+1}], s[0:1], 0")
        a("s_load_dwordx2 s[64:65], s[0:1], 8")
        a("s_load_dwordx4 s[68:71], s[0:1], 32")
        a(f"s_load_dwordx2 s[{S_WS}:{S_WS+1}], s[0:1], 72")
        a(f"s_load_dwordx2 s[{S_WD}:{S_WD+1}], s[0:1], 48")
        a(f"s_load_dwordx2 s[{S_WO}:{S_WO+1}], s[0:1], 16")
        a(f"s_load_dwordx2 s[{S_OUT}:{S_OUT+1}], s[0:1], 56")
        a.protect = {("s", i) for i in (64, 65, 68, 69, 70, 71)}
        self.stamp("start"); self.stamp("rtstart")
        if self.o.get("dbgtime"):
            a("s_memtime s[84:85]"); a("s_memrealtime s[86:87]"); a("s_load_dwordx2 s[92:93], s[0:1], 64")
        for b, size in ((S_X, 2097152), (S_WS, 0x10000000), (S_OUT, 2097152), (S_WD, 1792*1024), (S_WO, 524288), (S_U2, 512*3584)):
            a(f"s_mov_b32 s{b+2}, {size}"); a(f"s_mov_b32 s{b+3}, 0x00020000")
        a(f"s_mov_b32 s{S_U1+3}, 0x00020000"); a(f"s_mov_b32 s{S_U3+3}, 0x00020000")
        a(f"v_and_b32 {vLANE}, 63, v0")
        a("v_lshrrev_b32 v32, 6, v0")
        a(f"v_lshlrev_b32 {vL16}, 4, {vLANE}")
        a("v_readfirstlane_b32 s72, v32")
        a(f"s_and_b32 {sW}, s72, 3")
        a("s_and_b32 s3, s2, 7")
        a(f"s_lshr_b32 {sJ}, s2, 3")
        if self.o.get("map42", 0):
            a("s_lshr_b32 s7, s3, 1"); a(f"s_lshl_b32 {sR}, s7, 2")
            a(f"s_lshr_b32 s7, {sJ}, 3"); a(f"s_add_u32 {sR}, {sR}, s7")
            a(f"s_and_b32 {sHALF}, s3, 1"); a(f"s_lshl_b32 {sCG}, {sHALF}, 3")
            a(f"s_and_b32 {sC2}, {sJ}, 7"); a(f"s_add_u32 {sCG}, {sCG}, {sC2}")
            a(f"s_lshr_b32 {sM}, {sCG}, 1"); a(f"s_and_b32 {sPAR}, {sCG}, 1")
            a(f"s_lshl_b32 {sT}, {sR}, 1"); a(f"s_add_u32 {sT}, {sT}, {sHALF}")
            a(f"s_mov_b32 {sR2}, {sR}")
        else:
            a("s_lshr_b32 s7, s3, 2"); a(f"s_lshl_b32 {sR}, s7, 3")
            a(f"s_lshr_b32 s7, {sJ}, 2"); a(f"s_add_u32 {sR}, {sR}, s7")
            a("s_and_b32 s7, s3, 3"); a(f"s_lshl_b32 {sCG}, s7, 2")
            a(f"s_and_b32 s7, {sJ}, 3"); a(f"s_add_u32 {sCG}, {sCG}, s7")
            a(f"s_lshr_b32 {sM}, {sCG}, 1"); a(f"s_and_b32 {sPAR}, {sCG}, 1")
            a(f"s_bfe_u32 {sHALF}, s3, {(1 << 16) | 1}"); a(f"s_lshl_b32 {sT}, {sR}, 1"); a(f"s_add_u32 {sT}, {sT}, {sHALF}")
            a(f"s_and_b32 {sC2}, s3, 1"); a(f"s_lshl_b32 {sC2}, {sC2}, 2"); a(f"s_and_b32 s7, {sJ}, 3"); a(f"s_add_u32 {sC2}, {sC2}, s7")
            a(f"s_mov_b32 {sR2}, {sR}")
        a(f"s_lshl_b32 {sWLDS}, {sW}, 12"); a(f"s_lshl_b32 {sW8K}, {sW}, 13")
        a("s_cmp_lt_u32 s72, 4")
        a("s_cbranch_scc1 Lcompute")

    def h_setup(self):
        a = self.a
        self.xtok = {}; self.wtok = {}
        a(f"s_add_u32 s6, {sCG}, {sR}"); a(f"s_and_b32 {sROT}, s6, 3")
        a(f"s_lshl_b32 s6, {sR}, 7"); a(f"s_lshl_b32 s7, {sW}, 5"); a("s_add_u32 s6, s6, s7")
        a(f"s_lshl_b32 {sXB}, s6, 10"); a(f"s_add_u32 {sXB2}, {sXB}, 512")
        for k in range(4):
            a(f"s_add_u32 {KK[k]}, {sROT}, {k}"); a(f"s_and_b32 {KK[k]}, {KK[k]}, 3")
        a(f"v_lshrrev_b32 v44, 3, {vLANE}"); a(f"v_and_b32 v45, 7, {vLANE}")
        a(f"v_lshrrev_b32 v47, 4, {vLANE}"); a("v_xor_b32 v47, v45, v47"); a("v_lshlrev_b32 v47, 4, v47")
        a(f"v_lshl_add_u32 v{vX[0]}, v44, 10, v47")
        a(f"v_xor_b32 v47, 64, v{vX[0]}")
        a(f"v_add_u32 v{vX[1]}, {7*1024}, v47"); a(f"v_add_u32 v{vX[2]}, {14*1024}, v{vX[0]}"); a(f"v_add_u32 v{vX[3]}, {21*1024}, v47")
        a(f"s_cmp_eq_u32 {sPAR}, 0")
        a("s_movk_i32 s6, 3072"); a("s_movk_i32 s7, 3584")
        a(f"s_cselect_b32 {sP1}, s6, s7"); a(f"s_cselect_b32 {sP3}, s7, s6")
        a(f"s_mov_b32 s6, {512*3072}"); a(f"s_mov_b32 s7, {512*3584}")
        a(f"s_cselect_b32 s{S_U1+2}, s6, s7"); a(f"s_cselect_b32 s{S_U3+2}, s7, s6")
        a(f"v_bfe_u32 v43, {vLANE}, 4, 1")
        a("v_lshlrev_b32 v46, 2, v43"); a("v_xor_b32 v46, v45, v46"); a("v_lshlrev_b32 v46, 4, v46")
        a(f"v_mul_lo_u32 v47, v44, {sP1}"); a(f"v_add_u32 v{vU1[0]}, v47, v46")
        a(f"s_lshl_b32 s6, {sP1}, 3"); a("s_sub_u32 s6, s6, 1024")
        for i in range(1, 4): a(f"v_add_u32 v{vU1[i]}, s6, v{vU1[i-1]}")
        a(f"s_lshr_b32 s72, {sW}, 1")
        a("s_lshl_b32 s73, s72, 10"); a("s_add_u32 s73, s73, 1024")
        a(f"s_lshl_b32 s7, {sM}, 7"); a("s_add_u32 s73, s73, s7")
        a(f"s_lshl_b32 s6, {sM}, 8"); a("s_add_u32 s6, s6, 1024")
        a(f"s_cmp_eq_u32 {sPAR}, 0"); a(f"s_cselect_b32 {sC1B}, s73, s6")
        a(f"s_and_b32 s73, {sW}, 1")
        a(f"s_lshl_b32 {sU1c64}, {sP1}, 6")
        a(f"s_mul_i32 s6, s73, {sP1}"); a("s_lshl_b32 s7, s6, 5"); a(f"s_add_u32 {sU1b}, {sC1B}, s7")
        a(f"s_lshl_b32 s7, {sU1c64}, 2"); a(f"s_add_u32 {sU1b2}, {sU1b}, s7")
        a("s_waitcnt lgkmcnt(0)")
        self.stamp("kargs")
        self.dma_x(0)
        a(f"s_cmp_lt_u32 {sW}, 2")
        a(f"s_cselect_b32 s{S_U2}, s68, s70"); a(f"s_cselect_b32 s{S_U2+1}, s69, s71")
        a(f"s_cmp_eq_u32 {sPAR}, 0")
        a(f"s_cselect_b32 s{S_U1}, s64, s{S_U2}"); a(f"s_cselect_b32 s{S_U1+1}, s65, s{S_U2+1}")
        a(f"s_cselect_b32 s{S_U3}, s{S_U2}, s64"); a(f"s_cselect_b32 s{S_U3+1}, s{S_U2+1}, s65")
        a.protect = set()
        self.dma_w(0); self.dma_x(1); self.dma_w(1)
        a(f"s_load_dwordx2 s[60:61], s[{S_WS}:{S_WS+1}], 0")
        a(f"v_lshrrev_b32 v40, 5, {vLANE}"); a(f"v_bfe_u32 v41, {vLANE}, 2, 2"); a(f"v_and_b32 v42, 3, {vLANE}")
        a(f"s_lshl_b32 s7, {sM}, 7"); a(f"s_lshl_b32 s6, {sM}, 8"); a("s_add_u32 s6, s6, 1152")
        a(f"s_cmp_eq_u32 {sPAR}, 0"); a(f"s_cselect_b32 {sC2B}, s7, s6")
        a(f"s_lshr_b32 s6, {sM}, 1"); a("s_lshl_b32 s6, s6, 7"); a("s_add_u32 s6, s6, 3072")
        a(f"s_and_b32 s73, {sM}, 1"); a("s_lshl_b32 s73, s73, 6"); a("s_add_u32 s6, s6, s73")
        a("s_lshl_b32 s73, s72, 6"); a("s_add_u32 s73, s73, s7")
        a(f"s_cmp_eq_u32 {sPAR}, 0"); a(f"s_cselect_b32 {sC3B}, s6, s73")
        a(f"s_and_b32 s72, {sW}, 1")
        if self.o.get("touch1", 1): self.touch1()
        a("v_lshlrev_b32 v47, 5, v43"); a("v_lshl_add_u32 v47, v42, 3, v47")
        a("v_lshl_add_u32 v48, v40, 3, v41"); a("v_lshlrev_b32 v48, 6, v48"); a(f"v_add_u32 {hSA}, v48, v47")
        a(f"v_lshlrev_b32 {hG16}, 4, v40")
        a("s_movk_i32 s7, 3584"); a("v_mul_lo_u32 v47, v44, s7"); a(f"v_add_u32 v{vU2[0]}, v47, v46")
        for i in range(1, 4): a(f"v_add_u32 v{vU2[i]}, {8*3584-1024}, v{vU2[i-1]}")
        a(f"s_mul_i32 s7, s72, {32*3584}"); a(f"s_add_u32 {sU2b}, {sC2B}, s7"); a(f"s_add_u32 {sU2b2}, {sU2b}, {256*3584}")
        a(f"v_lshrrev_b32 v49, 2, {vLANE}"); a(f"v_mul_lo_u32 v47, v49, {sP3}"); a(f"v_lshl_add_u32 v{vU3[0]}, v42, 4, v47")
        a(f"s_lshl_b32 s6, {sP3}, 4"); a("s_sub_u32 s6, s6, 1024")
        for i in range(1, 4): a(f"v_add_u32 v{vU3[i]}, s6, v{vU3[i-1]}")
        a(f"s_lshl_b32 {sU3c64}, {sP3}, 6")
        a(f"s_lshl_b32 s7, {sU3c64}, 2"); a(f"s_add_u32 {sU3b2}, {sC3B}, s7")
        a(f"s_add_u32 s7, {sROT}, s72"); a(f"s_and_b32 {KS[0]}, s7, 3"); a("s_add_u32 s7, s7, 2"); a(f"s_and_b32 {KS[1]}, s7, 3")
        a(f"v_lshl_add_u32 v{vW2[0]}, v44, 10, v46")
        for k in range(1, 4): a(f"v_add_u32 v{vW2[k]}, {7*1024*k}, v{vW2[0]}")
        a(f"v_mul_lo_u32 v47, v49, {sP1}"); a("v_lshl_add_u32 v34, v42, 4, v47")
        a(f"s_lshl_b32 s6, {sP1}, 4"); a("s_sub_u32 s6, s6, 1024"); a("v_add_u32 v35, s6, v34")
        a("s_movk_i32 s7, 3584"); a("v_mul_lo_u32 v47, v49, s7"); a("v_lshl_add_u32 v36, v42, 4, v47"); a(f"v_add_u32 v37, {16*3584-1024}, v36")
        a(f"s_and_b32 s6, {sR}, 7"); a("s_lshl_b32 s6, s6, 6"); a(f"s_lshr_b32 s7, {sR}, 3"); a("s_lshl_b32 s7, s7, 5"); a("s_add_u32 s6, s6, s7")
        a("s_lshl_b32 s7, s72, 6")
        a(f"s_mul_i32 s73, s6, {sP1}"); a(f"s_add_u32 s73, s73, {sC1B}"); a("s_add_u32 s73, s73, s7")
        a("s_mul_i32 s74, s6, 3584"); a(f"s_add_u32 s74, s74, {sC2B}"); a("s_add_u32 s74, s74, s7")
        a(f"s_mul_i32 s75, s6, {sP3}"); a(f"s_add_u32 s75, s75, {sC3B}")
        a(f"s_lshl_b32 {sACC}, {sCG}, 13"); a(f"s_add_u32 {sACC}, {sACC}, {WS_ACC}")
        a(f"s_lshl_b32 s6, {sR}, 7"); a(f"s_lshl_b32 s7, {sCG}, 3"); a("s_add_u32 s6, s6, s7")
        a(f"s_lshl_b32 s7, {sW}, 1"); a("s_add_u32 s76, s6, s7")
        a(f"v_and_b32 {hCSA}, 31, {vLANE}"); a(f"v_lshlrev_b32 {hCSA}, 2, {hCSA}"); a(f"v_add_u32 {hCSA}, {L_CST}, {hCSA}")
        a(f"v_cmp_eq_u32 vcc, 0, {vLANE}"); a(f"v_mov_b32 {hL0}, {OOB}"); a("v_mov_b32 v47, 0"); a(f"v_cndmask_b32 {hL0}, {hL0}, v47, vcc")
        a(f"s_lshl_b32 s6, {sR}, 1"); a(f"s_lshr_b32 s7, {sW}, 1"); a("s_add_u32 s6, s6, s7"); a("s_mul_i32 s6, s6, 768")
        a(f"s_lshl_b32 s7, {sCG}, 4"); a("s_add_u32 s6, s6, s7"); a("s_lshl_b32 s7, s72, 3"); a("s_add_u32 s6, s6, s7"); a(f"s_add_u32 s77, s6, {WS_HF}")
        for _ in self.t_s2_q(): pass
        a("s_waitcnt lgkmcnt(0)")
        a(f"s_add_u32 {sTAGL}, {sTAGL}, 1"); a(f"s_addc_u32 {sTAGH}, {sTAGH}, 0")
        a(f"v_mov_b32 {vTAGL}, {sTAGL}"); a(f"v_mov_b32 {vTAGH}, {sTAGH}")

    def touch1(self):
        a = self.a
        a(f"s_and_b32 s6, {sR}, 7"); a("s_lshl_b32 s6, s6, 5"); a(f"s_and_b32 s7, {sW}, 1"); a("s_lshl_b32 s7, s7, 4"); a("s_add_u32 s6, s6, s7"); a("s_add_u32 s6, s6, 256")
        a(f"v_and_b32 v50, 15, {vLANE}"); a("v_add_u32 v50, s6, v50")
        a(f"v_mul_lo_u32 v51, v50, {sP1}")
        a.vm(f"buffer_load_dword {vDUM}, v51, {srd(S_U1)}, {sC1B} offen")
        a(f"v_and_b32 v52, 7, {vLANE}"); a(f"v_bfe_u32 v53, {vLANE}, 3, 2"); a("v_add_u32 v53, 4, v53")
        a("v_lshlrev_b32 v52, 10, v52"); a("v_lshl_add_u32 v52, v53, 7, v52")
        a(f"s_lshl_b32 s6, {sR}, 7"); a(f"s_and_b32 s7, {sCG}, 3"); a("s_lshl_b32 s7, s7, 5"); a("s_add_u32 s6, s6, s7")
        a(f"s_lshl_b32 s7, {sW}, 3"); a("s_add_u32 s6, s6, s7"); a("s_lshl_b32 s6, s6, 10")
        a.vm(f"buffer_load_dword {vDUM}, v52, {srd(S_X)}, s6 offen")
    def t_touch2(self):
        a = self.a
        a(f"s_and_b32 s6, {sR}, 7"); a("s_lshl_b32 s6, s6, 5"); a(f"s_and_b32 s7, {sW}, 1"); a("s_lshl_b32 s7, s7, 4"); a("s_add_u32 s6, s6, s7"); a("s_add_u32 s6, s6, 256")
        a(f"v_and_b32 v46, 15, {vLANE}"); a("v_add_u32 v46, s6, v46")
        a("s_movk_i32 s7, 3584"); a("v_mul_lo_u32 v46, v46, s7")
        a.vm(f"buffer_load_dword {vDUM}, v46, {srd(S_U2)}, {sC2B} offen"); yield
        a(f"s_and_b32 s6, {sR}, 7"); a("s_lshl_b32 s6, s6, 6"); a(f"s_and_b32 s7, {sW}, 1"); a("s_lshl_b32 s7, s7, 5"); a("s_add_u32 s6, s6, s7")
        a(f"v_and_b32 v46, 31, {vLANE}"); a("v_add_u32 v46, s6, v46"); a(f"v_mul_lo_u32 v46, v46, {sP3}")
        a.vm(f"buffer_load_dword {vDUM}, v46, {srd(S_U3)}, {sC3B} offen"); yield

    def mkparts(self, head, vs, sr, so, settok, ldsbase):
        a = self.a
        parts = []
        for i in range(4):
            def p(i=i):
                key = (so, ldsbase)
                if i == 0:
                    assert self.open_item.get(so) is None
                    self.open_item[so] = key
                assert self.open_item[so] == key
                if i == 3: self.open_item[so] = None
                if i == 0: head()
                elif self.m0_owner != so or self.m0_val != ldsbase: a(f"s_add_u32 m0, {sWLDS}, {ldsbase}")
                self.m0_owner = so; self.m0_val = ldsbase
                settok(a.vm(f"buffer_load_dwordx4 v{vs[i]}, {srd(sr)}, {so} offen{' offset:%d' % (1024*i) if i else ''} lds"))
            parts.append(p)
        return parts
    def m0_clobber(self): self.m0_owner = None
    def dma_x_parts(self, c):
        a = self.a
        def head():
            a(f"s_add_u32 m0, {sWLDS}, {L_X + (c % 3)*16384}")
            a(f"s_lshl_b32 s7, {KK[c & 3]}, 7"); a(f"s_add_u32 s58, {sXB2 if c & 4 else sXB}, s7")
        return self.mkparts(head, vX, S_X, "s58", lambda t: self.xtok.__setitem__(c, t), L_X + (c % 3)*16384)
    def dma_w_parts(self, G):
        a = self.a
        slot = G % NW
        if G < 8:    vs, sr, b, b2, c64 = vU1, S_U1, sU1b, sU1b2, sU1c64
        elif G < 16: vs, sr, b, b2, c64 = vU2, S_U2, sU2b, sU2b2, str(64*3584)
        else:        vs, sr, b, b2, c64 = vU3, S_U3, sC3B, sU3b2, sU3c64
        def head():
            a(f"s_add_u32 m0, {sWLDS}, {slot*16384}")
            if G < 16:
                pos = G % 8
                a(f"s_mul_i32 s7, {KK[pos & 3]}, {c64}")
            else:
                pos = 2*(G-16)
                a(f"s_mul_i32 s7, {KS[(pos & 3) // 2]}, {c64}")
            a(f"s_add_u32 s59, {b2 if pos & 4 else b}, s7")
        return self.mkparts(head, vs, sr, "s59", lambda t: self.wtok.__setitem__(G, t), slot*16384)
    def dma_x(self, c):
        for p in self.dma_x_parts(c): p()
    def dma_w(self, G):
        for p in self.dma_w_parts(G): p()
    def slab(self, base_expr, v0, v1, sr, so):
        a = self.a
        a(base_expr); self.m0_clobber(); a("s_nop 0")
        a.vm(f"buffer_load_dwordx4 v{v0}, {srd(sr)}, {so} offen lds")
        return a.vm(f"buffer_load_dwordx4 v{v1}, {srd(sr)}, {so} offen offset:1024 lds")

    def t_early(self):
        a = self.a; o = self.o
        a(f"s_lshl_b32 s6, {sW}, 11")
        self.ctokA = self.slab(f"s_add_u32 m0, s6, {L_CA}", 34, 35, S_U1, "s73"); yield
        if o["codepf"]:
            a("s_getpc_b64 s[64:65]")
            a.label("Lpc0" + self.sfx)
            a(f"s_sub_u32 s64, s64, Lpc0{self.sfx}-{KNAME}"); a("s_subb_u32 s65, s65, 0")
            a(f"v_min_u32 v40, 2, {vLANE}")
            a(f"s_mul_i32 s6, {sJ}, 12"); a(f"s_mul_i32 s7, {sW}, 3"); a("s_add_u32 s6, s6, s7")
            a("v_add_u32 v40, s6, v40"); a("v_lshlrev_b32 v40, 7, v40")
            a(f"s_mov_b32 s66, Lcode_end-{KNAME}-4"); a("v_min_u32 v40, s66, v40")
            a.vm(f"global_load_dword {vDUM}, v40, s[64:65]"); yield

    DPPM = ("quad_perm:[1,0,3,2] row_mask:0xf", "quad_perm:[2,3,0,1] row_mask:0xf", "row_half_mirror row_mask:0xf",
            "row_mirror row_mask:0xf", "row_bcast:15 row_mask:0xa", "row_bcast:31 row_mask:0xc")
    def c_stats(self):
        a = self.a
        D = 64
        for r in range(2):
            for k in range(4):
                a(f"v_lshlrev_b32 v{D+8*r+2*k}, 16, v{16+4*r+k}"); a(f"v_and_b32 v{D+8*r+2*k+1}, 0xffff0000, v{16+4*r+k}")
        for k in range(1, 8):
            for r in range(2):
                d = D + 8*r; t = 80 + r
                a(f"v_add_f32 v{t}, v{d}, v{d+1}" if k == 1 else f"v_add_f32 v{t}, v{t}, v{d+k}")
        for mod in self.DPPM:
            for v in ("v80", "v81"): a(f"v_add_f32_dpp {v}, {v}, {v} {mod} bank_mask:0xf")
        a("v_readlane_b32 s78, v80, 63"); a("v_readlane_b32 s79, v81, 63")
        a("s_mov_b32 s66, 0x3b000000"); a("v_mov_b32 v82, s78"); a("v_mov_b32 v83, s79")
        a("v_mul_f32 v82, s66, v82"); a("v_mul_f32 v83, s66, v83")
        for k in range(8):
            for r in range(2): a(f"v_sub_f32 v{D+8*r+k}, v{D+8*r+k}, v{82+r}")
        for k in range(8):
            for r in range(2):
                d = D + 8*r; t = 80 + r
                a(f"v_mul_f32 v{t}, v{d}, v{d}" if k == 0 else f"v_fmac_f32 v{t}, v{d+k}, v{d+k}")
        for mod in self.DPPM:
            for v in ("v80", "v81"): a(f"v_add_f32_dpp {v}, {v}, {v} {mod} bank_mask:0xf")
        a("v_readlane_b32 s78, v80, 63"); a("v_readlane_b32 s79, v81, 63")
        a("v_mov_b32 v84, s78"); a("v_mov_b32 v85, s79"); a("v_mov_b32 v86, 0x3727c5ac")
        a("v_fma_f32 v84, v84, s66, v86"); a("v_fma_f32 v85, v85, s66, v86")
        a("v_rsq_f32 v84, v84"); a("v_rsq_f32 v85, v85")
        a(f"v_cmp_eq_u32 vcc, 1, {vLANE}"); a("v_mov_b32 v90, s60"); a("v_mov_b32 v91, s61")
        a("v_cndmask_b32 v88, v82, v83, vcc"); a("v_cndmask_b32 v89, v84, v85, vcc")
        a(f"v_cmp_gt_u32 vcc, 2, {vLANE}"); a(f"v_mov_b32 v87, {OOB}")
        a("s_lshl_b32 s6, s75, 4"); a(f"s_add_u32 s6, s6, {WS_STAT}")
        a(f"v_cndmask_b32 v86, v87, {vL16}, vcc")
        a.vm(f"buffer_store_dwordx4 v[88:91], v86, {srd(S_WS)}, s6 offen sc1")

    def t_cs(self, rnd):
        a = self.a
        A = rnd == "A"
        nu = 1 if A else 2
        FR, ONES, D0, AD, RES = 96, 112, 116, 88, 84
        a(f"s_lshl_b32 s6, {sW}, {11 if A else 12}"); a(f"s_add_u32 s6, s6, {L_CA}")
        a(f"v_add_u32 v{AD}, s6, {hSA}"); yield
        for k in range(4): a(f"v_mov_b32 v{ONES+k}, 0x3f803f80")
        yield
        a(f"v_and_b32 v{AD+1}, 31, {vLANE}"); a(f"v_lshlrev_b32 v{AD+1}, {3 if A else 4}, v{AD+1}")
        a(f"v_cmp_gt_u32 vcc, 32, {vLANE}"); a(f"v_mov_b32 v{AD+2}, {OOB}"); a("s_nop 0")
        a(f"v_cndmask_b32 v{AD+1}, v{AD+2}, v{AD+1}, vcc"); yield
        a.wait(vm=self.ctokA if A else self.ctokB)
        for ui in range(nu):
            for s in range(2):
                for q in range(2):
                    r = FR + ui*8 + s*4 + q*2
                    t = a.lg(f"ds_read_b64_tr_b16 v[{r}:{r+1}], v{AD} offset:{ui*2048 + (16*s + 4*q)*64}")
            yield
        if not A: yield self.int_end
        a.wait(lg=t)
        DT = [116, 60]
        DT = [52, 68]
        for ui in range(nu):
            d = DT[ui]
            for s in range(2):
                r = FR + ui*8 + s*4
                a(f"v_mfma_f32_32x32x16_bf16 v[{d}:{d+15}], v[{ONES}:{ONES+3}], v[{r}:{r+3}], {'0' if s == 0 else f'v[{d}:{d+15}]'}")
            yield
        a(f"s_lshl_b32 s6, {sCG}, 4"); a(f"s_add_u32 s6, s6, {sR}"); a("s_lshl_b32 s6, s6, 2"); a(f"s_add_u32 s6, s6, {sW}")
        a(f"s_lshl_b32 s6, s6, {8 if A else 9}"); a(f"s_add_u32 s71, s6, {WS_CSPA if A else WS_CSP}"); yield
        if not A: yield self.int_end
        if A:
            a(f"v_mov_b32 v{RES}, v52"); a(f"v_mov_b32 v{RES+1}, {vTAGL}")
            a.vm(f"buffer_store_dwordx2 v[{RES}:{RES+1}], v{AD+1}, {srd(S_WS)}, s71 offen sc1"); yield
        else:
            a(f"v_mov_b32 v{RES}, v52"); a(f"v_mov_b32 v{RES+1}, v68"); a(f"v_mov_b32 v{RES+2}, {vTAGL}"); a(f"v_mov_b32 v{RES+3}, {vTAGL}")
            a.vm(f"buffer_store_dwordx4 v[{RES}:{RES+3}], v{AD+1}, {srd(S_WS)}, s71 offen sc1"); yield
        self.log["cs_pub" + rnd + self.sfx] = self.f

    def t_csum(self, rnd, chk_f):
        a = self.a
        A = rnd == "A"
        B = 52; W = 2 if A else 4; AD = 92
        SB, ST = "s68", "s69"
        a(f"v_and_b32 v{AD}, 31, {vLANE}"); a(f"v_lshlrev_b32 v{AD}, {3 if A else 4}, v{AD}")
        a(f"v_lshrrev_b32 v{AD+1}, 5, {vLANE}"); a(f"v_lshl_add_u32 v{AD}, v{AD+1}, {10 if A else 11}, v{AD}"); yield
        a(f"s_lshl_b32 s6, {sCG}, {14 if A else 15}"); a(f"s_lshl_b32 s7, {sW}, {8 if A else 9}"); a("s_add_u32 s6, s6, s7")
        a(f"s_add_u32 {SB}, s6, {WS_CSPA if A else WS_CSP}"); yield
        def loads():
            return [f"s_add_u32 {ST}, {SB}, {i*(2048 if A else 4096)}\nbuffer_load_dwordx{W} v[{B+W*i}:{B+W*i+W-1}], v{AD}, {srd(S_WS)}, {ST} offen sc1" for i in range(8)]
        for t in loads():
            yield from self.vmslot()
            l0, l1 = t.split("\n"); a(l0); tok = a.vm(l1); yield
        yield max(chk_f, self.f + self.o.get("csum_gap", 12))
        tg = W - 1
        cmp = f"v_cmp_eq_u32 vcc, v{B+tg}, {vTAGL}\n"
        for i in range(1, 8): cmp += f"v_cmp_eq_u32 s[64:65], v{B+tg+W*i}, {vTAGL}\ns_and_b64 vcc, vcc, s[64:65]\n"
        self.log["cs_chk" + rnd + self.sfx] = self.f
        self.poll_check(tok, cmp.strip(), "\n".join(loads()), "csp" + rnd)
        nv = 1 if A else 2
        for i in range(1, 8):
            for k in range(nv): a(f"v_add_f32 v{B+k}, v{B+k}, v{B+W*i+k}")
            yield
        T = B + 4
        for k in range(nv): a(f"v_mov_b32 v{T+k}, v{B+k}")
        for k in range(nv): a(f"v_permlane32_swap_b32 v{B+k}, v{T+k}")
        for k in range(nv): a(f"v_add_f32 v{B+k}, v{B+k}, v{T+k}")
        yield
        for k in range(nv): a(f"v_cvt_pk_bf16_f32 v{T+k}, v{B+k}, v{B+k}")
        for k in range(nv): a(f"v_lshlrev_b32 v{T+k}, 16, v{T+k}")
        for k in range(nv): a(f"v_sub_f32 v{T+k}, v{B+k}, v{T+k}")
        for k in range(nv): a(f"v_cvt_pk_bf16_f32 v{B+k}, v{B+k}, v{T+k}")
        yield
        a(f"s_lshl_b32 s6, {sW}, 7"); a(f"v_add_u32 v{AD+1}, s6, {hCSA}")
        if A: a.lg(f"ds_write_b32 v{AD+1}, v{B}")
        else:
            a.lg(f"ds_write_b32 v{AD+1}, v{B} offset:512")
            a(f"s_lshr_b32 s6, {sW}, 1"); a("s_lshl_b32 s6, s6, 7"); a(f"v_add_u32 v{AD+1}, s6, {hCSA}")
            a.lg(f"ds_write_b32 v{AD+1}, v{B+1} offset:1024")
        yield

    def t_stt(self, chk_f):
        a = self.a
        a(f"v_and_b32 v44, 31, {vLANE}"); a("v_lshlrev_b32 v45, 4, v44"); yield
        a(f"s_lshl_b32 s6, {sR}, 7"); a(f"s_lshl_b32 s7, {sW}, 5"); a("s_add_u32 s6, s6, s7")
        a("s_lshl_b32 s72, s6, 4"); a(f"s_add_u32 s72, s72, {WS_STAT}")
        txt = f"buffer_load_dwordx4 v[48:51], v45, {srd(S_WS)}, s72 offen sc1"
        tok = a.vm(txt)
        yield chk_f
        self.log["st_chk" + self.sfx] = self.f
        self.poll_check(tok, self.tagcmp(50), txt, "stp")
        a("v_sub_f32 v48, 0, v48")
        a("v_lshlrev_b32 v44, 3, v44"); a(f"s_lshl_b32 s6, {sW}, 8"); a(f"s_add_u32 s6, s6, {L_STT}"); a("v_add_u32 v44, s6, v44")
        a.lg("ds_write_b64 v44, v[48:49]"); yield

    def t_slabB(self):
        a = self.a
        yield from self.vmslot()
        self.slab(f"s_add_u32 m0, {sWLDS}, {L_CA}", 36, 37, S_U2, "s74"); yield
        yield from self.vmslot()
        self.ctokB = self.slab(f"s_add_u32 m0, {sWLDS}, {L_CA + 2048}", vU3[0], vU3[1], S_U3, "s75"); yield

    def publish(self, phase):
        a = self.a
        a.vm(f"buffer_store_dwordx2 v[{TAG}:{TAG+1}], {hL0}, {srd(S_WS)}, s77 offen offset:{phase*256} sc1")
        self.log[(self.par, "pub", phase)] = self.f

    def t_kv_tail(self):
        a = self.a; o = self.o
        a(f"v_lshrrev_b32 v38, 4, {vLANE}"); a("v_lshlrev_b32 v38, 3, v38")
        a(f"v_bfe_u32 v39, {vLANE}, 2, 2"); a("v_add_u32 v38, v38, v39"); yield
        a(f"s_movk_i32 s7, {KVP}"); a("v_mul_lo_u32 v38, v38, s7")
        a(f"v_and_b32 v39, 3, {vLANE}"); a("v_lshl_add_u32 v38, v39, 3, v38"); yield
        a(f"s_lshl_b32 s6, {sW}, 5"); a(f"s_add_u32 s6, s6, {L_KVS}"); a("v_add_u32 v38, s6, v38"); yield
        F = 52
        for ks in range(4):
            for tile in range(2):
                for q in range(2):
                    r = F + ks*8 + tile*4 + q*2
                    t = a.lg(f"ds_read_b64_tr_b16 v[{r}:{r+1}], v38 offset:{tile*128*KVP + (32*ks + 4*q)*KVP}")
                yield
        for k in range(4): a(f"v_mov_b32 v{84+k}, 0x3f803f80")
        yield self.int_end
        a.wait(lg=t)
        self.kv_reads_f = self.f
        for ks in range(4):
            pk = F + ks*8; vv = pk + 4
            a(f"v_mfma_f32_16x16x32_bf16 v[88:91], v[{vv}:{vv+3}], v[{pk}:{pk+3}], {'0' if ks == 0 else 'v[88:91]'}")
            a(f"v_mfma_f32_16x16x32_bf16 v[48:51], v[84:87], v[{pk}:{pk+3}], {'0' if ks == 0 else 'v[48:51]'}")
            yield
        a(f"s_lshl_b32 s6, {sM}, 2"); a(f"s_add_u32 s6, s6, {sW}")
        a("s_lshl_b32 s7, s6, 4"); a(f"s_add_u32 s7, s7, {sR}"); a("s_lshl_b32 s7, s7, 10"); a(f"s_add_u32 s73, s7, {WS_KVP}")
        a("s_lshl_b32 s7, s6, 10"); a(f"s_lshl_b32 s72, {sR}, 6"); a("s_add_u32 s7, s7, s72"); a(f"s_add_u32 s72, s7, {WS_KVZP}")
        a("s_lshl_b32 s7, s6, 7"); a(f"s_lshl_b32 s6, {sR}, 3"); a("s_add_u32 s7, s7, s6"); a(f"s_add_u32 s71, s7, {WS_KVF}")
        a(f"v_cmp_gt_u32 vcc, 16, {vLANE}"); a(f"v_mov_b32 v39, {OOB}"); a(f"v_lshlrev_b32 v38, 2, {vLANE}")
        a("v_cndmask_b32 v38, v39, v38, vcc")
        yield self.f + 2
        a.vm(f"buffer_store_dwordx4 v[88:91], {vL16}, {srd(S_WS)}, s73 offen sc1")
        tok = a.vm(f"buffer_store_dword v48, v38, {srd(S_WS)}, s72 offen sc1"); yield
        yield self.int_end + 16
        a.wait(vm=tok)
        a.vm(f"buffer_store_dwordx2 v[{TAG}:{TAG+1}], {hL0}, {srd(S_WS)}, s71 offen sc1")
        self.log[(0, "kvcnt")] = self.f
        yield

    def t_q_prep(self, chk_f):
        a = self.a
        a(f"s_lshl_b32 s6, {sM}, 2"); a(f"s_add_u32 s6, s6, {sW}")
        a("s_lshl_b32 s7, s6, 7"); a(f"s_add_u32 s71, s7, {WS_KVF}")
        a("s_lshl_b32 s7, s6, 14"); a(f"s_add_u32 s73, s7, {WS_KVP}")
        a("s_lshl_b32 s7, s6, 10"); a(f"s_add_u32 s76, s7, {WS_KVZP}")
        a(f"v_and_b32 v40, 15, {vLANE}"); a("v_lshlrev_b32 v40, 3, v40")
        txt = f"buffer_load_dwordx2 v[42:43], v40, {srd(S_WS)}, s71 offen sc1"
        tok = a.vm(txt)
        yield chk_f
        self.log[(1, "kvchk")] = self.f
        self.poll_check(tok, self.tagcmp(42), txt, "kvp")
        while self.active("csumB"): yield self.f + 1
        B = 52
        ztok = a.vm(f"buffer_load_dwordx4 v[116:119], {vL16}, {srd(S_WS)}, s76 offen sc1"); yield
        toks = []
        for r in range(16):
            yield from self.vmslot()
            if r % 4 == 0 and r: a("s_add_u32 s73, s73, 4096")
            toks.append(a.vm(f"buffer_load_dwordx4 v[{B+4*r}:{B+4*r+3}], {vL16}, {srd(S_WS)}, s73 offen offset:{(r % 4)*1024} sc1")); yield
        yield self.int_end
        a.wait(vm=ztok)
        for mod in ("row_shr:4", "row_shr:8"):
            for k in range(4): a(f"v_add_f32_dpp v{116+k}, v{116+k}, v{116+k} {mod} row_mask:0xf bank_mask:0xf bound_ctrl:0")
            yield
        for k in range(4):
            a(f"v_mov_b32 v{120+k}, v{116+k}")
        for k in range(4): a(f"v_permlane16_swap_b32 v{116+k}, v{120+k}")
        for k in range(4): a(f"v_add_f32 v{116+k}, v{116+k}, v{120+k}")
        yield
        for k in range(4): a(f"v_mov_b32 v{120+k}, v{116+k}")
        for k in range(4): a(f"v_permlane32_swap_b32 v{116+k}, v{120+k}")
        for k in range(4): a(f"v_add_f32 v{116+k}, v{116+k}, v{120+k}")
        yield
        for r in range(1, 16):
            a.wait(vm=toks[r])
            for k in range(0, 4, 2): a(f"v_pk_add_f32 v[{B+k}:{B+k+1}], v[{B+k}:{B+k+1}], v[{B+4*r+k}:{B+4*r+k+1}]")
            yield
        a(f"s_mul_i32 s6, {sW}, 1280"); a(f"s_add_u32 s6, s6, {L_KVO}")
        a(f"v_lshrrev_b32 v40, 4, {vLANE}"); a("v_lshlrev_b32 v40, 8, v40"); a(f"v_and_b32 v41, 15, {vLANE}"); a("v_lshl_add_u32 v40, v41, 2, v40")
        a("v_add_u32 v40, s6, v40")
        for v in range(4): a.lg(f"ds_write_b32 v40, v{B+v} offset:{v*64}")
        a(f"v_and_b32 v41, 3, {vLANE}"); a("v_lshlrev_b32 v41, 4, v41"); a("v_add_u32 v41, s6, v41"); a("v_add_u32 v41, 1024, v41")
        a(f"v_and_b32 v42, 15, {vLANE}"); a("v_cmp_le_u32 vcc, 12, v42"); a(f"v_mov_b32 v43, {L_KVO + 4*1280}")
        a("v_cndmask_b32 v41, v43, v41, vcc")
        t = a.lg("ds_write_b128 v41, v[116:119]"); yield
        yield self.f + 3
        a(f"s_mul_i32 s6, {sW}, 1280"); a(f"s_add_u32 s6, s6, {L_KVO}")
        a(f"v_and_b32 v41, 31, {vLANE}"); a("v_min_u32 v41, 16, v41"); a(f"v_lshl_add_u32 v41, v41, 6, {hG16}"); a("v_add_u32 v41, s6, v41")
        a.wait(lg=t)
        a.lg("ds_read_b128 v[52:55], v41"); t = a.lg("ds_read_b128 v[56:59], v41 offset:32"); yield
        yield self.f + 3
        a.wait(lg=t)
        for k in range(4): a(f"v_cvt_pk_bf16_f32 v{60+k}, v{52+2*k}, v{53+2*k}")
        a(f"s_lshl_b32 s6, {sW}, 10"); a(f"s_add_u32 s6, s6, {L_KVZ}"); a(f"v_add_u32 v41, s6, {vL16}")
        a.lg("ds_write_b128 v41, v[60:63]"); yield

    def qget(self, i, dst):
        reg = (sQA, sQB, sQC)[i // 4]
        self.a(f"s_bfe_u32 {dst}, {reg}, {(8 << 16) | (8*(i % 4))}")
    def t_s2_q(self):
        a = self.a
        a(f"s_lshr_b32 s68, {sJ}, {3 if self.o.get('map42', 0) else 2}"); a(f"s_add_u32 s68, s68, {sC2}"); a("s_and_b32 s68, s68, 7")
        tab = sum(((k % 3) << (2*k)) for k in range(12))
        a(f"s_lshl_b32 s69, s68, 1"); a(f"s_lshr_b32 s69, {tab}, s69"); a("s_and_b32 s69, s69, 3"); yield
        for i in range(9):
            reg = (sQA, sQB, sQC)[i // 4]
            if i < 2:
                a(f"s_add_u32 s6, s68, {i}"); a("s_and_b32 s6, s6, 1"); a("s_lshl_b32 s6, s6, 3")
                a(f"s_lshl_b32 s7, {sW}, 1"); a("s_add_u32 s6, s6, s7"); a("s_add_u32 s6, s6, 8")
            elif i < 6:
                a(f"s_add_u32 s6, s68, {i-2}"); a("s_and_b32 s6, s6, 3"); a("s_lshl_b32 s6, s6, 2"); a(f"s_add_u32 s6, s6, {sW}")
                a("s_lshl_b32 s7, s6, 1"); a("s_sub_u32 s7, s7, 7"); a("s_cmp_lt_u32 s6, 8"); a("s_cselect_b32 s6, s6, s7")
            else:
                a(f"s_add_u32 s6, s69, {i-6}"); a("s_sub_u32 s7, s6, 3"); a("s_cmp_lt_u32 s6, 3"); a("s_cselect_b32 s6, s6, s7")
                a("s_lshl_b32 s6, s6, 2"); a(f"s_add_u32 s6, s6, {sW}"); a("s_add_u32 s6, s6, 24")
            if i % 4 == 0: a(f"s_mov_b32 {reg}, s6")
            else: a(f"s_lshl_b32 s6, s6, {8*(i % 4)}"); a(f"s_or_b32 {reg}, {reg}, s6")
            yield
    def s2_w_dma(self, i):
        a = self.a
        self.qget(i, "s6")
        if i < 6: sr = S_WD
        else:
            sr = S_U1
            a("s_cmp_lt_u32 s6, 28")
            a(f"s_cselect_b32 s{S_U1}, s{S_WD}, s{S_WO}"); a(f"s_cselect_b32 s{S_U1+1}, s{S_WD+1}, s{S_WO+1}")
            a(f"s_cselect_b32 s{S_U1+2}, s{S_WD+2}, s{S_WO+2}")
            a("s_cselect_b32 s7, 0, 28"); a("s_sub_u32 s6, s6, s7")
        a("s_lshl_b32 s6, s6, 16"); a(f"s_lshl_b32 s7, {sC2}, 7"); a("s_add_u32 s74, s6, s7"); yield
        base = W2SLOT[i % 4]
        for g in range(2):
            for k in range(4):
                if i < 3: yield from self.vmslot()
                if k == 0 or self.m0_owner != ("w2", i, g):
                    a(f"s_add_u32 m0, {sW8K}, {base + g*4096}")
                    if k == 0 and g == 1: a("s_add_u32 s74, s74, 32768")
                    self.m0_owner = ("w2", i, g)
                self.w2tok[i] = a.vm(f"buffer_load_dwordx4 v{vW2[k]}, {srd(sr)}, s74 offen{' offset:%d' % (1024*k) if k else ''} lds"); yield
    def t_w2reg(self, i, areg):
        a = self.a
        self.qget(i, "s6")
        if i < 6: sr = S_WD
        else:
            sr = S_U1
            a("s_cmp_lt_u32 s6, 28")
            a(f"s_cselect_b32 s{S_U1}, s{S_WD}, s{S_WO}"); a(f"s_cselect_b32 s{S_U1+1}, s{S_WD+1}, s{S_WO+1}")
            a(f"s_cselect_b32 s{S_U1+2}, s{S_WD+2}, s{S_WO+2}")
            a("s_cselect_b32 s7, 0, 28"); a("s_sub_u32 s6, s6, s7")
        a("s_lshl_b32 s6, s6, 16"); a(f"s_lshl_b32 s7, {sC2}, 7"); a("s_add_u32 s75, s6, s7"); yield
        for g in range(2):
            for k in range(4):
                yield from self.vmslot()
                if k == 0 and g == 1: a("s_add_u32 s75, s75, 32768")
                r = areg + (g*4 + k)*4
                self.w2rtok[i] = a.vm(f"buffer_load_dwordx4 a[{r}:{r+3}], v{vW2[k]}, {srd(sr)}, s75 offen{' offset:%d' % (1024*k) if k else ''}"); yield
    def w2put(self, i, areg):
        a = self.a
        a.wait(vm=self.w2rtok[i])
        a(f"s_add_u32 s6, {sW8K}, {W2SLOT[i % 4]}"); a(f"v_add_u32 v40, s6, {vL16}")
        for k in range(8):
            r = areg + k*4
            self.w2ptok[i] = a.lg(f"ds_write_b128 v40, a[{r}:{r+3}] offset:{k*1024}")

    def flag_issue(self, phase):
        a = self.a
        if phase == 0:
            a(f"v_bfe_u32 {vPOLL}, {vLANE}, 1, 3"); a(f"v_lshlrev_b32 {vPOLL}, 2, {vPOLL}")
            a(f"v_and_b32 v{FLD}, 1, {vLANE}"); a(f"v_add_u32 {vPOLL}, {vPOLL}, v{FLD}"); a(f"v_add_u32 {vPOLL}, 2, {vPOLL}")
            a(f"v_lshlrev_b32 {vPOLL}, 3, {vPOLL}")
        else:
            a(f"v_and_b32 {vPOLL}, 31, {vLANE}"); a(f"v_lshlrev_b32 {vPOLL}, 3, {vPOLL}")
        a(f"s_mul_i32 s72, {sT}, 768"); a(f"s_add_u32 s72, s72, {WS_HF + phase*256}")
        self.fl_txt = f"buffer_load_dwordx2 v[{FLD}:{FLD+1}], {vPOLL}, {srd(S_WS)}, s72 offen sc1"
        self.fltok = a.vm(self.fl_txt)
    def flag_check(self, phase):
        self.log[(self.par, "chk", phase)] = self.f
        self.poll_check(self.fltok, self.tagcmp(FLD), self.fl_txt, f"fl{phase}")
        if not self.o.get("touchh", 0): return
        a = self.a
        n = (8, 16, 12)[phase]
        a(f"s_and_b32 s6, {sJ}, 3"); a(f"s_lshl_b32 s7, {sW}, 2"); a("s_add_u32 s6, s6, s7")
        if phase == 0: a("s_lshl_b32 s7, s6, 1"); a("s_add_u32 s7, s7, 8")
        elif phase == 1:
            a("s_lshl_b32 s7, s6, 1"); a("s_sub_u32 s7, s7, 7"); a("s_cmp_lt_u32 s6, 8"); a("s_cselect_b32 s7, s6, s7")
        else: a("s_add_u32 s7, s6, 24")
        a(f"s_mul_i32 s64, {sR}, 36"); a("s_add_u32 s7, s7, s64"); a("s_lshl_b32 s7, s7, 14")
        a(f"s_lshl_b32 s64, {sHALF}, 13"); a("s_add_u32 s7, s7, s64"); a(f"s_add_u32 s7, s7, {WS_H}")
        a(f"v_lshlrev_b32 v40, 7, {vLANE}"); a(f"v_mov_b32 v41, {OOB}")
        a(f"s_cmp_lt_u32 s6, {n}"); a("s_cselect_b64 vcc, -1, 0"); a("v_cndmask_b32 v40, v41, v40, vcc")
        a.vm(f"buffer_load_dword {vDUM}, v40, {srd(S_WS)}, s7 offen sc1")

    def vmslot(self):
        while self.a.vm_issued - self.int_vm0 >= self.int_cap: yield self.int_end
    def h_interval(self, f0, n, extras, budget=None, cap=None):
        a = self.a
        nfix = sum(len(extras.get(f0 + g, [])) for g in range(n))
        self.int_vm0 = a.vm_issued + nfix*0; self.int_end = f0 + n
        self.int_cap = (cap or self.o.get("vmcap", 8))
        self.int_vm0 = a.vm_issued
        for g in range(n):
            self.f = f0 + g
            start = len(a.lines)
            for fn in extras.get(f0 + g, []): fn()
            self.pump(self.f, start, budget or self.o["hbudget"])

    def helper(self, par):
        a = self.a; o = self.o
        self.par = par; self.sfx = f"_{par}"
        who = f"h{par}"
        self.tasks = []; self.w2tok = {}; self.w2rtok = {}; self.w2ptok = {}
        REGCH = {3: 0, 4: 32, 5: 64, 6: 96} if o.get("w2reg", 1) else {}
        self.kvz_done = False
        ex = {}
        def at(f, fn): ex.setdefault(f, []).append(fn)
        def spread(maker, positions):
            hd = {}
            def get(i):
                if "p" not in hd: hd["p"] = maker()
                hd["p"][i]()
            for i, pos in enumerate(positions): at(pos, (lambda i=i: get(i)))
        spread(lambda: self.dma_x_parts(2), (0, 0, 1, 1)); spread(lambda: self.dma_w_parts(2), (2, 2, 3, 3))
        spread(lambda: self.dma_w_parts(3), (10, 10, 11, 11))
        spread(lambda: self.dma_w_parts(4), (14, 14, 15, 15))
        for G in range(1, 16):
            spread(lambda G=G: self.dma_w_parts(G+4), [16*G + 10 + p for p in (0, 0, 1, 1)])
        for G in range(0, 5):
            spread(lambda G=G: self.dma_x_parts(G+3), [16*G + 10 + p for p in (2, 2, 3, 3)])
        self.spawn(self.t_early(), 0, "early")
        self.spawn(self.t_cs("A"), o.get("cs_f", 26), "csA")
        self.log["st_pub" + self.sfx] = 0
        self.spawn(self.t_csum("A", o.get("csumA_chk", 104)), o.get("csumA_f", 74), "csumA")
        self.spawn(self.t_stt(o.get("st_chk", 104)), o.get("stt_f", 80), "stt")
        self.spawn(self.t_slabB(), o.get("slabB_f", 58), "slabB")
        if o.get("touch2", 0): self.spawn(self.t_touch2(), o.get("touch2_f", 81), "touch2", front=True)
        self.spawn(self.t_cs("B"), o.get("csB_f", 106), "csB")
        self.spawn(self.t_csum("B", o.get("csumB_chk", 214)), o.get("csumB_f", 186), "csumB")
        if o.get("hprio", 0): a(f"s_setprio {o['hprio']}")
        a.wait(vm=self.wtok[0])
        self.barrier(who, "P0")
        self.h_interval(0, 10, ex)
        for G in range(20):
            self.f = 16*G + 9
            if G + 1 < 20: a.wait(vm=self.wtok[G+1])
            if G + 1 < 8: a.wait(vm=self.xtok[G+1])
            if G == 7: self.finish("csumA"); self.finish("stt"); a.wait_all(vm=False)
            if G == 15: self.finish("csumB"); a.wait_all(vm=False)
            if G == 17: self.flag_check(0)
            if G == 19:
                if par == 1: self.finish("qprep"); a.wait_all(vm=False)
            self.barrier(who, f"B{G}")
            self.f = 16*G + 10
            if G == o.get("pub0_G", 9) and par == 1: self.publish(0)
            if G == 8 and par == 0:
                self.finish("csB")
                self.spawn(self.t_kv_tail(), self.f, "kvtail", front=True)
            if G == o.get("pub1_G", 17): self.publish(1)
            if G == 11:
                if par == 0: assert self.kv_reads_f < self.f
                self.spawn(self.s2_w_dma(0), self.f, "w2_0")
            if G == 11 and par == 0: assert self.kv_reads_f < 180, "kv tail fragments overlap csumB registers"
            if G == 16 and par == 1: assert not self.active("csumB")
            if REGCH:
                if G == 7:
                    def r34():
                        for i_ in ((3, 4, 5, 6) if o.get("w2all", 0) else (3, 4)): yield from self.t_w2reg(i_, REGCH[i_])
                    self.spawn(r34(), self.f, "w2r3")
                if G == 15 and not o.get("w2all", 0):
                    self.finish("w2r3")
                    def r56():
                        yield from self.t_w2reg(5, 64); yield from self.t_w2reg(6, 96)
                    self.spawn(r56(), self.f, "w2r5")
            if G == 15: self.flag_issue(0)
            if G == 17:
                self.spawn(self.s2_w_dma(1), self.f, "w2_1")
            if G == o.get("qprep_G", 13) and par == 1: self.spawn(self.t_q_prep(self.f + o.get("kvchk_gap", 17)), self.f, "qprep")
            if G == 19: self.spawn(self.s2_w_dma(2), self.f, "w2_2")
            if G < 19:
                cap = (40 if (G == 7 and o.get("w2all", 0)) else 24) if G in (7, 15) else (10 if G >= 16 else (12 if G in (3, 4) else None))
                self.h_interval(16*G + 10, 16, ex, cap=cap, budget=(6 if G in (7, 15) else (4 if G >= 16 else None)))
        self.h_interval(314, 6, ex)
        self.barrier(who, "H0")
        if par == 0: assert not self.active("kvtail"), "kv tail still running at H0"
        if 3 in REGCH:
            for n in ("w2r3", "w2r5"): self.finish(n)
            self.w2put(3, REGCH[3])
        else: self.spawn(self.s2_w_dma(3), self.f, "w2_3")
        self.flag_issue(1)
        base = 336
        for i in range(9):
            self.h_interval(base + 16*i - 16, 16, ex, budget=8)
            self.f = base + 16*i
            if i in REGCH: a.wait(lg=self.w2ptok[i])
            else:
                self.finish(f"w2_{i}")
                a.wait(vm=self.w2tok[i])
            if i + 2 == 2: self.flag_check(1)
            if i == o.get("fl2_i", 5): self.flag_check(2)
            self.barrier(who, f"S{i}")
            self.f = base + 16*i + 1
            if i == o.get("pub2_i", 1): self.publish(2)
            if i == o.get("fl2_i", 5) - 1: self.flag_issue(2)
            if i >= 1 and i + 3 < 9:
                if i + 3 in REGCH: self.w2put(i + 3, REGCH[i + 3])
                else: self.spawn(self.s2_w_dma(i + 3), self.f, f"w2_{i+3}")
        a("s_cmp_eq_u32 s2, 0"); a("s_cselect_b64 vcc, -1, 0"); a(f"s_cmp_eq_u32 {sW}, 0"); a("s_cselect_b64 vcc, vcc, 0")
        a(f"v_mov_b32 v40, {OOB}"); a("s_nop 0"); a(f"v_cndmask_b32 v40, v40, {hL0}, vcc")
        a.vm(f"buffer_store_dwordx2 v[{TAG}:{TAG+1}], v40, {srd(S_WS)}, 0 offen sc1")
        self.prof_out(4)
        a("s_endpgm")

    def c_lane_consts(self):
        a = self.a
        a(f"v_and_b32 v56, 31, {vLANE}"); a(f"v_lshrrev_b32 v57, 5, {vLANE}"); a(f"v_bfe_u32 v58, {vLANE}, 2, 2")
        a(f"v_and_b32 v59, 3, {vLANE}"); a(f"v_bfe_u32 v60, {vLANE}, 4, 1")
        a("v_lshlrev_b32 v61, 5, v60"); a("v_lshl_add_u32 v61, v59, 3, v61")
        a("v_lshrrev_b32 v62, 1, v58"); a("v_lshlrev_b32 v62, 6, v62")
        a("v_lshl_add_u32 v63, v57, 3, v58")
        a("v_lshlrev_b32 v64, 7, v63")
        a("v_xor_b32 v65, v61, v62"); a(f"v_add_u32 {cWA[0][0]}, v64, v65")
        a("v_or_b32 v65, 64, v61"); a("v_xor_b32 v65, v65, v62"); a(f"v_add_u32 {cWA[0][1]}, v64, v65")
        a(f"v_add_u32 {cWA[1][0]}, 0x10000, {cWA[0][0]}"); a(f"v_add_u32 {cWA[1][1]}, 0x10000, {cWA[0][1]}")
        a("v_lshlrev_b32 v64, 6, v63"); a(f"v_add_u32 {cSA[0]}, v64, v61"); a(f"v_add_u32 {cSA[1]}, 0x10000, {cSA[0]}")
        a("v_bfe_u32 v64, v56, 1, 3"); a("v_xor_b32 v64, v64, v57")
        a("v_lshlrev_b32 v65, 7, v56"); a(f"s_add_u32 s7, {sWLDS}, {L_X}"); a("v_add_u32 v65, s7, v65")
        for s in range(4):
            a(f"v_xor_b32 v66, {2*s}, v64"); a(f"v_lshl_add_u32 {cXA[s]}, v66, 4, v65")
        a(f"v_lshlrev_b32 {cG16}, 4, v57")
        a(f"v_lshlrev_b32 {cCSA}, 2, v56"); a(f"v_add_u32 {cCSA}, {L_CST}, {cCSA}")
        a(f"v_mov_b32 v{BAUG+2}, 0"); a(f"v_mov_b32 v{BAUG+3}, 0")
        a("v_lshrrev_b32 v64, 3, v0"); a("v_and_b32 v65, 7, v0")
        a(f"v_lshlrev_b32 {cOUT}, 10, v64"); a(f"v_lshl_add_u32 {cOUT}, v65, 4, {cOUT}")

    def c_setup(self):
        a = self.a
        a("s_waitcnt lgkmcnt(0)")
        a.protect = set()
        a("s_mov_b32 s71, 0x3fb8aa3b"); a("s_mov_b32 s72, 0x358637bd")
        a(f"s_mul_i32 s76, {sR2}, 36"); a(f"s_lshl_b32 s77, {sHALF}, 13"); a(f"s_add_u32 s77, s77, {WS_H}")
        for _ in self.t_s2_q(): pass
        self.c_lane_consts()
        a(f"s_lshl_b32 s6, {sR}, 7"); a(f"s_lshl_b32 s7, {sCG}, 3"); a("s_add_u32 s6, s6, s7")
        a(f"s_lshl_b32 s7, {sW}, 1"); a("s_add_u32 s75, s6, s7"); a("s_lshl_b32 s6, s75, 10")
        a.vm(f"buffer_load_dwordx4 v[16:19], {vL16}, {srd(S_X)}, s6 offen")
        a.vm(f"buffer_load_dwordx4 v[20:23], {vL16}, {srd(S_X)}, s6 offen offset:1024")
        a(f"s_load_dwordx2 s[60:61], s[{S_WS}:{S_WS+1}], 0")
        a("s_waitcnt vmcnt(0) lgkmcnt(0)")
        a("s_add_u32 s60, s60, 1"); a("s_addc_u32 s61, s61, 0")
        self.c_stats()

    def finfo(self, f):
        if f < NF1:
            G, m = divmod(f, 16)
            if G < 16:
                c = G % 8; s = m // 4; tile = m % 4; ks = c*4 + s
            else:
                s = m // 2; tile = m % 2; ks = (G-16)*8 + s
            return dict(phi=f, acc=ACC + 16*tile, b=ks*4, first=(ks == 0))
        i, m = divmod(f - NF1, 16)
        s, r = divmod(m, 4); cb, rf = divmod(r, 2)
        return dict(phi=NF1 + 8*i + 2*s + cb, acc=ACC + (cb*2+rf)*16, b=(i % 3)*32 + rf*16 + s*4, first=(i == 0 and s == 0), chunk=i, m=m)
    def phi_first_use(self, phi): return phi if phi < NF1 else NF1 + 2*(phi - NF1)
    def frag_read(self, phi):
        a = self.a
        r = RING + 4*(phi % NFR)
        if phi < NF1:
            G, m = divmod(phi, 16)
            slot = G % NW; rng = slot // 4; sb = (slot % 4)*16384
            if G < 16:
                s = m // 4; cbk = m % 4; panel, cb = divmod(cbk, 2)
                base = cWA[rng][cb]; imm = [sb + panel*8192 + (16*s + 4*q)*128 for q in range(2)]
            else:
                s = m // 2; b = m % 2
                base = cSA[rng]; imm = [sb + b*8192 + (16*s + 4*q)*64 for q in range(2)]
        else:
            i, r2 = divmod(phi - NF1, 8); s, cb = divmod(r2, 2)
            so = W2SLOT[i % 4]
            base = cB2[cb] if so < 0x10000 else cB2H[cb]
            imm = [(so % 0x10000) + (16*s + 8*q)*128 for q in range(2)]
        a.lg(f"ds_read_b64_tr_b16 v[{r}:{r+1}], {base} offset:{imm[0]}")
        self.ftok[phi] = a.lg(f"ds_read_b64_tr_b16 v[{r+2}:{r+3}], {base} offset:{imm[1]}")
    def x_read(self, c, s):
        r = (c*4 + s)*4
        self.xrtok[c] = self.a.lg(f"ds_read_b128 a[{r}:{r+3}], {cXA[s]} offset:{(c % 3)*16384}")

    def c_run(self, f0, f1, ex, fend):
        a = self.a
        for f in range(f0, f1):
            inf = self.finfo(f)
            self.stamp(f"f{f}")
            ph = inf["phi"]
            nxt = ph + 1
            a.wait(lg=self.ftok[nxt] if (nxt in self.ftok and f % 2 == 0 and f < NF1) else self.ftok[ph])
            if f < 128 and f % 16 == 0: a.wait(lg=self.xrtok[f // 16])
            if f >= NF1 and inf["m"] == 0:
                self.stamp(f"hw{inf['chunk']}_in"); a.wait(vm=self.htok[inf["chunk"]]); self.stamp(f"hw{inf['chunk']}_out")
            r = RING + 4*(ph % NFR)
            acc = f"v[{inf['acc']}:{inf['acc']+15}]"
            a(f"v_mfma_f32_32x32x16_bf16 {acc}, v[{r}:{r+3}], a[{inf['b']}:{inf['b']+3}], {'0' if inf['first'] else acc}")
            for fn in ex.get(f, []): fn()
            fu = f + LOOK
            if fu < fend:
                p = self.finfo(fu)["phi"]
                if self.phi_first_use(p) == fu: self.frag_read(p)
    def c_prime(self, f0):
        for f in range(f0, f0 + LOOK):
            p = self.finfo(f)["phi"]
            if self.phi_first_use(p) == f: self.frag_read(p)

    def aug(self, p, ntile):
        a = self.a
        toks = []
        for t in range(ntile):
            g = RING + 4*t; off = (p*128 + 32*t)*4
            a.lg(f"ds_read_b32 v{g}, {cCSA} offset:{off}")
            toks.append(a.lg(f"ds_read_b32 v{g+1}, {cCSA} offset:{off}"))
            a(f"v_mov_b32 v{g+2}, 0"); a(f"v_mov_b32 v{g+3}, 0")
        for t in range(ntile):
            g = RING + 4*t; A = ACC + 16*t
            a.wait(lg=toks[t])
            a(f"v_mfma_f32_32x32x16_bf16 v[{A}:{A+15}], v[{g}:{g+3}], v[{BAUG}:{BAUG+3}], v[{A}:{A+15}]")
    def hbase_q(self, q):
        a = self.a
        a(f"s_mul_i32 s7, {sR}, 36"); a(f"s_add_u32 s7, s7, {q}")
        a("s_lshl_b32 s7, s7, 2"); a(f"s_add_u32 s7, s7, {sW}")
        a("s_lshl_b32 s7, s7, 12"); a(f"s_add_u32 {sHB}, s7, {WS_H}")
    def ffn_block(self, tg, tu, dst):
        a = self.a
        for k in range(16): a(f"v_max_f32 v{tg+k}, 0, v{tg+k}")
        for k in range(0, 16, 2): a(f"v_pk_mul_f32 v[{tg+k}:{tg+k+1}], v[{tg+k}:{tg+k+1}], v[{tu+k}:{tu+k+1}]")
        for k in range(8): a(f"v_cvt_pk_bf16_f32 v{dst+k}, v{tg+2*k}, v{tg+2*k+1}")
    def epi_ffn(self, p):
        a = self.a
        self.aug(p, 4)
        a(f"s_lshl_b32 s6, {sM}, 1"); a(f"s_add_u32 s6, s6, {8 if p == 0 else 9}")
        if p == 1: a(f"s_cmp_eq_u32 {sPAR}, 0"); a(f"s_cselect_b32 s6, {sM}, s6")
        self.hbase_q("s6")
        for cb in range(2):
            d = 32 + 8*cb
            self.ffn_block(ACC + 16*cb, ACC + 32 + 16*cb, d)
            for h in range(2):
                a.vm(f"buffer_store_dwordx4 v[{d+4*h}:{d+4*h+3}], {vL16}, {srd(S_WS)}, {sHB} offen offset:{(2*cb+h)*1024} sc1")
    def epi_side(self):
        a = self.a
        self.aug(2, 2)
        a(f"s_lshr_b32 s6, {sM}, 1"); a("s_add_u32 s6, s6, 24"); self.hbase_q("s6")
        a(f"s_and_b32 s6, {sM}, 1"); a("s_lshl_b32 s6, s6, 11"); a(f"s_add_u32 {sHB}, {sHB}, s6")
        self.ffn_block(ACC, ACC + 16, 32)
        for h in range(2):
            a.vm(f"buffer_store_dwordx4 v[{32+4*h}:{32+4*h+3}], {vL16}, {srd(S_WS)}, {sHB} offen offset:{h*1024} sc1")
    def phi_tile(self, T):
        a = self.a
        for h in range(2):
            B = T + 8*h
            for k in range(8): a(f"v_mul_f32 v{TMP+k}, {cRL}, v{B+k}")
            for k in range(8): a(f"v_exp_f32 v{TMP+k}, v{TMP+k} clamp")
            for k in range(8): a(f"v_fma_f32 v{B+k}, v{B+k}, {cRSTD}, s72")
            for k in range(8): a(f"v_max_f32 v{B+k}, s72, v{B+k}")
            for k in range(0, 8, 2): a(f"v_pk_add_f32 v[{B+k}:{B+k+1}], v[{B+k}:{B+k+1}], v[{TMP+k}:{TMP+k+1}]")
    def epi_kv(self):
        a = self.a
        self.aug(0, 4)
        a(f"v_and_b32 v32, 31, {vLANE}"); a(f"s_lshl_b32 s6, {sW}, 5"); a("v_add_u32 v32, s6, v32")
        a(f"s_movk_i32 s7, {KVP}"); a("v_mul_lo_u32 v32, v32, s7")
        a(f"v_lshrrev_b32 v33, 1, {cG16}"); a("v_add_u32 v32, v32, v33"); a(f"v_add_u32 v32, {L_KVS}, v32")
        a(f"v_mov_b32 v34, {cRSTD}"); a(f"v_mov_b32 v35, {cRSTD}")
        for t in range(4):
            T = ACC + 16*t
            if t < 2: self.phi_tile(T)
            else:
                for k in range(0, 16, 2): a(f"v_pk_mul_f32 v[{T+k}:{T+k+1}], v[{T+k}:{T+k+1}], v[34:35]")
            for g4 in range(4):
                d = 36 + 2*g4
                a(f"v_cvt_pk_bf16_f32 v{d}, v{T+4*g4}, v{T+4*g4+1}"); a(f"v_cvt_pk_bf16_f32 v{d+1}, v{T+4*g4+2}, v{T+4*g4+3}")
            for g4 in range(4):
                d = 36 + 2*g4
                off = (t // 2)*128*KVP + (32*(t % 2) + 8*g4)*2
                a.lg(f"ds_write_b64 v32, v[{d}:{d+1}] offset:{off}")
    def epi_q(self):
        a = self.a
        self.aug(2, 2)
        a(f"s_add_u32 s6, {sM}, 28"); self.hbase_q("s6")
        toks = []
        a(f"v_add_u32 v44, {L_KVZ}, {vL16}")
        for h in range(4): toks.append(a.lg(f"ds_read_b128 v[{16+4*h}:{16+4*h+3}], v44 offset:{h*1024}"))
        for t in range(2):
            T = ACC + 16*t
            self.phi_tile(T)
            for k in range(8): a(f"v_cvt_pk_bf16_f32 v{32+8*t+k}, v{T+2*k}, v{T+2*k+1}") if t == 0 else a(f"v_cvt_pk_bf16_f32 v{TMP+k}, v{T+2*k}, v{T+2*k+1}")
        PQ = [32, 36, TMP, TMP + 4]
        a(f"v_mul_f32 v45, {cRSTD}, {cRSTD}")
        a.wait(lg=toks[-1])
        for h in range(4):
            d = ACC + 16*h
            a(f"v_mfma_f32_32x32x16_bf16 v[{d}:{d+15}], v[{16+4*h}:{16+4*h+3}], v[{PQ[h]}:{PQ[h]+3}], 0")
        for h in range(4):
            d = ACC + 16*h
            a(f"v_add_f32 v{d+8}, s72, v{d+8}"); a(f"v_mul_f32 v{d+8}, v{d+8}, v45"); a(f"v_rcp_f32 v{d+8}, v{d+8}")
            a(f"v_mov_b32 v{d+9}, v{d+8}")
            for k in range(0, 8, 2): a(f"v_pk_mul_f32 v[{d+k}:{d+k+1}], v[{d+k}:{d+k+1}], v[{d+8}:{d+9}]")
            for k in range(4): a(f"v_cvt_pk_bf16_f32 v{16+4*h+k}, v{d+2*k}, v{d+2*k+1}")
            a.vm(f"buffer_store_dwordx4 v[{16+4*h}:{16+4*h+3}], {vL16}, {srd(S_WS)}, {sHB} offen offset:{h*1024} sc1")
    def branch2(self, even, odd):
        a = self.a
        lo = a.newlabel("Lo"); lj = a.newlabel("Lj")
        a(f"s_cmp_eq_u32 {sPAR}, 0"); a(f"s_cbranch_scc0 {lo}")
        st = (a.vm_issued, a.lg_issued, a.vm_floor, a.lg_floor)
        even(); sa = (a.vm_issued, a.lg_issued)
        a(f"s_branch {lj}"); a.label(lo)
        a.vm_issued, a.lg_issued, a.vm_floor, a.lg_floor = st
        odd(); sb = (a.vm_issued, a.lg_issued)
        a.label(lj)
        a.vm_issued = min(sa[0], sb[0]); a.lg_issued = min(sa[1], sb[1])
        a.vm_floor = min(a.vm_floor, st[2]) if False else st[2]; a.lg_floor = st[3]
    def h_load(self, i):
        a = self.a
        parts = []
        def head():
            self.qget(i, "s6"); a("s_add_u32 s6, s6, s76"); a("s_lshl_b32 s6, s6, 14"); a("s_add_u32 s78, s6, s77"); a("s_add_u32 s79, s78, 4096")
        for rf in range(2):
            for s in range(4):
                def p(rf=rf, s=s):
                    if rf == 0 and s == 0: head()
                    r = (i % 3)*32 + rf*16 + s*4
                    self.htok[i] = a.vm(f"buffer_load_dwordx4 a[{r}:{r+3}], {vL16}, {srd(S_WS)}, {'s78' if rf == 0 else 's79'} offen offset:{s*1024} sc1")
                parts.append(p)
        return parts

    def compute(self):
        a = self.a; o = self.o
        who = "c"
        self.c_setup()
        self.ftok = {}; self.xrtok = {}; self.htok = {}
        ex = {}
        def at(f, fn): ex.setdefault(f, []).append(fn)
        for G in range(20):
            at(16*G + 9, lambda G=G: self.c_bar(G))
            if G < 7:
                for s in range(4): at(16*G + 11 + s, lambda G=G, s=s: self.x_read(G+1, s))
        for i, f0 in ((0, 290), (1, 303)):
            hd = {}
            def get(k, i=i, hd=hd):
                if "p" not in hd: hd["p"] = self.h_load(i)
                hd["p"][k]()
            for k in range(8): at(f0 + k + (k // 4), lambda k=k, get=get: get(k))
        self.barrier(who, "P0")
        self.stamp("go"); self.stamp("rtgo")
        for s in range(4): self.x_read(0, s)
        self.c_prime(0)
        self.c_run(0, 128, ex, 128)
        self.stamp("e1")
        if o.get("touchw2", 1):
            self.c_touch_w2()
        a(f"v_and_b32 v44, 31, {vLANE}"); a("v_lshlrev_b32 v44, 3, v44"); a(f"s_lshl_b32 s6, {sW}, 8"); a(f"s_add_u32 s6, s6, {L_STT}"); a("v_add_u32 v44, s6, v44")
        t = a.lg("ds_read_b64 v[46:47], v44")
        a.wait(lg=t)
        a(f"v_mov_b32 {cRSTD}, v47"); a(f"v_mul_f32 {cRL}, s71, v47")
        a(f"v_cvt_pk_bf16_f32 v{BAUG}, v46, v46"); a(f"v_lshlrev_b32 v45, 16, v{BAUG}"); a("v_sub_f32 v45, v46, v45")
        a(f"v_cvt_pk_bf16_f32 v{BAUG+1}, v45, v45")
        a(f"v_cmp_gt_u32 vcc, 32, {vLANE}"); a("v_mov_b32 v45, 0"); a("s_nop 0")
        a(f"v_cndmask_b32 v{BAUG}, v45, v{BAUG}, vcc"); a(f"v_cndmask_b32 v{BAUG+1}, v45, v{BAUG+1}, vcc")
        self.branch2(self.epi_kv, lambda: self.epi_ffn(0))
        a.wait_all(vm=False)
        self.stamp("e1end")
        self.c_prime(128)
        self.c_run(128, 256, ex, 256)
        self.stamp("e2")
        self.epi_ffn(1)
        self.stamp("e2end")
        self.c_prime(256)
        self.c_run(256, 320, ex, 320)
        self.barrier(who, "H0")
        a(f"v_lshrrev_b32 v56, 5, {vLANE}"); a(f"v_bfe_u32 v57, {vLANE}, 2, 2"); a(f"v_and_b32 v58, 3, {vLANE}"); a(f"v_bfe_u32 v59, {vLANE}, 4, 1")
        a("v_lshlrev_b32 v60, 5, v59"); a("v_lshl_add_u32 v60, v58, 3, v60")
        a("v_lshrrev_b32 v58, 1, v57"); a("v_lshlrev_b32 v58, 6, v58")
        a("v_lshl_add_u32 v56, v56, 2, v57"); a("v_lshlrev_b32 v56, 7, v56"); a(f"v_add_u32 v56, {sW8K}, v56")
        a("v_xor_b32 v57, v60, v58"); a(f"v_add_u32 {cB2[0]}, v56, v57")
        a("v_or_b32 v60, 64, v60"); a("v_xor_b32 v57, v60, v58"); a(f"v_add_u32 {cB2[1]}, v56, v57")
        a(f"v_add_u32 {cB2H[0]}, 0x10000, {cB2[0]}"); a(f"v_add_u32 {cB2H[1]}, 0x10000, {cB2[1]}")
        self.stamp("e3")
        self.branch2(self.epi_side, self.epi_q)
        self.stamp("e3end")
        self.e3_mark = a.vm_issued
        ex2 = {}
        def at2(f, fn): ex2.setdefault(f, []).append(fn)
        for i in range(9):
            f0 = NF1 + 16*i
            if i > 0: at2(f0 - LOOK - 1, lambda i=i: self.c_sbar(i))
            late = o.get("fl2_i", 5) == 5
            todo = []
            if i + 2 < 9 and not (late and i + 2 == 6): todo.append(i + 2)
            if late and i == 5: todo.insert(0, 6)
            for n, j in enumerate(todo):
                hd = {}
                def get(k, j=j, hd=hd):
                    if "p" not in hd: hd["p"] = self.h_load(j)
                    hd["p"][k]()
                for k in range(8): at2(f0 + (1 + k if len(todo) == 1 else (k + 8*n) * 15 // 16), lambda k=k, get=get: get(k))
        def resid():
            a(f"s_lshl_b32 s64, {sT}, 16"); a(f"s_lshl_b32 s7, {sC2}, 7"); a("s_add_u32 s64, s64, s7"); a("s_add_u32 s65, s64, 32768")
            a.vm(f"buffer_load_dwordx4 a[96:99], {cOUT}, {srd(S_X)}, s64 offen")
            a.vm(f"buffer_load_dwordx4 a[100:103], {cOUT}, {srd(S_X)}, s65 offen")
            a("v_lshrrev_b32 v56, 3, v0"); a("v_lshlrev_b32 v56, 4, v56")
            a(f"s_lshl_b32 s6, {sT}, 10"); a(f"s_add_u32 s6, s6, {WS_STAT + 4}")
            a.vm(f"buffer_load_dword v50, v56, {srd(S_WS)}, s6 offen sc1")
            self.xrtk = a.vm(f"buffer_load_dword v51, v56, {srd(S_WS)}, s6 offen offset:512 sc1")
        at2(NF1 + 16*7 + 2, resid)
        self.c_sbar(0)
        self.c_prime(NF1)
        self.c_run(NF1, NF, ex2, NF)
        self.final()

    def c_bar(self, G):
        a = self.a; o = self.o
        if G == o.get("pub0_G", 9) or G == o.get("pub1_G", 17): a.wait_all(lg=False)
        if G == 8: a.wait_all(vm=False)
        self.barrier("c", f"B{G}")
    def c_kv_read(self):
        a = self.a
        a(f"s_mul_i32 s6, {sW}, 1280"); a(f"s_add_u32 s6, s6, {L_KVO}"); a(f"v_lshlrev_b32 v{TMP}, 2, {vLANE}"); a(f"v_add_u32 v{TMP}, s6, v{TMP}")
        for v in range(5): self.kvrt = a.lg(f"ds_read_b32 v{TMP+1+v}, v{TMP} offset:{v*256}")
    def c_kv_atomics(self):
        a = self.a
        a(f"v_lshrrev_b32 v{TMP}, 4, {vLANE}"); a(f"v_lshlrev_b32 v{TMP}, 8, v{TMP}")
        a(f"v_and_b32 v{TMP+6}, 15, {vLANE}"); a(f"v_lshl_add_u32 v{TMP}, v{TMP+6}, 2, v{TMP}")
        a(f"v_lshlrev_b32 v{TMP+6}, 2, v{TMP+6}")
        a(f"v_cmp_gt_u32 vcc, 16, {vLANE}"); a(f"v_mov_b32 v{TMP+7}, {OOB}")
        a(f"s_lshl_b32 s64, {sCG}, 13"); a(f"s_mul_i32 s65, {sW}, {KVH}"); a("s_add_u32 s64, s64, s65"); a(f"s_add_u32 s64, s64, {WS_ACC + ACC_KV}")
        a(f"v_cndmask_b32 v{TMP+6}, v{TMP+7}, v{TMP+6}, vcc")
        a(f"s_cmp_eq_u32 {sPAR}, 0"); a("s_cselect_b64 vcc, -1, 0")
        a(f"v_cndmask_b32 v{TMP}, v{TMP+7}, v{TMP}, vcc"); a(f"v_cndmask_b32 v{TMP+6}, v{TMP+7}, v{TMP+6}, vcc")
        a.wait(lg=self.kvrt)
        for v in range(4): a.vm(f"buffer_atomic_add_f32 v{TMP+1+v}, v{TMP}, {srd(S_WS)}, s64 offen offset:{v*64} sc1")
        a.vm(f"buffer_atomic_add_f32 v{TMP+5}, v{TMP+6}, {srd(S_WS)}, s64 offen offset:1024 sc1")

    def c_touch_w2(self):
        a = self.a
        m42 = self.o.get("map42", 0)
        per, sh = (576, 3) if m42 else (288, 2)
        pw = per // 4
        self.touch_n = (pw + 63) // 64
        a(f"s_lshr_b32 s6, {sJ}, {sh}"); a(f"s_mul_i32 s6, s6, {per}"); a(f"s_mul_i32 s7, {sW}, {pw}"); a("s_add_u32 s6, s6, s7")
        a(f"v_add_u32 v{TMP}, s6, {vLANE}"); a(f"v_lshlrev_b32 v{TMP}, 10, v{TMP}")
        a(f"s_lshl_b32 s65, {sC2}, 7")
        a(f"v_mov_b32 v{TMP+2}, {OOB}")
        for k in range(self.touch_n):
            n = min(64, pw - 64*k)
            a(f"v_add_u32 v{TMP+1}, {64*1024*k}, v{TMP}")
            if n < 64:
                a(f"v_cmp_gt_u32 vcc, {n}, {vLANE}"); a("s_nop 1"); a(f"v_cndmask_b32 v{TMP+1}, v{TMP+2}, v{TMP+1}, vcc")
            a.vm(f"buffer_load_dword v50, v{TMP+1}, {srd(S_WD)}, s65 offen")
            a(f"v_subrev_u32 v{TMP+4}, {1792*1024}, v{TMP+1}")
            a.vm(f"buffer_load_dword v50, v{TMP+4}, {srd(S_WO)}, s65 offen")

    def c_sbar(self, i):
        a = self.a; o = self.o
        if i == o.get("pub2_i", 1):
            a(f"s_waitcnt vmcnt({min(63, self.younger_than_e3())})")
        self.barrier("c", f"S{i}")
    def younger_than_e3(self):
        return self.a.vm_issued - self.e3_mark

    def final(self):
        a = self.a
        self.stamp("loopend")
        a(f"v_and_b32 v56, 31, {vLANE}"); a("s_movk_i32 s7, 272"); a("v_mul_lo_u32 v56, v56, s7")
        a(f"v_add_u32 v56, v56, {cG16}"); a(f"s_mul_i32 s6, {sW}, 17408"); a("v_add_u32 v56, s6, v56")
        for cb in range(2):
            for rf in range(2):
                for t in range(4):
                    r = ACC + (cb*2+rf)*16 + 4*t
                    a.lg(f"ds_write_b128 v56, v[{r}:{r+3}] offset:{rf*8704 + cb*128 + t*32}")
        a("v_lshrrev_b32 v57, 3, v0"); a("v_mul_lo_u32 v57, v57, s7")
        a("v_and_b32 v58, 7, v0"); a("v_lshl_add_u32 v57, v58, 5, v57")
        a.wait_all(vm=False)
        a("s_barrier")
        toks = {}
        for it in range(2):
            for p in range(4):
                for hh in range(2):
                    r = 64 + it*32 + p*8 + hh*4
                    toks[it] = a.lg(f"ds_read_b128 v[{r}:{r+3}], v57 offset:{p*17408 + it*8704 + hh*16}")
        a.wait(vm=self.xrtk)
        for k in range(8): a(f"v_accvgpr_read_b32 v{16+k}, a{96+k}")
        for it in range(2):
            a.wait(lg=toks[it])
            b = 64 + it*32; x = 16 + 4*it
            for k in range(0, 8, 2):
                a(f"v_pk_add_f32 v[{b+k}:{b+k+1}], v[{b+k}:{b+k+1}], v[{b+8+k}:{b+8+k+1}]")
                a(f"v_pk_add_f32 v[{b+16+k}:{b+16+k+1}], v[{b+16+k}:{b+16+k+1}], v[{b+24+k}:{b+24+k+1}]")
            a(f"v_mul_f32 v58, v{50+it}, v{50+it}")
            for k in range(0, 8, 2): a(f"v_pk_add_f32 v[{b+k}:{b+k+1}], v[{b+k}:{b+k+1}], v[{b+16+k}:{b+16+k+1}]")
            for k in range(4):
                a(f"v_lshlrev_b32 v59, 16, v{x+k}"); a(f"v_and_b32 v60, 0xffff0000, v{x+k}")
                a(f"v_fma_f32 v{b+2*k}, v{b+2*k}, v58, v59"); a(f"v_fma_f32 v{b+2*k+1}, v{b+2*k+1}, v58, v60")
            for k in range(4): a(f"v_cvt_pk_bf16_f32 v{24+4*it+k}, v{b+2*k}, v{b+2*k+1}")
            a.vm(f"buffer_store_dwordx4 v[{24+4*it}:{24+4*it+3}], {cOUT}, {srd(S_OUT)}, {'s64' if it == 0 else 's65'} offen")
        self.stamp("end"); self.stamp("rtend")
        if self.o.get("dbgtime"):
            a.wait_all()
            a("s_memtime s[88:89]"); a("s_memrealtime s[90:91]"); a("s_waitcnt lgkmcnt(0)")
            a("s_sub_u32 s88, s88, s84"); a("s_sub_u32 s90, s90, s86")
            a("s_mov_b32 s96, s92"); a("s_mov_b32 s97, s93"); a("s_mov_b32 s98, 256"); a("s_mov_b32 s99, 0x00020000")
            a("s_mov_b32 s6, 64")
            a("s_cmp_eq_u32 s2, 0"); a("s_cselect_b32 s6, 0, s6")
            a("s_cmp_eq_u32 s2, 100"); a("s_cselect_b32 s6, 16, s6")
            a("s_cmp_eq_u32 s2, 255"); a("s_cselect_b32 s6, 32, s6")
            a("s_cmp_eq_u32 s6, 64"); a(f"s_cselect_b32 s6, {OOB}, s6")
            a("v_mov_b32 v40, s88"); a("v_mov_b32 v41, s90"); a("v_mov_b32 v42, s86"); a("v_mov_b32 v43, s90")
            a("v_add_u32 v43, s86, v43")
            a(f"v_mov_b32 v44, {OOB}"); a("v_mov_b32 v45, s6"); a("v_cmp_eq_u32 vcc, 0, v0"); a("s_nop 1"); a("v_cndmask_b32 v44, v44, v45, vcc")
            a.vm("buffer_store_dwordx4 v[40:43], v44, s[96:99], 0 offen")
        self.prof_out(0)
        a("s_endpgm")

    def prof_out(self, woff):
        if self.prof is None: return
        a = self.a
        a.wait_all()
        a(f"s_lshl_b32 s6, s2, 3"); a(f"s_add_u32 s6, s6, {sW}"); a(f"s_add_u32 s6, s6, {woff}"); a("s_lshl_b32 s6, s6, 7"); a(f"s_add_u32 s6, s6, {WS_PROF}")
        a(f"v_cmp_eq_u32 vcc, 0, {vLANE}"); a(f"v_mov_b32 v40, {OOB}"); a("v_mov_b32 v41, 0"); a("v_cndmask_b32 v40, v40, v41, vcc")
        for i in range(len(self.prof)):
            a(f"v_mov_b32 v42, s{84+2*i}"); a(f"v_mov_b32 v43, s{85+2*i}")
            a.vm(f"buffer_store_dwordx2 v[42:43], v40, {srd(S_WS)}, s6 offen offset:{i*8}")
            a("s_nop 1")

    def build(self):
        a = self.a
        self.bars = {}
        self.prologue()
        prot = set(a.protect)
        self.sfx = "_c"
        self.h_setup()
        st = (a.vm_issued, a.lg_issued, a.vm_floor, a.lg_floor)
        saved = (dict(self.xtok), dict(self.wtok)); m0s = (self.m0_owner, self.m0_val)
        a(f"s_cmp_eq_u32 {sPAR}, 0"); a("s_cbranch_scc0 Lhodd")
        self.helper(0)
        a.label("Lhodd")
        a.vm_issued, a.lg_issued, a.vm_floor, a.lg_floor = st
        self.xtok, self.wtok = dict(saved[0]), dict(saved[1]); self.m0_owner, self.m0_val = m0s; self.open_item = {}
        self.helper(1)
        a.label("Lcompute")
        a.vm_issued = a.lg_issued = a.vm_floor = a.lg_floor = 0
        a.protect = prot
        self.compute()
        a.label("Lend")
        a("s_endpgm")
        assert self.bars["c"] == self.bars["h0"] == self.bars["h1"], (self.bars["c"], self.bars["h0"])
        L = self.log
        print("schedule:", {str(k): v for k, v in sorted(L.items(), key=str)}, file=sys.stderr)
        for c in (0, 1):
            assert L[(1, "pub", 0)] < L[(c, "chk", 0)]
            for ph in (1, 2):
                for p in (0, 1): assert L[(p, "pub", ph)] < L[(c, "chk", ph)], ("order", ph, p, c)
            for d in (0, 1):
                assert L[f"cs_pubA_{c}"] < L[f"cs_chkA_{d}"] and L[f"cs_pubB_{c}"] < L[f"cs_chkB_{d}"] and L[f"st_pub_{c}"] < L[f"st_chk_{d}"]
        assert L[(0, "kvcnt")] < L[(1, "kvchk")]
        for e in self.slow: e()
        a.label("Lcode_end")
        a.finalize()
        return a.text()

HEADER = """; Kernarg layout for this problem (80 bytes, ptrs only, base s[0:1]):
; @launch grid=(256,1,1) block=(512,1,1) lds=%d
.amdgcn_target "amdgcn-amd-amdhsa--gfx950"
.text
.globl %s
.p2align 8
.type %s,@function
%s:
"""
FOOTER = """
.section .rodata,"a"
.p2align 6
.amdhsa_kernel %s
  .amdhsa_next_free_vgpr 256
  .amdhsa_next_free_sgpr 102
  .amdhsa_accum_offset 128
  .amdhsa_group_segment_fixed_size 0
  .amdhsa_kernarg_size 80
  .amdhsa_user_sgpr_count 2
  .amdhsa_user_sgpr_kernarg_segment_ptr 1
  .amdhsa_system_sgpr_workgroup_id_x 1
.end_amdhsa_kernel
"""
BLOCK = 512
def generate(prof=None, opts=None):
    g = Gen(prof=prof, opts=opts)
    body = g.build()
    return HEADER % (LDS_BYTES, KNAME, KNAME, KNAME) + body + "\n" + FOOTER % KNAME

if __name__ == "__main__":
    prof = None; opts = {}; out = None
    for x in sys.argv[1:]:
        if x.startswith("--prof="): prof = x[7:].split(",")
        elif x.startswith("--opt="):
            for kv in x[6:].split(","):
                k, v = kv.split("="); opts[k] = int(v)
        else: out = x
    txt = generate(prof, opts)
    path = out or "parallel_sum__linear_attn_block__glu_gated_reglu__prompt.s"
    open(path, "w").write(txt)
    print("wrote", path, len(txt), "bytes")
```

```python
import sys, os
sys.path.insert(0, os.path.dirname(os.path.abspath(__file__)))
from asmlib import Asm

KNAME = "parallel_sum__linear_attn_block__glu_gated_reglu__prompt_kernel"

WS_EPOCH = 0x0
WS_ZF    = 0x1000
WS_HF    = 0x2000
WS_STAT  = 0x10000
WS_ACC   = 0x20000
ACC_CNT_KV = 1408
ACC_KV     = 2048
KVH, KVR = 1088, 64
WS_CSP   = 0x40000
WS_CSPA  = 0xC0000
WS_H     = 0x100000
WS_KVP   = 0xA00000
WS_KVZP  = 0xA80000
WS_KVF   = 0xA90000
WS_PROF  = 0xF00000
OOB      = 0x7FFFFFF0

NW = 5
L_X    = 0x14000
L_CA   = 0x20000
L_KVS  = 0x14000
KVP    = 136
L_CST  = 0x24800
L_STT  = 0x24E00
L_KVZ  = 0x25400
L_KVO  = 0x26400
W2SLOT = [0x14000, 0x0, 0x8000, 0x1C000]
LDS_BYTES = 0x28000

LOOK = 6
NFR  = 8
NF1  = 320
NF   = NF1 + 144

S_X, S_WS, S_OUT, S_U1, S_U2, S_U3, S_WD, S_WO = 8, 12, 16, 20, 24, 28, 32, 36
def srd(b): return f"s[{b}:{b+3}]"
sC1B, sC2B, sP1, sP3, sC3B, sJ = "s40", "s41", "s42", "s43", "s44", "s45"
sW, sR, sCG, sM, sPAR, sWLDS = "s46", "s47", "s48", "s49", "s50", "s51"
sU1b, sU1c64, sU2b, sU3c64 = "s52", "s53", "s54", "s55"
sXB, sW8K = "s56", "s57"
sTAGL, sTAGH = "s60", "s61"
sACC = "s62"
sROT = "s4"
sQA, sQB, sQC = "s5", "s3", "s63"
sT, sC2, sR2, sHALF = "s80", "s81", "s82", "s83"
sHB = "s70"
vLANE, vL16 = "v1", "v2"

cWA = [["v3", "v4"], ["v5", "v6"]]
cSA = ["v7", "v8"]
cXA = ["v9", "v10", "v11", "v12"]
cB2 = ["v9", "v10"]; cB2H = ["v11", "v12"]
cRSTD, cRL, cG16, cCSA = "v13", "v14", "v15", "v48"
RING = 16
BAUG = 52
cOUT = "v49"
TMP = 56
ACC = 64
hSA = "v3"
vU1 = [4, 5, 6, 7]; vU2 = [8, 9, 10, 11]; vU3 = [12, 13, 14, 15]; vX = [16, 17, 18, 19]; vW2 = [20, 21, 22, 23]
hG16, hCSA, hL0, vPOLL, vDUM = "v24", "v25", "v26", "v27", "v28"
TAG = 30
vTAGL, vTAGH = "v30", "v31"
FLD = 32

class Task:
    def __init__(self, g, wake, name):
        self.g = g; self.wake = wake; self.done = False; self.name = name

class Gen:
    def __init__(self, prof=None, opts=None):
        self.a = Asm()
        self.slow = []
        self.prof = prof
        self.tasks = []
        self.log = {}
        self.o = dict(codepf=1, hbudget=3)
        if opts: self.o.update(opts)
        self.nbar = {"c": 0, "h0": 0, "h1": 0}
        self.m0_owner = None; self.m0_val = None; self.open_item = {}

    def stamp(self, name):
        if self.prof is None or name not in self.prof: return
        i = self.prof.index(name)
        assert i < 9
        op = "s_memrealtime" if name.startswith("rt") else "s_memtime"
        self.a(f"{op} s[{84+2*i}:{85+2*i}]")
    def spawn(self, g, wake, name, front=False):
        t = Task(g, wake, name)
        if front: self.tasks.insert(0, t)
        else: self.tasks.append(t)
        return t
    def step(self, t):
        try: r = next(t.g)
        except StopIteration:
            t.done = True; return
        if r is not None: t.wake = r
    def pump(self, f, start, budget):
        a = self.a
        while len(a.lines) - start < budget:
            t = next((t for t in self.tasks if not t.done and t.wake <= f), None)
            if t is None: break
            self.step(t)
        self.tasks = [t for t in self.tasks if not t.done]
    def finish(self, name):
        cap = getattr(self, "int_cap", 0); self.int_cap = 10**9
        for t in list(self.tasks):
            if t.name == name:
                while not t.done: self.step(t)
        self.int_cap = cap
        self.tasks = [t for t in self.tasks if not t.done]
    def active(self, name): return any(t.name == name and not t.done for t in self.tasks)
    def barrier(self, who, name):
        self.bars.setdefault(who, []).append(name)
        self.stamp(f"{who[0]}{name}_in")
        self.a("s_barrier")
        self.stamp(f"{who[0]}{name}_out")

    def poll_check(self, tok, cmp_lines, reissue, name="x"):
        a = self.a
        if self.o.get("nopoll"): return
        slow = a.newlabel("Lslow"); back = a.newlabel("Lback")
        self.stamp(name + "_in")
        a.wait(vm=tok)
        a(cmp_lines)
        a("s_cmp_eq_u64 vcc, -1")
        a(f"s_cbranch_scc0 {slow}")
        a.label(back)
        self.stamp(name + "_out")
        def emit():
            loop = a.newlabel("Lspin")
            a.label(slow)
            a("s_mov_b32 s66, 0x4000")
            a.label(loop)
            a("s_sleep 1")
            a(reissue)
            a("s_waitcnt vmcnt(0)")
            a(cmp_lines)
            a("s_cmp_eq_u64 vcc, -1")
            a(f"s_cbranch_scc1 {back}")
            a("s_sub_u32 s66, s66, 1")
            a("s_cmp_lg_u32 s66, 0")
            a(f"s_cbranch_scc1 {loop}")
            a(f"s_branch {back}")
        self.slow.append(emit)
    def tagcmp(self, d):
        return (f"v_cmp_eq_u32 vcc, v{d}, {vTAGL}\n"
                f"v_cmp_eq_u32 s[64:65], v{d+1}, {vTAGH}\n"
                f"s_and_b64 vcc, vcc, s[64:65]")
    def reset_track(self):
        a = self.a
        a.vm_floor = a.vm_issued; a.lg_floor = a.lg_issued

    def prologue(self):
        a = self.a
        a("s_cmp_ge_u32 s2, 256")
        a("s_cbranch_scc1 Lend")
        a(f"s_load_dwordx2 s[{S_X}:{S_X+1}], s[0:1], 0")
        a("s_load_dwordx2 s[64:65], s[0:1], 8")
        a("s_load_dwordx4 s[68:71], s[0:1], 32")
        a(f"s_load_dwordx2 s[{S_WS}:{S_WS+1}], s[0:1], 72")
        a(f"s_load_dwordx2 s[{S_WD}:{S_WD+1}], s[0:1], 48")
        a(f"s_load_dwordx2 s[{S_WO}:{S_WO+1}], s[0:1], 16")
        a(f"s_load_dwordx2 s[{S_OUT}:{S_OUT+1}], s[0:1], 56")
        a.protect = {("s", i) for i in (64, 65, 68, 69, 70, 71)}
        self.stamp("start"); self.stamp("rtstart")
        if self.o.get("dbgtime"):
            a("s_memtime s[84:85]"); a("s_memrealtime s[86:87]"); a("s_load_dwordx2 s[92:93], s[0:1], 64")
        for b, size in ((S_X, 2097152), (S_WS, 0x10000000), (S_OUT, 2097152), (S_WD, 1792*1024), (S_WO, 524288), (S_U2, 512*3584)):
            a(f"s_mov_b32 s{b+2}, {size}"); a(f"s_mov_b32 s{b+3}, 0x00020000")
        a(f"s_mov_b32 s{S_U1+3}, 0x00020000"); a(f"s_mov_b32 s{S_U3+3}, 0x00020000")
        a(f"v_and_b32 {vLANE}, 63, v0")
        a("v_lshrrev_b32 v32, 6, v0")
        a(f"v_lshlrev_b32 {vL16}, 4, {vLANE}")
        a("v_readfirstlane_b32 s72, v32")
        a(f"s_and_b32 {sW}, s72, 3")
        a("s_and_b32 s3, s2, 7")
        a(f"s_lshr_b32 {sJ}, s2, 3")
        if self.o.get("map42", 0):
            a("s_lshr_b32 s7, s3, 1"); a(f"s_lshl_b32 {sR}, s7, 2")
            a(f"s_lshr_b32 s7, {sJ}, 3"); a(f"s_add_u32 {sR}, {sR}, s7")
            a(f"s_and_b32 {sHALF}, s3, 1"); a(f"s_lshl_b32 {sCG}, {sHALF}, 3")
            a(f"s_and_b32 {sC2}, {sJ}, 7"); a(f"s_add_u32 {sCG}, {sCG}, {sC2}")
            a(f"s_lshr_b32 {sM}, {sCG}, 1"); a(f"s_and_b32 {sPAR}, {sCG}, 1")
            a(f"s_lshl_b32 {sT}, {sR}, 1"); a(f"s_add_u32 {sT}, {sT}, {sHALF}")
            a(f"s_mov_b32 {sR2}, {sR}")
        else:
            a("s_lshr_b32 s7, s3, 2"); a(f"s_lshl_b32 {sR}, s7, 3")
            a(f"s_lshr_b32 s7, {sJ}, 2"); a(f"s_add_u32 {sR}, {sR}, s7")
            a("s_and_b32 s7, s3, 3"); a(f"s_lshl_b32 {sCG}, s7, 2")
            a(f"s_and_b32 s7, {sJ}, 3"); a(f"s_add_u32 {sCG}, {sCG}, s7")
            a(f"s_lshr_b32 {sM}, {sCG}, 1"); a(f"s_and_b32 {sPAR}, {sCG}, 1")
            a(f"s_bfe_u32 {sHALF}, s3, {(1 << 16) | 1}"); a(f"s_lshl_b32 {sT}, {sR}, 1"); a(f"s_add_u32 {sT}, {sT}, {sHALF}")
            a(f"s_and_b32 {sC2}, s3, 1"); a(f"s_lshl_b32 {sC2}, {sC2}, 2"); a(f"s_and_b32 s7, {sJ}, 3"); a(f"s_add_u32 {sC2}, {sC2}, s7")
            a(f"s_mov_b32 {sR2}, {sR}")
        a(f"s_lshl_b32 {sWLDS}, {sW}, 12"); a(f"s_lshl_b32 {sW8K}, {sW}, 13")
        a("s_cmp_lt_u32 s72, 4")
        a("s_cbranch_scc1 Lcompute")

    def h_setup(self):
        a = self.a
        self.xtok = {}; self.wtok = {}
        a(f"s_add_u32 s6, {sCG}, {sR}"); a(f"s_and_b32 {sROT}, s6, 3")
        a(f"s_lshl_b32 s6, {sR}, 7"); a(f"s_lshl_b32 s7, {sW}, 5"); a("s_add_u32 s6, s6, s7")
        a(f"s_lshl_b32 {sXB}, s6, 10")
        a(f"v_lshrrev_b32 v44, 3, {vLANE}"); a(f"v_and_b32 v45, 7, {vLANE}")
        a(f"v_lshrrev_b32 v47, 4, {vLANE}"); a("v_xor_b32 v47, v45, v47"); a("v_lshlrev_b32 v47, 4, v47")
        a(f"v_lshl_add_u32 v{vX[0]}, v44, 10, v47")
        a(f"v_xor_b32 v47, 64, v{vX[0]}")
        a(f"v_add_u32 v{vX[1]}, {7*1024}, v47"); a(f"v_add_u32 v{vX[2]}, {14*1024}, v{vX[0]}"); a(f"v_add_u32 v{vX[3]}, {21*1024}, v47")
        a(f"s_cmp_eq_u32 {sPAR}, 0")
        a("s_movk_i32 s6, 3072"); a("s_movk_i32 s7, 3584")
        a(f"s_cselect_b32 {sP1}, s6, s7"); a(f"s_cselect_b32 {sP3}, s7, s6")
        a(f"s_mov_b32 s6, {512*3072}"); a(f"s_mov_b32 s7, {512*3584}")
        a(f"s_cselect_b32 s{S_U1+2}, s6, s7"); a(f"s_cselect_b32 s{S_U3+2}, s7, s6")
        a(f"v_bfe_u32 v43, {vLANE}, 4, 1")
        a("v_lshlrev_b32 v46, 2, v43"); a("v_xor_b32 v46, v45, v46"); a("v_lshlrev_b32 v46, 4, v46")
        a(f"v_mul_lo_u32 v47, v44, {sP1}"); a(f"v_add_u32 v{vU1[0]}, v47, v46")
        a(f"s_lshl_b32 s6, {sP1}, 3"); a("s_sub_u32 s6, s6, 1024")
        for i in range(1, 4): a(f"v_add_u32 v{vU1[i]}, s6, v{vU1[i-1]}")
        a(f"s_lshr_b32 s72, {sW}, 1")
        a("s_lshl_b32 s73, s72, 10"); a("s_add_u32 s73, s73, 1024")
        a(f"s_lshl_b32 s7, {sM}, 7"); a("s_add_u32 s73, s73, s7")
        a(f"s_lshl_b32 s6, {sM}, 8"); a("s_add_u32 s6, s6, 1024")
        a(f"s_cmp_eq_u32 {sPAR}, 0"); a(f"s_cselect_b32 {sC1B}, s73, s6")
        a(f"s_and_b32 s73, {sW}, 1")
        a(f"s_lshl_b32 {sU1c64}, {sP1}, 6")
        a(f"s_mul_i32 s6, s73, {sP1}"); a("s_lshl_b32 s7, s6, 5"); a(f"s_add_u32 {sU1b}, {sC1B}, s7")
        a("s_waitcnt lgkmcnt(0)")
        self.stamp("kargs")
        self.dma_x(0)
        a(f"s_cmp_lt_u32 {sW}, 2")
        a(f"s_cselect_b32 s{S_U2}, s68, s70"); a(f"s_cselect_b32 s{S_U2+1}, s69, s71")
        a(f"s_cmp_eq_u32 {sPAR}, 0")
        a(f"s_cselect_b32 s{S_U1}, s64, s{S_U2}"); a(f"s_cselect_b32 s{S_U1+1}, s65, s{S_U2+1}")
        a(f"s_cselect_b32 s{S_U3}, s{S_U2}, s64"); a(f"s_cselect_b32 s{S_U3+1}, s{S_U2+1}, s65")
        a.protect = set()
        self.dma_w(0); self.dma_x(1); self.dma_w(1)
        a(f"s_load_dwordx2 s[60:61], s[{S_WS}:{S_WS+1}], 0")
        a(f"v_lshrrev_b32 v40, 5, {vLANE}"); a(f"v_bfe_u32 v41, {vLANE}, 2, 2"); a(f"v_and_b32 v42, 3, {vLANE}")
        a(f"s_lshl_b32 s7, {sM}, 7"); a(f"s_lshl_b32 s6, {sM}, 8"); a("s_add_u32 s6, s6, 1152")
        a(f"s_cmp_eq_u32 {sPAR}, 0"); a(f"s_cselect_b32 {sC2B}, s7, s6")
        a(f"s_lshr_b32 s6, {sM}, 1"); a("s_lshl_b32 s6, s6, 7"); a("s_add_u32 s6, s6, 3072")
        a(f"s_and_b32 s73, {sM}, 1"); a("s_lshl_b32 s73, s73, 6"); a("s_add_u32 s6, s6, s73")
        a("s_lshl_b32 s73, s72, 6"); a("s_add_u32 s73, s73, s7")
        a(f"s_cmp_eq_u32 {sPAR}, 0"); a(f"s_cselect_b32 {sC3B}, s6, s73")
        a(f"s_and_b32 s72, {sW}, 1")
        if self.o.get("touch1", 1): self.touch1()
        a("v_lshlrev_b32 v47, 5, v43"); a("v_lshl_add_u32 v47, v42, 3, v47")
        a("v_lshl_add_u32 v48, v40, 3, v41"); a("v_lshlrev_b32 v48, 6, v48"); a(f"v_add_u32 {hSA}, v48, v47")
        a(f"v_lshlrev_b32 {hG16}, 4, v40")
        a("s_movk_i32 s7, 3584"); a("v_mul_lo_u32 v47, v44, s7"); a(f"v_add_u32 v{vU2[0]}, v47, v46")
        for i in range(1, 4): a(f"v_add_u32 v{vU2[i]}, {8*3584-1024}, v{vU2[i-1]}")
        a(f"s_mul_i32 s7, s72, {32*3584}"); a(f"s_add_u32 {sU2b}, {sC2B}, s7")
        a(f"v_lshrrev_b32 v49, 2, {vLANE}"); a(f"v_mul_lo_u32 v47, v49, {sP3}"); a(f"v_lshl_add_u32 v{vU3[0]}, v42, 4, v47")
        a(f"s_lshl_b32 s6, {sP3}, 4"); a("s_sub_u32 s6, s6, 1024")
        for i in range(1, 4): a(f"v_add_u32 v{vU3[i]}, s6, v{vU3[i-1]}")
        a(f"s_lshl_b32 {sU3c64}, {sP3}, 6")
        a(f"v_lshl_add_u32 v{vW2[0]}, v44, 10, v46")
        for k in range(1, 4): a(f"v_add_u32 v{vW2[k]}, {7*1024*k}, v{vW2[0]}")
        a(f"v_mul_lo_u32 v47, v49, {sP1}"); a("v_lshl_add_u32 v34, v42, 4, v47")
        a(f"s_lshl_b32 s6, {sP1}, 4"); a("s_sub_u32 s6, s6, 1024"); a("v_add_u32 v35, s6, v34")
        a("s_movk_i32 s7, 3584"); a("v_mul_lo_u32 v47, v49, s7"); a("v_lshl_add_u32 v36, v42, 4, v47"); a(f"v_add_u32 v37, {16*3584-1024}, v36")
        a(f"s_and_b32 s6, {sR}, 7"); a("s_lshl_b32 s6, s6, 6"); a(f"s_lshr_b32 s7, {sR}, 3"); a("s_lshl_b32 s7, s7, 5"); a("s_add_u32 s6, s6, s7")
        a("s_lshl_b32 s7, s72, 6")
        a(f"s_mul_i32 s73, s6, {sP1}"); a(f"s_add_u32 s73, s73, {sC1B}"); a("s_add_u32 s73, s73, s7")
        a("s_mul_i32 s74, s6, 3584"); a(f"s_add_u32 s74, s74, {sC2B}"); a("s_add_u32 s74, s74, s7")
        a(f"s_mul_i32 s75, s6, {sP3}"); a(f"s_add_u32 s75, s75, {sC3B}")
        a(f"s_lshl_b32 {sACC}, {sCG}, 13"); a(f"s_add_u32 {sACC}, {sACC}, {WS_ACC}")
        a(f"s_lshl_b32 s6, {sR}, 7"); a(f"s_lshl_b32 s7, {sCG}, 3"); a("s_add_u32 s6, s6, s7")
        a(f"s_lshl_b32 s7, {sW}, 1"); a("s_add_u32 s76, s6, s7")
        a(f"v_and_b32 {hCSA}, 31, {vLANE}"); a(f"v_lshlrev_b32 {hCSA}, 2, {hCSA}"); a(f"v_add_u32 {hCSA}, {L_CST}, {hCSA}")
        a(f"v_cmp_eq_u32 vcc, 0, {vLANE}"); a(f"v_mov_b32 {hL0}, {OOB}"); a("v_mov_b32 v47, 0"); a(f"v_cndmask_b32 {hL0}, {hL0}, v47, vcc")
        a(f"s_lshl_b32 s6, {sR}, 1"); a(f"s_lshr_b32 s7, {sW}, 1"); a("s_add_u32 s6, s6, s7"); a("s_mul_i32 s6, s6, 768")
        a(f"s_lshl_b32 s7, {sCG}, 4"); a("s_add_u32 s6, s6, s7"); a("s_lshl_b32 s7, s72, 3"); a("s_add_u32 s6, s6, s7"); a(f"s_add_u32 s77, s6, {WS_HF}")
        for _ in self.t_s2_q(): pass
        a("s_waitcnt lgkmcnt(0)")
        a(f"s_add_u32 {sTAGL}, {sTAGL}, 1"); a(f"s_addc_u32 {sTAGH}, {sTAGH}, 0")
        a(f"v_mov_b32 {vTAGL}, {sTAGL}"); a(f"v_mov_b32 {vTAGH}, {sTAGH}")

    def touch1(self):
        a = self.a
        a(f"s_and_b32 s6, {sR}, 7"); a("s_lshl_b32 s6, s6, 5"); a(f"s_and_b32 s7, {sW}, 1"); a("s_lshl_b32 s7, s7, 4"); a("s_add_u32 s6, s6, s7"); a("s_add_u32 s6, s6, 256")
        a(f"v_and_b32 v50, 15, {vLANE}"); a("v_add_u32 v50, s6, v50")
        a(f"v_mul_lo_u32 v51, v50, {sP1}")
        a.vm(f"buffer_load_dword {vDUM}, v51, {srd(S_U1)}, {sC1B} offen")
        a(f"v_and_b32 v52, 7, {vLANE}"); a(f"v_bfe_u32 v53, {vLANE}, 3, 2"); a("v_add_u32 v53, 4, v53")
        a("v_lshlrev_b32 v52, 10, v52"); a("v_lshl_add_u32 v52, v53, 7, v52")
        a(f"s_lshl_b32 s6, {sR}, 7"); a(f"s_and_b32 s7, {sCG}, 3"); a("s_lshl_b32 s7, s7, 5"); a("s_add_u32 s6, s6, s7")
        a(f"s_lshl_b32 s7, {sW}, 3"); a("s_add_u32 s6, s6, s7"); a("s_lshl_b32 s6, s6, 10")
        a.vm(f"buffer_load_dword {vDUM}, v52, {srd(S_X)}, s6 offen")
    def t_touch2(self):
        a = self.a
        a(f"s_and_b32 s6, {sR}, 7"); a("s_lshl_b32 s6, s6, 5"); a(f"s_and_b32 s7, {sW}, 1"); a("s_lshl_b32 s7, s7, 4"); a("s_add_u32 s6, s6, s7"); a("s_add_u32 s6, s6, 256")
        a(f"v_and_b32 v46, 15, {vLANE}"); a("v_add_u32 v46, s6, v46")
        a("s_movk_i32 s7, 3584"); a("v_mul_lo_u32 v46, v46, s7")
        a.vm(f"buffer_load_dword {vDUM}, v46, {srd(S_U2)}, {sC2B} offen"); yield
        a(f"s_and_b32 s6, {sR}, 7"); a("s_lshl_b32 s6, s6, 6"); a(f"s_and_b32 s7, {sW}, 1"); a("s_lshl_b32 s7, s7, 5"); a("s_add_u32 s6, s6, s7")
        a(f"v_and_b32 v46, 31, {vLANE}"); a("v_add_u32 v46, s6, v46"); a(f"v_mul_lo_u32 v46, v46, {sP3}")
        a.vm(f"buffer_load_dword {vDUM}, v46, {srd(S_U3)}, {sC3B} offen"); yield

    def mkparts(self, head, vs, sr, so, settok, ldsbase):
        a = self.a
        parts = []
        for i in range(4):
            def p(i=i):
                key = (so, ldsbase)
                if i == 0:
                    assert self.open_item.get(so) is None
                    self.open_item[so] = key
                assert self.open_item[so] == key
                if i == 3: self.open_item[so] = None
                if i == 0: head()
                elif self.m0_owner != so or self.m0_val != ldsbase: a(f"s_add_u32 m0, {sWLDS}, {ldsbase}")
                self.m0_owner = so; self.m0_val = ldsbase
                settok(a.vm(f"buffer_load_dwordx4 v{vs[i]}, {srd(sr)}, {so} offen{' offset:%d' % (1024*i) if i else ''} lds"))
            parts.append(p)
        return parts
    def m0_clobber(self): self.m0_owner = None
    def dma_x_parts(self, c):
        a = self.a
        def head():
            a(f"s_add_u32 m0, {sWLDS}, {L_X + (c % 3)*16384}")
            a(f"s_add_u32 s7, {sROT}, {c & 3}"); a("s_and_b32 s7, s7, 3")
            if c & 4: a("s_or_b32 s7, s7, 4")
            if self.o.get("fake1"): a("s_mov_b32 s7, 0")
            a("s_lshl_b32 s7, s7, 7"); a(f"s_add_u32 s58, {sXB}, s7")
        return self.mkparts(head, vX, S_X, "s58", lambda t: self.xtok.__setitem__(c, t), L_X + (c % 3)*16384)
    def dma_w_parts(self, G):
        a = self.a
        slot = G % NW
        if G < 8:    vs, sr, b, c64 = vU1, S_U1, sU1b, sU1c64
        elif G < 16: vs, sr, b, c64 = vU2, S_U2, sU2b, str(64*3584)
        else:        vs, sr, b, c64 = vU3, S_U3, sC3B, sU3c64
        def head():
            a(f"s_add_u32 m0, {sWLDS}, {slot*16384}")
            if G < 16:
                pos = G % 8; a(f"s_add_u32 s7, {sROT}, {pos & 3}")
            else:
                pos = 2*(G-16)
                a(f"s_and_b32 s7, {sW}, 1"); a(f"s_add_u32 s7, s7, {sROT}"); a(f"s_add_u32 s7, s7, {pos & 3}")
            a("s_and_b32 s7, s7, 3")
            if pos & 4: a("s_or_b32 s7, s7, 4")
            if self.o.get("fake1"): a("s_mov_b32 s7, 0")
            a(f"s_mul_i32 s7, s7, {c64}"); a(f"s_add_u32 s59, {b}, s7")
        return self.mkparts(head, vs, sr, "s59", lambda t: self.wtok.__setitem__(G, t), slot*16384)
    def dma_x(self, c):
        for p in self.dma_x_parts(c): p()
    def dma_w(self, G):
        for p in self.dma_w_parts(G): p()
    def slab(self, base_expr, v0, v1, sr, so):
        a = self.a
        a(base_expr); self.m0_clobber(); a("s_nop 0")
        a.vm(f"buffer_load_dwordx4 v{v0}, {srd(sr)}, {so} offen lds")
        return a.vm(f"buffer_load_dwordx4 v{v1}, {srd(sr)}, {so} offen offset:1024 lds")

    def t_early(self):
        a = self.a; o = self.o
        a(f"s_lshl_b32 s6, {sW}, 11")
        self.ctokA = self.slab(f"s_add_u32 m0, s6, {L_CA}", 34, 35, S_U1, "s73"); yield
        if o["codepf"]:
            a("s_getpc_b64 s[64:65]")
            a.label("Lpc0" + self.sfx)
            a(f"s_sub_u32 s64, s64, Lpc0{self.sfx}-{KNAME}"); a("s_subb_u32 s65, s65, 0")
            a(f"v_min_u32 v40, 2, {vLANE}")
            a(f"s_mul_i32 s6, {sJ}, 12"); a(f"s_mul_i32 s7, {sW}, 3"); a("s_add_u32 s6, s6, s7")
            a("v_add_u32 v40, s6, v40"); a("v_lshlrev_b32 v40, 7, v40")
            a(f"s_mov_b32 s66, Lcode_end-{KNAME}-4"); a("v_min_u32 v40, s66, v40")
            a.vm(f"global_load_dword {vDUM}, v40, s[64:65]"); yield

    DPPM = ("quad_perm:[1,0,3,2] row_mask:0xf", "quad_perm:[2,3,0,1] row_mask:0xf", "row_half_mirror row_mask:0xf",
            "row_mirror row_mask:0xf", "row_bcast:15 row_mask:0xa", "row_bcast:31 row_mask:0xc")
    def c_stats(self):
        a = self.a
        D = 64
        for r in range(2):
            for k in range(4):
                a(f"v_lshlrev_b32 v{D+8*r+2*k}, 16, v{16+4*r+k}"); a(f"v_and_b32 v{D+8*r+2*k+1}, 0xffff0000, v{16+4*r+k}")
        for k in range(1, 8):
            for r in range(2):
                d = D + 8*r; t = 80 + r
                a(f"v_add_f32 v{t}, v{d}, v{d+1}" if k == 1 else f"v_add_f32 v{t}, v{t}, v{d+k}")
        for mod in self.DPPM:
            for v in ("v80", "v81"): a(f"v_add_f32_dpp {v}, {v}, {v} {mod} bank_mask:0xf")
        a("v_readlane_b32 s78, v80, 63"); a("v_readlane_b32 s79, v81, 63")
        a("s_mov_b32 s66, 0x3b000000"); a("v_mov_b32 v82, s78"); a("v_mov_b32 v83, s79")
        a("v_mul_f32 v82, s66, v82"); a("v_mul_f32 v83, s66, v83")
        for k in range(8):
            for r in range(2): a(f"v_sub_f32 v{D+8*r+k}, v{D+8*r+k}, v{82+r}")
        for k in range(8):
            for r in range(2):
                d = D + 8*r; t = 80 + r
                a(f"v_mul_f32 v{t}, v{d}, v{d}" if k == 0 else f"v_fmac_f32 v{t}, v{d+k}, v{d+k}")
        for mod in self.DPPM:
            for v in ("v80", "v81"): a(f"v_add_f32_dpp {v}, {v}, {v} {mod} bank_mask:0xf")
        a("v_readlane_b32 s78, v80, 63"); a("v_readlane_b32 s79, v81, 63")
        a("v_mov_b32 v84, s78"); a("v_mov_b32 v85, s79"); a("v_mov_b32 v86, 0x3727c5ac")
        a("v_fma_f32 v84, v84, s66, v86"); a("v_fma_f32 v85, v85, s66, v86")
        a("v_rsq_f32 v84, v84"); a("v_rsq_f32 v85, v85")
        a(f"v_cmp_eq_u32 vcc, 1, {vLANE}"); a("v_mov_b32 v90, s60"); a("v_mov_b32 v91, s61")
        a("v_cndmask_b32 v88, v82, v83, vcc"); a("v_cndmask_b32 v89, v84, v85, vcc")
        a(f"v_cmp_gt_u32 vcc, 2, {vLANE}"); a(f"v_mov_b32 v87, {OOB}")
        a("s_lshl_b32 s6, s75, 4"); a(f"s_add_u32 s6, s6, {WS_STAT}")
        a(f"v_cndmask_b32 v86, v87, {vL16}, vcc")
        a.vm(f"buffer_store_dwordx4 v[88:91], v86, {srd(S_WS)}, s6 offen sc1")

    def t_cs(self, rnd):
        a = self.a
        A = rnd == "A"
        nu = 1 if A else 2
        FR, ONES, D0, AD, RES = 96, 112, 116, 88, 84
        a(f"s_lshl_b32 s6, {sW}, {11 if A else 12}"); a(f"s_add_u32 s6, s6, {L_CA}")
        a(f"v_add_u32 v{AD}, s6, {hSA}"); yield
        for k in range(4): a(f"v_mov_b32 v{ONES+k}, 0x3f803f80")
        yield
        a(f"v_and_b32 v{AD+1}, 31, {vLANE}"); a(f"v_lshlrev_b32 v{AD+1}, {3 if A else 4}, v{AD+1}")
        a(f"v_cmp_gt_u32 vcc, 32, {vLANE}"); a(f"v_mov_b32 v{AD+2}, {OOB}"); a("s_nop 0")
        a(f"v_cndmask_b32 v{AD+1}, v{AD+2}, v{AD+1}, vcc"); yield
        a.wait(vm=self.ctokA if A else self.ctokB)
        for ui in range(nu):
            for s in range(2):
                for q in range(2):
                    r = FR + ui*8 + s*4 + q*2
                    t = a.lg(f"ds_read_b64_tr_b16 v[{r}:{r+1}], v{AD} offset:{ui*2048 + (16*s + 4*q)*64}")
            yield
        if not A: yield self.int_end
        a.wait(lg=t)
        DT = [116, 60]
        DT = [52, 68]
        for ui in range(nu):
            d = DT[ui]
            for s in range(2):
                r = FR + ui*8 + s*4
                a(f"v_mfma_f32_32x32x16_bf16 v[{d}:{d+15}], v[{ONES}:{ONES+3}], v[{r}:{r+3}], {'0' if s == 0 else f'v[{d}:{d+15}]'}")
            yield
        a(f"s_lshl_b32 s6, {sCG}, 4"); a(f"s_add_u32 s6, s6, {sR}"); a("s_lshl_b32 s6, s6, 2"); a(f"s_add_u32 s6, s6, {sW}")
        a(f"s_lshl_b32 s6, s6, {8 if A else 9}"); a(f"s_add_u32 s71, s6, {WS_CSPA if A else WS_CSP}"); yield
        if not A: yield self.int_end
        if A:
            a(f"v_mov_b32 v{RES}, v52"); a(f"v_mov_b32 v{RES+1}, {vTAGL}")
            a.vm(f"buffer_store_dwordx2 v[{RES}:{RES+1}], v{AD+1}, {srd(S_WS)}, s71 offen sc1"); yield
        else:
            a(f"v_mov_b32 v{RES}, v52"); a(f"v_mov_b32 v{RES+1}, v68"); a(f"v_mov_b32 v{RES+2}, {vTAGL}"); a(f"v_mov_b32 v{RES+3}, {vTAGL}")
            a.vm(f"buffer_store_dwordx4 v[{RES}:{RES+3}], v{AD+1}, {srd(S_WS)}, s71 offen sc1"); yield
        self.log["cs_pub" + rnd + self.sfx] = self.f

    def t_csum(self, rnd, chk_f):
        a = self.a
        A = rnd == "A"
        B = 52; W = 2 if A else 4; AD = 92
        SB, ST = "s68", "s69"
        a(f"v_and_b32 v{AD}, 31, {vLANE}"); a(f"v_lshlrev_b32 v{AD}, {3 if A else 4}, v{AD}")
        a(f"v_lshrrev_b32 v{AD+1}, 5, {vLANE}"); a(f"v_lshl_add_u32 v{AD}, v{AD+1}, {10 if A else 11}, v{AD}"); yield
        a(f"s_lshl_b32 s6, {sCG}, {14 if A else 15}"); a(f"s_lshl_b32 s7, {sW}, {8 if A else 9}"); a("s_add_u32 s6, s6, s7")
        a(f"s_add_u32 {SB}, s6, {WS_CSPA if A else WS_CSP}"); yield
        def loads():
            return [f"s_add_u32 {ST}, {SB}, {i*(2048 if A else 4096)}\nbuffer_load_dwordx{W} v[{B+W*i}:{B+W*i+W-1}], v{AD}, {srd(S_WS)}, {ST} offen sc1" for i in range(8)]
        for t in loads():
            yield from self.vmslot()
            l0, l1 = t.split("\n"); a(l0); tok = a.vm(l1); yield
        yield max(chk_f, self.f + 24)
        tg = W - 1
        cmp = f"v_cmp_eq_u32 vcc, v{B+tg}, {vTAGL}\n"
        for i in range(1, 8): cmp += f"v_cmp_eq_u32 s[64:65], v{B+tg+W*i}, {vTAGL}\ns_and_b64 vcc, vcc, s[64:65]\n"
        self.log["cs_chk" + rnd + self.sfx] = self.f
        self.poll_check(tok, cmp.strip(), "\n".join(loads()), "csp" + rnd)
        nv = 1 if A else 2
        for i in range(1, 8):
            for k in range(nv): a(f"v_add_f32 v{B+k}, v{B+k}, v{B+W*i+k}")
            yield
        T = B + 4
        for k in range(nv): a(f"v_mov_b32 v{T+k}, v{B+k}")
        for k in range(nv): a(f"v_permlane32_swap_b32 v{B+k}, v{T+k}")
        for k in range(nv): a(f"v_add_f32 v{B+k}, v{B+k}, v{T+k}")
        yield
        for k in range(nv): a(f"v_cvt_pk_bf16_f32 v{T+k}, v{B+k}, v{B+k}")
        for k in range(nv): a(f"v_lshlrev_b32 v{T+k}, 16, v{T+k}")
        for k in range(nv): a(f"v_sub_f32 v{T+k}, v{B+k}, v{T+k}")
        for k in range(nv): a(f"v_cvt_pk_bf16_f32 v{B+k}, v{B+k}, v{T+k}")
        yield
        a(f"s_lshl_b32 s6, {sW}, 7"); a(f"v_add_u32 v{AD+1}, s6, {hCSA}")
        if A: a.lg(f"ds_write_b32 v{AD+1}, v{B}")
        else:
            a.lg(f"ds_write_b32 v{AD+1}, v{B} offset:512")
            a(f"s_lshr_b32 s6, {sW}, 1"); a("s_lshl_b32 s6, s6, 7"); a(f"v_add_u32 v{AD+1}, s6, {hCSA}")
            a.lg(f"ds_write_b32 v{AD+1}, v{B+1} offset:1024")
        yield

    def t_stt(self, chk_f):
        a = self.a
        a(f"v_and_b32 v44, 31, {vLANE}"); a("v_lshlrev_b32 v45, 4, v44"); yield
        a(f"s_lshl_b32 s6, {sR}, 7"); a(f"s_lshl_b32 s7, {sW}, 5"); a("s_add_u32 s6, s6, s7")
        a("s_lshl_b32 s72, s6, 4"); a(f"s_add_u32 s72, s72, {WS_STAT}")
        txt = f"buffer_load_dwordx4 v[48:51], v45, {srd(S_WS)}, s72 offen sc1"
        tok = a.vm(txt)
        yield chk_f
        self.log["st_chk" + self.sfx] = self.f
        self.poll_check(tok, self.tagcmp(50), txt, "stp")
        a("v_sub_f32 v48, 0, v48")
        a("v_lshlrev_b32 v44, 3, v44"); a(f"s_lshl_b32 s6, {sW}, 8"); a(f"s_add_u32 s6, s6, {L_STT}"); a("v_add_u32 v44, s6, v44")
        a.lg("ds_write_b64 v44, v[48:49]"); yield

    def t_slabB(self):
        a = self.a
        yield from self.vmslot()
        self.slab(f"s_add_u32 m0, {sWLDS}, {L_CA}", 36, 37, S_U2, "s74"); yield
        yield from self.vmslot()
        self.ctokB = self.slab(f"s_add_u32 m0, {sWLDS}, {L_CA + 2048}", vU3[0], vU3[1], S_U3, "s75"); yield

    def publish(self, phase):
        a = self.a
        a.vm(f"buffer_store_dwordx2 v[{TAG}:{TAG+1}], {hL0}, {srd(S_WS)}, s77 offen offset:{phase*256} sc1")
        self.log[(self.par, "pub", phase)] = self.f

    def t_kv_tail(self):
        a = self.a; o = self.o
        a(f"v_lshrrev_b32 v38, 4, {vLANE}"); a("v_lshlrev_b32 v38, 3, v38")
        a(f"v_bfe_u32 v39, {vLANE}, 2, 2"); a("v_add_u32 v38, v38, v39"); yield
        a(f"s_movk_i32 s7, {KVP}"); a("v_mul_lo_u32 v38, v38, s7")
        a(f"v_and_b32 v39, 3, {vLANE}"); a("v_lshl_add_u32 v38, v39, 3, v38"); yield
        a(f"s_lshl_b32 s6, {sW}, 5"); a(f"s_add_u32 s6, s6, {L_KVS}"); a("v_add_u32 v38, s6, v38"); yield
        F = 52
        for ks in range(4):
            for tile in range(2):
                for q in range(2):
                    r = F + ks*8 + tile*4 + q*2
                    t = a.lg(f"ds_read_b64_tr_b16 v[{r}:{r+1}], v38 offset:{tile*128*KVP + (32*ks + 4*q)*KVP}")
                yield
        for k in range(4): a(f"v_mov_b32 v{84+k}, 0x3f803f80")
        yield self.int_end
        a.wait(lg=t)
        self.kv_reads_f = self.f
        for ks in range(4):
            pk = F + ks*8; vv = pk + 4
            a(f"v_mfma_f32_16x16x32_bf16 v[88:91], v[{vv}:{vv+3}], v[{pk}:{pk+3}], {'0' if ks == 0 else 'v[88:91]'}")
            a(f"v_mfma_f32_16x16x32_bf16 v[48:51], v[84:87], v[{pk}:{pk+3}], {'0' if ks == 0 else 'v[48:51]'}")
            yield
        a(f"s_lshl_b32 s6, {sM}, 2"); a(f"s_add_u32 s6, s6, {sW}")
        a("s_lshl_b32 s7, s6, 4"); a(f"s_add_u32 s7, s7, {sR}"); a("s_lshl_b32 s7, s7, 10"); a(f"s_add_u32 s73, s7, {WS_KVP}")
        a("s_lshl_b32 s7, s6, 10"); a(f"s_lshl_b32 s72, {sR}, 6"); a("s_add_u32 s7, s7, s72"); a(f"s_add_u32 s72, s7, {WS_KVZP}")
        a("s_lshl_b32 s7, s6, 7"); a(f"s_lshl_b32 s6, {sR}, 3"); a("s_add_u32 s7, s7, s6"); a(f"s_add_u32 s71, s7, {WS_KVF}")
        a(f"v_cmp_gt_u32 vcc, 16, {vLANE}"); a(f"v_mov_b32 v39, {OOB}"); a(f"v_lshlrev_b32 v38, 2, {vLANE}")
        a("v_cndmask_b32 v38, v39, v38, vcc")
        yield self.f + 2
        a.vm(f"buffer_store_dwordx4 v[88:91], {vL16}, {srd(S_WS)}, s73 offen sc1")
        tok = a.vm(f"buffer_store_dword v48, v38, {srd(S_WS)}, s72 offen sc1"); yield
        yield self.int_end + 16
        a.wait(vm=tok)
        a.vm(f"buffer_store_dwordx2 v[{TAG}:{TAG+1}], {hL0}, {srd(S_WS)}, s71 offen sc1")
        self.log[(0, "kvcnt")] = self.f
        yield

    def t_q_prep(self, chk_f):
        a = self.a
        a(f"s_lshl_b32 s6, {sM}, 2"); a(f"s_add_u32 s6, s6, {sW}")
        a("s_lshl_b32 s7, s6, 7"); a(f"s_add_u32 s71, s7, {WS_KVF}")
        a("s_lshl_b32 s7, s6, 14"); a(f"s_add_u32 s73, s7, {WS_KVP}")
        a("s_lshl_b32 s7, s6, 10"); a(f"s_add_u32 s76, s7, {WS_KVZP}")
        a(f"v_and_b32 v40, 15, {vLANE}"); a("v_lshlrev_b32 v40, 3, v40")
        txt = f"buffer_load_dwordx2 v[42:43], v40, {srd(S_WS)}, s71 offen sc1"
        tok = a.vm(txt)
        yield chk_f
        self.log[(1, "kvchk")] = self.f
        self.poll_check(tok, self.tagcmp(42), txt, "kvp")
        while self.active("csumB"): yield self.f + 1
        B = 52
        ztok = a.vm(f"buffer_load_dwordx4 v[116:119], {vL16}, {srd(S_WS)}, s76 offen sc1"); yield
        toks = []
        for r in range(16):
            yield from self.vmslot()
            if r % 4 == 0 and r: a("s_add_u32 s73, s73, 4096")
            toks.append(a.vm(f"buffer_load_dwordx4 v[{B+4*r}:{B+4*r+3}], {vL16}, {srd(S_WS)}, s73 offen offset:{(r % 4)*1024} sc1")); yield
        yield self.int_end
        a.wait(vm=ztok)
        for mod in ("row_shr:4", "row_shr:8"):
            for k in range(4): a(f"v_add_f32_dpp v{116+k}, v{116+k}, v{116+k} {mod} row_mask:0xf bank_mask:0xf bound_ctrl:0")
            yield
        for k in range(4):
            a(f"v_mov_b32 v{120+k}, v{116+k}")
        for k in range(4): a(f"v_permlane16_swap_b32 v{116+k}, v{120+k}")
        for k in range(4): a(f"v_add_f32 v{116+k}, v{116+k}, v{120+k}")
        yield
        for k in range(4): a(f"v_mov_b32 v{120+k}, v{116+k}")
        for k in range(4): a(f"v_permlane32_swap_b32 v{116+k}, v{120+k}")
        for k in range(4): a(f"v_add_f32 v{116+k}, v{116+k}, v{120+k}")
        yield
        for r in range(1, 16):
            a.wait(vm=toks[r])
            for k in range(0, 4, 2): a(f"v_pk_add_f32 v[{B+k}:{B+k+1}], v[{B+k}:{B+k+1}], v[{B+4*r+k}:{B+4*r+k+1}]")
            yield
        a(f"s_mul_i32 s6, {sW}, 1280"); a(f"s_add_u32 s6, s6, {L_KVO}")
        a(f"v_lshrrev_b32 v40, 4, {vLANE}"); a("v_lshlrev_b32 v40, 8, v40"); a(f"v_and_b32 v41, 15, {vLANE}"); a("v_lshl_add_u32 v40, v41, 2, v40")
        a("v_add_u32 v40, s6, v40")
        for v in range(4): a.lg(f"ds_write_b32 v40, v{B+v} offset:{v*64}")
        a(f"v_and_b32 v41, 3, {vLANE}"); a("v_lshlrev_b32 v41, 4, v41"); a("v_add_u32 v41, s6, v41"); a("v_add_u32 v41, 1024, v41")
        a(f"v_and_b32 v42, 15, {vLANE}"); a("v_cmp_le_u32 vcc, 12, v42"); a(f"v_mov_b32 v43, {L_KVO + 4*1280}")
        a("v_cndmask_b32 v41, v43, v41, vcc")
        t = a.lg("ds_write_b128 v41, v[116:119]"); yield
        yield self.f + 3
        a(f"s_mul_i32 s6, {sW}, 1280"); a(f"s_add_u32 s6, s6, {L_KVO}")
        a(f"v_and_b32 v41, 31, {vLANE}"); a("v_min_u32 v41, 16, v41"); a(f"v_lshl_add_u32 v41, v41, 6, {hG16}"); a("v_add_u32 v41, s6, v41")
        a.wait(lg=t)
        a.lg("ds_read_b128 v[52:55], v41"); t = a.lg("ds_read_b128 v[56:59], v41 offset:32"); yield
        yield self.f + 3
        a.wait(lg=t)
        for k in range(4): a(f"v_cvt_pk_bf16_f32 v{60+k}, v{52+2*k}, v{53+2*k}")
        a(f"s_lshl_b32 s6, {sW}, 10"); a(f"s_add_u32 s6, s6, {L_KVZ}"); a(f"v_add_u32 v41, s6, {vL16}")
        a.lg("ds_write_b128 v41, v[60:63]"); yield

    def qget(self, i, dst):
        reg = (sQA, sQB, sQC)[i // 4]
        self.a(f"s_bfe_u32 {dst}, {reg}, {(8 << 16) | (8*(i % 4))}")
        if self.o.get("fake2"): self.a(f"s_mov_b32 {dst}, 8")
    def t_s2_q(self):
        a = self.a
        a(f"s_lshr_b32 s68, {sJ}, {3 if self.o.get('map42', 0) else 2}"); a(f"s_add_u32 s68, s68, {sC2}"); a("s_and_b32 s68, s68, 7")
        tab = sum(((k % 3) << (2*k)) for k in range(12))
        a(f"s_lshl_b32 s69, s68, 1"); a(f"s_lshr_b32 s69, {tab}, s69"); a("s_and_b32 s69, s69, 3"); yield
        for i in range(9):
            reg = (sQA, sQB, sQC)[i // 4]
            if i < 2:
                a(f"s_add_u32 s6, s68, {i}"); a("s_and_b32 s6, s6, 1"); a("s_lshl_b32 s6, s6, 3")
                a(f"s_lshl_b32 s7, {sW}, 1"); a("s_add_u32 s6, s6, s7"); a("s_add_u32 s6, s6, 8")
            elif i < 6:
                a(f"s_add_u32 s6, s68, {i-2}"); a("s_and_b32 s6, s6, 3"); a("s_lshl_b32 s6, s6, 2"); a(f"s_add_u32 s6, s6, {sW}")
                a("s_lshl_b32 s7, s6, 1"); a("s_sub_u32 s7, s7, 7"); a("s_cmp_lt_u32 s6, 8"); a("s_cselect_b32 s6, s6, s7")
            else:
                a(f"s_add_u32 s6, s69, {i-6}"); a("s_sub_u32 s7, s6, 3"); a("s_cmp_lt_u32 s6, 3"); a("s_cselect_b32 s6, s6, s7")
                a("s_lshl_b32 s6, s6, 2"); a(f"s_add_u32 s6, s6, {sW}"); a("s_add_u32 s6, s6, 24")
            if i % 4 == 0: a(f"s_mov_b32 {reg}, s6")
            else: a(f"s_lshl_b32 s6, s6, {8*(i % 4)}"); a(f"s_or_b32 {reg}, {reg}, s6")
            yield
    def s2_w_dma(self, i):
        a = self.a
        self.qget(i, "s6")
        if i < 6: sr = S_WD
        else:
            sr = S_U1
            a("s_cmp_lt_u32 s6, 28")
            a(f"s_cselect_b32 s{S_U1}, s{S_WD}, s{S_WO}"); a(f"s_cselect_b32 s{S_U1+1}, s{S_WD+1}, s{S_WO+1}")
            a(f"s_cselect_b32 s{S_U1+2}, s{S_WD+2}, s{S_WO+2}")
            a("s_cselect_b32 s7, 0, 28"); a("s_sub_u32 s6, s6, s7")
        a("s_lshl_b32 s6, s6, 16"); a(f"s_lshl_b32 s7, {sC2}, 7"); a("s_add_u32 s74, s6, s7"); yield
        base = W2SLOT[i % 4]
        for g in range(2):
            for k in range(4):
                if i < 3: yield from self.vmslot()
                if k == 0 or self.m0_owner != ("w2", i, g):
                    a(f"s_add_u32 m0, {sW8K}, {base + g*4096}")
                    if k == 0 and g == 1: a("s_add_u32 s74, s74, 32768")
                    self.m0_owner = ("w2", i, g)
                self.w2tok[i] = a.vm(f"buffer_load_dwordx4 v{vW2[k]}, {srd(sr)}, s74 offen{' offset:%d' % (1024*k) if k else ''} lds"); yield
    def t_w2reg(self, i, areg):
        a = self.a
        self.qget(i, "s6")
        if i < 6: sr = S_WD
        else:
            sr = S_U1
            a("s_cmp_lt_u32 s6, 28")
            a(f"s_cselect_b32 s{S_U1}, s{S_WD}, s{S_WO}"); a(f"s_cselect_b32 s{S_U1+1}, s{S_WD+1}, s{S_WO+1}")
            a(f"s_cselect_b32 s{S_U1+2}, s{S_WD+2}, s{S_WO+2}")
            a("s_cselect_b32 s7, 0, 28"); a("s_sub_u32 s6, s6, s7")
        a("s_lshl_b32 s6, s6, 16"); a(f"s_lshl_b32 s7, {sC2}, 7"); a("s_add_u32 s75, s6, s7"); yield
        for g in range(2):
            for k in range(4):
                yield from self.vmslot()
                if k == 0 and g == 1: a("s_add_u32 s75, s75, 32768")
                r = areg + (g*4 + k)*4
                self.w2rtok[i] = a.vm(f"buffer_load_dwordx4 a[{r}:{r+3}], v{vW2[k]}, {srd(sr)}, s75 offen{' offset:%d' % (1024*k) if k else ''}"); yield
    def w2put(self, i, areg):
        a = self.a
        a.wait(vm=self.w2rtok[i])
        a(f"s_add_u32 s6, {sW8K}, {W2SLOT[i % 4]}"); a(f"v_add_u32 v40, s6, {vL16}")
        for k in range(8):
            r = areg + k*4
            self.w2ptok[i] = a.lg(f"ds_write_b128 v40, a[{r}:{r+3}] offset:{k*1024}")

    def flag_issue(self, phase):
        a = self.a
        if phase == 0:
            a(f"v_bfe_u32 {vPOLL}, {vLANE}, 1, 3"); a(f"v_lshlrev_b32 {vPOLL}, 2, {vPOLL}")
            a(f"v_and_b32 v{FLD}, 1, {vLANE}"); a(f"v_add_u32 {vPOLL}, {vPOLL}, v{FLD}"); a(f"v_add_u32 {vPOLL}, 2, {vPOLL}")
            a(f"v_lshlrev_b32 {vPOLL}, 3, {vPOLL}")
        else:
            a(f"v_and_b32 {vPOLL}, 31, {vLANE}"); a(f"v_lshlrev_b32 {vPOLL}, 3, {vPOLL}")
        a(f"s_mul_i32 s72, {sT}, 768"); a(f"s_add_u32 s72, s72, {WS_HF + phase*256}")
        self.fl_txt = f"buffer_load_dwordx2 v[{FLD}:{FLD+1}], {vPOLL}, {srd(S_WS)}, s72 offen sc1"
        self.fltok = a.vm(self.fl_txt)
    def flag_check(self, phase):
        self.log[(self.par, "chk", phase)] = self.f
        self.poll_check(self.fltok, self.tagcmp(FLD), self.fl_txt, f"fl{phase}")
        if not self.o.get("touchh", 0): return
        a = self.a
        n = (8, 16, 12)[phase]
        a(f"s_and_b32 s6, {sJ}, 3"); a(f"s_lshl_b32 s7, {sW}, 2"); a("s_add_u32 s6, s6, s7")
        if phase == 0: a("s_lshl_b32 s7, s6, 1"); a("s_add_u32 s7, s7, 8")
        elif phase == 1:
            a("s_lshl_b32 s7, s6, 1"); a("s_sub_u32 s7, s7, 7"); a("s_cmp_lt_u32 s6, 8"); a("s_cselect_b32 s7, s6, s7")
        else: a("s_add_u32 s7, s6, 24")
        a(f"s_mul_i32 s64, {sR}, 36"); a("s_add_u32 s7, s7, s64"); a("s_lshl_b32 s7, s7, 14")
        a(f"s_lshl_b32 s64, {sHALF}, 13"); a("s_add_u32 s7, s7, s64"); a(f"s_add_u32 s7, s7, {WS_H}")
        a(f"v_lshlrev_b32 v40, 7, {vLANE}"); a(f"v_mov_b32 v41, {OOB}")
        a(f"s_cmp_lt_u32 s6, {n}"); a("s_cselect_b64 vcc, -1, 0"); a("v_cndmask_b32 v40, v41, v40, vcc")
        a.vm(f"buffer_load_dword {vDUM}, v40, {srd(S_WS)}, s7 offen sc1")

    def vmslot(self):
        while self.a.vm_issued - self.int_vm0 >= self.int_cap: yield self.int_end
    def h_interval(self, f0, n, extras, budget=None, cap=None):
        a = self.a
        nfix = sum(len(extras.get(f0 + g, [])) for g in range(n))
        self.int_vm0 = a.vm_issued + nfix*0; self.int_end = f0 + n
        self.int_cap = (cap or self.o.get("vmcap", 8))
        self.int_vm0 = a.vm_issued
        for g in range(n):
            self.f = f0 + g
            start = len(a.lines)
            for fn in extras.get(f0 + g, []): fn()
            self.pump(self.f, start, budget or self.o["hbudget"])

    def helper(self, par):
        a = self.a; o = self.o
        self.par = par; self.sfx = f"_{par}"
        who = f"h{par}"
        self.tasks = []; self.w2tok = {}; self.w2rtok = {}; self.w2ptok = {}
        REGCH = {3: 0, 4: 32, 5: 64, 6: 96} if o.get("w2reg", 1) else {}
        self.kvz_done = False
        ex = {}
        def at(f, fn): ex.setdefault(f, []).append(fn)
        def spread(maker, positions):
            hd = {}
            def get(i):
                if "p" not in hd: hd["p"] = maker()
                hd["p"][i]()
            for i, pos in enumerate(positions): at(pos, (lambda i=i: get(i)))
        spread(lambda: self.dma_x_parts(2), (0, 1, 2, 3)); spread(lambda: self.dma_w_parts(2), (4, 5, 6, 7))
        spread(lambda: self.dma_w_parts(3), (10, 12, 14, 16))
        for G in range(0, 16):
            spread(lambda G=G: self.dma_w_parts(G+4), [16*G + 10 + p for p in ((1, 5, 9, 13) if G == 0 else (0, 2, 4, 6))] if G > 0 else [18, 20, 22, 24])
        for G in range(0, 5):
            spread(lambda G=G: self.dma_x_parts(G+3), [16*G + 10 + p for p in (1, 3, 5, 7)])
        self.spawn(self.t_early(), 0, "early")
        self.spawn(self.t_cs("A"), o.get("cs_f", 26), "csA")
        self.log["st_pub" + self.sfx] = 0
        self.spawn(self.t_csum("A", o.get("csumA_chk", 104)), o.get("csumA_f", 74), "csumA")
        self.spawn(self.t_stt(o.get("st_chk", 104)), o.get("stt_f", 80), "stt")
        self.spawn(self.t_slabB(), o.get("slabB_f", 58), "slabB")
        if o.get("touch2", 0): self.spawn(self.t_touch2(), o.get("touch2_f", 81), "touch2", front=True)
        self.spawn(self.t_cs("B"), o.get("csB_f", 106), "csB")
        self.spawn(self.t_csum("B", o.get("csumB_chk", 214)), o.get("csumB_f", 186), "csumB")
        if o.get("hprio", 0): a(f"s_setprio {o['hprio']}")
        a.wait(vm=self.wtok[0])
        self.barrier(who, "P0")
        self.h_interval(0, 10, ex)
        for G in range(20):
            self.f = 16*G + 9
            if G + 1 < 20: a.wait(vm=self.wtok[G+1])
            if G + 1 < 8: a.wait(vm=self.xtok[G+1])
            if G == 7: self.finish("csumA"); self.finish("stt"); a.wait_all(vm=False)
            if G == 15: self.finish("csumB"); a.wait_all(vm=False)
            if G == 17: self.flag_check(0)
            if G == 19:
                if par == 1: self.finish("qprep"); a.wait_all(vm=False)
            self.barrier(who, f"B{G}")
            self.f = 16*G + 10
            if G == o.get("pub0_G", 9) and par == 1: self.publish(0)
            if G == 8 and par == 0:
                self.finish("csB")
                self.spawn(self.t_kv_tail(), self.f, "kvtail", front=True)
            if G == o.get("pub1_G", 17): self.publish(1)
            if G == 11:
                if par == 0: assert self.kv_reads_f < self.f
                self.spawn(self.s2_w_dma(0), self.f, "w2_0")
            if G == 11 and par == 0: assert self.kv_reads_f < 180, "kv tail fragments overlap csumB registers"
            if G == 16 and par == 1: assert not self.active("csumB")
            if REGCH:
                if G == 7:
                    def r34():
                        for i_ in ((3, 4, 5, 6) if o.get("w2all", 0) else (3, 4)): yield from self.t_w2reg(i_, REGCH[i_])
                    self.spawn(r34(), self.f, "w2r3")
                if G == 15 and not o.get("w2all", 0):
                    self.finish("w2r3")
                    def r56():
                        yield from self.t_w2reg(5, 64); yield from self.t_w2reg(6, 96)
                    self.spawn(r56(), self.f, "w2r5")
            if G == 15: self.flag_issue(0)
            if G == 17:
                self.spawn(self.s2_w_dma(1), self.f, "w2_1")
            if G == o.get("qprep_G", 13) and par == 1: self.spawn(self.t_q_prep(self.f + o.get("kvchk_gap", 17)), self.f, "qprep")
            if G == 19: self.spawn(self.s2_w_dma(2), self.f, "w2_2")
            if G < 19:
                cap = (40 if (G == 7 and o.get("w2all", 0)) else 24) if G in (7, 15) else (10 if G >= 16 else (12 if G in (3, 4) else None))
                self.h_interval(16*G + 10, 16, ex, cap=cap, budget=(6 if G in (7, 15) else (4 if G >= 16 else None)))
        self.h_interval(314, 6, ex)
        self.barrier(who, "H0")
        if par == 0: assert not self.active("kvtail"), "kv tail still running at H0"
        if 3 in REGCH:
            for n in ("w2r3", "w2r5"): self.finish(n)
            self.w2put(3, REGCH[3])
        else: self.spawn(self.s2_w_dma(3), self.f, "w2_3")
        self.flag_issue(1)
        base = 336
        for i in range(9):
            self.h_interval(base + 16*i - 16, 16, ex, budget=8)
            self.f = base + 16*i
            if i in REGCH: a.wait(lg=self.w2ptok[i])
            else:
                self.finish(f"w2_{i}")
                a.wait(vm=self.w2tok[i])
            if i + 2 == 2: self.flag_check(1)
            if i == o.get("fl2_i", 5): self.flag_check(2)
            self.barrier(who, f"S{i}")
            self.f = base + 16*i + 1
            if i == o.get("pub2_i", 1): self.publish(2)
            if i == o.get("fl2_i", 5) - 1: self.flag_issue(2)
            if i >= 1 and i + 3 < 9:
                if i + 3 in REGCH: self.w2put(i + 3, REGCH[i + 3])
                else: self.spawn(self.s2_w_dma(i + 3), self.f, f"w2_{i+3}")
        a("s_cmp_eq_u32 s2, 0"); a("s_cselect_b64 vcc, -1, 0"); a(f"s_cmp_eq_u32 {sW}, 0"); a("s_cselect_b64 vcc, vcc, 0")
        a(f"v_mov_b32 v40, {OOB}"); a("s_nop 0"); a(f"v_cndmask_b32 v40, v40, {hL0}, vcc")
        a.vm(f"buffer_store_dwordx2 v[{TAG}:{TAG+1}], v40, {srd(S_WS)}, 0 offen sc1")
        self.prof_out(4)
        a("s_endpgm")

    def c_lane_consts(self):
        a = self.a
        a(f"v_and_b32 v56, 31, {vLANE}"); a(f"v_lshrrev_b32 v57, 5, {vLANE}"); a(f"v_bfe_u32 v58, {vLANE}, 2, 2")
        a(f"v_and_b32 v59, 3, {vLANE}"); a(f"v_bfe_u32 v60, {vLANE}, 4, 1")
        a("v_lshlrev_b32 v61, 5, v60"); a("v_lshl_add_u32 v61, v59, 3, v61")
        a("v_lshrrev_b32 v62, 1, v58"); a("v_lshlrev_b32 v62, 6, v62")
        a("v_lshl_add_u32 v63, v57, 3, v58")
        a("v_lshlrev_b32 v64, 7, v63")
        a("v_xor_b32 v65, v61, v62"); a(f"v_add_u32 {cWA[0][0]}, v64, v65")
        a("v_or_b32 v65, 64, v61"); a("v_xor_b32 v65, v65, v62"); a(f"v_add_u32 {cWA[0][1]}, v64, v65")
        a(f"v_add_u32 {cWA[1][0]}, 0x10000, {cWA[0][0]}"); a(f"v_add_u32 {cWA[1][1]}, 0x10000, {cWA[0][1]}")
        a("v_lshlrev_b32 v64, 6, v63"); a(f"v_add_u32 {cSA[0]}, v64, v61"); a(f"v_add_u32 {cSA[1]}, 0x10000, {cSA[0]}")
        a("v_bfe_u32 v64, v56, 1, 3"); a("v_xor_b32 v64, v64, v57")
        a("v_lshlrev_b32 v65, 7, v56"); a(f"s_add_u32 s7, {sWLDS}, {L_X}"); a("v_add_u32 v65, s7, v65")
        for s in range(4):
            a(f"v_xor_b32 v66, {2*s}, v64"); a(f"v_lshl_add_u32 {cXA[s]}, v66, 4, v65")
        a(f"v_lshlrev_b32 {cG16}, 4, v57")
        a(f"v_lshlrev_b32 {cCSA}, 2, v56"); a(f"v_add_u32 {cCSA}, {L_CST}, {cCSA}")
        a(f"v_mov_b32 v{BAUG+2}, 0"); a(f"v_mov_b32 v{BAUG+3}, 0")
        a("v_lshrrev_b32 v64, 3, v0"); a("v_and_b32 v65, 7, v0")
        a(f"v_lshlrev_b32 {cOUT}, 10, v64"); a(f"v_lshl_add_u32 {cOUT}, v65, 4, {cOUT}")

    def c_setup(self):
        a = self.a
        a("s_waitcnt lgkmcnt(0)")
        a.protect = set()
        a("s_mov_b32 s71, 0x3fb8aa3b"); a("s_mov_b32 s72, 0x358637bd")
        a(f"s_mul_i32 s76, {sR2}, 36"); a(f"s_lshl_b32 s77, {sHALF}, 13"); a(f"s_add_u32 s77, s77, {WS_H}")
        for _ in self.t_s2_q(): pass
        self.c_lane_consts()
        a(f"s_lshl_b32 s6, {sR}, 7"); a(f"s_lshl_b32 s7, {sCG}, 3"); a("s_add_u32 s6, s6, s7")
        a(f"s_lshl_b32 s7, {sW}, 1"); a("s_add_u32 s75, s6, s7"); a("s_lshl_b32 s6, s75, 10")
        a.vm(f"buffer_load_dwordx4 v[16:19], {vL16}, {srd(S_X)}, s6 offen")
        a.vm(f"buffer_load_dwordx4 v[20:23], {vL16}, {srd(S_X)}, s6 offen offset:1024")
        a(f"s_load_dwordx2 s[60:61], s[{S_WS}:{S_WS+1}], 0")
        a("s_waitcnt vmcnt(0) lgkmcnt(0)")
        a("s_add_u32 s60, s60, 1"); a("s_addc_u32 s61, s61, 0")
        self.c_stats()

    def finfo(self, f):
        if f < NF1:
            G, m = divmod(f, 16)
            if G < 16:
                c = G % 8; s = m // 4; tile = m % 4; ks = c*4 + s
            else:
                s = m // 2; tile = m % 2; ks = (G-16)*8 + s
            return dict(phi=f, acc=ACC + 16*tile, b=ks*4, first=(ks == 0))
        i, m = divmod(f - NF1, 16)
        s, r = divmod(m, 4); cb, rf = divmod(r, 2)
        return dict(phi=NF1 + 8*i + 2*s + cb, acc=ACC + (cb*2+rf)*16, b=(i % 3)*32 + rf*16 + s*4, first=(i == 0 and s == 0), chunk=i, m=m)
    def phi_first_use(self, phi): return phi if phi < NF1 else NF1 + 2*(phi - NF1)
    def frag_read(self, phi):
        a = self.a
        r = RING + 4*(phi % NFR)
        if phi < NF1:
            G, m = divmod(phi, 16)
            slot = G % NW; rng = slot // 4; sb = (slot % 4)*16384
            if G < 16:
                s = m // 4; cbk = m % 4; panel, cb = divmod(cbk, 2)
                base = cWA[rng][cb]; imm = [sb + panel*8192 + (16*s + 4*q)*128 for q in range(2)]
            else:
                s = m // 2; b = m % 2
                base = cSA[rng]; imm = [sb + b*8192 + (16*s + 4*q)*64 for q in range(2)]
        else:
            i, r2 = divmod(phi - NF1, 8); s, cb = divmod(r2, 2)
            so = W2SLOT[i % 4]
            base = cB2[cb] if so < 0x10000 else cB2H[cb]
            imm = [(so % 0x10000) + (16*s + 8*q)*128 for q in range(2)]
        a.lg(f"ds_read_b64_tr_b16 v[{r}:{r+1}], {base} offset:{imm[0]}")
        self.ftok[phi] = a.lg(f"ds_read_b64_tr_b16 v[{r+2}:{r+3}], {base} offset:{imm[1]}")
    def x_read(self, c, s):
        r = (c*4 + s)*4
        self.xrtok[c] = self.a.lg(f"ds_read_b128 a[{r}:{r+3}], {cXA[s]} offset:{(c % 3)*16384}")

    def c_run(self, f0, f1, ex, fend):
        a = self.a
        for f in range(f0, f1):
            inf = self.finfo(f)
            self.stamp(f"f{f}")
            ph = inf["phi"]
            nxt = ph + 1
            a.wait(lg=self.ftok[nxt] if (nxt in self.ftok and f % 2 == 0 and f < NF1) else self.ftok[ph])
            if f < 128 and f % 16 == 0: a.wait(lg=self.xrtok[f // 16])
            if f >= NF1 and inf["m"] == 0:
                self.stamp(f"hw{inf['chunk']}_in"); a.wait(vm=self.htok[inf["chunk"]]); self.stamp(f"hw{inf['chunk']}_out")
            r = RING + 4*(ph % NFR)
            acc = f"v[{inf['acc']}:{inf['acc']+15}]"
            a(f"v_mfma_f32_32x32x16_bf16 {acc}, v[{r}:{r+3}], a[{inf['b']}:{inf['b']+3}], {'0' if inf['first'] else acc}")
            for fn in ex.get(f, []): fn()
            fu = f + LOOK
            if fu < fend:
                p = self.finfo(fu)["phi"]
                if self.phi_first_use(p) == fu: self.frag_read(p)
    def c_prime(self, f0):
        for f in range(f0, f0 + LOOK):
            p = self.finfo(f)["phi"]
            if self.phi_first_use(p) == f: self.frag_read(p)

    def aug(self, p, ntile):
        a = self.a
        toks = []
        for t in range(ntile):
            g = RING + 4*t; off = (p*128 + 32*t)*4
            a.lg(f"ds_read_b32 v{g}, {cCSA} offset:{off}")
            toks.append(a.lg(f"ds_read_b32 v{g+1}, {cCSA} offset:{off}"))
            a(f"v_mov_b32 v{g+2}, 0"); a(f"v_mov_b32 v{g+3}, 0")
        for t in range(ntile):
            g = RING + 4*t; A = ACC + 16*t
            a.wait(lg=toks[t])
            a(f"v_mfma_f32_32x32x16_bf16 v[{A}:{A+15}], v[{g}:{g+3}], v[{BAUG}:{BAUG+3}], v[{A}:{A+15}]")
    def hbase_q(self, q):
        a = self.a
        a(f"s_mul_i32 s7, {sR}, 36"); a(f"s_add_u32 s7, s7, {q}")
        a("s_lshl_b32 s7, s7, 2"); a(f"s_add_u32 s7, s7, {sW}")
        a("s_lshl_b32 s7, s7, 12"); a(f"s_add_u32 {sHB}, s7, {WS_H}")
    def ffn_block(self, tg, tu, dst):
        a = self.a
        for k in range(16): a(f"v_max_f32 v{tg+k}, 0, v{tg+k}")
        for k in range(0, 16, 2): a(f"v_pk_mul_f32 v[{tg+k}:{tg+k+1}], v[{tg+k}:{tg+k+1}], v[{tu+k}:{tu+k+1}]")
        for k in range(8): a(f"v_cvt_pk_bf16_f32 v{dst+k}, v{tg+2*k}, v{tg+2*k+1}")
    def epi_ffn(self, p):
        a = self.a
        self.aug(p, 4)
        a(f"s_lshl_b32 s6, {sM}, 1"); a(f"s_add_u32 s6, s6, {8 if p == 0 else 9}")
        if p == 1: a(f"s_cmp_eq_u32 {sPAR}, 0"); a(f"s_cselect_b32 s6, {sM}, s6")
        self.hbase_q("s6")
        for cb in range(2):
            d = 32 + 8*cb
            self.ffn_block(ACC + 16*cb, ACC + 32 + 16*cb, d)
            for h in range(2):
                a.vm(f"buffer_store_dwordx4 v[{d+4*h}:{d+4*h+3}], {vL16}, {srd(S_WS)}, {sHB} offen offset:{(2*cb+h)*1024} sc1")
    def epi_side(self):
        a = self.a
        self.aug(2, 2)
        a(f"s_lshr_b32 s6, {sM}, 1"); a("s_add_u32 s6, s6, 24"); self.hbase_q("s6")
        a(f"s_and_b32 s6, {sM}, 1"); a("s_lshl_b32 s6, s6, 11"); a(f"s_add_u32 {sHB}, {sHB}, s6")
        self.ffn_block(ACC, ACC + 16, 32)
        for h in range(2):
            a.vm(f"buffer_store_dwordx4 v[{32+4*h}:{32+4*h+3}], {vL16}, {srd(S_WS)}, {sHB} offen offset:{h*1024} sc1")
    def phi_tile(self, T):
        a = self.a
        for h in range(2):
            B = T + 8*h
            for k in range(8): a(f"v_mul_f32 v{TMP+k}, {cRL}, v{B+k}")
            for k in range(8): a(f"v_exp_f32 v{TMP+k}, v{TMP+k} clamp")
            for k in range(8): a(f"v_fma_f32 v{B+k}, v{B+k}, {cRSTD}, s72")
            for k in range(8): a(f"v_max_f32 v{B+k}, s72, v{B+k}")
            for k in range(0, 8, 2): a(f"v_pk_add_f32 v[{B+k}:{B+k+1}], v[{B+k}:{B+k+1}], v[{TMP+k}:{TMP+k+1}]")
    def epi_kv(self):
        a = self.a
        self.aug(0, 4)
        a(f"v_and_b32 v32, 31, {vLANE}"); a(f"s_lshl_b32 s6, {sW}, 5"); a("v_add_u32 v32, s6, v32")
        a(f"s_movk_i32 s7, {KVP}"); a("v_mul_lo_u32 v32, v32, s7")
        a(f"v_lshrrev_b32 v33, 1, {cG16}"); a("v_add_u32 v32, v32, v33"); a(f"v_add_u32 v32, {L_KVS}, v32")
        a(f"v_mov_b32 v34, {cRSTD}"); a(f"v_mov_b32 v35, {cRSTD}")
        for t in range(4):
            T = ACC + 16*t
            if t < 2: self.phi_tile(T)
            else:
                for k in range(0, 16, 2): a(f"v_pk_mul_f32 v[{T+k}:{T+k+1}], v[{T+k}:{T+k+1}], v[34:35]")
            for g4 in range(4):
                d = 36 + 2*g4
                a(f"v_cvt_pk_bf16_f32 v{d}, v{T+4*g4}, v{T+4*g4+1}"); a(f"v_cvt_pk_bf16_f32 v{d+1}, v{T+4*g4+2}, v{T+4*g4+3}")
            for g4 in range(4):
                d = 36 + 2*g4
                off = (t // 2)*128*KVP + (32*(t % 2) + 8*g4)*2
                a.lg(f"ds_write_b64 v32, v[{d}:{d+1}] offset:{off}")
    def epi_q(self):
        a = self.a
        self.aug(2, 2)
        a(f"s_add_u32 s6, {sM}, 28"); self.hbase_q("s6")
        toks = []
        a(f"v_add_u32 v44, {L_KVZ}, {vL16}")
        for h in range(4): toks.append(a.lg(f"ds_read_b128 v[{16+4*h}:{16+4*h+3}], v44 offset:{h*1024}"))
        for t in range(2):
            T = ACC + 16*t
            self.phi_tile(T)
            for k in range(8): a(f"v_cvt_pk_bf16_f32 v{32+8*t+k}, v{T+2*k}, v{T+2*k+1}") if t == 0 else a(f"v_cvt_pk_bf16_f32 v{TMP+k}, v{T+2*k}, v{T+2*k+1}")
        PQ = [32, 36, TMP, TMP + 4]
        a(f"v_mul_f32 v45, {cRSTD}, {cRSTD}")
        a.wait(lg=toks[-1])
        for h in range(4):
            d = ACC + 16*h
            a(f"v_mfma_f32_32x32x16_bf16 v[{d}:{d+15}], v[{16+4*h}:{16+4*h+3}], v[{PQ[h]}:{PQ[h]+3}], 0")
        for h in range(4):
            d = ACC + 16*h
            a(f"v_add_f32 v{d+8}, s72, v{d+8}"); a(f"v_mul_f32 v{d+8}, v{d+8}, v45"); a(f"v_rcp_f32 v{d+8}, v{d+8}")
            a(f"v_mov_b32 v{d+9}, v{d+8}")
            for k in range(0, 8, 2): a(f"v_pk_mul_f32 v[{d+k}:{d+k+1}], v[{d+k}:{d+k+1}], v[{d+8}:{d+9}]")
            for k in range(4): a(f"v_cvt_pk_bf16_f32 v{16+4*h+k}, v{d+2*k}, v{d+2*k+1}")
            a.vm(f"buffer_store_dwordx4 v[{16+4*h}:{16+4*h+3}], {vL16}, {srd(S_WS)}, {sHB} offen offset:{h*1024} sc1")
    def branch2(self, even, odd):
        a = self.a
        lo = a.newlabel("Lo"); lj = a.newlabel("Lj")
        a(f"s_cmp_eq_u32 {sPAR}, 0"); a(f"s_cbranch_scc0 {lo}")
        st = (a.vm_issued, a.lg_issued, a.vm_floor, a.lg_floor)
        even(); sa = (a.vm_issued, a.lg_issued)
        a(f"s_branch {lj}"); a.label(lo)
        a.vm_issued, a.lg_issued, a.vm_floor, a.lg_floor = st
        odd(); sb = (a.vm_issued, a.lg_issued)
        a.label(lj)
        a.vm_issued = min(sa[0], sb[0]); a.lg_issued = min(sa[1], sb[1])
        a.vm_floor = min(a.vm_floor, st[2]) if False else st[2]; a.lg_floor = st[3]
    def h_load(self, i):
        a = self.a
        parts = []
        def head():
            self.qget(i, "s6"); a("s_add_u32 s6, s6, s76"); a("s_lshl_b32 s6, s6, 14"); a("s_add_u32 s78, s6, s77"); a("s_add_u32 s79, s78, 4096")
        for rf in range(2):
            for s in range(4):
                def p(rf=rf, s=s):
                    if rf == 0 and s == 0: head()
                    r = (i % 3)*32 + rf*16 + s*4
                    self.htok[i] = a.vm(f"buffer_load_dwordx4 a[{r}:{r+3}], {vL16}, {srd(S_WS)}, {'s78' if rf == 0 else 's79'} offen offset:{s*1024} sc1")
                parts.append(p)
        return parts

    def compute(self):
        a = self.a; o = self.o
        who = "c"
        self.c_setup()
        self.ftok = {}; self.xrtok = {}; self.htok = {}
        ex = {}
        def at(f, fn): ex.setdefault(f, []).append(fn)
        for G in range(20):
            at(16*G + 9, lambda G=G: self.c_bar(G))
            if G < 7:
                for s in range(4): at(16*G + 11 + s, lambda G=G, s=s: self.x_read(G+1, s))
        for i, f0 in ((0, 290), (1, 303)):
            hd = {}
            def get(k, i=i, hd=hd):
                if "p" not in hd: hd["p"] = self.h_load(i)
                hd["p"][k]()
            for k in range(8): at(f0 + k + (k // 4), lambda k=k, get=get: get(k))
        self.barrier(who, "P0")
        self.stamp("go"); self.stamp("rtgo")
        for s in range(4): self.x_read(0, s)
        self.c_prime(0)
        self.c_run(0, 128, ex, 128)
        self.stamp("e1")
        if o.get("touchw2", 1):
            self.c_touch_w2()
        a(f"v_and_b32 v44, 31, {vLANE}"); a("v_lshlrev_b32 v44, 3, v44"); a(f"s_lshl_b32 s6, {sW}, 8"); a(f"s_add_u32 s6, s6, {L_STT}"); a("v_add_u32 v44, s6, v44")
        t = a.lg("ds_read_b64 v[46:47], v44")
        a.wait(lg=t)
        a(f"v_mov_b32 {cRSTD}, v47"); a(f"v_mul_f32 {cRL}, s71, v47")
        a(f"v_cvt_pk_bf16_f32 v{BAUG}, v46, v46"); a(f"v_lshlrev_b32 v45, 16, v{BAUG}"); a("v_sub_f32 v45, v46, v45")
        a(f"v_cvt_pk_bf16_f32 v{BAUG+1}, v45, v45")
        a(f"v_cmp_gt_u32 vcc, 32, {vLANE}"); a("v_mov_b32 v45, 0"); a("s_nop 0")
        a(f"v_cndmask_b32 v{BAUG}, v45, v{BAUG}, vcc"); a(f"v_cndmask_b32 v{BAUG+1}, v45, v{BAUG+1}, vcc")
        self.branch2(self.epi_kv, lambda: self.epi_ffn(0))
        a.wait_all(vm=False)
        self.stamp("e1end")
        self.c_prime(128)
        self.c_run(128, 256, ex, 256)
        self.stamp("e2")
        self.epi_ffn(1)
        self.stamp("e2end")
        self.c_prime(256)
        self.c_run(256, 320, ex, 320)
        self.barrier(who, "H0")
        a(f"v_lshrrev_b32 v56, 5, {vLANE}"); a(f"v_bfe_u32 v57, {vLANE}, 2, 2"); a(f"v_and_b32 v58, 3, {vLANE}"); a(f"v_bfe_u32 v59, {vLANE}, 4, 1")
        a("v_lshlrev_b32 v60, 5, v59"); a("v_lshl_add_u32 v60, v58, 3, v60")
        a("v_lshrrev_b32 v58, 1, v57"); a("v_lshlrev_b32 v58, 6, v58")
        a("v_lshl_add_u32 v56, v56, 2, v57"); a("v_lshlrev_b32 v56, 7, v56"); a(f"v_add_u32 v56, {sW8K}, v56")
        a("v_xor_b32 v57, v60, v58"); a(f"v_add_u32 {cB2[0]}, v56, v57")
        a("v_or_b32 v60, 64, v60"); a("v_xor_b32 v57, v60, v58"); a(f"v_add_u32 {cB2[1]}, v56, v57")
        a(f"v_add_u32 {cB2H[0]}, 0x10000, {cB2[0]}"); a(f"v_add_u32 {cB2H[1]}, 0x10000, {cB2[1]}")
        self.stamp("e3")
        self.branch2(self.epi_side, self.epi_q)
        self.stamp("e3end")
        self.e3_mark = a.vm_issued
        ex2 = {}
        def at2(f, fn): ex2.setdefault(f, []).append(fn)
        for i in range(9):
            f0 = NF1 + 16*i
            if i > 0: at2(f0 - LOOK - 1, lambda i=i: self.c_sbar(i))
            late = o.get("fl2_i", 5) == 5
            todo = []
            if i + 2 < 9 and not (late and i + 2 == 6): todo.append(i + 2)
            if late and i == 5: todo.insert(0, 6)
            for n, j in enumerate(todo):
                hd = {}
                def get(k, j=j, hd=hd):
                    if "p" not in hd: hd["p"] = self.h_load(j)
                    hd["p"][k]()
                for k in range(8): at2(f0 + (1 + k if len(todo) == 1 else (k + 8*n) * 15 // 16), lambda k=k, get=get: get(k))
        def resid():
            a(f"s_lshl_b32 s64, {sT}, 16"); a(f"s_lshl_b32 s7, {sC2}, 7"); a("s_add_u32 s64, s64, s7"); a("s_add_u32 s65, s64, 32768")
            a.vm(f"buffer_load_dwordx4 a[96:99], {cOUT}, {srd(S_X)}, s64 offen")
            a.vm(f"buffer_load_dwordx4 a[100:103], {cOUT}, {srd(S_X)}, s65 offen")
            a("v_lshrrev_b32 v56, 3, v0"); a("v_lshlrev_b32 v56, 4, v56")
            a(f"s_lshl_b32 s6, {sT}, 10"); a(f"s_add_u32 s6, s6, {WS_STAT + 4}")
            a.vm(f"buffer_load_dword v50, v56, {srd(S_WS)}, s6 offen sc1")
            self.xrtk = a.vm(f"buffer_load_dword v51, v56, {srd(S_WS)}, s6 offen offset:512 sc1")
        at2(NF1 + 16*7 + 2, resid)
        self.c_sbar(0)
        self.c_prime(NF1)
        self.c_run(NF1, NF, ex2, NF)
        self.final()

    def c_bar(self, G):
        a = self.a; o = self.o
        if G == o.get("pub0_G", 9) or G == o.get("pub1_G", 17): a.wait_all(lg=False)
        if G == 8: a.wait_all(vm=False)
        self.barrier("c", f"B{G}")
    def c_kv_read(self):
        a = self.a
        a(f"s_mul_i32 s6, {sW}, 1280"); a(f"s_add_u32 s6, s6, {L_KVO}"); a(f"v_lshlrev_b32 v{TMP}, 2, {vLANE}"); a(f"v_add_u32 v{TMP}, s6, v{TMP}")
        for v in range(5): self.kvrt = a.lg(f"ds_read_b32 v{TMP+1+v}, v{TMP} offset:{v*256}")
    def c_kv_atomics(self):
        a = self.a
        a(f"v_lshrrev_b32 v{TMP}, 4, {vLANE}"); a(f"v_lshlrev_b32 v{TMP}, 8, v{TMP}")
        a(f"v_and_b32 v{TMP+6}, 15, {vLANE}"); a(f"v_lshl_add_u32 v{TMP}, v{TMP+6}, 2, v{TMP}")
        a(f"v_lshlrev_b32 v{TMP+6}, 2, v{TMP+6}")
        a(f"v_cmp_gt_u32 vcc, 16, {vLANE}"); a(f"v_mov_b32 v{TMP+7}, {OOB}")
        a(f"s_lshl_b32 s64, {sCG}, 13"); a(f"s_mul_i32 s65, {sW}, {KVH}"); a("s_add_u32 s64, s64, s65"); a(f"s_add_u32 s64, s64, {WS_ACC + ACC_KV}")
        a(f"v_cndmask_b32 v{TMP+6}, v{TMP+7}, v{TMP+6}, vcc")
        a(f"s_cmp_eq_u32 {sPAR}, 0"); a("s_cselect_b64 vcc, -1, 0")
        a(f"v_cndmask_b32 v{TMP}, v{TMP+7}, v{TMP}, vcc"); a(f"v_cndmask_b32 v{TMP+6}, v{TMP+7}, v{TMP+6}, vcc")
        a.wait(lg=self.kvrt)
        for v in range(4): a.vm(f"buffer_atomic_add_f32 v{TMP+1+v}, v{TMP}, {srd(S_WS)}, s64 offen offset:{v*64} sc1")
        a.vm(f"buffer_atomic_add_f32 v{TMP+5}, v{TMP+6}, {srd(S_WS)}, s64 offen offset:1024 sc1")

    def c_touch_w2(self):
        a = self.a
        m42 = self.o.get("map42", 0)
        per, sh = (576, 3) if m42 else (288, 2)
        pw = per // 4
        self.touch_n = (pw + 63) // 64
        a(f"s_lshr_b32 s6, {sJ}, {sh}"); a(f"s_mul_i32 s6, s6, {per}"); a(f"s_mul_i32 s7, {sW}, {pw}"); a("s_add_u32 s6, s6, s7")
        a(f"v_add_u32 v{TMP}, s6, {vLANE}"); a(f"v_lshlrev_b32 v{TMP}, 10, v{TMP}")
        a(f"s_lshl_b32 s65, {sC2}, 7")
        a(f"v_mov_b32 v{TMP+2}, {OOB}")
        for k in range(self.touch_n):
            n = min(64, pw - 64*k)
            a(f"v_add_u32 v{TMP+1}, {64*1024*k}, v{TMP}")
            if n < 64:
                a(f"v_cmp_gt_u32 vcc, {n}, {vLANE}"); a("s_nop 1"); a(f"v_cndmask_b32 v{TMP+1}, v{TMP+2}, v{TMP+1}, vcc")
            a.vm(f"buffer_load_dword v50, v{TMP+1}, {srd(S_WD)}, s65 offen")
            a(f"v_subrev_u32 v{TMP+4}, {1792*1024}, v{TMP+1}")
            a.vm(f"buffer_load_dword v50, v{TMP+4}, {srd(S_WO)}, s65 offen")

    def c_sbar(self, i):
        a = self.a; o = self.o
        if i == o.get("pub2_i", 1):
            a(f"s_waitcnt vmcnt({min(63, self.younger_than_e3())})")
        self.barrier("c", f"S{i}")
    def younger_than_e3(self):
        return self.a.vm_issued - self.e3_mark

    def final(self):
        a = self.a
        self.stamp("loopend")
        a(f"v_and_b32 v56, 31, {vLANE}"); a("s_movk_i32 s7, 272"); a("v_mul_lo_u32 v56, v56, s7")
        a(f"v_add_u32 v56, v56, {cG16}"); a(f"s_mul_i32 s6, {sW}, 17408"); a("v_add_u32 v56, s6, v56")
        for cb in range(2):
            for rf in range(2):
                for t in range(4):
                    r = ACC + (cb*2+rf)*16 + 4*t
                    a.lg(f"ds_write_b128 v56, v[{r}:{r+3}] offset:{rf*8704 + cb*128 + t*32}")
        a("v_lshrrev_b32 v57, 3, v0"); a("v_mul_lo_u32 v57, v57, s7")
        a("v_and_b32 v58, 7, v0"); a("v_lshl_add_u32 v57, v58, 5, v57")
        a.wait_all(vm=False)
        a("s_barrier")
        toks = {}
        for it in range(2):
            for p in range(4):
                for hh in range(2):
                    r = 64 + it*32 + p*8 + hh*4
                    toks[it] = a.lg(f"ds_read_b128 v[{r}:{r+3}], v57 offset:{p*17408 + it*8704 + hh*16}")
        a.wait(vm=self.xrtk)
        for k in range(8): a(f"v_accvgpr_read_b32 v{16+k}, a{96+k}")
        for it in range(2):
            a.wait(lg=toks[it])
            b = 64 + it*32; x = 16 + 4*it
            for k in range(0, 8, 2):
                a(f"v_pk_add_f32 v[{b+k}:{b+k+1}], v[{b+k}:{b+k+1}], v[{b+8+k}:{b+8+k+1}]")
                a(f"v_pk_add_f32 v[{b+16+k}:{b+16+k+1}], v[{b+16+k}:{b+16+k+1}], v[{b+24+k}:{b+24+k+1}]")
            a(f"v_mul_f32 v58, v{50+it}, v{50+it}")
            for k in range(0, 8, 2): a(f"v_pk_add_f32 v[{b+k}:{b+k+1}], v[{b+k}:{b+k+1}], v[{b+16+k}:{b+16+k+1}]")
            for k in range(4):
                a(f"v_lshlrev_b32 v59, 16, v{x+k}"); a(f"v_and_b32 v60, 0xffff0000, v{x+k}")
                a(f"v_fma_f32 v{b+2*k}, v{b+2*k}, v58, v59"); a(f"v_fma_f32 v{b+2*k+1}, v{b+2*k+1}, v58, v60")
            for k in range(4): a(f"v_cvt_pk_bf16_f32 v{24+4*it+k}, v{b+2*k}, v{b+2*k+1}")
            a.vm(f"buffer_store_dwordx4 v[{24+4*it}:{24+4*it+3}], {cOUT}, {srd(S_OUT)}, {'s64' if it == 0 else 's65'} offen")
        self.stamp("end"); self.stamp("rtend")
        if self.o.get("dbgtime"):
            a.wait_all()
            a("s_memtime s[88:89]"); a("s_memrealtime s[90:91]"); a("s_waitcnt lgkmcnt(0)")
            a("s_sub_u32 s88, s88, s84"); a("s_sub_u32 s90, s90, s86")
            a("s_mov_b32 s96, s92"); a("s_mov_b32 s97, s93"); a("s_mov_b32 s98, 256"); a("s_mov_b32 s99, 0x00020000")
            a("s_mov_b32 s6, 64")
            a("s_cmp_eq_u32 s2, 0"); a("s_cselect_b32 s6, 0, s6")
            a("s_cmp_eq_u32 s2, 100"); a("s_cselect_b32 s6, 16, s6")
            a("s_cmp_eq_u32 s2, 255"); a("s_cselect_b32 s6, 32, s6")
            a("s_cmp_eq_u32 s6, 64"); a(f"s_cselect_b32 s6, {OOB}, s6")
            a("v_mov_b32 v40, s88"); a("v_mov_b32 v41, s90"); a("v_mov_b32 v42, s86"); a("v_mov_b32 v43, s90")
            a("v_add_u32 v43, s86, v43")
            a(f"v_mov_b32 v44, {OOB}"); a("v_mov_b32 v45, s6"); a("v_cmp_eq_u32 vcc, 0, v0"); a("s_nop 1"); a("v_cndmask_b32 v44, v44, v45, vcc")
            a.vm("buffer_store_dwordx4 v[40:43], v44, s[96:99], 0 offen")
        self.prof_out(0)
        a("s_endpgm")

    def prof_out(self, woff):
        if self.prof is None: return
        a = self.a
        a.wait_all()
        a(f"s_lshl_b32 s6, s2, 3"); a(f"s_add_u32 s6, s6, {sW}"); a(f"s_add_u32 s6, s6, {woff}"); a("s_lshl_b32 s6, s6, 7"); a(f"s_add_u32 s6, s6, {WS_PROF}")
        a(f"v_cmp_eq_u32 vcc, 0, {vLANE}"); a(f"v_mov_b32 v40, {OOB}"); a("v_mov_b32 v41, 0"); a("v_cndmask_b32 v40, v40, v41, vcc")
        for i in range(len(self.prof)):
            a(f"v_mov_b32 v42, s{84+2*i}"); a(f"v_mov_b32 v43, s{85+2*i}")
            a.vm(f"buffer_store_dwordx2 v[42:43], v40, {srd(S_WS)}, s6 offen offset:{i*8}")
            a("s_nop 1")

    def build(self):
        a = self.a
        self.bars = {}
        self.prologue()
        prot = set(a.protect)
        self.sfx = "_c"
        self.h_setup()
        st = (a.vm_issued, a.lg_issued, a.vm_floor, a.lg_floor)
        saved = (dict(self.xtok), dict(self.wtok)); m0s = (self.m0_owner, self.m0_val)
        a(f"s_cmp_eq_u32 {sPAR}, 0"); a("s_cbranch_scc0 Lhodd")
        self.helper(0)
        a.label("Lhodd")
        a.vm_issued, a.lg_issued, a.vm_floor, a.lg_floor = st
        self.xtok, self.wtok = dict(saved[0]), dict(saved[1]); self.m0_owner, self.m0_val = m0s; self.open_item = {}
        self.helper(1)
        a.label("Lcompute")
        a.vm_issued = a.lg_issued = a.vm_floor = a.lg_floor = 0
        a.protect = prot
        self.compute()
        a.label("Lend")
        a("s_endpgm")
        assert self.bars["c"] == self.bars["h0"] == self.bars["h1"], (self.bars["c"], self.bars["h0"])
        L = self.log
        print("schedule:", {str(k): v for k, v in sorted(L.items(), key=str)}, file=sys.stderr)
        for c in (0, 1):
            assert L[(1, "pub", 0)] < L[(c, "chk", 0)]
            for ph in (1, 2):
                for p in (0, 1): assert L[(p, "pub", ph)] < L[(c, "chk", ph)], ("order", ph, p, c)
            for d in (0, 1):
                assert L[f"cs_pubA_{c}"] < L[f"cs_chkA_{d}"] and L[f"cs_pubB_{c}"] < L[f"cs_chkB_{d}"] and L[f"st_pub_{c}"] < L[f"st_chk_{d}"]
        assert L[(0, "kvcnt")] < L[(1, "kvchk")]
        for e in self.slow: e()
        a.label("Lcode_end")
        a.finalize()
        return a.text()

HEADER = """; Kernarg layout for this problem (80 bytes, ptrs only, base s[0:1]):
; @launch grid=(256,1,1) block=(512,1,1) lds=%d
.amdgcn_target "amdgcn-amd-amdhsa--gfx950"
.text
.globl %s
.p2align 8
.type %s,@function
%s:
"""
FOOTER = """
.section .rodata,"a"
.p2align 6
.amdhsa_kernel %s
  .amdhsa_next_free_vgpr 256
  .amdhsa_next_free_sgpr 102
  .amdhsa_accum_offset 128
  .amdhsa_group_segment_fixed_size 0
  .amdhsa_kernarg_size 80
  .amdhsa_user_sgpr_count 2
  .amdhsa_user_sgpr_kernarg_segment_ptr 1
  .amdhsa_system_sgpr_workgroup_id_x 1
.end_amdhsa_kernel
"""
BLOCK = 512
def generate(prof=None, opts=None):
    g = Gen(prof=prof, opts=opts)
    body = g.build()
    return HEADER % (LDS_BYTES, KNAME, KNAME, KNAME) + body + "\n" + FOOTER % KNAME

if __name__ == "__main__":
    prof = None; opts = {}; out = None
    for x in sys.argv[1:]:
        if x.startswith("--prof="): prof = x[7:].split(",")
        elif x.startswith("--opt="):
            for kv in x[6:].split(","):
                k, v = kv.split("="); opts[k] = int(v)
        else: out = x
    txt = generate(prof, opts)
    path = out or "parallel_sum__linear_attn_block__glu_gated_reglu__prompt.s"
    open(path, "w").write(txt)
    print("wrote", path, len(txt), "bytes")
```
